```python
import torch

def _softmax(x, axis=-1):
    return torch.softmax(x, dim=axis)
def _gelu(x):
    return torch.nn.functional.gelu(x, approximate="tanh")
def _silu(x):
    return torch.nn.functional.silu(x)
def _sigmoid(x):
    return torch.sigmoid(x)
def _layernorm(x, axis=-1, eps=1e-5):
    m = x.mean(dim=axis, keepdim=True)
    v = x.var(dim=axis, keepdim=True, unbiased=False)
    return (x - m) / torch.sqrt(v + eps)
def _scatter_add(tgt, idx, src, axis=0):
    return tgt.clone().index_add_(axis, idx, src)
def _segment_sum(src, seg, n):
    out = torch.zeros((n,) + src.shape[1:], dtype=src.dtype)
    return out.index_add_(0, seg, src)
def _pad(x, pw):
    flat = tuple(v for pair in reversed(pw) for v in pair)
    return torch.nn.functional.pad(x, flat)

kernel_name = 'sequential_preLN__sliding_block__swiglu_ffn__prompt'

def setup_inputs():

    _w = (lambda a: (lambda t: t.to(torch.bfloat16) if t.is_floating_point() else t)(torch.as_tensor(a)))
    def _A_setup():
        B, S, D = 1, 2048, 576
        return {
            "x": _w((lambda *s: torch.randn(*s, dtype=torch.bfloat16) * 0.05)(B, S, D)),
            "wqkv": _w((lambda *s: torch.randn(*s, dtype=torch.bfloat16) * 0.05)(D, 3 * D)),
            "wo": _w((lambda *s: torch.randn(*s, dtype=torch.bfloat16) * 0.05)(D, D)),
        }
    _A_in = _A_setup()

    def _B_setup():
        B, S, D, F = 1, 2048, 576, 4608
        return {
            "x": _w((lambda *s: torch.randn(*s, dtype=torch.bfloat16) * 0.05)(B, S, D)),
            "w_gate": _w((lambda *s: torch.randn(*s, dtype=torch.bfloat16) * 0.05)(D, F)),
            "w_up": _w((lambda *s: torch.randn(*s, dtype=torch.bfloat16) * 0.05)(D, F)),
            "w_down": _w((lambda *s: torch.randn(*s, dtype=torch.bfloat16) * 0.05)(F, D)),
        }
    _B_in = _B_setup()

    return {
        "A_x": _A_in["x"],
        "A_wqkv": _A_in["wqkv"],
        "A_wo": _A_in["wo"],
        "B_x": _B_in["x"],
        "B_w_gate": _B_in["w_gate"],
        "B_w_up": _B_in["w_up"],
        "B_w_down": _B_in["w_down"],
    }

def reference(A_x, A_wqkv, A_wo, B_x, B_w_gate, B_w_up, B_w_down):
    def _A_ref(x, wqkv, wo):
        B, S, D = x.shape
        H = 32; Dh = D // H; W = 256
        qkv = (lambda x, *d: x.permute(*d))((x @ wqkv).reshape(B, S, 3, H, Dh), 2, 0, 3, 1, 4)
        q, k, v = qkv[0], qkv[1], qkv[2]
        scores = torch.einsum("bhqd,bhkd->bhqk", q, k) * (Dh ** -0.5)
        idx = torch.arange(S)
        mask = (idx[:, None] - idx[None, :] >= 0) & (idx[:, None] - idx[None, :] < W)
        scores = torch.where(mask[None, None], scores, -1e9)
        p = _softmax(scores, axis=-1)
        o = torch.einsum("bhqk,bhkd->bhqd", p, v)
        return (lambda x, *d: x.permute(*d))(o, 0, 2, 1, 3).reshape(B, S, D) @ wo

    def _B_ref(x, w_gate, w_up, w_down):
        g = _silu(x @ w_gate)
        u = x @ w_up
        return (g * u) @ w_down

    x = A_x
    h = x + _A_ref(_layernorm(x, axis=-1), A_wqkv, A_wo)
    h2 = h + _B_ref(_layernorm(h, axis=-1), B_w_gate, B_w_up, B_w_down)
    return h2
```

```python
import re

def vr(a, n=1, p="v"):
    return "%s%d" % (p, a) if n == 1 else "%s[%d:%d]" % (p, a, a + n - 1)
def ar(a, n=1): return vr(a, n, "a")
def sr(a, n=1): return vr(a, n, "s")

_REG = re.compile(r"^(-|abs\(|-abs\(|\|)?([vas])(\d+|\[(\d+):(\d+)\])\)?\|?$")
def regs_of(op):
    op = op.strip()
    if op in ("vcc",): return [("s", "vcc")]
    if op in ("exec",): return [("s", "exec")]
    if op == "m0": return [("s", "m0")]
    m = _REG.match(op)
    if not m: return []
    p = m.group(2)
    if m.group(4) is not None:
        return [(p, i) for i in range(int(m.group(4)), int(m.group(5)) + 1)]
    return [(p, int(m.group(3)))]

TRANS = ("v_exp_f32", "v_log_f32", "v_rcp_f32", "v_rsq_f32", "v_sqrt_f32", "v_sin_f32", "v_cos_f32")

class I:
    __slots__ = ("text", "op", "rd", "wr", "kind", "tag", "passes", "srcc", "srcab", "data")
    def __init__(self, text):
        self.tag = None
        if ";#" in text:
            text, t = text.split(";#"); self.tag = t.strip()
        self.text = text.strip()
        self.passes = 0; self.srcc = []; self.srcab = []; self.data = []
        t = self.text.split(";")[0].strip()
        self.rd = []; self.wr = []
        if t.endswith(":"):
            self.op = "label"; self.kind = "label"; return
        if t.startswith("@"):
            self.op = t.split()[0]; self.kind = "pseudo"; return
        if t.startswith("."):
            self.op = t.split()[0]; self.kind = "directive"; return
        sp = t.split(None, 1)
        self.op = op = sp[0]
        rest = sp[1] if len(sp) > 1 else ""
        ops = [o.strip() for o in re.split(r",(?![^\[]*\])", rest)] if rest else []
        mods = ""
        if ops:
            parts = ops[-1].split(None, 1)
            ops[-1] = parts[0]
            mods = parts[1] if len(parts) > 1 else ""
        R = lambda l: [r for o in l for r in regs_of(o)]
        if op.startswith("v_mfma"):
            self.kind = "mfma"
            self.wr = R(ops[:1]); self.srcab = R(ops[1:3]); self.srcc = R(ops[3:4]); self.rd = self.srcab + self.srcc
            self.passes = 8 if "32x32" in op else 4
        elif op.startswith("buffer_load") or op.startswith("global_load"):
            if re.search(r"\blds\b", mods) or "_lds_" in op:
                self.kind = "dma"; self.rd = R(ops) + [("s", "m0")]
            else:
                self.kind = "vload"; self.wr = R(ops[:1]); self.rd = R(ops[1:])
        elif op.startswith("buffer_store"):
            self.kind = "vstore"; self.rd = R(ops); self.data = R(ops[:1])
        elif op.startswith("global_store"):
            self.kind = "vstore"; self.rd = R(ops); self.data = R(ops[1:2])
        elif op.startswith("buffer_atomic") or op.startswith("global_atomic"):
            if "sc0" in mods and op.startswith("buffer"):
                self.kind = "vload"; self.wr = R(ops[:1]); self.rd = R(ops)
            else:
                self.kind = "vstore"; self.rd = R(ops)
        elif op.startswith("buffer_"):
            self.kind = "vstore"
        elif op.startswith("ds_read") or op.startswith("ds_bpermute") or op.startswith("ds_permute") or op.startswith("ds_swizzle"):
            self.kind = "dsread"; self.wr = R(ops[:1]); self.rd = R(ops[1:])
        elif op.startswith("ds_"):
            self.kind = "dswrite"; self.rd = R(ops)
        elif op.startswith("s_load") or op in ("s_memtime", "s_memrealtime"):
            self.kind = "smem"; self.wr = R(ops[:1]); self.rd = R(ops[1:])
        elif op == "s_waitcnt": self.kind = "wait"
        elif op == "s_nop": self.kind = "nop"
        elif op == "s_barrier": self.kind = "barrier"
        elif op.startswith("s_cbranch") or op in ("s_branch", "s_endpgm", "s_setpc_b64"): self.kind = "branch"
        elif op.startswith("s_cmp") or op.startswith("s_bitcmp"):
            self.kind = "salu"; self.rd = R(ops)
        elif op in ("s_setprio", "s_sleep", "s_sethalt"): self.kind = "salu"
        elif op.startswith("s_"):
            self.kind = "salu"; self.wr = R(ops[:1]); self.rd = R(ops[1:])
            if "saveexec" in op: self.wr += [("s", "exec")]; self.rd += [("s", "exec")]
            if op in ("s_addk_i32", "s_mulk_i32"): self.rd += self.wr
        elif op.startswith("v_"):
            self.kind = "valu"
            base = op.replace("_e32", "").replace("_e64", "").replace("_dpp", "").replace("_sdwa", "")
            if base.startswith("v_permlane") and "swap" in base:
                self.wr = R(ops[:2]); self.rd = R(ops[:2])
            elif base.startswith("v_cmp"):
                self.wr = R(ops[:1]); self.rd = R(ops[1:])
                if base.startswith("v_cmpx"): self.wr += [("s", "exec")]
            elif re.match(r"v_(add|sub|subrev)_co_u32", base):
                self.wr = R(ops[:2]); self.rd = R(ops[2:])
            elif re.match(r"v_(addc|subb|subbrev)_co_u32", base):
                self.wr = R(ops[:2]); self.rd = R(ops[2:])
            else:
                self.wr = R(ops[:1]); self.rd = R(ops[1:])
                if base in ("v_fmac_f32", "v_dot2c_f32_bf16", "v_writelane_b32") or "_dpp" in op or "_sdwa" in op:
                    self.rd += self.wr
            if base in TRANS: self.kind = "trans"
        else:
            raise ValueError("unknown instruction: " + text)

class K:
    def __init__(self, name):
        self.name = name
        self.ins = []
        self.nlab = 0
        self.vgpr = 256; self.agpr = 0; self.sgpr = 102
        self.auto = True
        self.stats = {}
    def __call__(self, s, *a):
        if a: s = s % a
        for l in s.split("\n"):
            l = l.strip()
            if l: self.ins.append(I(l))
    def extend(self, lst):
        for s in lst: self(s)
    def label(self, base="L"):
        self.nlab += 1
        return "%s_%s_%d" % (self.name.replace("_kernel", ""), base, self.nlab)
    def srd(self, d, base, nbytes, off=0):
        if off:
            self("s_add_u32 s%d, s%d, 0x%x" % (d, base, off))
            self("s_addc_u32 s%d, s%d, 0" % (d + 1, base + 1))
            self("s_and_b32 s%d, s%d, 0xffff" % (d + 1, d + 1))
        else:
            self("s_mov_b32 s%d, s%d" % (d, base))
            self("s_and_b32 s%d, s%d, 0xffff" % (d + 1, base + 1))
        self("s_mov_b32 s%d, 0x%x" % (d + 2, nbytes))
        self("s_mov_b32 s%d, 0x20000" % (d + 3))

    def _waits(self):
        out = []
        vm = []
        lg = []
        smem = set()
        def emit_wait(nvm, nlg):
            parts = []
            if nvm is not None: parts.append("vmcnt(%d)" % min(nvm, 63))
            if nlg is not None: parts.append("lgkmcnt(%d)" % min(nlg, 15))
            if not parts: return
            if out and out[-1].kind == "wait" and out[-1].tag == "auto":
                prev = out.pop().text
                m = re.search(r"vmcnt\((\d+)\)", prev)
                if m and nvm is None: parts.insert(0, m.group(0))
                m = re.search(r"lgkmcnt\((\d+)\)", prev)
                if m and nlg is None: parts.append(m.group(0))
            w = I("s_waitcnt " + " ".join(parts)); w.tag = "auto"
            out.append(w)
        for ins in self.ins:
            if ins.kind == "pseudo":
                a = ins.text.split()
                if a[0] == "@waitvm":
                    tags = a[1:]
                    idx = [i for i, e in enumerate(vm) if (tags == ["all"] or e[1] in tags)]
                    if idx:
                        n = len(vm) - 1 - max(idx)
                        emit_wait(n, None); n = min(n, 63); vm[:] = vm[len(vm) - n:] if n else []
                elif a[0] == "@waitlds":
                    tags = a[1:]
                    idx = [i for i, e in enumerate(lg) if (tags == ["all"] or e[1] in tags)]
                    if idx:
                        n = len(lg) - 1 - max(idx)
                        if smem: n = 0
                        emit_wait(None, n); n = min(n, 15); lg[:] = lg[len(lg) - n:] if n else []
                        if n == 0: smem.clear()
                elif a[0] == "@reset":
                    vm[:] = []; lg[:] = []; smem.clear()
                else:
                    raise ValueError(ins.text)
                continue
            if ins.kind == "wait":
                m = re.search(r"vmcnt\((\d+)\)", ins.text)
                if m:
                    n = int(m.group(1)); vm[:] = vm[max(0, len(vm) - n):] if n else []
                m = re.search(r"lgkmcnt\((\d+)\)", ins.text)
                if m:
                    n = int(m.group(1))
                    if n == 0: smem.clear()
                    lg[:] = lg[max(0, len(lg) - n):] if n else []
                out.append(ins); continue
            touched = set(ins.rd) | set(ins.wr)
            nvm = nlg = None
            idx = [i for i, e in enumerate(vm) if e[0] & touched]
            if idx:
                nvm = len(vm) - 1 - max(idx)
            idx = [i for i, e in enumerate(lg) if e[0] & touched]
            if idx:
                nlg = len(lg) - 1 - max(idx)
                if smem: nlg = 0
            if smem & touched: nlg = 0
            if nvm is not None or nlg is not None:
                emit_wait(nvm, nlg)
                if nvm is not None:
                    n = min(nvm, 63); vm[:] = vm[len(vm) - n:] if n else []
                if nlg is not None:
                    n = min(nlg, 15); lg[:] = lg[len(lg) - n:] if n else []
                    if n == 0: smem.clear()
            if ins.kind in ("vload", "vstore", "dma"):
                vm.append((set(ins.wr), ins.tag))
                assert len(vm) <= 64 or True
            elif ins.kind in ("dsread", "dswrite"):
                lg.append((set(ins.wr), ins.tag))
            elif ins.kind == "smem":
                smem |= set(ins.wr)
            out.append(ins)
        self.ins = out

    def _hazards(self):
        out = []
        pos = 0
        lastw = {}
        lastc = {}
        lastst = {}
        nn = 0
        for ins in self.ins:
            if ins.kind in ("label", "directive"):
                out.append(ins); continue
            need = 0
            def req(p, n):
                nonlocal need
                need = max(need, n - (pos - p - 1))
            isv = ins.kind in ("valu", "trans")
            for r in set(ins.rd):
                if r not in lastw: continue
                p, w = lastw[r]
                wv = w.kind in ("valu", "trans")
                if r[0] in "va":
                    if wv:
                        if ins.kind == "mfma": req(p, 2)
                        if isv and ("_dpp" in ins.op or ins.op.startswith("v_permlane")): req(p, 2)
                        if ins.op.startswith("v_readlane") or ins.op.startswith("v_readfirstlane"): req(p, 1)
                        if w.kind == "trans" and ins.kind == "valu": req(p, 1)
                        if w.kind == "trans" and ins.kind == "mfma": req(p, 2)
                        if w.op.startswith("v_dot"):
                            base = lambda o: o.replace("_e32", "").replace("_e64", "")
                            if base(ins.op) == base(w.op) and r in ins.rd[-1:] and r not in ins.rd[:-1]: pass
                            else: req(p, 3)
                        if "_sdwa" in w.op and isv: req(p, 1)
                    if w.kind == "mfma":
                        if ins.kind == "mfma":
                            if r in ins.srcab: req(p, 8 if w.passes == 4 else 12)
                            if r in ins.srcc:
                                if ins.srcc == w.wr and ins.passes == w.passes: pass
                                else: req(p, 6 if w.passes == 4 else 10)
                        else: req(p, 8 if w.passes == 4 else 12)
                else:
                    if wv:
                        if ins.kind in ("vload", "vstore", "dma"): req(p, 5)
                        elif isv:
                            if ins.op.startswith("v_readlane") or ins.op.startswith("v_writelane"): req(p, 4)
                            else: req(p, 2)
                        elif ins.kind == "salu": req(p, 1)
                    if r == ("s", "m0") and w.kind == "salu" and ins.kind == "dma": req(p, 1)
            for r in set(ins.wr):
                if r in lastw:
                    p, w = lastw[r]
                    if w.kind == "mfma" and ins.kind != "mfma": req(p, 8 if w.passes == 4 else 12)
                    if w.kind == "mfma" and ins.kind == "mfma" and r not in ins.srcc: req(p, 8 if w.passes == 4 else 12)
                    if w.op.startswith("v_dot") and isv and w.op != ins.op: req(p, 3)
                if r in lastc and isv:
                    p, w = lastc[r]; req(p, 3 if w.passes == 4 else 7)
                if r in lastst and ins.kind != "branch":
                    req(lastst[r], 2 if isv else 1)
            if ins.kind == "mfma" and ("s", "exec") in lastw and lastw[("s", "exec")][1].kind in ("valu", "trans"):
                req(lastw[("s", "exec")][0], 4)
            while need > 0:
                n = min(need, 16)
                x = I("s_nop %d" % (n - 1)); out.append(x); pos += n; need -= n; nn += 1
            if ins.kind == "nop":
                pos += int(ins.text.split()[1]) + 1
                out.append(ins); continue
            for r in ins.wr: lastw[r] = (pos, ins)
            if ins.kind == "mfma":
                for r in ins.srcc: lastc[r] = (pos, ins)
            if ins.kind == "vstore" and len(ins.data) >= 3:
                for r in ins.data: lastst[r] = pos
            out.append(ins); pos += 1
        self.ins = out
        self.stats["nops"] = nn

    def finalize(self):
        if self.auto:
            self._waits(); self._hazards(); self.auto = False
        mv = ma = ms = -1
        cnt = {}
        for i in self.ins:
            cnt[i.kind] = cnt.get(i.kind, 0) + 1
            for p, n in i.rd + i.wr:
                if isinstance(n, int):
                    if p == "v": mv = max(mv, n)
                    elif p == "a": ma = max(ma, n)
                    else: ms = max(ms, n)
        self.stats.update(cnt); self.stats.update(maxv=mv, maxa=ma, maxs=ms)
        assert mv < self.vgpr and ma < max(self.agpr, 0) + (0 if self.agpr else 0) or (ma < 0 and mv < self.vgpr), (self.name, mv, ma)
        assert ms < self.sgpr
    def text(self):
        self.finalize()
        o = [".globl %s" % self.name, ".p2align 8", ".type %s,@function" % self.name, "%s:" % self.name]
        o += [(i.text if i.kind == "label" else " " + i.text) for i in self.ins]
        return "\n".join(o) + "\n"
    def desc(self):
        acc = (self.vgpr + 3) // 4 * 4
        nfv = acc + self.agpr if self.agpr else self.vgpr
        return "\n".join([
            ".p2align 6",
            ".amdhsa_kernel %s" % self.name,
            "  .amdhsa_next_free_vgpr %d" % nfv,
            "  .amdhsa_next_free_sgpr %d" % self.sgpr,
            "  .amdhsa_accum_offset %d" % acc,
            "  .amdhsa_group_segment_fixed_size 0",
            "  .amdhsa_kernarg_size 80",
            "  .amdhsa_user_sgpr_count 2",
            "  .amdhsa_user_sgpr_kernarg_segment_ptr 1",
            "  .amdhsa_system_sgpr_workgroup_id_x 1",
            "  .amdhsa_float_denorm_mode_32 3",
            "  .amdhsa_float_denorm_mode_16_64 3",
            "  .amdhsa_ieee_mode 0",
            "  .amdhsa_dx10_clamp 0",
            ".end_amdhsa_kernel"]) + "\n"

def program(launches, kernels, header=""):
    o = []
    for l in header.strip().split("\n"):
        if l.strip(): o.append("; " + l.strip())
    for k, g, b, lds in launches:
        o.append("; @launch kernel=%s grid=(%d,1,1) block=(%d,1,1) lds=%d" % (k.name, g, b, lds))
    o.append('.amdgcn_target "amdgcn-amd-amdhsa--gfx950"')
    o.append(".text")
    s = "\n".join(o) + "\n"
    for k in kernels: s += k.text()
    s += '.section .rodata,"a"\n'
    for k in kernels: s += k.desc()
    return s

def weave(main, fill):
    out = list(fill.get(-1, []))
    for i, m in enumerate(main):
        out.append(m)
        out += fill.get(i, [])
    return out

def spread(fill, items, lo, hi):
    n = len(items)
    span = hi - lo + 1
    for j, it in enumerate(items):
        idx = lo + (j * span) // n
        fill.setdefault(idx, [])
        if isinstance(it, (list, tuple)): fill[idx] += list(it)
        else: fill[idx].append(it)
```

```python
import sys, struct
from asmgen import *

S, D, F, NQKV, NH, DH = 2048, 576, 4608, 1728, 32, 18
CGS = 16384 + 128
WS_Z, Z_BYTES = 0, 432 * CGS
WS_OP, OP_BYTES = 0x700000, 64 * 32768
WS_O2, O2_BYTES = 0x900000, 32 * 8192
WS_H, H_BYTES = 0xA00000, 128 * 18 * 1024
WS_ST, ST_BYTES = 0xD00000, 9 * 2048 * 8
WS_P, P_BYTES = 0x1000000, 16 * 16 * 4 * 36 * 1024
WS_TS = 0x4000000
X_BYTES = S * D * 2
def f2u(x): return struct.unpack("<I", struct.pack("<f", x))[0]
LOG2E = 1.4426950408889634
SC = "sc1"
STAMP = False

def stamp(k, slot, n):
    if STAMP: k("s_memrealtime s[%d:%d]" % (80 + 2 * n, 81 + 2 * n))
def stamp_flush(k, slot, n, wsreg):
    if not STAMP: return
    k("s_waitcnt vmcnt(0)")
    k("s_memrealtime s[%d:%d]" % (80 + 2 * n, 81 + 2 * n))
    k("s_waitcnt lgkmcnt(0)")
    k.srd(76, wsreg, 1 << 22, WS_TS + slot * 65536)
    k("s_mov_b64 exec, 1")
    k("v_mov_b32 v1, s74")
    for j in range(n + 1):
        k("v_mov_b32 v2, s%d" % (80 + 2 * j))
        k("buffer_store_dword v2, v1, s[76:79], 0 offen offset:%d" % (4 * j))
def stamp_init(k, wavereg):
    if STAMP:
        k("s_lshl_b32 s74, s2, 3\ns_add_u32 s74, s74, s%d\ns_lshl_b32 s74, s74, 5" % wavereg)

def bf16_round(k, dst, src):
    k("v_cvt_pk_bf16_f32 v%d, v%d, v%d" % (dst, src, src))
    k("v_and_b32 v%d, 0xffff0000, v%d" % (dst, dst))

def k1():
    k = K("qkv_kernel"); k.vgpr = 256; k.sgpr = 100
    XL, RING, STL = 0, 73728, 73728 + 4 * 20480
    lds = STL + 256
    k("s_cmp_ge_u32 s2, 224\ns_cbranch_scc1 qkv_end")
    stamp(k, 0, 0)
    k("s_load_dwordx4 s[4:7], s[0:1], 0\ns_load_dwordx2 s[20:21], s[0:1], 72")
    k("v_and_b32 v1, 63, v0\nv_lshrrev_b32 v2, 6, v0")
    k("v_readfirstlane_b32 s22, v2")
    k("s_lshr_b32 s23, s2, 5")
    k("s_and_b32 s24, s2, 7\ns_lshl_b32 s24, s24, 2\ns_bfe_u32 s25, s2, 0x20003\ns_add_u32 s24, s24, s25")
    k("s_lshl_b32 s25, s23, 2\ns_add_u32 s25, s25, s22")
    stamp_init(k, 22)
    k("v_lshrrev_b32 v3, 3, v1\nv_and_b32 v4, 7, v1")
    k("v_mul_u32_u24 v5, 1152, v3\nv_lshl_add_u32 v5, v4, 4, v5")
    k("s_lshl_b32 s26, s24, 6\ns_lshl_b32 s27, s22, 4\ns_add_u32 s26, s26, s27\ns_mul_i32 s26, s26, 1152")
    k("s_add_u32 s27, s26, %d" % (8 * 1152))
    k("s_waitcnt lgkmcnt(0)")
    k.srd(8, 4, X_BYTES)
    XR = 16
    for j in range(9):
        for h in range(2):
            k("buffer_load_dwordx4 %s, v5, s[8:11], s%d offen offset:%d" % (vr(XR + (h * 9 + j) * 4, 4), 26 + h, 128 * j))
    k.srd(12, 6, D * NQKV * 2)
    k("v_lshlrev_b32 v6, 5, v0\ns_mul_i32 s28, s2, 6432\ns_add_u32 s28, s28, %d" % (160 * 3456))
    k("buffer_load_dword v255, v6, s[12:15], s28 offen")
    VD = 232
    k("v_lshrrev_b32 v6, 2, v3\nv_lshlrev_b32 v6, 3, v6\nv_and_b32 v7, 3, v3\nv_add_u32 v6, v6, v7")
    k("v_mul_u32_u24 v6, 3456, v6")
    k("v_lshrrev_b32 v7, 1, v3\nv_lshlrev_b32 v7, 1, v7\nv_xor_b32 v7, v7, v4\nv_lshl_add_u32 v6, v7, 4, v6")
    base = [0, 16, 4, 20]
    for a in range(4):
        k("v_add_u32 v%d, %d, v6" % (VD + a, base[a] * 3456 - a * 1024))
    k("s_lshl_b32 s28, s25, 7")
    k("s_mul_i32 s29, s22, 20480\ns_add_u32 s29, s29, %d" % RING)
    def dma(t):
        o = ["s_add_u32 m0, s29, %d" % ((t % 5) * 4096)]
        for a in range(4):
            o.append("buffer_load_dwordx4 v%d, s[12:15], s28 offen offset:%d lds ;#w%d" % (VD + a, 1024 * a, t))
        o.append("s_add_u32 s28, s28, %d" % (32 * 3456))
        return o
    for t in range(5): k.extend(dma(t))
    k.srd(16, 20, Z_BYTES, WS_Z)
    k("s_lshr_b32 s30, s22, 1\ns_lshl_b32 s30, s30, 1")
    k("v_lshrrev_b32 v7, 5, v1\nv_add_u32 v7, s30, v7\nv_mul_u32_u24 v7, 18, v7")
    k("v_lshrrev_b32 v10, 2, v4\nv_add_u32 v7, v7, v10\nv_lshlrev_b32 v7, 10, v7")
    k("v_and_b32 v10, 3, v4\nv_lshl_add_u32 v7, v10, 8, v7")
    k("s_and_b32 s30, s22, 1\ns_lshl_b32 s30, s30, 3")
    k("v_and_b32 v10, 3, v3\nv_add_u32 v10, s30, v10")
    k("v_xor_b32 v11, v10, v4\nv_lshl_add_u32 v8, v11, 4, v7")
    k("v_add_u32 v10, 4, v10\nv_xor_b32 v11, v10, v4\nv_lshl_add_u32 v9, v11, 4, v7")
    k("v_and_b32 v10, 15, v1\nv_lshrrev_b32 v11, 4, v1")
    k("v_xor_b32 v12, v10, v11\nv_lshlrev_b32 v12, 4, v12\nv_lshl_add_u32 v236, v11, 8, v12")
    k("v_xor_b32 v237, 64, v236\nv_add_u32 v238, 36864, v236\nv_add_u32 v239, 36864, v237")
    k("v_lshrrev_b32 v12, 2, v10\nv_and_b32 v13, 1, v11\nv_lshl_add_u32 v12, v13, 2, v12")
    k("v_lshrrev_b32 v13, 1, v11\nv_lshlrev_b32 v13, 10, v13\nv_lshl_add_u32 v13, v12, 7, v13")
    k("v_and_b32 v14, 3, v1\nv_lshl_add_u32 v13, v14, 3, v13\nv_add_u32 v13, s29, v13")
    k("v_lshrrev_b32 v12, 1, v12")
    for T in range(4):
        k("v_xor_b32 v14, %d, v12\nv_lshl_add_u32 v%d, v14, 5, v13" % (T, 240 + T))
    k("s_mov_b32 s31, %d" % CGS)
    k("v_lshrrev_b32 v12, 2, v10\nv_mul_lo_u32 v12, v12, s31\nv_lshl_add_u32 v12, v11, 6, v12\nv_and_b32 v13, 3, v10\nv_lshl_add_u32 v244, v13, 4, v12")
    k("v_lshlrev_b32 v245, 5, v11\nv_add_u32 v245, %d, v245" % STL)
    k("s_lshl_b32 s30, s22, 6\ns_add_u32 s30, s30, %d\nv_lshl_add_u32 v246, v3, 2, s30" % STL)
    k("s_mov_b32 s32, 0x3f803f80\ns_mov_b32 s33, 0x00003f80\ns_mov_b32 s34, 0x3f800000\ns_mov_b32 s35, 0x%x" % f2u(1.0 / D))
    T0 = 88
    for i in range(4): k("v_mov_b32 v%d, 0" % (T0 + i))
    for i in range(4): k("v_mov_b32 v%d, 0" % (T0 + 4 + i))
    for j in range(9):
        for c in range(4):
            for h in range(2):
                k("v_dot2c_f32_bf16 v%d, s32, v%d" % (T0 + 2 * h + (c & 1), XR + (h * 9 + j) * 4 + c))
    stamp(k, 0, 1)
    def red8(r):
        k("v_add_f32_dpp v%d, v%d, v%d quad_perm:[1,0,3,2] row_mask:0xf bank_mask:0xf" % (r, r, r))
    k("v_add_f32 v%d, v%d, v%d\nv_add_f32 v%d, v%d, v%d" % (T0, T0, T0 + 1, T0 + 2, T0 + 2, T0 + 3))
    for ctl in ("quad_perm:[1,0,3,2]", "quad_perm:[2,3,0,1]", "row_half_mirror"):
        for r in (T0, T0 + 2):
            k("v_add_f32_dpp v%d, v%d, v%d %s row_mask:0xf bank_mask:0xf" % (r, r, r, ctl))
    for h in range(2):
        r = T0 + 2 * h
        k("v_mul_f32 v%d, s35, v%d" % (r, r))
        bf16_round(k, r + 1, r)
        k("v_sub_f32 v%d, v%d, v%d" % (r, r, r + 1))
        k("v_sub_f32 v%d, 0, v%d" % (r + 1, r + 1))
    T1 = T0 + 8
    for j in range(9):
        for h in range(2):
            x = XR + (h * 9 + j) * 4
            for c in range(4):
                k("v_dot2_f32_bf16 v%d, v%d, s33, v%d" % (T1 + 2 * c, x + c, T0 + 2 * h + 1))
                k("v_dot2_f32_bf16 v%d, v%d, s34, v%d" % (T1 + 2 * c + 1, x + c, T0 + 2 * h + 1))
            for c in range(4):
                k("v_cvt_pk_bf16_f32 v%d, v%d, v%d" % (x + c, T1 + 2 * c, T1 + 2 * c + 1))
            k("ds_write_b128 v%d, %s offset:%d" % (8 + h, vr(x, 4), XL + 2048 * j))
    for j in range(9):
        for c in range(4):
            for h in range(2):
                x = XR + (h * 9 + j) * 4 + c
                k("v_dot2c_f32_bf16 v%d, v%d, v%d" % (T0 + 4 + 2 * h + (c & 1), x, x))
    k("v_add_f32 v%d, v%d, v%d\nv_add_f32 v%d, v%d, v%d" % (T0 + 4, T0 + 4, T0 + 5, T0 + 6, T0 + 6, T0 + 7))
    for ctl in ("quad_perm:[1,0,3,2]", "quad_perm:[2,3,0,1]", "row_half_mirror"):
        for r in (T0 + 4, T0 + 6):
            k("v_add_f32_dpp v%d, v%d, v%d %s row_mask:0xf bank_mask:0xf" % (r, r, r, ctl))
    for h in range(2):
        r = T0 + 4 + 2 * h; dl = T0 + 2 * h
        k("v_mul_f32 v%d, v%d, v%d" % (dl, dl, dl))
        k("v_fma_f32 v%d, v%d, s35, -v%d" % (r, r, dl))
        k("v_max_f32 v%d, 0, v%d" % (r, r))
        bf16_round(k, r, r)
        k("v_add_f32 v%d, 0x%x, v%d" % (r, f2u(1e-5), r))
        bf16_round(k, r, r)
        k("v_sqrt_f32 v%d, v%d" % (r, r))
        bf16_round(k, r, r)
        k("v_rcp_f32 v%d, v%d" % (r, r))
        k("ds_write_b32 v246, v%d offset:%d" % (r, 32 * h))
    k("@waitlds all\ns_barrier")
    stamp(k, 0, 2)
    ACC, XF, WF = 104, 168, 200
    def reads(t):
        o = []
        b = t & 1
        for r in range(4):
            o.append("ds_read_b128 %s, v%d offset:%d" % (vr(XF + 16 * b + 4 * r, 4), 236 + (t & 1) + 2 * (r >> 1), XL + ((r & 1) * 18 + t) * 1024))
        for T in range(4):
            for j in range(2):
                o.append("ds_read_b64_tr_b16 %s, v%d offset:%d" % (vr(WF + 16 * b + 4 * T + 2 * j, 2), 240 + T, (t % 5) * 4096 + j * 2048))
        return o
    k("@waitvm w0")
    k.extend(reads(0))
    for t in range(18):
        b = t & 1
        main = []
        for u in range(16):
            T, r = u >> 2, u & 3
            a = vr(ACC + 16 * T + 4 * r, 4)
            main.append("v_mfma_f32_16x16x32_bf16 %s, %s, %s, %s" % (a, vr(XF + 16 * b + 4 * r, 4), vr(WF + 16 * b + 4 * T, 4), a if t else "0"))
        fill = {-1: ["@waitlds all"]}
        if t + 5 < 18: spread(fill, dma(t + 5), 0, 2)
        if t + 1 < 18:
            rd = reads(t + 1)
            spread(fill, rd[:4], 0, 3)
            fill.setdefault(3, []).append("@waitvm w%d" % (t + 1))
            spread(fill, rd[4:], 4, 11)
        else:
            spread(fill, ["ds_read_b128 %s, v245 offset:%d" % (vr(XR + 4 * r, 4), 128 * (r >> 1) + 16 * (r & 1)) for r in range(4)], 0, 3)
        k.extend(weave(main, fill))
    stamp(k, 0, 3)
    k("s_mul_i32 s28, s25, %d\ns_lshl_b32 s30, s24, 9\ns_add_u32 s28, s28, s30" % (16 * CGS))
    OUT = 40
    for T in range(4):
        o = OUT + 8 * T
        for r in range(4):
            a = ACC + 16 * T + 4 * r
            for b in range(4): k("v_mul_f32 v%d, v%d, v%d" % (a + b, a + b, XR + 4 * r + b))
            k("v_cvt_pk_bf16_f32 v%d, v%d, v%d\nv_cvt_pk_bf16_f32 v%d, v%d, v%d" % (o + 2 * r, a, a + 1, o + 2 * r + 1, a + 2, a + 3))
        k("buffer_store_dwordx4 %s, v244, s[16:19], s28 offen %s" % (vr(o, 4), SC))
        k("buffer_store_dwordx4 %s, v244, s[16:19], s28 offen offset:256 %s" % (vr(o + 4, 4), SC))
        if T < 3: k("s_add_u32 s28, s28, %d" % (4 * CGS))
    stamp(k, 0, 4)
    stamp_flush(k, 0, 5, 20)
    k("qkv_end:\ns_endpgm")
    return k, 224, 256, lds

def k2():
    k = K("attn_kernel"); k.vgpr = 256; k.sgpr = 100
    KB, VB, QB, ONES = 0, 20800, 41600, 41600 + 8 * 2048
    lds = ONES + 4096
    k("s_cmp_ge_u32 s2, 256\ns_cbranch_scc1 attn_end")
    stamp(k, 1, 0)
    k("s_load_dwordx2 s[20:21], s[0:1], 72")
    k("v_and_b32 v1, 63, v0\nv_lshrrev_b32 v2, 6, v0")
    k("v_readfirstlane_b32 s22, v2")
    k("s_lshr_b32 s23, s2, 5")
    k("s_and_b32 s24, s2, 7\ns_lshl_b32 s24, s24, 2\ns_bfe_u32 s25, s2, 0x20003\ns_add_u32 s24, s24, s25")
    stamp_init(k, 22)
    k("s_mul_i32 s25, s24, 18\ns_and_b32 s26, s25, 3\ns_lshr_b32 s25, s25, 2")
    k("s_lshr_b32 s27, s22, 2\ns_and_b32 s28, s22, 3")
    k("s_mul_i32 s29, s27, 144\ns_add_u32 s29, s29, s25\ns_add_u32 s29, s29, 144\ns_mul_i32 s29, s29, %d" % CGS)
    k("s_lshl_b32 s30, s23, 1\ns_add_u32 s30, s30, s28\ns_cmp_lt_u32 s30, 2\ns_cselect_b32 s31, 0, 2\ns_sub_u32 s30, s30, s31")
    k("s_lshl_b32 s30, s30, 10\ns_add_u32 s29, s29, s30")
    k("s_mul_i32 s30, s27, %d\ns_lshl_b32 s31, s28, 10\ns_add_u32 s30, s30, s31" % VB)
    k("v_lshlrev_b32 v3, 4, v1")
    k("s_mov_b32 s31, %d" % CGS)
    k("v_lshrrev_b32 v4, 4, v1\nv_mul_lo_u32 v4, v4, s31\nv_and_b32 v5, 15, v1\nv_lshl_add_u32 v4, v5, 4, v4")
    k("s_mul_i32 s32, s25, %d\ns_lshl_b32 s33, s23, 11\ns_add_u32 s32, s32, s33\ns_lshl_b32 s33, s22, 8\ns_add_u32 s32, s32, s33" % CGS)
    k("s_lshl_b32 s33, s22, 11\ns_add_u32 s33, s33, %d" % QB)
    k("s_waitcnt lgkmcnt(0)")
    k.srd(8, 20, Z_BYTES, WS_Z)
    k("s_mov_b32 m0, s33")
    k("buffer_load_dwordx4 v4, s[8:11], s32 offen lds ;#q")
    k("s_add_u32 m0, s33, 1024\ns_add_u32 s32, s32, %d" % (4 * CGS))
    k("buffer_load_dwordx4 v4, s[8:11], s32 offen lds ;#q")
    for c in range(5):
        k("s_add_u32 m0, s30, %d" % (c * 4160))
        k("buffer_load_dwordx4 v3, s[8:11], s29 offen lds ;#kv")
        if c < 4: k("s_add_u32 s29, s29, %d" % CGS)
    k("v_mov_b32 v6, 0x3f803f80\nv_mov_b32 v7, 0x3f803f80\nv_lshlrev_b32 v5, 3, v0")
    k("ds_write_b64 v5, v[6:7] offset:%d" % ONES)
    k.srd(12, 20, OP_BYTES, WS_OP)
    k.srd(16, 20, O2_BYTES, WS_O2)
    k("v_lshrrev_b32 v5, 5, v1")
    k("v_bfe_u32 v6, v1, 4, 1\nv_bfe_u32 v7, v1, 2, 2\nv_and_b32 v8, 3, v1")
    k("v_and_b32 v9, 1, v8\nv_lshl_add_u32 v9, v6, 1, v9\nv_lshlrev_b32 v9, 6, v9\nv_lshrrev_b32 v10, 1, v8\nv_lshl_add_u32 v9, v10, 3, v9")
    k("v_lshrrev_b32 v15, 1, v8\nv_lshl_add_u32 v15, v6, 1, v15\nv_lshlrev_b32 v15, 6, v15\nv_and_b32 v10, 1, v8\nv_lshl_add_u32 v15, v10, 3, v15")
    k("v_lshl_add_u32 v10, v5, 3, v7\nv_add_u32 v10, s26, v10")
    k("v_min_u32 v11, 1, v7\nv_add_u32 v11, s26, v11\nv_add_u32 v11, 16, v11")
    AK1, AK3, AQ1, AQ3, AV = 240, 241, 242, 243, 244
    k("s_lshl_b32 s34, s22, 8")
    for src, dk, dq in ((10, AK1, AQ1), (11, AK3, AQ3)):
        k("v_lshrrev_b32 v12, 2, v%d\nv_and_b32 v13, 3, v%d\nv_lshlrev_b32 v13, 4, v13" % (src, src))
        k("v_mul_u32_u24 v14, 4160, v12\nv_add3_u32 v14, v14, v13, v9\nv_add_u32 v%d, s34, v14" % dk)
        k("v_lshl_add_u32 v14, v12, 8, v13\nv_add3_u32 v%d, v14, v15, s33" % dq)
    k("v_and_b32 v10, 31, v1\nv_add_u32 v11, s26, v10\nv_lshrrev_b32 v12, 2, v11\nv_and_b32 v13, 3, v11")
    k("v_mul_u32_u24 v12, 4160, v12\nv_lshl_add_u32 v12, v13, 4, v12\nv_lshl_add_u32 v12, v5, 6, v12")
    k("s_add_u32 s35, s34, %d\nv_add_u32 v12, s35, v12" % VB)
    k("v_mov_b32 v13, %d\nv_cmp_gt_u32 vcc, 18, v10\nv_cndmask_b32 v%d, v13, v12, vcc" % (ONES + 64, AV))
    k("v_lshlrev_b32 v11, 3, v5\nv_sub_u32 v11, v10, v11")
    MK = 224
    k("v_mov_b32 v12, 0xffff\nv_mov_b32 v13, 0xffff0000")
    for rho in range(16):
        a, b = rho >> 2, rho & 3
        kc = 16 * (a >> 1) + 4 * (a & 1) + b
        k("v_cmp_le_i32 s[%d:%d], %d, v11" % (36 + 2 * rho, 37 + 2 * rho, kc))
    for i in range(8):
        k("v_cndmask_b32 v14, 0, v12, s[%d:%d]\nv_cndmask_b32 v15, 0, v13, s[%d:%d]\nv_or_b32 v%d, v14, v15" % (36 + 4 * i, 37 + 4 * i, 38 + 4 * i, 39 + 4 * i, MK + i))
    k("s_lshl_b32 s68, s23, 8\ns_lshl_b32 s69, s22, 5\ns_add_u32 s68, s68, s69")
    k("v_lshl_add_u32 v245, v5, 11, v10\nv_lshlrev_b32 v245, 4, v245\nv_lshlrev_b32 v246, 2, v10")
    k("s_lshl_b32 s69, s24, 12\ns_add_u32 s69, s69, s68\ns_lshl_b32 s69, s69, 4")
    k("s_lshl_b32 s70, s24, 11\ns_add_u32 s70, s70, s68\ns_lshl_b32 s70, s70, 2")
    SCO, QF, KF, VF, OA = 16, 160, 168, 192, 208
    for i in range(3):
        k("v_mov_b32 v%d, 0\nv_mov_b32 v%d, 0" % (KF + 8 * i + 6, KF + 8 * i + 7))
    k("v_mov_b32 v%d, 0\nv_mov_b32 v%d, 0" % (QF + 6, QF + 7))
    k("@waitvm q")
    k("ds_read_b64_tr_b16 %s, v%d\nds_read_b64_tr_b16 %s, v%d offset:256\nds_read_b64_tr_b16 %s, v%d" % (vr(QF, 2), AQ1, vr(QF + 2, 2), AQ1, vr(QF + 4, 2), AQ3))
    k("v_cmp_gt_u32 vcc, 32, v1")
    k("v_cndmask_b32 v%d, 0, v%d, vcc\nv_mov_b32 v%d, 0" % (QF + 4, QF + 4, QF + 5))
    k("@waitvm kv\n@waitlds all\ns_barrier")
    stamp(k, 1, 1)
    def kread(j):
        f = KF + 8 * (j % 3)
        return ["ds_read_b64_tr_b16 %s, v%d offset:%d" % (vr(f, 2), AK1, KB + 256 * j),
                "ds_read_b64_tr_b16 %s, v%d offset:%d" % (vr(f + 2, 2), AK1, KB + 256 * j + 4160),
                "ds_read_b64_tr_b16 %s, v%d offset:%d" % (vr(f + 4, 2), AK3, KB + 256 * j)]
    order = [0, 8, 1, 2, 3, 4, 5, 6, 7]
    def kread_n(n):
        j = order[n]; f = KF + 8 * (n % 3)
        return ["ds_read_b64_tr_b16 %s, v%d offset:%d" % (vr(f, 2), AK1, KB + 256 * j),
                "ds_read_b64_tr_b16 %s, v%d offset:%d" % (vr(f + 2, 2), AK1, KB + 256 * j + 4160),
                "ds_read_b64_tr_b16 %s, v%d offset:%d" % (vr(f + 4, 2), AK3, KB + 256 * j)]
    k.extend(kread_n(0)); k.extend(kread_n(1))
    for n in range(9):
        j = order[n]; f = KF + 8 * (n % 3); s = vr(SCO + 16 * j, 16)
        if n + 2 < 9: k.extend(kread_n(n + 2))
        k("v_mfma_f32_32x32x16_bf16 %s, %s, %s, 0" % (s, vr(f, 4), vr(QF, 4)))
        k("v_mfma_f32_32x32x16_bf16 %s, %s, %s, %s" % (s, vr(f + 4, 4), vr(QF + 4, 4), s))
    def vread(n2):
        return "ds_read_b128 %s, v%d offset:%d" % (vr(VF + 4 * (n2 % 4), 4), AV, 128 * n2)
    k("s_nop 7\ns_nop 3")
    k("s_cmp_lg_u32 s23, 0\ns_cbranch_scc1 attn_nomask")
    for j in range(8):
        k("s_cmp_ge_u32 s22, %d\ns_cbranch_scc1 attn_nomask" % (8 - j))
        for i in range(16): k("v_mov_b32 v%d, 0xff800000" % (SCO + 16 * j + i))
    k("attn_nomask:")
    for rho in range(16):
        k("v_cndmask_b32 v%d, v%d, v%d, s[%d:%d]" % (SCO + rho, SCO + rho, SCO + 128 + rho, 36 + 2 * rho, 37 + 2 * rho))
    k("v_max3_f32 v2, v%d, v%d, v%d\nv_max3_f32 v3, v%d, v%d, v%d" % (SCO, SCO + 1, SCO + 2, SCO + 3, SCO + 4, SCO + 5))
    i = 6
    n = 0
    while i < 128:
        r = 2 + (n & 1)
        k("v_max3_f32 v%d, v%d, v%d, v%d" % (r, r, SCO + i, SCO + i + 1)); i += 2; n += 1
    k("v_max_f32 v2, v2, v3\nv_mov_b32 v3, v2\nv_permlane32_swap_b32 v2, v3\nv_max_f32 v2, v2, v3")
    c = LOG2E * DH ** -0.5
    k("s_mov_b32 s71, 0x%x\nv_mul_f32 v2, s71, v2" % f2u(c))
    stamp(k, 1, 2)
    border = [1, 2, 3, 4, 5, 6, 7, 0]
    pv = []
    nv = 0
    vq = [(j, s) for j in [1, 2, 3, 4, 5, 6, 7, 0, 8] for s in range(2)]
    def vrd(i):
        j, s = vq[i]
        return "ds_read_b128 %s, v%d offset:%d" % (vr(VF + 4 * (i % 4), 4), AV, 256 * j + 128 * s)
    k(vrd(0)); k(vrd(1))
    first = True
    def pvm(i):
        nonlocal first
        j, s = vq[i]
        o = "v_mfma_f32_32x32x16_bf16 %s, %s, %s, %s" % (vr(OA, 16), vr(VF + 4 * (i % 4), 4), vr(SCO + 16 * j + 4 * s, 4), "0" if first else vr(OA, 16))
        first = False
        return o
    pend = []
    for bi, j in enumerate(border):
        b = SCO + 16 * j
        ops = []
        for hf in range(2):
            for i in range(8): ops.append("v_fma_f32 v%d, v%d, s71, -v2" % (b + 8 * hf + i, b + 8 * hf + i))
            for i in range(8): ops.append("v_exp_f32 v%d, v%d" % (b + 8 * hf + i, b + 8 * hf + i))
            for i in range(4): ops.append("v_cvt_pk_bf16_f32 v%d, v%d, v%d" % (b + 4 * hf + i, b + 8 * hf + 2 * i, b + 8 * hf + 2 * i + 1))
        fill = {}
        if bi > 0:
            i0 = 2 * (bi - 1)
            fill[3] = [pvm(i0)]; fill[4] = [vrd(i0 + 2)]
            fill[22] = [pvm(i0 + 1)]; fill[23] = [vrd(i0 + 3)]
        k.extend(weave(ops, fill))
    for i in range(8):
        k("v_and_b32 v%d, v%d, v%d" % (SCO + 128 + i, SCO + i, MK + i))
        k("v_xor_b32 v%d, v%d, v%d" % (SCO + i, SCO + i, SCO + 128 + i))
    k(pvm(14)); k(vrd(16)); k(pvm(15)); k(vrd(17)); k(pvm(16)); k(pvm(17))
    k("v_rcp_f32 v3, v%d" % (OA + 12))
    for i in range(10): k("v_mul_f32 v%d, v%d, v3" % (OA + i, OA + i))
    for i in range(5): k("v_cvt_pk_bf16_f32 v%d, v%d, v%d" % (4 + i, OA + 2 * i, OA + 2 * i + 1))
    stamp(k, 1, 3)
    k("buffer_store_dwordx4 v[4:7], v245, s[12:15], s69 offen %s" % SC)
    k("s_mov_b32 exec_hi, 0")
    k("buffer_store_dword v8, v246, s[16:19], s70 offen %s" % SC)
    stamp_flush(k, 1, 4, 20)
    k("attn_end:\ns_endpgm")
    return k, 256, 512, lds

def tr_addrs(k, dst, lanereg, basesreg, t0=2):
    a, b, c, d = t0, t0 + 1, t0 + 2, t0 + 3
    k("v_bfe_u32 v%d, v%d, 2, 3" % (a, lanereg))
    k("v_lshrrev_b32 v%d, 5, v%d\nv_lshlrev_b32 v%d, 10, v%d\nv_lshl_add_u32 v%d, v%d, 7, v%d" % (b, lanereg, b, b, b, a, b))
    k("v_and_b32 v%d, 3, v%d\nv_lshl_add_u32 v%d, v%d, 3, v%d" % (c, lanereg, b, c, b))
    if basesreg is not None: k("v_add_u32 v%d, %s, v%d" % (b, basesreg, b))
    k("v_lshrrev_b32 v%d, 1, v%d" % (a, a))
    for T in range(4):
        k("v_xor_b32 v%d, %d, v%d\nv_lshl_add_u32 v%d, v%d, 5, v%d" % (c, T, a, dst + T, c, b))

def dma_piece(k, dst, lanereg, t0):
    k("v_lshrrev_b32 v%d, 3, v%d" % (t0, lanereg))
    k("v_and_b32 v%d, 6, v%d\nv_and_b32 v%d, 7, v%d\nv_xor_b32 v%d, v%d, v%d\nv_lshlrev_b32 v%d, 4, v%d" % (dst, t0, t0 + 1, lanereg, dst, dst, t0 + 1, dst, dst))

def k3():
    k = K("oproj_kernel"); k.vgpr = 160; k.sgpr = 100
    lds = 72 * 1024
    k("s_and_b32 s3, s2, 7\ns_mul_i32 s3, s3, 30\ns_lshr_b32 s4, s2, 3\ns_add_u32 s3, s3, s4")
    k("s_cmp_ge_u32 s2, 240\ns_cbranch_scc1 oproj_end\ns_cmp_ge_u32 s3, 234\ns_cbranch_scc1 oproj_end")
    stamp(k, 2, 0)
    k("s_load_dwordx2 s[4:5], s[0:1], 0\ns_load_dwordx2 s[6:7], s[0:1], 16\ns_load_dwordx2 s[20:21], s[0:1], 72")
    k("v_and_b32 v1, 63, v0\nv_lshrrev_b32 v2, 6, v0")
    k("v_readfirstlane_b32 s22, v2")
    k("s_mul_i32 s23, s3, 7282\ns_lshr_b32 s23, s23, 16")
    k("s_mul_i32 s24, s23, 9\ns_sub_u32 s24, s3, s24")
    k("s_mul_i32 s25, s23, 5\ns_add_u32 s25, s25, s22")
    stamp_init(k, 22)
    VD, VE = 140, 144
    dma_piece(k, 4, 1, 2)
    k("v_mul_u32_u24 v5, 1152, v2\nv_add_u32 v5, v5, v4")
    un = [0, 18, 8, 26]
    for a in range(4): k("v_add_u32 v%d, %d, v5" % (VD + a, un[a] * 1152 - a * 1024))
    k("v_lshrrev_b32 v5, 2, v2\nv_lshlrev_b32 v5, 2, v5\nv_bfe_u32 v6, v2, 1, 1\nv_add_u32 v5, v5, v6\nv_mul_u32_u24 v5, 18, v5\nv_and_b32 v6, 1, v2\nv_add_u32 v5, v5, v6")
    k("v_mul_u32_u24 v5, 1152, v5\nv_add_u32 v5, v5, v4")
    k("s_cmp_eq_u32 s22, 0\ns_cselect_b64 s[26:27], -1, 0")
    ue = [16, 18 * 8 + 16, 18 * 2 + 16, 18 * 10 + 16]
    for a in range(4):
        k("v_add_u32 v6, %d, v5\nv_cndmask_b32 v%d, v6, v%d, s[26:27]" % (ue[a] * 1152 - a * 1024, VE + a, VD + a))
    k("v_and_b32 v6, 15, v1\nv_lshrrev_b32 v7, 4, v1")
    k("v_lshl_add_u32 v8, v7, 11, v6\nv_lshlrev_b32 v8, 4, v8")
    k("v_lshl_add_u32 v9, v7, 13, v6\nv_lshlrev_b32 v9, 2, v9")
    k("s_lshl_b32 s28, s24, 7\ns_mul_i32 s29, s22, %d\ns_add_u32 s29, s29, s28" % (36 * 1152))
    k("s_lshl_b32 s30, s22, 12")
    k("s_min_u32 s46, s25, 127")
    k("s_lshl_b32 s31, s46, 8")
    k("s_lshl_b32 s32, s46, 6")
    k("s_add_u32 s33, s22, 1\ns_and_b32 s33, s33, 1")
    k("s_mul_i32 s34, s33, %d\ns_add_u32 s34, s34, s28\ns_add_u32 s35, s28, %d" % (18 * 16 * 1152, 15 * 36 * 1152))
    k("s_add_u32 s33, s33, 16\ns_cmp_eq_u32 s22, 0\ns_cselect_b32 s34, s35, s34\ns_cselect_b32 s33, 15, s33\ns_lshl_b32 s33, s33, 12")
    k("s_waitcnt lgkmcnt(0)")
    k.srd(8, 6, D * D * 2)
    k.srd(12, 20, OP_BYTES, WS_OP)
    k.srd(16, 20, O2_BYTES, WS_O2)
    BF = 16
    for c in range(4):
        if c < 3:
            k("s_add_u32 m0, s30, %d" % (c * 20480))
            for a in range(4): k("buffer_load_dwordx4 v%d, s[8:11], s29 offen offset:%d lds ;#w%d" % (VD + a, 1024 * a, c))
            k("s_add_u32 s29, s29, %d" % (5 * 36 * 1152))
        else:
            k("s_mov_b32 m0, s33")
            for a in range(4): k("buffer_load_dwordx4 v%d, s[8:11], s34 offen offset:%d lds ;#w%d" % (VE + a, 1024 * a, c))
        for t in range(5 * c, min(5 * c + 5, 18)):
            if t < 16:
                k("buffer_load_dwordx4 %s, v8, s[12:15], s31 offen" % vr(BF + 4 * t, 4))
                k("s_add_u32 s31, s31, %d" % (4 * 32768))
            else:
                for e in range(4):
                    k("buffer_load_dword v%d, v9, s[16:19], s32 offen" % (BF + 4 * t + e))
                    k("s_add_u32 s32, s32, %d" % (8192 if e < 3 else 13 * 8192))
    k.srd(36, 4, X_BYTES)
    XR = 88
    k("v_mul_u32_u24 v10, 1152, v6\nv_lshl_add_u32 v10, v7, 3, v10\ns_mul_i32 s40, s46, %d\ns_add_u32 s40, s40, s28" % (16 * 1152))
    for T in range(4): k("buffer_load_dwordx2 %s, v10, s[36:39], s40 offen offset:%d" % (vr(XR + 2 * T, 2), 32 * T))
    TA = 148
    tr_addrs(k, TA, 1, None, 2)
    for T in range(4): k("v_add_u32 v%d, 40960, v%d" % (TA + 4 + T, TA + T))
    k.srd(12, 20, H_BYTES, WS_H)
    k.srd(16, 20, ST_BYTES, WS_ST)
    ACC, WF = 96, 112
    seq = [(t, T) for t in range(18) for T in range(4)]
    def rd(n):
        t, T = seq[n]; f = WF + 4 * (n % 6)
        ab, off = (TA + T, t * 4096) if t < 10 else (TA + 4 + T, (t - 10) * 4096)
        return ["ds_read_b64_tr_b16 %s, v%d offset:%d" % (vr(f + 2 * j, 2), ab, off + 2048 * j) for j in range(2)]
    bounds = [0, 20, 40, 60, 72]
    for c in range(4):
        k("@waitvm w%d\ns_barrier" % c)
        if c == 0: stamp(k, 2, 1)
        lo, hi = bounds[c], bounds[c + 1]
        LA = 4
        for n in range(lo, min(lo + LA, hi)): k.extend(rd(n))
        for n in range(lo, hi):
            if n + LA < hi: k.extend(rd(n + LA))
            t, T = seq[n]; a = vr(ACC + 4 * T, 4)
            k("v_mfma_f32_16x16x32_bf16 %s, %s, %s, %s" % (a, vr(WF + 4 * (n % 6), 4), vr(BF + 4 * t, 4), a if t else "0"))
    stamp(k, 2, 2)
    k("s_cmp_ge_u32 s25, 128\ns_cbranch_scc1 oproj_end")
    k("s_mov_b32 s41, 0x00003f80\ns_mov_b32 s42, 0x3f800000\ns_mov_b32 s43, 0x3f803f80")
    HO, TT = 16, 24
    k("v_mov_b32 v40, 0\nv_mov_b32 v41, 0")
    for T in range(4):
        a = ACC + 4 * T
        for j in range(2):
            k("v_cvt_pk_bf16_f32 v%d, v%d, v%d" % (TT + 2 * T + j, a + 2 * j, a + 2 * j + 1))
    for T in range(4):
        a = ACC + 4 * T
        for j in range(2):
            p = TT + 2 * T + j
            k("v_lshlrev_b32 v%d, 16, v%d\nv_and_b32 v%d, 0xffff0000, v%d" % (a + 2 * j, p, a + 2 * j + 1, p))
    for T in range(4):
        a = ACC + 4 * T
        for j in range(2):
            k("v_dot2c_f32_bf16 v%d, s41, v%d\nv_dot2c_f32_bf16 v%d, s42, v%d" % (a + 2 * j, XR + 2 * T + j, a + 2 * j + 1, XR + 2 * T + j))
    for T in range(4):
        a = ACC + 4 * T
        for j in range(2):
            k("v_cvt_pk_bf16_f32 v%d, v%d, v%d" % (HO + 2 * T + j, a + 2 * j, a + 2 * j + 1))
    k("v_lshlrev_b32 v2, 4, v1\ns_mul_i32 s44, s25, 18\ns_lshl_b32 s45, s24, 1\ns_add_u32 s44, s44, s45\ns_lshl_b32 s44, s44, 10")
    k("buffer_store_dwordx4 %s, v2, s[12:15], s44 offen %s" % (vr(HO, 4), SC))
    k("buffer_store_dwordx4 %s, v2, s[12:15], s44 offen offset:1024 %s" % (vr(HO + 4, 4), SC))
    for i in range(8):
        k("v_dot2c_f32_bf16 v40, s43, v%d\nv_dot2c_f32_bf16 v41, v%d, v%d" % (HO + i, HO + i, HO + i))
    for sw in ("v_permlane16_swap_b32", "v_permlane32_swap_b32"):
        k("v_mov_b32 v42, v40\nv_mov_b32 v43, v41")
        k("%s v40, v42\n%s v41, v43" % (sw, sw))
        k("v_add_f32 v40, v40, v42\nv_add_f32 v41, v41, v43")
    k("v_lshlrev_b32 v2, 3, v6\ns_lshl_b32 s44, s24, 14\ns_lshl_b32 s45, s25, 7\ns_add_u32 s44, s44, s45")
    k("s_mov_b32 exec_lo, 0xffff\ns_mov_b32 exec_hi, 0")
    k("buffer_store_dwordx2 v[40:41], v2, s[16:19], s44 offen %s" % SC)
    stamp_flush(k, 2, 3, 20)
    k("oproj_end:\ns_endpgm")
    return k, 240, 320, lds

def k4():
    k = K("ffn_kernel"); k.vgpr = 256; k.agpr = 144; k.sgpr = 100
    SLOT = 36864
    lds = 4 * SLOT
    k("s_cmp_ge_u32 s2, 256\ns_cbranch_scc1 ffn_end")
    stamp(k, 3, 0)
    k("s_load_dwordx4 s[4:7], s[0:1], 32\ns_load_dwordx2 s[36:37], s[0:1], 48\ns_load_dwordx2 s[20:21], s[0:1], 72")
    k("v_and_b32 v1, 63, v0\nv_lshrrev_b32 v2, 6, v0")
    k("v_readfirstlane_b32 s22, v2")
    k("s_lshr_b32 s23, s2, 4\ns_and_b32 s24, s2, 15")
    stamp_init(k, 22)
    XF, GA, UA = 16, 160, 192
    VG, VM, VW, TA, TM, C1, C2, TMP = 224, 228, 232, 236, 240, 242, 244, 246
    AF, HF = 0, 72
    WB = D * F * 2
    k("s_and_b32 s25, s24, 1\ns_mul_i32 s26, s24, 576\ns_lshl_b32 s27, s25, 6\ns_add_u32 s27, s27, s26")
    k("s_xor_b32 s25, s25, 1\ns_lshl_b32 s25, s25, 9\ns_add_u32 s28, s25, s26")
    k("s_lshl_b32 s29, s23, 3\ns_lshl_b32 s30, s22, 1\ns_add_u32 s29, s29, s30")
    k("v_and_b32 v6, 15, v1\nv_lshrrev_b32 v7, 4, v1")
    k("v_lshl_add_u32 v8, v7, 11, v6\nv_lshlrev_b32 v8, 3, v8\nv_lshlrev_b32 v9, 4, v1")
    k("v_add_u32 v12, 0x10000, v8\nv_add_u32 v13, 0x20000, v8")
    k("s_lshl_b32 s30, s29, 7\ns_mul_i32 s31, s29, 18432")
    dma_piece(k, 4, 1, 2)
    k("v_mul_u32_u24 v5, 9216, v2\nv_add_u32 v5, v5, v4")
    for a in range(4): k("v_add_u32 v%d, %d, v5" % (VG + a, a * (8 * 9216 - 1024)))
    k("s_waitcnt lgkmcnt(0)")
    k.srd(8, 20, ST_BYTES, WS_ST)
    k.srd(12, 20, H_BYTES, WS_H)
    ST = GA
    for r in range(2):
        for j in range(3):
            k("buffer_load_dwordx2 %s, v%d, s[8:11], s30 offen offset:%d" % (vr(ST + 6 * r + 2 * j, 2), (8, 12, 13)[j], 128 * r))
    k.srd(40, 4, WB)
    k.srd(44, 6, WB)
    k.srd(48, 36, WB)
    k("s_cmp_lt_u32 s22, 2\ns_cselect_b32 s52, s40, s44\ns_cselect_b32 s53, s41, s45\ns_mov_b32 s54, 0x%x\ns_mov_b32 s55, 0x20000" % WB)
    k("s_mul_i32 s56, s22, %d\ns_add_u32 s56, s56, s27" % (64 * 9216))
    k("s_mul_i32 s57, s22, %d\ns_add_u32 s57, s57, s27\ns_add_u32 s57, s57, %d" % (8 * 9216, 256 * 9216))
    k("s_lshl_b32 s58, s22, 13\ns_lshl_b32 s59, s22, 10\ns_add_u32 s59, s59, 32768")
    stages = []
    for B in range(4): stages += [("G", B, 0), ("G", B, 1), ("U", B, 0), ("U", B, 1)]
    stages += [("M", 4, 0), ("M", 4, 1)]
    stages += [("D", c, 0) for c in range(9)]
    NS = len(stages)
    def dma(n):
        kind, B, kh = stages[n]
        sl = (n % 4) * SLOT
        o = []
        if kind in "GU":
            srd = "s[40:43]" if kind == "G" else "s[44:47]"
            off = 128 * B + kh * 288 * 9216
            for g in range(2):
                pre = ["s_add_u32 m0, s58, %d" % (sl + 4096 * g), "s_add_u32 s60, s56, %d" % (off + g * 32 * 9216)]
                for a in range(4):
                    o.append(pre + ["buffer_load_dwordx4 v%d, %s, s60 offen offset:%d lds ;#s%d" % (VG + a, srd, 1024 * a, n)]); pre = []
            o.append(["s_add_u32 m0, s59, %d" % sl, "s_add_u32 s60, s57, %d" % off, "buffer_load_dwordx4 v%d, %s, s60 offen lds ;#s%d" % (VG, srd, n)])
        elif kind == "M":
            for g in range(3):
                pre = ["s_add_u32 m0, s61, %d" % (sl + 4096 * g), "s_add_u32 s60, s62, %d" % (kh * 288 * 9216 + g * 64 * 9216)]
                for a in range(4 if g < 2 else 1):
                    o.append(pre + ["buffer_load_dwordx4 v%d, s[52:55], s60 offen offset:%d lds ;#s%d" % (VM + a, 1024 * a, n)]); pre = []
        else:
            for g in range(2):
                pre = ["s_add_u32 m0, s58, %d" % (sl + 4096 * g), "s_add_u32 s60, s63, %d" % (128 * B + g * 32 * 1152)]
                for a in range(4):
                    o.append(pre + ["buffer_load_dwordx4 v%d, s[48:51], s60 offen offset:%d lds ;#s%d" % (VW + a, 1024 * a, n)]); pre = []
            o.append(["s_add_u32 m0, s59, %d" % sl, "s_add_u32 s60, s64, %d" % (128 * B), "buffer_load_dwordx4 v%d, s[48:51], s60 offen lds ;#s%d" % (VW, n)])
        return o
    def xload(r, t):
        return ["s_add_u32 s32, s31, %d" % ((r * 18 + t) // 4 * 4096) if (r * 18 + t) % 4 == 0 or True else "",
                "buffer_load_dwordx4 %s, v9, s[12:15], s32 offen offset:%d" % (vr(XF + 72 * r + 4 * t, 4), ((r * 18 + t) % 4) * 1024)]
    d0, d1 = dma(0), dma(1)
    for t in range(9):
        for r in range(2): k.extend(xload(r, t))
        k.extend(d0[t])
    for t in range(9, 18):
        for r in range(2): k.extend(xload(r, t))
        k.extend(d1[t - 9])
    k("v_mul_u32_u24 v5, 1152, v2\nv_add_u32 v5, v5, v4")
    for a in range(4): k("v_add_u32 v%d, %d, v5" % (VW + a, a * (8 * 1152 - 1024)))
    k("v_lshrrev_b32 v2, 2, v1\nv_mul_u32_u24 v5, 9216, v2\nv_bfe_u32 v3, v1, 4, 1\nv_lshlrev_b32 v3, 1, v3\nv_and_b32 v4, 3, v1\nv_xor_b32 v3, v3, v4\nv_lshl_add_u32 v5, v3, 4, v5")
    for a in range(4): k("v_add_u32 v%d, %d, v5" % (VM + a, a * (16 * 9216 - 1024)))
    k("s_mul_i32 s61, s22, 9216\ns_and_b32 s62, s22, 1\ns_mul_i32 s62, s62, %d\ns_add_u32 s62, s62, s28" % (144 * 9216))
    k("s_lshr_b32 s63, s27, 1\ns_lshl_b32 s64, s22, 6\ns_add_u32 s63, s63, s64\ns_mul_i32 s63, s63, 1152")
    k("s_lshr_b32 s64, s28, 1\ns_lshl_b32 s65, s22, 3\ns_add_u32 s64, s64, s65\ns_mul_i32 s64, s64, 1152")
    tr_addrs(k, TA, 1, None, 2)
    k("v_lshrrev_b32 v2, 2, v1\nv_lshlrev_b32 v2, 6, v2\nv_and_b32 v3, 3, v1\nv_lshl_add_u32 v2, v3, 3, v2\nv_bfe_u32 v3, v1, 4, 1")
    k("v_lshl_add_u32 v%d, v3, 5, v2\nv_xor_b32 v%d, 32, v%d" % (TM, TM + 1, TM))
    k("s_mov_b32 s33, 0x00003f80\ns_mov_b32 s34, 0x3f800000\ns_mov_b32 s35, 0x%x" % f2u(1.0 / D))
    for r in range(2):
        b = ST + 6 * r
        k("v_add_f32 v%d, v%d, v%d\nv_add_f32 v%d, v%d, v%d" % (b, b, b + 2, b + 1, b + 1, b + 3))
        k("v_add_f32 v%d, v%d, v%d\nv_add_f32 v%d, v%d, v%d" % (b, b, b + 4, b + 1, b + 1, b + 5))
        for sw in ("v_permlane16_swap_b32", "v_permlane32_swap_b32"):
            k("v_mov_b32 v%d, v%d\nv_mov_b32 v%d, v%d" % (b + 2, b, b + 3, b + 1))
            k("%s v%d, v%d\n%s v%d, v%d" % (sw, b, b + 2, sw, b + 1, b + 3))
            k("v_add_f32 v%d, v%d, v%d\nv_add_f32 v%d, v%d, v%d" % (b, b, b + 2, b + 1, b + 1, b + 3))
        k("v_mul_f32 v%d, s35, v%d" % (b, b))
        k("v_mul_f32 v%d, v%d, v%d" % (b + 2, b, b))
        k("v_fma_f32 v%d, v%d, s35, -v%d" % (b + 1, b + 1, b + 2))
        k("v_max_f32 v%d, 0, v%d" % (b + 1, b + 1))
        bf16_round(k, b, b)
        k("v_sub_f32 v%d, 0, v%d" % (10 + r, b))
        bf16_round(k, b + 1, b + 1)
        k("v_add_f32 v%d, 0x%x, v%d" % (b + 1, f2u(1e-5), b + 1))
        bf16_round(k, b + 1, b + 1)
        k("v_sqrt_f32 v%d, v%d" % (b + 1, b + 1))
        bf16_round(k, b + 1, b + 1)
        k("v_mul_f32 v%d, v%d, v%d" % (C2 + r, b + 1, b + 1))
        k("v_rcp_f32 v%d, v%d" % (b + 1, b + 1))
        k("v_mul_f32 v%d, 0x%x, v%d" % (C1 + r, f2u(-LOG2E), b + 1))
    def center(r, t):
        x = XF + 72 * r + 4 * t
        o = []
        for c in range(4):
            o.append("v_dot2_f32_bf16 v%d, v%d, s33, v%d" % (TMP + 2 * c, x + c, 10 + r))
            o.append("v_dot2_f32_bf16 v%d, v%d, s34, v%d" % (TMP + 2 * c + 1, x + c, 10 + r))
        for c in range(4):
            o.append("v_cvt_pk_bf16_f32 v%d, v%d, v%d" % (x + c, TMP + 2 * c, TMP + 2 * c + 1))
        return o
    d2 = dma(2)
    for t in range(18):
        for r in range(2): k.extend(center(r, t))
        if t % 2 == 0: k.extend(d2[t // 2])
    k.srd(8, 20, P_BYTES, WS_P)
    k("s_lshl_b32 s66, s2, 2\ns_add_u32 s66, s66, s22\ns_mul_i32 s66, s66, 36864")
    stamp(k, 3, 1)

    cur_pair = [0, 0]
    def frag_reads(n, T):
        kind, B, kh = stages[n]
        gt = n * 4 + T
        f0 = AF + 36 * (gt & 1)
        sl = n % 4
        o = []
        if kind == "M":
            which, regs, nreg = 1, TM, 2
        else:
            which, regs, nreg = 0, TA, 4
        pre = []
        if cur_pair[which] != sl:
            d = (sl - cur_pair[which]) * SLOT
            for q in range(nreg):
                pre.append("v_add_u32 v%d, %d, v%d" % (regs + q, d, regs + q) if d > 0 else "v_subrev_u32 v%d, %d, v%d" % (regs + q, -d, regs + q))
            cur_pair[which] = sl
        for j in range(9):
            for h in range(2):
                if kind == "M":
                    a, off = TM + (T & 1), (T >> 1) * 18432 + j * 2048 + h * 1024
                else:
                    a, off = TA + T, j * 4096 + h * 2048
                o.append("ds_read_b64_tr_b16 %s, v%d offset:%d ;#f%d%s" % (ar(f0 + 4 * j + 2 * h, 2), a, off, gt, "a" if j < 4 else "b"))
        return pre, o
    def acc_of(n, T, r):
        kind, B, kh = stages[n]
        if kind == "G": return GA + 8 * T + 4 * r
        if kind == "U": return UA + 8 * T + 4 * r
        if kind == "M": return (GA if T < 2 else UA) + 8 * (T & 1) + 4 * r
        return GA + ((n * 8 + 2 * T + r) % 16) * 4
    main = []
    for n in range(NS):
        kind, B, kh = stages[n]
        for T in range(4):
            f0 = AF + 36 * ((n * 4 + T) & 1)
            for r in range(2):
                a = vr(acc_of(n, T, r), 4)
                for j in range(9):
                    if kind == "D": b = ar(HF + 36 * r + 4 * j, 4)
                    else: b = vr(XF + 72 * r + 4 * (9 * kh + j), 4)
                    c = "0" if (j == 0 and (kh == 0 or kind == "D")) else a
                    main.append("v_mfma_f32_16x16x32_bf16 %s, %s, %s, %s" % (a, ar(f0 + 4 * j, 4), b, c))
    NM = len(main)
    fill = {}
    load = [0.0] * (NM + 1)
    def put(g, items, cost=None):
        if isinstance(items, str): items = [items]
        fill.setdefault(g, []).extend(items)
        load[max(g, 0)] += len([x for x in items if not x.startswith("@")]) if cost is None else cost
    pre, o = frag_reads(0, 0)
    fill[-1] = ["@waitvm s0", "s_barrier"] + pre + o
    for n in range(NS):
        for T in range(4):
            g0 = (n * 4 + T) * 18
            gt = n * 4 + T
            put(g0 - 1, "@waitlds f%da" % gt, 1)
            if T < 3: put(g0 + 3, "@waitlds f%db" % gt, 1)
            nn, TT = (n, T + 1) if T < 3 else (n + 1, 0)
            if nn >= NS: continue
            pre, o = frag_reads(nn, TT)
            if T == 3:
                put(g0 - 1, ["@waitlds all", "@waitvm s%d" % (n + 1), "s_barrier"], 2)
            if pre: put(g0, pre)
            for i, x in enumerate(o): put(g0 + (1 if pre else 0) + (i * 16) // 18, x)
    def place_dma(m, lo, hi):
        gs = dma(m)
        for i, x in enumerate(gs): put(lo + (i * (hi - lo + 1)) // len(gs), x)
    place_dma(3, 2, 50)
    for n in range(NS - 4):
        g = (n * 4 + 3) * 18
        place_dma(n + 4, g + 2, g + 52)
    work = []
    def done_gap(n, T, r): return (n * 4 + T) * 18 + 9 * r + 8
    tmpi = [0]
    for B in range(5):
        if B < 4: nG, nU, tiles, u0 = 4 * B + 1, 4 * B + 3, 4, 2 * B
        else: nG, nU, tiles, u0 = 17, 17, 2, 8
        nxt = nU + 1
        for T in range(tiles):
            for r in range(2):
                g = GA + 8 * T + 4 * r; u = UA + 8 * T + 4 * r
                e = done_gap(nG, T, r) + 3
                eu = done_gap(nU, T if B < 4 else T + 2, r) + 3
                if B < 3: dl = (nxt * 4 + T) * 18 + 9 * r - 2
                elif B == 3: dl = (nxt * 4 + T) * 18 + 9 * r - 2 if T < 2 else (nxt * 4 + 2) * 18 - 2
                else: dl = eu + 1
                t0 = TMP + 4 * (tmpi[0] & 1); tmpi[0] += 1
                ops = []
                for b in range(4): ops.append(("v_mul_f32 v%d, v%d, v%d" % (t0 + b, C1 + r, g + b), 1))
                for b in range(4): ops.append(("v_exp_f32 v%d, v%d" % (t0 + b, t0 + b), 2))
                for b in range(4): ops.append(("v_fma_f32 v%d, v%d, v%d, v%d" % (t0 + b, t0 + b, C2 + r, C2 + r), 1))
                for b in range(4): ops.append(("v_rcp_f32 v%d, v%d" % (t0 + b, t0 + b), 2))
                for b in range(4): ops.append(("v_mul_f32 v%d, v%d, v%d" % (g + b, g + b, t0 + b), 1))
                work.append(dict(e=e, dl=max(eu - 1, e + 8) if B < 4 else eu, ops=ops, key=("s", B, T, r)))
                ops = [("v_mul_f32 v%d, v%d, v%d" % (u + b, u + b, g + b), 1) for b in range(4)]
                work.append(dict(e=eu, dl=dl, ops=ops, key=("m", B, T, r), after=("s", B, T, r)))
                h = HF + 36 * r + 4 * (u0 + (T >> 1)) + 2 * (T & 1)
                ops = [("v_cvt_pk_bf16_f32 v%d, v%d, v%d" % (u + 2 * j, u + 2 * j, u + 2 * j + 1), 1) for j in range(2)]
                ops += [("v_accvgpr_write_b32 a%d, v%d" % (h + j, u + 2 * j), 1) for j in range(2)]
                if B < 3: dl2 = ((nxt + 2) * 4 + T) * 18 + 9 * r - 2
                elif B == 3: dl2 = (nxt * 4 + 2) * 18 - 2
                else: dl2 = eu + 3
                work.append(dict(e=eu, dl=dl2, ops=ops, key=("c", B, T, r), after=("m", B, T, r)))
    QS = XF
    for n in range(18, NS):
        c = stages[n][1]
        for T in range(4):
            for r in range(2):
                a = acc_of(n, T, r)
                q = QS + 4 * ((n * 4 + 2 * (T >> 1) + r) % 16) + 2 * (T & 1)
                e = done_gap(n, T, r) + 3
                ops = [("v_cvt_pk_bf16_f32 v%d, v%d, v%d" % (q + j, a + 2 * j, a + 2 * j + 1), 1) for j in range(2)]
                if T & 1:
                    qi = r * 18 + 2 * c + (T >> 1)
                    ops.append(("s_add_u32 s67, s66, %d" % (qi * 1024), 1))
                    ops.append(("buffer_store_dwordx4 %s, v9, s[8:11], s67 offen %s" % (vr(q - 2, 4), SC), 1))
                work.append(dict(e=e, dl=e + 12, ops=ops, key=("d", n, T, r)))
    CAP = 2.35
    done = {}
    pend = sorted(work, key=lambda w: (w["dl"], w["e"]))
    cur = None
    g = 0
    tail = []
    credit = 0.0
    while pend or cur:
        if g >= NM:
            if cur is None:
                cand = [w for w in pend if w.get("after") is None or w["after"] in done]
                cur = min(cand, key=lambda w: (w["dl"], w["e"])); pend.remove(cur); cur["i"] = 0
            tail += [o for o, _ in cur["ops"][cur["i"]:]]; done[cur["key"]] = g; cur = None
            continue
        credit = min(credit + CAP - load[g], 3.0)
        while True:
            if cur is None:
                cand = [w for w in pend if w["e"] <= g and (w.get("after") is None or w["after"] in done)]
                if not cand: break
                cur = min(cand, key=lambda w: (w["dl"], w["e"])); pend.remove(cur); cur["i"] = 0
            op, cost = cur["ops"][cur["i"]]
            urgent = cur["dl"] - g <= (len(cur["ops"]) - cur["i"]) // 3 or any(w["dl"] - g <= 2 for w in pend if w["e"] <= g)
            if credit < cost and not urgent: break
            fill.setdefault(g, []).append(op); credit -= cost
            cur["i"] += 1
            if cur["i"] == len(cur["ops"]):
                if g > cur["dl"] and cur["key"][0] in "mc": raise RuntimeError("deadline miss %s %d %d" % (cur["key"], g, cur["dl"]))
                done[cur["key"]] = g; cur = None
        g += 1
    body = weave(main, fill)
    if STAMP:
        idx = [i for i, x in enumerate(body) if x == main[18 * 72]][0]
        body.insert(idx, "s_memrealtime s[84:85]"); body.insert(idx + 1, "s_waitcnt lgkmcnt(0)")
    k.extend(body); k.extend(tail)
    stamp(k, 3, 3)
    stamp_flush(k, 3, 4, 20)
    k("ffn_end:\ns_endpgm")
    return k, 256, 256, lds

def k5():
    k = K("red_kernel"); k.vgpr = 96; k.sgpr = 100
    k("s_cmp_ge_u32 s2, 576\ns_cbranch_scc1 red_end")
    stamp(k, 4, 0)
    k("s_load_dwordx2 s[4:5], s[0:1], 56\ns_load_dwordx2 s[20:21], s[0:1], 72")
    k("v_and_b32 v1, 63, v0\nv_lshrrev_b32 v2, 6, v0")
    k("v_readfirstlane_b32 s22, v2")
    k("s_lshl_b32 s23, s2, 2\ns_add_u32 s23, s23, s22")
    k("s_mul_i32 s24, s23, 58255\ns_lshr_b32 s24, s24, 21")
    k("s_mul_i32 s25, s24, 36\ns_sub_u32 s25, s23, s25")
    k("s_lshr_b32 s26, s24, 2\ns_and_b32 s27, s24, 3")
    k("s_lshl_b32 s28, s26, 6\ns_add_u32 s28, s28, s27\ns_mul_i32 s28, s28, 36\ns_add_u32 s28, s28, s25\ns_lshl_b32 s28, s28, 10")
    k("s_lshl_b32 s29, s23, 10")
    k("v_lshlrev_b32 v3, 4, v1")
    k("s_waitcnt lgkmcnt(0)")
    k.srd(8, 20, P_BYTES, WS_P)
    k.srd(12, 20, H_BYTES, WS_H)
    k.srd(16, 4, X_BYTES)
    for s in range(16):
        k("buffer_load_dwordx4 %s, v3, s[8:11], s28 offen" % vr(16 + 4 * s, 4))
        if s < 15: k("s_add_u32 s28, s28, %d" % (4 * 36864))
    k("buffer_load_dwordx4 v[80:83], v3, s[12:15], s29 offen")
    k("s_mov_b32 s33, 0x00003f80\ns_mov_b32 s34, 0x3f800000")
    k("s_cmp_ge_u32 s25, 18\ns_cselect_b32 s30, 1, 0\ns_mul_i32 s31, s30, 18\ns_sub_u32 s31, s25, s31")
    k("s_lshl_b32 s32, s24, 1\ns_add_u32 s32, s32, s30\ns_mul_i32 s32, s32, %d\ns_lshl_b32 s31, s31, 6\ns_add_u32 s32, s32, s31" % (16 * 1152))
    k("v_and_b32 v4, 15, v1\nv_mul_u32_u24 v4, 1152, v4\nv_bfe_u32 v5, v1, 4, 1\nv_lshl_add_u32 v4, v5, 5, v4\nv_lshrrev_b32 v5, 5, v1\nv_lshl_add_u32 v4, v5, 4, v4")
    for i in range(8): k("v_mov_b32 v%d, 0" % (8 + i))
    for s in range(16):
        for c in range(4):
            k("v_dot2c_f32_bf16 v%d, s33, v%d\nv_dot2c_f32_bf16 v%d, s34, v%d" % (8 + 2 * c, 16 + 4 * s + c, 9 + 2 * c, 16 + 4 * s + c))
    for c in range(4): k("v_cvt_pk_bf16_f32 v%d, v%d, v%d" % (84 + c, 8 + 2 * c, 9 + 2 * c))
    for c in range(4): k("v_lshlrev_b32 v%d, 16, v%d\nv_and_b32 v%d, 0xffff0000, v%d" % (8 + 2 * c, 84 + c, 9 + 2 * c, 84 + c))
    for c in range(4): k("v_dot2c_f32_bf16 v%d, s33, v%d\nv_dot2c_f32_bf16 v%d, s34, v%d" % (8 + 2 * c, 80 + c, 9 + 2 * c, 80 + c))
    for c in range(4): k("v_cvt_pk_bf16_f32 v%d, v%d, v%d" % (84 + c, 8 + 2 * c, 9 + 2 * c))
    k("v_permlane16_swap_b32 v84, v86\nv_permlane16_swap_b32 v85, v87")
    k("buffer_store_dwordx4 v[84:87], v4, s[16:19], s32 offen")
    if STAMP:
        k("s_cmp_ge_u32 s2, 256\ns_cbranch_scc1 red_end")
        stamp_init(k, 22)
        stamp_flush(k, 4, 1, 20)
    k("red_end:\ns_endpgm")
    return k, 576, 256, 0

HEADER = """
Pre-LN transformer block (sliding-window attention + SwiGLU FFN), S=2048 D=576 H=32 F=4608, bf16.
Generated by work/gen.py (hand-written generator).  Kernarg: x, wqkv, wo, (unused), wg, wu, wd, out, dbg, ws.
"""
def build(path, stampit=False):
    global STAMP
    STAMP = stampit
    ks = [k1(), k2(), k3(), k4(), k5()]
    txt = program(ks, [x[0] for x in ks], HEADER)
    open(path, "w").write(txt)
    for x in ks: print(x[0].name, x[0].stats)
    print(len(txt), "bytes")

if __name__ == "__main__":
    build(sys.argv[1] if len(sys.argv) > 1 else "full.s", "stamp" in sys.argv)
```

```python
import gen as G
from asmgen import *
def empty(n):
    k = K("e%d_kernel" % n); k.vgpr = 8; k.sgpr = 16
    k("s_endpgm")
    return k, 1, 64, 0
ks = [G.k1(), G.k2(), G.k3(), G.k4(), G.k5()]
for name, ne in (("v_e5", 5), ("v_e10", 10)):
    ks = [G.k1(), G.k2(), G.k3(), G.k4(), G.k5()]
    e = empty(0)
    open(name + ".s", "w").write(program(ks + [e] * ne, [x[0] for x in ks] + [e[0]], G.HEADER))
ks = [G.k1(), G.k2(), G.k3(), G.k4(), G.k5()]
open("v_twice.s", "w").write(program(ks + ks, [x[0] for x in ks], G.HEADER))
```

```python
import re

def vr(a, n=1, p="v"):
    return "%s%d" % (p, a) if n == 1 else "%s[%d:%d]" % (p, a, a + n - 1)
def ar(a, n=1): return vr(a, n, "a")
def sr(a, n=1): return vr(a, n, "s")

_REG = re.compile(r"^(-|abs\(|-abs\(|\|)?([vas])(\d+|\[(\d+):(\d+)\])\)?\|?$")
def regs_of(op):
    op = op.strip()
    if op in ("vcc",): return [("s", "vcc")]
    if op in ("exec",): return [("s", "exec")]
    if op == "m0": return [("s", "m0")]
    m = _REG.match(op)
    if not m: return []
    p = m.group(2)
    if m.group(4) is not None:
        return [(p, i) for i in range(int(m.group(4)), int(m.group(5)) + 1)]
    return [(p, int(m.group(3)))]

TRANS = ("v_exp_f32", "v_log_f32", "v_rcp_f32", "v_rsq_f32", "v_sqrt_f32", "v_sin_f32", "v_cos_f32")

class I:
    __slots__ = ("text", "op", "rd", "wr", "kind", "tag", "passes", "srcc", "srcab", "data")
    def __init__(self, text):
        self.tag = None
        if ";#" in text:
            text, t = text.split(";#"); self.tag = t.strip()
        self.text = text.strip()
        self.passes = 0; self.srcc = []; self.srcab = []; self.data = []
        t = self.text.split(";")[0].strip()
        self.rd = []; self.wr = []
        if t.endswith(":"):
            self.op = "label"; self.kind = "label"; return
        if t.startswith("@"):
            self.op = t.split()[0]; self.kind = "pseudo"; return
        if t.startswith("."):
            self.op = t.split()[0]; self.kind = "directive"; return
        sp = t.split(None, 1)
        self.op = op = sp[0]
        rest = sp[1] if len(sp) > 1 else ""
        ops = [o.strip() for o in re.split(r",(?![^\[]*\])", rest)] if rest else []
        mods = ""
        if ops:
            parts = ops[-1].split(None, 1)
            ops[-1] = parts[0]
            mods = parts[1] if len(parts) > 1 else ""
        R = lambda l: [r for o in l for r in regs_of(o)]
        if op.startswith("v_mfma"):
            self.kind = "mfma"
            self.wr = R(ops[:1]); self.srcab = R(ops[1:3]); self.srcc = R(ops[3:4]); self.rd = self.srcab + self.srcc
            self.passes = 8 if "32x32" in op else 4
        elif op.startswith("buffer_load") or op.startswith("global_load"):
            if re.search(r"\blds\b", mods) or "_lds_" in op:
                self.kind = "dma"; self.rd = R(ops) + [("s", "m0")]
            else:
                self.kind = "vload"; self.wr = R(ops[:1]); self.rd = R(ops[1:])
        elif op.startswith("buffer_store"):
            self.kind = "vstore"; self.rd = R(ops); self.data = R(ops[:1])
        elif op.startswith("global_store"):
            self.kind = "vstore"; self.rd = R(ops); self.data = R(ops[1:2])
        elif op.startswith("buffer_atomic") or op.startswith("global_atomic"):
            if "sc0" in mods and op.startswith("buffer"):
                self.kind = "vload"; self.wr = R(ops[:1]); self.rd = R(ops)
            else:
                self.kind = "vstore"; self.rd = R(ops)
        elif op.startswith("buffer_"):
            self.kind = "vstore"
        elif op.startswith("ds_read") or op.startswith("ds_bpermute") or op.startswith("ds_permute") or op.startswith("ds_swizzle"):
            self.kind = "dsread"; self.wr = R(ops[:1]); self.rd = R(ops[1:])
        elif op.startswith("ds_"):
            self.kind = "dswrite"; self.rd = R(ops)
        elif op.startswith("s_load") or op in ("s_memtime", "s_memrealtime"):
            self.kind = "smem"; self.wr = R(ops[:1]); self.rd = R(ops[1:])
        elif op == "s_waitcnt": self.kind = "wait"
        elif op == "s_nop": self.kind = "nop"
        elif op == "s_barrier": self.kind = "barrier"
        elif op.startswith("s_cbranch") or op in ("s_branch", "s_endpgm", "s_setpc_b64"): self.kind = "branch"
        elif op.startswith("s_cmp") or op.startswith("s_bitcmp"):
            self.kind = "salu"; self.rd = R(ops)
        elif op in ("s_setprio", "s_sleep", "s_sethalt"): self.kind = "salu"
        elif op.startswith("s_"):
            self.kind = "salu"; self.wr = R(ops[:1]); self.rd = R(ops[1:])
            if "saveexec" in op: self.wr += [("s", "exec")]; self.rd += [("s", "exec")]
            if op in ("s_addk_i32", "s_mulk_i32"): self.rd += self.wr
        elif op.startswith("v_"):
            self.kind = "valu"
            base = op.replace("_e32", "").replace("_e64", "").replace("_dpp", "").replace("_sdwa", "")
            if base.startswith("v_permlane") and "swap" in base:
                self.wr = R(ops[:2]); self.rd = R(ops[:2])
            elif base.startswith("v_cmp"):
                self.wr = R(ops[:1]); self.rd = R(ops[1:])
                if base.startswith("v_cmpx"): self.wr += [("s", "exec")]
            elif re.match(r"v_(add|sub|subrev)_co_u32", base):
                self.wr = R(ops[:2]); self.rd = R(ops[2:])
            elif re.match(r"v_(addc|subb|subbrev)_co_u32", base):
                self.wr = R(ops[:2]); self.rd = R(ops[2:])
            else:
                self.wr = R(ops[:1]); self.rd = R(ops[1:])
                if base in ("v_fmac_f32", "v_dot2c_f32_bf16", "v_writelane_b32") or "_dpp" in op or "_sdwa" in op:
                    self.rd += self.wr
            if base in TRANS: self.kind = "trans"
        else:
            raise ValueError("unknown instruction: " + text)

class K:
    def __init__(self, name):
        self.name = name
        self.ins = []
        self.nlab = 0
        self.vgpr = 256; self.agpr = 0; self.sgpr = 102
        self.auto = True
        self.stats = {}
    def __call__(self, s, *a):
        if a: s = s % a
        for l in s.split("\n"):
            l = l.strip()
            if l: self.ins.append(I(l))
    def extend(self, lst):
        for s in lst: self(s)
    def label(self, base="L"):
        self.nlab += 1
        return "%s_%s_%d" % (self.name.replace("_kernel", ""), base, self.nlab)
    def srd(self, d, base, nbytes, off=0):
        if off:
            self("s_add_u32 s%d, s%d, 0x%x" % (d, base, off))
            self("s_addc_u32 s%d, s%d, 0" % (d + 1, base + 1))
            self("s_and_b32 s%d, s%d, 0xffff" % (d + 1, d + 1))
        else:
            self("s_mov_b32 s%d, s%d" % (d, base))
            self("s_and_b32 s%d, s%d, 0xffff" % (d + 1, base + 1))
        self("s_mov_b32 s%d, 0x%x" % (d + 2, nbytes))
        self("s_mov_b32 s%d, 0x20000" % (d + 3))

    def _waits(self):
        out = []
        vm = []
        lg = []
        smem = set()
        def emit_wait(nvm, nlg):
            parts = []
            if nvm is not None: parts.append("vmcnt(%d)" % min(nvm, 63))
            if nlg is not None: parts.append("lgkmcnt(%d)" % min(nlg, 15))
            if not parts: return
            if out and out[-1].kind == "wait" and out[-1].tag == "auto":
                prev = out.pop().text
                m = re.search(r"vmcnt\((\d+)\)", prev)
                if m and nvm is None: parts.insert(0, m.group(0))
                m = re.search(r"lgkmcnt\((\d+)\)", prev)
                if m and nlg is None: parts.append(m.group(0))
            w = I("s_waitcnt " + " ".join(parts)); w.tag = "auto"
            out.append(w)
        for ins in self.ins:
            if ins.kind == "pseudo":
                a = ins.text.split()
                if a[0] == "@waitvm":
                    tags = a[1:]
                    idx = [i for i, e in enumerate(vm) if (tags == ["all"] or e[1] in tags)]
                    if idx:
                        n = len(vm) - 1 - max(idx)
                        emit_wait(n, None); n = min(n, 63); vm[:] = vm[len(vm) - n:] if n else []
                elif a[0] == "@waitlds":
                    tags = a[1:]
                    idx = [i for i, e in enumerate(lg) if (tags == ["all"] or e[1] in tags)]
                    if idx:
                        n = len(lg) - 1 - max(idx)
                        if smem: n = 0
                        emit_wait(None, n); n = min(n, 15); lg[:] = lg[len(lg) - n:] if n else []
                        if n == 0: smem.clear()
                elif a[0] == "@reset":
                    vm[:] = []; lg[:] = []; smem.clear()
                else:
                    raise ValueError(ins.text)
                continue
            if ins.kind == "wait":
                m = re.search(r"vmcnt\((\d+)\)", ins.text)
                if m:
                    n = int(m.group(1)); vm[:] = vm[max(0, len(vm) - n):] if n else []
                m = re.search(r"lgkmcnt\((\d+)\)", ins.text)
                if m:
                    n = int(m.group(1))
                    if n == 0: smem.clear()
                    lg[:] = lg[max(0, len(lg) - n):] if n else []
                out.append(ins); continue
            touched = set(ins.rd) | set(ins.wr)
            nvm = nlg = None
            idx = [i for i, e in enumerate(vm) if e[0] & touched]
            if idx:
                nvm = len(vm) - 1 - max(idx)
            idx = [i for i, e in enumerate(lg) if e[0] & touched]
            if idx:
                nlg = len(lg) - 1 - max(idx)
                if smem: nlg = 0
            if smem & touched: nlg = 0
            if nvm is not None or nlg is not None:
                emit_wait(nvm, nlg)
                if nvm is not None:
                    n = min(nvm, 63); vm[:] = vm[len(vm) - n:] if n else []
                if nlg is not None:
                    n = min(nlg, 15); lg[:] = lg[len(lg) - n:] if n else []
                    if n == 0: smem.clear()
            if ins.kind in ("vload", "vstore", "dma"):
                vm.append((set(ins.wr), ins.tag))
                assert len(vm) <= 64 or True
            elif ins.kind in ("dsread", "dswrite"):
                lg.append((set(ins.wr), ins.tag))
            elif ins.kind == "smem":
                smem |= set(ins.wr)
            out.append(ins)
        self.ins = out

    def _hazards(self):
        out = []
        pos = 0
        lastw = {}
        lastc = {}
        lastst = {}
        nn = 0
        for ins in self.ins:
            if ins.kind in ("label", "directive"):
                out.append(ins); continue
            need = 0
            def req(p, n):
                nonlocal need
                need = max(need, n - (pos - p - 1))
            isv = ins.kind in ("valu", "trans")
            for r in set(ins.rd):
                if r not in lastw: continue
                p, w = lastw[r]
                wv = w.kind in ("valu", "trans")
                if r[0] in "va":
                    if wv:
                        if ins.kind == "mfma": req(p, 2)
                        if isv and ("_dpp" in ins.op or ins.op.startswith("v_permlane")): req(p, 2)
                        if ins.op.startswith("v_readlane") or ins.op.startswith("v_readfirstlane"): req(p, 1)
                        if w.kind == "trans" and ins.kind == "valu": req(p, 1)
                        if w.kind == "trans" and ins.kind == "mfma": req(p, 2)
                        if w.op.startswith("v_dot"):
                            base = lambda o: o.replace("_e32", "").replace("_e64", "")
                            if base(ins.op) == base(w.op) and r in ins.rd[-1:] and r not in ins.rd[:-1]: pass
                            else: req(p, 3)
                        if "_sdwa" in w.op and isv: req(p, 1)
                    if w.kind == "mfma":
                        if ins.kind == "mfma":
                            if r in ins.srcab: req(p, 8 if w.passes == 4 else 12)
                            if r in ins.srcc:
                                if ins.srcc == w.wr and ins.passes == w.passes: pass
                                else: req(p, 6 if w.passes == 4 else 10)
                        else: req(p, 8 if w.passes == 4 else 12)
                else:
                    if wv:
                        if ins.kind in ("vload", "vstore", "dma"): req(p, 5)
                        elif isv:
                            if ins.op.startswith("v_readlane") or ins.op.startswith("v_writelane"): req(p, 4)
                            else: req(p, 2)
                        elif ins.kind == "salu": req(p, 1)
                    if r == ("s", "m0") and w.kind == "salu" and ins.kind == "dma": req(p, 1)
            for r in set(ins.wr):
                if r in lastw:
                    p, w = lastw[r]
                    if w.kind == "mfma" and ins.kind != "mfma": req(p, 8 if w.passes == 4 else 12)
                    if w.kind == "mfma" and ins.kind == "mfma" and r not in ins.srcc: req(p, 8 if w.passes == 4 else 12)
                    if w.op.startswith("v_dot") and isv and w.op != ins.op: req(p, 3)
                if r in lastc and isv:
                    p, w = lastc[r]; req(p, 3 if w.passes == 4 else 7)
                if r in lastst and ins.kind != "branch":
                    req(lastst[r], 2 if isv else 1)
            if ins.kind == "mfma" and ("s", "exec") in lastw and lastw[("s", "exec")][1].kind in ("valu", "trans"):
                req(lastw[("s", "exec")][0], 4)
            while need > 0:
                n = min(need, 16)
                x = I("s_nop %d" % (n - 1)); out.append(x); pos += n; need -= n; nn += 1
            if ins.kind == "nop":
                pos += int(ins.text.split()[1]) + 1
                out.append(ins); continue
            for r in ins.wr: lastw[r] = (pos, ins)
            if ins.kind == "mfma":
                for r in ins.srcc: lastc[r] = (pos, ins)
            if ins.kind == "vstore" and len(ins.data) >= 3:
                for r in ins.data: lastst[r] = pos
            out.append(ins); pos += 1
        self.ins = out
        self.stats["nops"] = nn

    def finalize(self):
        if self.auto:
            self._waits(); self._hazards(); self.auto = False
        mv = ma = ms = -1
        cnt = {}
        for i in self.ins:
            cnt[i.kind] = cnt.get(i.kind, 0) + 1
            for p, n in i.rd + i.wr:
                if isinstance(n, int):
                    if p == "v": mv = max(mv, n)
                    elif p == "a": ma = max(ma, n)
                    else: ms = max(ms, n)
        self.stats.update(cnt); self.stats.update(maxv=mv, maxa=ma, maxs=ms)
        assert mv < self.vgpr and ma < max(self.agpr, 0) + (0 if self.agpr else 0) or (ma < 0 and mv < self.vgpr), (self.name, mv, ma)
        assert ms < self.sgpr
    def text(self):
        self.finalize()
        o = [".globl %s" % self.name] + ([".p2align 12"] if getattr(self, "page_align", False) else []) + [".p2align 8", ".type %s,@function" % self.name, "%s:" % self.name]
        o += [(i.text if i.kind == "label" else " " + i.text) for i in self.ins]
        return "\n".join(o) + "\n"
    def desc(self):
        acc = (self.vgpr + 3) // 4 * 4
        nfv = acc + self.agpr if self.agpr else self.vgpr
        return "\n".join([
            ".p2align 6",
            ".amdhsa_kernel %s" % self.name,
            "  .amdhsa_next_free_vgpr %d" % nfv,
            "  .amdhsa_next_free_sgpr %d" % self.sgpr,
            "  .amdhsa_accum_offset %d" % acc,
            "  .amdhsa_group_segment_fixed_size 0",
            "  .amdhsa_kernarg_size 80",
            "  .amdhsa_user_sgpr_count 2",
            "  .amdhsa_user_sgpr_kernarg_segment_ptr 1",
            "  .amdhsa_system_sgpr_workgroup_id_x 1",
            "  .amdhsa_float_denorm_mode_32 3",
            "  .amdhsa_float_denorm_mode_16_64 3",
            "  .amdhsa_ieee_mode 0",
            "  .amdhsa_dx10_clamp 0",
            ".end_amdhsa_kernel"]) + "\n"

def program(launches, kernels, header=""):
    o = []
    for l in header.strip().split("\n"):
        if l.strip(): o.append("; " + l.strip())
    for k, g, b, lds in launches:
        o.append("; @launch kernel=%s grid=(%d,1,1) block=(%d,1,1) lds=%d" % (k.name, g, b, lds))
    o.append('.amdgcn_target "amdgcn-amd-amdhsa--gfx950"')
    o.append(".text")
    s = "\n".join(o) + "\n"
    for k in kernels: s += k.text()
    s += '.section .rodata,"a"\n'
    for k in kernels: s += k.desc()
    return s

def weave(main, fill):
    out = list(fill.get(-1, []))
    for i, m in enumerate(main):
        out.append(m)
        out += fill.get(i, [])
    return out

def spread(fill, items, lo, hi):
    n = len(items)
    span = hi - lo + 1
    for j, it in enumerate(items):
        idx = lo + (j * span) // n
        fill.setdefault(idx, [])
        if isinstance(it, (list, tuple)): fill[idx] += list(it)
        else: fill[idx].append(it)


import subprocess, os, tempfile
def ins_sizes(k):
    txt = '.amdgcn_target "amdgcn-amd-amdhsa--gfx950"\n.text\n' + "\n".join(i.text for i in k.ins if i.kind != "directive") + "\n"
    with tempfile.TemporaryDirectory() as d:
        open(d + "/a.s", "w").write(txt)
        r = subprocess.run(["llvm-mc", "-triple", "amdgcn-amd-amdhsa", "-mcpu=gfx950", "-show-encoding", d + "/a.s"], capture_output=True, text=True)
        assert r.returncode == 0, r.stderr[:2000]
    sizes = []
    for l in r.stdout.split("\n"):
        m = re.search(r"encoding: \[(.*?)\]", l)
        if m: sizes.append(len(m.group(1).split(",")))
    real = [i for i in k.ins if i.kind not in ("label", "directive")]
    assert len(real) == len(sizes), (len(real), len(sizes))
    return sizes

def add_page_stubs(k, main_label, groups, nw=4, base=0):
    k.finalize()
    sizes = iter(ins_sizes(k))
    out = []; off = None; nextpage = 4096; execz = False
    cur = None; pages = {g[0]: [] for g in groups}
    starts = {g[1] + ":": g[0] for g in groups}; ends = {g[2] + ":" for g in groups}
    for ins in k.ins:
        if ins.kind == "label":
            if ins.text == main_label + ":": off = base
            if ins.text in ends: cur = None
            if ins.text in starts: cur = starts[ins.text]
            out.append(ins); continue
        if ins.kind == "directive":
            out.append(ins); continue
        sz = next(sizes)
        if off is not None:
            if off >= nextpage and not execz:
                if cur is not None:
                    lab = I("%s_p%d:" % (cur, len(pages[cur]))); br = I("s_cbranch_execz PLACEHOLDER")
                    pages[cur].append(br); out += [lab, br]; off += 4
                nextpage += 4096
            off += sz
        if ins.text == "s_mov_b64 exec, 0": execz = True
        elif ins.text == "s_mov_b64 exec, -1": execz = False
        out.append(ins)
    for name, lst in pages.items():
        for j, br in enumerate(lst):
            br.text = "s_cbranch_execz %s" % ("%s_p%d" % (name, j + nw) if j + nw < len(lst) else name + "_ret")
    for ins in out:
        m = re.match(r"(s_cbranch_scc1|s_branch) (\w+)_h(\d+)$", ins.text)
        if m and m.group(2) in pages:
            j = int(m.group(3))
            ins.text = "%s %s" % (m.group(1), "%s_p%d" % (m.group(2), j) if j < len(pages[m.group(2)]) else m.group(2) + "_ret")
    k.ins = out
    k.stats["code_bytes"] = off
    k.stats["pages"] = {n: len(l) for n, l in pages.items()}

def touch_chain(k, name, wavereg, nw=4):
    k("s_mov_b64 exec, 0")
    for w in range(nw - 1): k("s_cmp_eq_u32 s%d, %d\ns_cbranch_scc1 %s_h%d" % (wavereg, w, name, w))
    k("s_branch %s_h%d" % (name, nw - 1))
    k("%s_ret:\ns_mov_b64 exec, -1" % name)
```

```python
import sys, struct
from asmgen import *

S, D, F, NQKV, NH, DH = 2048, 576, 4608, 1728, 32, 18
CGS = 16384 + 128
WS_Z, Z_BYTES = 0, 432 * CGS
WS_OP, OP_BYTES = 0x700000, 64 * 32768
WS_O2, O2_BYTES = 0x900000, 32 * 8192
WS_H, H_BYTES = 0xA00000, 128 * 18 * 1024
WS_ST, ST_BYTES = 0xD00000, 9 * 2048 * 8
WS_P, P_BYTES = 0x1000000, 16 * 16 * 4 * 36 * 1024
WS_FL, FL_BYTES = 0xE00000, 16 * 4 * 9 * 64
WS_HB, HB_BYTES = 0x1000000, 256 * 73728
WS_P2, P2_BYTES = 0x2400000, 256 * 36864
WS_TS = 0x4000000
X_BYTES = S * D * 2
def f2u(x): return struct.unpack("<I", struct.pack("<f", x))[0]
LOG2E = 1.4426950408889634
SC = "sc1"
STAMP = False
STAMP2 = False
OPT = set()
XP = dict(flag=66, poll=30, check=56, mfma=44, dp=3, dm=4, nb=2, mid=7, npre=18)

def stamp(k, slot, n):
    if STAMP: k("s_memrealtime s[%d:%d]" % (80 + 2 * n, 81 + 2 * n))
def stamp_flush(k, slot, n, wsreg):
    if not STAMP: return
    k("s_waitcnt vmcnt(0)")
    k("s_memrealtime s[%d:%d]" % (80 + 2 * n, 81 + 2 * n))
    k("s_waitcnt lgkmcnt(0)")
    k.srd(76, wsreg, 1 << 22, WS_TS + slot * 65536)
    k("s_mov_b64 exec, 1")
    k("v_mov_b32 v1, s74")
    for j in range(n + 1):
        k("v_mov_b32 v2, s%d" % (80 + 2 * j))
        k("buffer_store_dword v2, v1, s[76:79], 0 offen offset:%d" % (4 * j))
def stamp_init(k, wavereg):
    if STAMP:
        k("s_lshl_b32 s74, s2, 3\ns_add_u32 s74, s74, s%d\ns_lshl_b32 s74, s74, 5" % wavereg)

def bf16_round(k, dst, src):
    k("v_cvt_pk_bf16_f32 v%d, v%d, v%d" % (dst, src, src))
    k("v_and_b32 v%d, 0xffff0000, v%d" % (dst, dst))

def k1():
    k = K("qkv_kernel"); k.vgpr = 256; k.sgpr = 100
    XL, RING, STL = 0, 73728, 73728 + 4 * 20480
    lds = STL + 256
    k("s_cmp_ge_u32 s2, 224\ns_cbranch_scc1 qkv_end")
    stamp(k, 0, 0)
    k("s_load_dwordx4 s[4:7], s[0:1], 0\ns_load_dwordx2 s[20:21], s[0:1], 72")
    k("v_and_b32 v1, 63, v0\nv_lshrrev_b32 v2, 6, v0")
    k("v_readfirstlane_b32 s22, v2")
    k("s_lshr_b32 s23, s2, 5")
    k("s_and_b32 s24, s2, 7\ns_lshl_b32 s24, s24, 2\ns_bfe_u32 s25, s2, 0x20003\ns_add_u32 s24, s24, s25")
    k("s_lshl_b32 s25, s23, 2\ns_add_u32 s25, s25, s22")
    stamp_init(k, 22)
    k("v_lshrrev_b32 v3, 3, v1\nv_and_b32 v4, 7, v1")
    k("v_mul_u32_u24 v5, 1152, v3\nv_lshl_add_u32 v5, v4, 4, v5")
    k("s_lshl_b32 s26, s24, 6\ns_lshl_b32 s27, s22, 4\ns_add_u32 s26, s26, s27\ns_mul_i32 s26, s26, 1152")
    k("s_add_u32 s27, s26, %d" % (8 * 1152))
    k("s_waitcnt lgkmcnt(0)")
    k.srd(8, 4, X_BYTES)
    XR = 16
    for j in range(9):
        for h in range(2):
            k("buffer_load_dwordx4 %s, v5, s[8:11], s%d offen offset:%d" % (vr(XR + (h * 9 + j) * 4, 4), 26 + h, 128 * j))
    k.srd(12, 6, D * NQKV * 2)
    k("v_lshlrev_b32 v6, 5, v0\ns_mul_i32 s28, s2, 6432\ns_add_u32 s28, s28, %d" % (160 * 3456))
    k("buffer_load_dword v255, v6, s[12:15], s28 offen")
    if "pfcode" in OPT:
        k("s_getpc_b64 s[36:37]\nqkv_pc:")
        k("s_lshr_b32 s38, s2, 3\ns_lshl_b32 s38, s38, 12\nv_lshl_add_u32 v7, v0, 4, s38")
        k("s_mov_b32 s39, code_end-qkv_pc-4\nv_min_u32 v7, s39, v7\nv_and_b32 v7, -4, v7")
        k("global_load_dword v254, v7, s[36:37]")
    if "pfwo" in OPT:
        k("s_load_dwordx2 s[40:41], s[0:1], 16\ns_waitcnt lgkmcnt(0)")
        k.srd(40, 40, D * D * 2)
        k("s_mul_i32 s38, s2, 2976\nv_lshlrev_b32 v7, 4, v0")
        k("buffer_load_dword v253, v7, s[40:43], s38 offen")
    VD = 232
    k("v_lshrrev_b32 v6, 2, v3\nv_lshlrev_b32 v6, 3, v6\nv_and_b32 v7, 3, v3\nv_add_u32 v6, v6, v7")
    k("v_mul_u32_u24 v6, 3456, v6")
    k("v_lshrrev_b32 v7, 1, v3\nv_lshlrev_b32 v7, 1, v7\nv_xor_b32 v7, v7, v4\nv_lshl_add_u32 v6, v7, 4, v6")
    base = [0, 16, 4, 20]
    for a in range(4):
        k("v_add_u32 v%d, %d, v6" % (VD + a, base[a] * 3456 - a * 1024))
    k("s_lshl_b32 s28, s25, 7")
    k("s_mul_i32 s29, s22, 20480\ns_add_u32 s29, s29, %d" % RING)
    def dma(t):
        o = ["s_add_u32 m0, s29, %d" % ((t % 5) * 4096)]
        for a in range(4):
            o.append("buffer_load_dwordx4 v%d, s[12:15], s28 offen offset:%d lds ;#w%d" % (VD + a, 1024 * a, t))
        o.append("s_add_u32 s28, s28, %d" % (32 * 3456))
        return o
    for t in range(5): k.extend(dma(t))
    if "xch" in OPT:
        k.srd(16, 20, FL_BYTES, WS_FL)
        k("v_mov_b32 v7, 0\ns_lshl_b32 s30, s2, 10\nv_lshl_add_u32 v10, v0, 2, s30")
        k("buffer_store_dword v7, v10, s[16:19], 0 offen")
    k.srd(16, 20, Z_BYTES, WS_Z)
    k("s_lshr_b32 s30, s22, 1\ns_lshl_b32 s30, s30, 1")
    k("v_lshrrev_b32 v7, 5, v1\nv_add_u32 v7, s30, v7\nv_mul_u32_u24 v7, 18, v7")
    k("v_lshrrev_b32 v10, 2, v4\nv_add_u32 v7, v7, v10\nv_lshlrev_b32 v7, 10, v7")
    k("v_and_b32 v10, 3, v4\nv_lshl_add_u32 v7, v10, 8, v7")
    k("s_and_b32 s30, s22, 1\ns_lshl_b32 s30, s30, 3")
    k("v_and_b32 v10, 3, v3\nv_add_u32 v10, s30, v10")
    k("v_xor_b32 v11, v10, v4\nv_lshl_add_u32 v8, v11, 4, v7")
    k("v_add_u32 v10, 4, v10\nv_xor_b32 v11, v10, v4\nv_lshl_add_u32 v9, v11, 4, v7")
    k("v_and_b32 v10, 15, v1\nv_lshrrev_b32 v11, 4, v1")
    k("v_xor_b32 v12, v10, v11\nv_lshlrev_b32 v12, 4, v12\nv_lshl_add_u32 v236, v11, 8, v12")
    k("v_xor_b32 v237, 64, v236\nv_add_u32 v238, 36864, v236\nv_add_u32 v239, 36864, v237")
    k("v_lshrrev_b32 v12, 2, v10\nv_and_b32 v13, 1, v11\nv_lshl_add_u32 v12, v13, 2, v12")
    k("v_lshrrev_b32 v13, 1, v11\nv_lshlrev_b32 v13, 10, v13\nv_lshl_add_u32 v13, v12, 7, v13")
    k("v_and_b32 v14, 3, v1\nv_lshl_add_u32 v13, v14, 3, v13\nv_add_u32 v13, s29, v13")
    k("v_lshrrev_b32 v12, 1, v12")
    for T in range(4):
        k("v_xor_b32 v14, %d, v12\nv_lshl_add_u32 v%d, v14, 5, v13" % (T, 240 + T))
    k("s_mov_b32 s31, %d" % CGS)
    k("v_lshrrev_b32 v12, 2, v10\nv_mul_lo_u32 v12, v12, s31\nv_lshl_add_u32 v12, v11, 6, v12\nv_and_b32 v13, 3, v10\nv_lshl_add_u32 v244, v13, 4, v12")
    k("v_lshlrev_b32 v245, 5, v11\nv_add_u32 v245, %d, v245" % STL)
    k("s_lshl_b32 s30, s22, 6\ns_add_u32 s30, s30, %d\nv_lshl_add_u32 v246, v3, 2, s30" % STL)
    k("s_mov_b32 s32, 0x3f803f80\ns_mov_b32 s33, 0x00003f80\ns_mov_b32 s34, 0x3f800000\ns_mov_b32 s35, 0x%x" % f2u(1.0 / D))
    T0 = 88
    for i in range(4): k("v_mov_b32 v%d, 0" % (T0 + i))
    for i in range(4): k("v_mov_b32 v%d, 0" % (T0 + 4 + i))
    for j in range(9):
        for c in range(4):
            for h in range(2):
                k("v_dot2c_f32_bf16 v%d, s32, v%d" % (T0 + 2 * h + (c & 1), XR + (h * 9 + j) * 4 + c))
    stamp(k, 0, 1)
    def red8(r):
        k("v_add_f32_dpp v%d, v%d, v%d quad_perm:[1,0,3,2] row_mask:0xf bank_mask:0xf" % (r, r, r))
    k("v_add_f32 v%d, v%d, v%d\nv_add_f32 v%d, v%d, v%d" % (T0, T0, T0 + 1, T0 + 2, T0 + 2, T0 + 3))
    for ctl in ("quad_perm:[1,0,3,2]", "quad_perm:[2,3,0,1]", "row_half_mirror"):
        for r in (T0, T0 + 2):
            k("v_add_f32_dpp v%d, v%d, v%d %s row_mask:0xf bank_mask:0xf" % (r, r, r, ctl))
    for h in range(2):
        r = T0 + 2 * h
        k("v_mul_f32 v%d, s35, v%d" % (r, r))
        bf16_round(k, r + 1, r)
        k("v_sub_f32 v%d, v%d, v%d" % (r, r, r + 1))
        k("v_sub_f32 v%d, 0, v%d" % (r + 1, r + 1))
    T1 = T0 + 8
    for j in range(9):
        for h in range(2):
            x = XR + (h * 9 + j) * 4
            for c in range(4):
                k("v_dot2_f32_bf16 v%d, v%d, s33, v%d" % (T1 + 2 * c, x + c, T0 + 2 * h + 1))
                k("v_dot2_f32_bf16 v%d, v%d, s34, v%d" % (T1 + 2 * c + 1, x + c, T0 + 2 * h + 1))
            for c in range(4):
                k("v_cvt_pk_bf16_f32 v%d, v%d, v%d" % (x + c, T1 + 2 * c, T1 + 2 * c + 1))
            k("ds_write_b128 v%d, %s offset:%d" % (8 + h, vr(x, 4), XL + 2048 * j))
    for j in range(9):
        for c in range(4):
            for h in range(2):
                x = XR + (h * 9 + j) * 4 + c
                k("v_dot2c_f32_bf16 v%d, v%d, v%d" % (T0 + 4 + 2 * h + (c & 1), x, x))
    k("v_add_f32 v%d, v%d, v%d\nv_add_f32 v%d, v%d, v%d" % (T0 + 4, T0 + 4, T0 + 5, T0 + 6, T0 + 6, T0 + 7))
    for ctl in ("quad_perm:[1,0,3,2]", "quad_perm:[2,3,0,1]", "row_half_mirror"):
        for r in (T0 + 4, T0 + 6):
            k("v_add_f32_dpp v%d, v%d, v%d %s row_mask:0xf bank_mask:0xf" % (r, r, r, ctl))
    for h in range(2):
        r = T0 + 4 + 2 * h; dl = T0 + 2 * h
        k("v_mul_f32 v%d, v%d, v%d" % (dl, dl, dl))
        k("v_fma_f32 v%d, v%d, s35, -v%d" % (r, r, dl))
        k("v_max_f32 v%d, 0, v%d" % (r, r))
        bf16_round(k, r, r)
        k("v_add_f32 v%d, 0x%x, v%d" % (r, f2u(1e-5), r))
        bf16_round(k, r, r)
        k("v_sqrt_f32 v%d, v%d" % (r, r))
        bf16_round(k, r, r)
        k("v_rcp_f32 v%d, v%d" % (r, r))
        k("ds_write_b32 v246, v%d offset:%d" % (r, 32 * h))
    k("@waitlds all\ns_barrier")
    stamp(k, 0, 2)
    ACC, XF, WF = 104, 168, 200
    def reads(t):
        o = []
        b = t & 1
        for r in range(4):
            o.append("ds_read_b128 %s, v%d offset:%d" % (vr(XF + 16 * b + 4 * r, 4), 236 + (t & 1) + 2 * (r >> 1), XL + ((r & 1) * 18 + t) * 1024))
        for T in range(4):
            for j in range(2):
                o.append("ds_read_b64_tr_b16 %s, v%d offset:%d" % (vr(WF + 16 * b + 4 * T + 2 * j, 2), 240 + T, (t % 5) * 4096 + j * 2048))
        return o
    k("@waitvm w0")
    k.extend(reads(0))
    for t in range(18):
        b = t & 1
        main = []
        for u in range(16):
            T, r = u >> 2, u & 3
            a = vr(ACC + 16 * T + 4 * r, 4)
            main.append("v_mfma_f32_16x16x32_bf16 %s, %s, %s, %s" % (a, vr(XF + 16 * b + 4 * r, 4), vr(WF + 16 * b + 4 * T, 4), a if t else "0"))
        fill = {-1: ["@waitlds all"]}
        if t + 5 < 18: spread(fill, dma(t + 5), 0, 2)
        if t + 1 < 18:
            rd = reads(t + 1)
            spread(fill, rd[:4], 0, 3)
            fill.setdefault(3, []).append("@waitvm w%d" % (t + 1))
            spread(fill, rd[4:], 4, 11)
        else:
            spread(fill, ["ds_read_b128 %s, v245 offset:%d" % (vr(XR + 4 * r, 4), 128 * (r >> 1) + 16 * (r & 1)) for r in range(4)], 0, 3)
        k.extend(weave(main, fill))
    stamp(k, 0, 3)
    k("s_mul_i32 s28, s25, %d\ns_lshl_b32 s30, s24, 9\ns_add_u32 s28, s28, s30" % (16 * CGS))
    OUT = 40
    for T in range(4):
        o = OUT + 8 * T
        for r in range(4):
            a = ACC + 16 * T + 4 * r
            for b in range(4): k("v_mul_f32 v%d, v%d, v%d" % (a + b, a + b, XR + 4 * r + b))
            k("v_cvt_pk_bf16_f32 v%d, v%d, v%d\nv_cvt_pk_bf16_f32 v%d, v%d, v%d" % (o + 2 * r, a, a + 1, o + 2 * r + 1, a + 2, a + 3))
        k("buffer_store_dwordx4 %s, v244, s[16:19], s28 offen %s" % (vr(o, 4), SC))
        k("buffer_store_dwordx4 %s, v244, s[16:19], s28 offen offset:256 %s" % (vr(o + 4, 4), SC))
        if T < 3: k("s_add_u32 s28, s28, %d" % (4 * CGS))
    stamp(k, 0, 4)
    stamp_flush(k, 0, 5, 20)
    k("qkv_end:\ns_endpgm")
    return k, 224, 256, lds

def k2():
    k = K("attn_kernel"); k.vgpr = 256; k.sgpr = 100
    KB, VB, QB, ONES = 0, 20800, 41600, 41600 + 8 * 2048
    lds = ONES + 4096
    k("s_cmp_ge_u32 s2, 256\ns_cbranch_scc1 attn_end")
    stamp(k, 1, 0)
    k("s_load_dwordx2 s[20:21], s[0:1], 72")
    k("v_and_b32 v1, 63, v0\nv_lshrrev_b32 v2, 6, v0")
    k("v_readfirstlane_b32 s22, v2")
    k("s_lshr_b32 s23, s2, 5")
    k("s_and_b32 s24, s2, 7\ns_lshl_b32 s24, s24, 2\ns_bfe_u32 s25, s2, 0x20003\ns_add_u32 s24, s24, s25")
    stamp_init(k, 22)
    k("s_mul_i32 s25, s24, 18\ns_and_b32 s26, s25, 3\ns_lshr_b32 s25, s25, 2")
    k("s_lshr_b32 s27, s22, 2\ns_and_b32 s28, s22, 3")
    k("s_mul_i32 s29, s27, 144\ns_add_u32 s29, s29, s25\ns_add_u32 s29, s29, 144\ns_mul_i32 s29, s29, %d" % CGS)
    k("s_lshl_b32 s30, s23, 1\ns_add_u32 s30, s30, s28\ns_cmp_lt_u32 s30, 2\ns_cselect_b32 s31, 0, 2\ns_sub_u32 s30, s30, s31")
    k("s_lshl_b32 s30, s30, 10\ns_add_u32 s29, s29, s30")
    k("s_mul_i32 s30, s27, %d\ns_lshl_b32 s31, s28, 10\ns_add_u32 s30, s30, s31" % VB)
    k("v_lshlrev_b32 v3, 4, v1")
    k("s_mov_b32 s31, %d" % CGS)
    k("v_lshrrev_b32 v4, 4, v1\nv_mul_lo_u32 v4, v4, s31\nv_and_b32 v5, 15, v1\nv_lshl_add_u32 v4, v5, 4, v4")
    k("s_mul_i32 s32, s25, %d\ns_lshl_b32 s33, s23, 11\ns_add_u32 s32, s32, s33\ns_lshl_b32 s33, s22, 8\ns_add_u32 s32, s32, s33" % CGS)
    k("s_lshl_b32 s33, s22, 11\ns_add_u32 s33, s33, %d" % QB)
    k("s_waitcnt lgkmcnt(0)")
    k.srd(8, 20, Z_BYTES, WS_Z)
    k("s_mov_b32 m0, s33")
    k("buffer_load_dwordx4 v4, s[8:11], s32 offen lds ;#q")
    k("s_add_u32 m0, s33, 1024\ns_add_u32 s32, s32, %d" % (4 * CGS))
    k("buffer_load_dwordx4 v4, s[8:11], s32 offen lds ;#q")
    for c in range(5):
        k("s_add_u32 m0, s30, %d" % (c * 4160))
        k("buffer_load_dwordx4 v3, s[8:11], s29 offen lds ;#kv")
        if c < 4: k("s_add_u32 s29, s29, %d" % CGS)
    if "pfw" in OPT:
        k("s_load_dwordx4 s[4:7], s[0:1], 32\ns_load_dwordx2 s[96:97], s[0:1], 48\ns_waitcnt lgkmcnt(0)")
        k("v_lshlrev_b32 v5, 7, v0\ns_mul_i32 s98, s2, 20736")
        k("v_cmp_gt_u32 vcc, 162, v0\nv_mov_b32 v6, 0x7fff0000\nv_cndmask_b32 v5, v6, v5, vcc")
        for j, b in enumerate((4, 6, 96)):
            k.srd(92, b, D * F * 2)
            k("buffer_load_dword v%d, v5, s[92:95], s98 offen" % (250 + j))
    k("v_mov_b32 v6, 0x3f803f80\nv_mov_b32 v7, 0x3f803f80\nv_lshlrev_b32 v5, 3, v0")
    k("ds_write_b64 v5, v[6:7] offset:%d" % ONES)
    k.srd(12, 20, OP_BYTES, WS_OP)
    k.srd(16, 20, O2_BYTES, WS_O2)
    k("v_lshrrev_b32 v5, 5, v1")
    k("v_bfe_u32 v6, v1, 4, 1\nv_bfe_u32 v7, v1, 2, 2\nv_and_b32 v8, 3, v1")
    k("v_and_b32 v9, 1, v8\nv_lshl_add_u32 v9, v6, 1, v9\nv_lshlrev_b32 v9, 6, v9\nv_lshrrev_b32 v10, 1, v8\nv_lshl_add_u32 v9, v10, 3, v9")
    k("v_lshrrev_b32 v15, 1, v8\nv_lshl_add_u32 v15, v6, 1, v15\nv_lshlrev_b32 v15, 6, v15\nv_and_b32 v10, 1, v8\nv_lshl_add_u32 v15, v10, 3, v15")
    k("v_lshl_add_u32 v10, v5, 3, v7\nv_add_u32 v10, s26, v10")
    k("v_min_u32 v11, 1, v7\nv_add_u32 v11, s26, v11\nv_add_u32 v11, 16, v11")
    AK1, AK3, AQ1, AQ3, AV = 240, 241, 242, 243, 244
    k("s_lshl_b32 s34, s22, 8")
    for src, dk, dq in ((10, AK1, AQ1), (11, AK3, AQ3)):
        k("v_lshrrev_b32 v12, 2, v%d\nv_and_b32 v13, 3, v%d\nv_lshlrev_b32 v13, 4, v13" % (src, src))
        k("v_mul_u32_u24 v14, 4160, v12\nv_add3_u32 v14, v14, v13, v9\nv_add_u32 v%d, s34, v14" % dk)
        k("v_lshl_add_u32 v14, v12, 8, v13\nv_add3_u32 v%d, v14, v15, s33" % dq)
    k("v_and_b32 v10, 31, v1\nv_add_u32 v11, s26, v10\nv_lshrrev_b32 v12, 2, v11\nv_and_b32 v13, 3, v11")
    k("v_mul_u32_u24 v12, 4160, v12\nv_lshl_add_u32 v12, v13, 4, v12\nv_lshl_add_u32 v12, v5, 6, v12")
    k("s_add_u32 s35, s34, %d\nv_add_u32 v12, s35, v12" % VB)
    k("v_mov_b32 v13, %d\nv_cmp_gt_u32 vcc, 18, v10\nv_cndmask_b32 v%d, v13, v12, vcc" % (ONES + 64, AV))
    k("v_lshlrev_b32 v11, 3, v5\nv_sub_u32 v11, v10, v11")
    MK = 224
    k("v_mov_b32 v12, 0xffff\nv_mov_b32 v13, 0xffff0000")
    for rho in range(16):
        a, b = rho >> 2, rho & 3
        kc = 16 * (a >> 1) + 4 * (a & 1) + b
        k("v_cmp_le_i32 s[%d:%d], %d, v11" % (36 + 2 * rho, 37 + 2 * rho, kc))
    for i in range(8):
        k("v_cndmask_b32 v14, 0, v12, s[%d:%d]\nv_cndmask_b32 v15, 0, v13, s[%d:%d]\nv_or_b32 v%d, v14, v15" % (36 + 4 * i, 37 + 4 * i, 38 + 4 * i, 39 + 4 * i, MK + i))
    k("s_lshl_b32 s68, s23, 8\ns_lshl_b32 s69, s22, 5\ns_add_u32 s68, s68, s69")
    k("v_lshl_add_u32 v245, v5, 11, v10\nv_lshlrev_b32 v245, 4, v245\nv_lshlrev_b32 v246, 2, v10")
    k("s_lshl_b32 s69, s24, 12\ns_add_u32 s69, s69, s68\ns_lshl_b32 s69, s69, 4")
    k("s_lshl_b32 s70, s24, 11\ns_add_u32 s70, s70, s68\ns_lshl_b32 s70, s70, 2")
    SCO, QF, KF, VF, OA = 16, 160, 168, 192, 208
    for i in range(3):
        k("v_mov_b32 v%d, 0\nv_mov_b32 v%d, 0" % (KF + 8 * i + 6, KF + 8 * i + 7))
    k("v_mov_b32 v%d, 0\nv_mov_b32 v%d, 0" % (QF + 6, QF + 7))
    k("@waitvm q")
    k("ds_read_b64_tr_b16 %s, v%d\nds_read_b64_tr_b16 %s, v%d offset:256\nds_read_b64_tr_b16 %s, v%d" % (vr(QF, 2), AQ1, vr(QF + 2, 2), AQ1, vr(QF + 4, 2), AQ3))
    k("v_cmp_gt_u32 vcc, 32, v1")
    k("v_cndmask_b32 v%d, 0, v%d, vcc\nv_mov_b32 v%d, 0" % (QF + 4, QF + 4, QF + 5))
    k("@waitvm kv\n@waitlds all\ns_barrier")
    stamp(k, 1, 1)
    def kread(j):
        f = KF + 8 * (j % 3)
        return ["ds_read_b64_tr_b16 %s, v%d offset:%d" % (vr(f, 2), AK1, KB + 256 * j),
                "ds_read_b64_tr_b16 %s, v%d offset:%d" % (vr(f + 2, 2), AK1, KB + 256 * j + 4160),
                "ds_read_b64_tr_b16 %s, v%d offset:%d" % (vr(f + 4, 2), AK3, KB + 256 * j)]
    order = [0, 8, 1, 2, 3, 4, 5, 6, 7]
    def kread_n(n):
        j = order[n]; f = KF + 8 * (n % 3)
        return ["ds_read_b64_tr_b16 %s, v%d offset:%d" % (vr(f, 2), AK1, KB + 256 * j),
                "ds_read_b64_tr_b16 %s, v%d offset:%d" % (vr(f + 2, 2), AK1, KB + 256 * j + 4160),
                "ds_read_b64_tr_b16 %s, v%d offset:%d" % (vr(f + 4, 2), AK3, KB + 256 * j)]
    k.extend(kread_n(0)); k.extend(kread_n(1))
    for n in range(9):
        j = order[n]; f = KF + 8 * (n % 3); s = vr(SCO + 16 * j, 16)
        if n + 2 < 9: k.extend(kread_n(n + 2))
        k("v_mfma_f32_32x32x16_bf16 %s, %s, %s, 0" % (s, vr(f, 4), vr(QF, 4)))
        k("v_mfma_f32_32x32x16_bf16 %s, %s, %s, %s" % (s, vr(f + 4, 4), vr(QF + 4, 4), s))
    def vread(n2):
        return "ds_read_b128 %s, v%d offset:%d" % (vr(VF + 4 * (n2 % 4), 4), AV, 128 * n2)
    k("s_nop 7\ns_nop 3")
    k("s_cmp_lg_u32 s23, 0\ns_cbranch_scc1 attn_nomask")
    for j in range(8):
        k("s_cmp_ge_u32 s22, %d\ns_cbranch_scc1 attn_nomask" % (8 - j))
        for i in range(16): k("v_mov_b32 v%d, 0xff800000" % (SCO + 16 * j + i))
    k("attn_nomask:")
    for rho in range(16):
        k("v_cndmask_b32 v%d, v%d, v%d, s[%d:%d]" % (SCO + rho, SCO + rho, SCO + 128 + rho, 36 + 2 * rho, 37 + 2 * rho))
    k("v_max3_f32 v2, v%d, v%d, v%d\nv_max3_f32 v3, v%d, v%d, v%d" % (SCO, SCO + 1, SCO + 2, SCO + 3, SCO + 4, SCO + 5))
    i = 6
    n = 0
    while i < 128:
        r = 2 + (n & 1)
        k("v_max3_f32 v%d, v%d, v%d, v%d" % (r, r, SCO + i, SCO + i + 1)); i += 2; n += 1
    k("v_max_f32 v2, v2, v3\nv_mov_b32 v3, v2\nv_permlane32_swap_b32 v2, v3\nv_max_f32 v2, v2, v3")
    c = LOG2E * DH ** -0.5
    k("s_mov_b32 s71, 0x%x\nv_mul_f32 v2, s71, v2" % f2u(c))
    stamp(k, 1, 2)
    border = [1, 2, 3, 4, 5, 6, 7, 0]
    pv = []
    nv = 0
    vq = [(j, s) for j in [1, 2, 3, 4, 5, 6, 7, 0, 8] for s in range(2)]
    def vrd(i):
        j, s = vq[i]
        return "ds_read_b128 %s, v%d offset:%d" % (vr(VF + 4 * (i % 4), 4), AV, 256 * j + 128 * s)
    k(vrd(0)); k(vrd(1))
    first = True
    def pvm(i):
        nonlocal first
        j, s = vq[i]
        o = "v_mfma_f32_32x32x16_bf16 %s, %s, %s, %s" % (vr(OA, 16), vr(VF + 4 * (i % 4), 4), vr(SCO + 16 * j + 4 * s, 4), "0" if first else vr(OA, 16))
        first = False
        return o
    pend = []
    for bi, j in enumerate(border):
        b = SCO + 16 * j
        ops = []
        for hf in range(2):
            for i in range(8): ops.append("v_fma_f32 v%d, v%d, s71, -v2" % (b + 8 * hf + i, b + 8 * hf + i))
            for i in range(8): ops.append("v_exp_f32 v%d, v%d" % (b + 8 * hf + i, b + 8 * hf + i))
            for i in range(4): ops.append("v_cvt_pk_bf16_f32 v%d, v%d, v%d" % (b + 4 * hf + i, b + 8 * hf + 2 * i, b + 8 * hf + 2 * i + 1))
        fill = {}
        if bi > 0:
            i0 = 2 * (bi - 1)
            fill[3] = [pvm(i0)]; fill[4] = [vrd(i0 + 2)]
            fill[22] = [pvm(i0 + 1)]; fill[23] = [vrd(i0 + 3)]
        k.extend(weave(ops, fill))
    for i in range(8):
        k("v_and_b32 v%d, v%d, v%d" % (SCO + 128 + i, SCO + i, MK + i))
        k("v_xor_b32 v%d, v%d, v%d" % (SCO + i, SCO + i, SCO + 128 + i))
    k(pvm(14)); k(vrd(16)); k(pvm(15)); k(vrd(17)); k(pvm(16)); k(pvm(17))
    k("v_rcp_f32 v3, v%d" % (OA + 12))
    for i in range(10): k("v_mul_f32 v%d, v%d, v3" % (OA + i, OA + i))
    for i in range(5): k("v_cvt_pk_bf16_f32 v%d, v%d, v%d" % (4 + i, OA + 2 * i, OA + 2 * i + 1))
    stamp(k, 1, 3)
    k("buffer_store_dwordx4 v[4:7], v245, s[12:15], s69 offen %s" % SC)
    k("s_mov_b32 exec_hi, 0")
    k("buffer_store_dword v8, v246, s[16:19], s70 offen %s" % SC)
    stamp_flush(k, 1, 4, 20)
    k("attn_end:\ns_endpgm")
    return k, 256, 512, lds

def tr_addrs(k, dst, lanereg, basesreg, t0=2):
    a, b, c, d = t0, t0 + 1, t0 + 2, t0 + 3
    k("v_bfe_u32 v%d, v%d, 2, 3" % (a, lanereg))
    k("v_lshrrev_b32 v%d, 5, v%d\nv_lshlrev_b32 v%d, 10, v%d\nv_lshl_add_u32 v%d, v%d, 7, v%d" % (b, lanereg, b, b, b, a, b))
    k("v_and_b32 v%d, 3, v%d\nv_lshl_add_u32 v%d, v%d, 3, v%d" % (c, lanereg, b, c, b))
    if basesreg is not None: k("v_add_u32 v%d, %s, v%d" % (b, basesreg, b))
    k("v_lshrrev_b32 v%d, 1, v%d" % (a, a))
    for T in range(4):
        k("v_xor_b32 v%d, %d, v%d\nv_lshl_add_u32 v%d, v%d, 5, v%d" % (c, T, a, dst + T, c, b))

def dma_piece(k, dst, lanereg, t0):
    k("v_lshrrev_b32 v%d, 3, v%d" % (t0, lanereg))
    k("v_and_b32 v%d, 6, v%d\nv_and_b32 v%d, 7, v%d\nv_xor_b32 v%d, v%d, v%d\nv_lshlrev_b32 v%d, 4, v%d" % (dst, t0, t0 + 1, lanereg, dst, dst, t0 + 1, dst, dst))

def k3():
    k = K("oproj_kernel"); k.vgpr = 160; k.sgpr = 100
    lds = 72 * 1024
    k("s_and_b32 s3, s2, 7\ns_mul_i32 s3, s3, 30\ns_lshr_b32 s4, s2, 3\ns_add_u32 s3, s3, s4")
    k("s_cmp_ge_u32 s2, 240\ns_cbranch_scc1 oproj_end\ns_cmp_ge_u32 s3, 234\ns_cbranch_scc1 oproj_end")
    stamp(k, 2, 0)
    k("s_load_dwordx2 s[4:5], s[0:1], 0\ns_load_dwordx2 s[6:7], s[0:1], 16\ns_load_dwordx2 s[20:21], s[0:1], 72")
    k("v_and_b32 v1, 63, v0\nv_lshrrev_b32 v2, 6, v0")
    k("v_readfirstlane_b32 s22, v2")
    k("s_mul_i32 s23, s3, 7282\ns_lshr_b32 s23, s23, 16")
    k("s_mul_i32 s24, s23, 9\ns_sub_u32 s24, s3, s24")
    k("s_mul_i32 s25, s23, 5\ns_add_u32 s25, s25, s22")
    stamp_init(k, 22)
    VD, VE = 140, 144
    dma_piece(k, 4, 1, 2)
    k("v_mul_u32_u24 v5, 1152, v2\nv_add_u32 v5, v5, v4")
    un = [0, 18, 8, 26]
    for a in range(4): k("v_add_u32 v%d, %d, v5" % (VD + a, un[a] * 1152 - a * 1024))
    k("v_lshrrev_b32 v5, 2, v2\nv_lshlrev_b32 v5, 2, v5\nv_bfe_u32 v6, v2, 1, 1\nv_add_u32 v5, v5, v6\nv_mul_u32_u24 v5, 18, v5\nv_and_b32 v6, 1, v2\nv_add_u32 v5, v5, v6")
    k("v_mul_u32_u24 v5, 1152, v5\nv_add_u32 v5, v5, v4")
    k("s_cmp_eq_u32 s22, 0\ns_cselect_b64 s[26:27], -1, 0")
    ue = [16, 18 * 8 + 16, 18 * 2 + 16, 18 * 10 + 16]
    for a in range(4):
        k("v_add_u32 v6, %d, v5\nv_cndmask_b32 v%d, v6, v%d, s[26:27]" % (ue[a] * 1152 - a * 1024, VE + a, VD + a))
    k("v_and_b32 v6, 15, v1\nv_lshrrev_b32 v7, 4, v1")
    k("v_lshl_add_u32 v8, v7, 11, v6\nv_lshlrev_b32 v8, 4, v8")
    k("v_lshl_add_u32 v9, v7, 13, v6\nv_lshlrev_b32 v9, 2, v9")
    k("s_lshl_b32 s28, s24, 7\ns_mul_i32 s29, s22, %d\ns_add_u32 s29, s29, s28" % (36 * 1152))
    k("s_lshl_b32 s30, s22, 12")
    k("s_min_u32 s46, s25, 127")
    k("s_lshl_b32 s31, s46, 8")
    k("s_lshl_b32 s32, s46, 6")
    k("s_add_u32 s33, s22, 1\ns_and_b32 s33, s33, 1")
    k("s_mul_i32 s34, s33, %d\ns_add_u32 s34, s34, s28\ns_add_u32 s35, s28, %d" % (18 * 16 * 1152, 15 * 36 * 1152))
    k("s_add_u32 s33, s33, 16\ns_cmp_eq_u32 s22, 0\ns_cselect_b32 s34, s35, s34\ns_cselect_b32 s33, 15, s33\ns_lshl_b32 s33, s33, 12")
    k("s_waitcnt lgkmcnt(0)")
    k.srd(8, 6, D * D * 2)
    k.srd(12, 20, OP_BYTES, WS_OP)
    k.srd(16, 20, O2_BYTES, WS_O2)
    BF = 16
    for c in range(4):
        if c < 3:
            k("s_add_u32 m0, s30, %d" % (c * 20480))
            for a in range(4): k("buffer_load_dwordx4 v%d, s[8:11], s29 offen offset:%d lds ;#w%d" % (VD + a, 1024 * a, c))
            k("s_add_u32 s29, s29, %d" % (5 * 36 * 1152))
        else:
            k("s_mov_b32 m0, s33")
            for a in range(4): k("buffer_load_dwordx4 v%d, s[8:11], s34 offen offset:%d lds ;#w%d" % (VE + a, 1024 * a, c))
        for t in range(5 * c, min(5 * c + 5, 18)):
            if t < 16:
                k("buffer_load_dwordx4 %s, v8, s[12:15], s31 offen" % vr(BF + 4 * t, 4))
                k("s_add_u32 s31, s31, %d" % (4 * 32768))
            else:
                for e in range(4):
                    k("buffer_load_dword v%d, v9, s[16:19], s32 offen" % (BF + 4 * t + e))
                    k("s_add_u32 s32, s32, %d" % (8192 if e < 3 else 13 * 8192))
    k.srd(36, 4, X_BYTES)
    XR = 88
    k("v_mul_u32_u24 v10, 1152, v6\nv_lshl_add_u32 v10, v7, 3, v10\ns_mul_i32 s40, s46, %d\ns_add_u32 s40, s40, s28" % (16 * 1152))
    for T in range(4): k("buffer_load_dwordx2 %s, v10, s[36:39], s40 offen offset:%d" % (vr(XR + 2 * T, 2), 32 * T))
    TA = 148
    tr_addrs(k, TA, 1, None, 2)
    for T in range(4): k("v_add_u32 v%d, 40960, v%d" % (TA + 4 + T, TA + T))
    k.srd(12, 20, H_BYTES, WS_H)
    k.srd(16, 20, ST_BYTES, WS_ST)
    ACC, WF = 96, 112
    seq = [(t, T) for t in range(18) for T in range(4)]
    def rd(n):
        t, T = seq[n]; f = WF + 4 * (n % 6)
        ab, off = (TA + T, t * 4096) if t < 10 else (TA + 4 + T, (t - 10) * 4096)
        return ["ds_read_b64_tr_b16 %s, v%d offset:%d" % (vr(f + 2 * j, 2), ab, off + 2048 * j) for j in range(2)]
    bounds = [0, 20, 40, 60, 72]
    for c in range(4):
        k("@waitvm w%d\ns_barrier" % c)
        if c == 0: stamp(k, 2, 1)
        lo, hi = bounds[c], bounds[c + 1]
        LA = 4
        for n in range(lo, min(lo + LA, hi)): k.extend(rd(n))
        for n in range(lo, hi):
            if n + LA < hi: k.extend(rd(n + LA))
            t, T = seq[n]; a = vr(ACC + 4 * T, 4)
            k("v_mfma_f32_16x16x32_bf16 %s, %s, %s, %s" % (a, vr(WF + 4 * (n % 6), 4), vr(BF + 4 * t, 4), a if t else "0"))
    stamp(k, 2, 2)
    k("s_cmp_ge_u32 s25, 128\ns_cbranch_scc1 oproj_end")
    k("s_mov_b32 s41, 0x00003f80\ns_mov_b32 s42, 0x3f800000\ns_mov_b32 s43, 0x3f803f80")
    HO, TT = 16, 24
    k("v_mov_b32 v40, 0\nv_mov_b32 v41, 0")
    for T in range(4):
        a = ACC + 4 * T
        for j in range(2):
            k("v_cvt_pk_bf16_f32 v%d, v%d, v%d" % (TT + 2 * T + j, a + 2 * j, a + 2 * j + 1))
    for T in range(4):
        a = ACC + 4 * T
        for j in range(2):
            p = TT + 2 * T + j
            k("v_lshlrev_b32 v%d, 16, v%d\nv_and_b32 v%d, 0xffff0000, v%d" % (a + 2 * j, p, a + 2 * j + 1, p))
    for T in range(4):
        a = ACC + 4 * T
        for j in range(2):
            k("v_dot2c_f32_bf16 v%d, s41, v%d\nv_dot2c_f32_bf16 v%d, s42, v%d" % (a + 2 * j, XR + 2 * T + j, a + 2 * j + 1, XR + 2 * T + j))
    for T in range(4):
        a = ACC + 4 * T
        for j in range(2):
            k("v_cvt_pk_bf16_f32 v%d, v%d, v%d" % (HO + 2 * T + j, a + 2 * j, a + 2 * j + 1))
    k("v_lshlrev_b32 v2, 4, v1\ns_mul_i32 s44, s25, 18\ns_lshl_b32 s45, s24, 1\ns_add_u32 s44, s44, s45\ns_lshl_b32 s44, s44, 10")
    k("buffer_store_dwordx4 %s, v2, s[12:15], s44 offen %s" % (vr(HO, 4), SC))
    k("buffer_store_dwordx4 %s, v2, s[12:15], s44 offen offset:1024 %s" % (vr(HO + 4, 4), SC))
    for i in range(8):
        k("v_dot2c_f32_bf16 v40, s43, v%d\nv_dot2c_f32_bf16 v41, v%d, v%d" % (HO + i, HO + i, HO + i))
    for sw in ("v_permlane16_swap_b32", "v_permlane32_swap_b32"):
        k("v_mov_b32 v42, v40\nv_mov_b32 v43, v41")
        k("%s v40, v42\n%s v41, v43" % (sw, sw))
        k("v_add_f32 v40, v40, v42\nv_add_f32 v41, v41, v43")
    k("v_lshlrev_b32 v2, 3, v6\ns_lshl_b32 s44, s24, 14\ns_lshl_b32 s45, s25, 7\ns_add_u32 s44, s44, s45")
    k("s_mov_b32 exec_lo, 0xffff\ns_mov_b32 exec_hi, 0")
    k("buffer_store_dwordx2 v[40:41], v2, s[16:19], s44 offen %s" % SC)
    stamp_flush(k, 2, 3, 20)
    k("oproj_end:\ns_endpgm")
    return k, 240, 320, lds

def k4():
    k = K("ffn_kernel"); k.vgpr = 256; k.agpr = 256 if "mockB" in OPT else 144; k.sgpr = 100
    SLOT = 36864
    lds = 4 * SLOT
    k("s_cmp_ge_u32 s2, 256\ns_cbranch_scc1 ffn_end")
    stamp(k, 3, 0)
    k("s_load_dwordx4 s[4:7], s[0:1], 32\ns_load_dwordx4 s[36:39], s[0:1], 48\ns_load_dwordx2 s[20:21], s[0:1], 72")
    k("v_and_b32 v1, 63, v0\nv_lshrrev_b32 v2, 6, v0")
    k("v_readfirstlane_b32 s22, v2")
    if "map84" in OPT:
        k("s_and_b32 s23, s2, 1\ns_lshl_b32 s23, s23, 3\ns_bfe_u32 s25, s2, 0x30003\ns_add_u32 s23, s23, s25")
        k("s_bfe_u32 s24, s2, 0x20001\ns_lshl_b32 s24, s24, 2\ns_lshr_b32 s25, s2, 6\ns_add_u32 s24, s24, s25")
    elif "map48" in OPT:
        k("s_and_b32 s23, s2, 3\ns_lshl_b32 s23, s23, 2\ns_bfe_u32 s25, s2, 0x20003\ns_add_u32 s23, s23, s25")
        k("s_bfe_u32 s24, s2, 0x10002\ns_lshl_b32 s24, s24, 3\ns_lshr_b32 s25, s2, 5\ns_add_u32 s24, s24, s25")
    else:
        k("s_lshr_b32 s23, s2, 4\ns_and_b32 s24, s2, 15")
    stamp_init(k, 22)
    XF, GA, UA = 16, 160, 192
    VG, VM, VW, TA, TM, C1, C2, TMP = 224, 228, 232, 236, 240, 242, 244, 246
    AF, HF = 0, 72
    WB = D * F * 2
    k("s_and_b32 s25, s24, 1\ns_mul_i32 s26, s24, 576\ns_lshl_b32 s27, s25, 6\ns_add_u32 s27, s27, s26")
    k("s_xor_b32 s25, s25, 1\ns_lshl_b32 s25, s25, 9\ns_add_u32 s28, s25, s26")
    k("s_lshl_b32 s29, s23, 3\ns_lshl_b32 s30, s22, 1\ns_add_u32 s29, s29, s30")
    k("v_and_b32 v6, 15, v1\nv_lshrrev_b32 v7, 4, v1")
    k("v_lshl_add_u32 v8, v7, 11, v6\nv_lshlrev_b32 v8, 3, v8\nv_lshlrev_b32 v9, 4, v1")
    k("v_add_u32 v12, 0x10000, v8\nv_add_u32 v13, 0x20000, v8")
    k("s_lshl_b32 s30, s29, 7\ns_mul_i32 s31, s29, 18432")
    dma_piece(k, 4, 1, 2)
    k("v_mul_u32_u24 v5, 9216, v2\nv_add_u32 v5, v5, v4")
    for a in range(4): k("v_add_u32 v%d, %d, v5" % (VG + a, a * (8 * 9216 - 1024)))
    k("s_waitcnt lgkmcnt(0)")
    k.srd(8, 20, ST_BYTES, WS_ST)
    k.srd(12, 20, H_BYTES, WS_H)
    ST = GA
    for r in range(2):
        for j in range(3):
            k("buffer_load_dwordx2 %s, v%d, s[8:11], s30 offen offset:%d" % (vr(ST + 6 * r + 2 * j, 2), (8, 12, 13)[j], 128 * r))
    k.srd(40, 4, WB)
    k.srd(44, 6, WB)
    k.srd(48, 36, WB)
    k("s_cmp_lt_u32 s22, 2\ns_cselect_b32 s52, s40, s44\ns_cselect_b32 s53, s41, s45\ns_mov_b32 s54, 0x%x\ns_mov_b32 s55, 0x20000" % WB)
    k("s_mul_i32 s56, s22, %d\ns_add_u32 s56, s56, s27" % (64 * 9216))
    k("s_mul_i32 s57, s22, %d\ns_add_u32 s57, s57, s27\ns_add_u32 s57, s57, %d" % (8 * 9216, 256 * 9216))
    k("s_lshl_b32 s58, s22, 13\ns_lshl_b32 s59, s22, 10\ns_add_u32 s59, s59, 32768")
    stages = []
    for B in range(4): stages += [("G", B, 0), ("G", B, 1), ("U", B, 0), ("U", B, 1)]
    stages += [("M", 4, 0), ("M", 4, 1)]
    stages += [("D", c, 0) for c in range(9)]
    NS = len(stages)
    def dma(n):
        kind, B, kh = stages[n]
        sl = (n % 4) * SLOT
        o = []
        if kind in "GU":
            srd = "s[40:43]" if kind == "G" else "s[44:47]"
            off = 128 * B + kh * 288 * 9216
            for g in range(2):
                pre = ["s_add_u32 m0, s58, %d" % (sl + 4096 * g), "s_add_u32 s60, s56, %d" % (off + g * 32 * 9216)]
                for a in range(4):
                    o.append(pre + ["buffer_load_dwordx4 v%d, %s, s60 offen offset:%d lds ;#s%d" % (VG + a, srd, 1024 * a, n)]); pre = []
            o.append(["s_add_u32 m0, s59, %d" % sl, "s_add_u32 s60, s57, %d" % off, "buffer_load_dwordx4 v%d, %s, s60 offen lds ;#s%d" % (VG, srd, n)])
        elif kind == "M":
            for g in range(3):
                pre = ["s_add_u32 m0, s61, %d" % (sl + 4096 * g), "s_add_u32 s60, s62, %d" % (kh * 288 * 9216 + g * 64 * 9216)]
                for a in range(4 if g < 2 else 1):
                    o.append(pre + ["buffer_load_dwordx4 v%d, s[52:55], s60 offen offset:%d lds ;#s%d" % (VM + a, 1024 * a, n)]); pre = []
        else:
            for g in range(2):
                pre = ["s_add_u32 m0, s58, %d" % (sl + 4096 * g), "s_add_u32 s60, s63, %d" % (128 * B + g * 32 * 1152)]
                for a in range(4):
                    o.append(pre + ["buffer_load_dwordx4 v%d, s[48:51], s60 offen offset:%d lds ;#s%d" % (VW + a, 1024 * a, n)]); pre = []
            o.append(["s_add_u32 m0, s59, %d" % sl, "s_add_u32 s60, s64, %d" % (128 * B), "buffer_load_dwordx4 v%d, s[48:51], s60 offen lds ;#s%d" % (VW, n)])
        return o
    def xload(r, t):
        return ["s_add_u32 s32, s31, %d" % ((r * 18 + t) // 4 * 4096) if (r * 18 + t) % 4 == 0 or True else "",
                "buffer_load_dwordx4 %s, v9, s[12:15], s32 offen offset:%d" % (vr(XF + 72 * r + 4 * t, 4), ((r * 18 + t) % 4) * 1024)]
    d0, d1 = dma(0), dma(1)
    for t in range(9):
        for r in range(2): k.extend(xload(r, t))
        k.extend(d0[t])
    for t in range(9, 18):
        for r in range(2): k.extend(xload(r, t))
        k.extend(d1[t - 9])
    k("v_mul_u32_u24 v5, 1152, v2\nv_add_u32 v5, v5, v4")
    for a in range(4): k("v_add_u32 v%d, %d, v5" % (VW + a, a * (8 * 1152 - 1024)))
    k("v_lshrrev_b32 v2, 2, v1\nv_mul_u32_u24 v5, 9216, v2\nv_bfe_u32 v3, v1, 4, 1\nv_lshlrev_b32 v3, 1, v3\nv_and_b32 v4, 3, v1\nv_xor_b32 v3, v3, v4\nv_lshl_add_u32 v5, v3, 4, v5")
    for a in range(4): k("v_add_u32 v%d, %d, v5" % (VM + a, a * (16 * 9216 - 1024)))
    k("s_mul_i32 s61, s22, 9216\ns_and_b32 s62, s22, 1\ns_mul_i32 s62, s62, %d\ns_add_u32 s62, s62, s28" % (144 * 9216))
    k("s_lshr_b32 s63, s27, 1\ns_lshl_b32 s64, s22, 6\ns_add_u32 s63, s63, s64\ns_mul_i32 s63, s63, 1152")
    k("s_lshr_b32 s64, s28, 1\ns_lshl_b32 s65, s22, 3\ns_add_u32 s64, s64, s65\ns_mul_i32 s64, s64, 1152")
    tr_addrs(k, TA, 1, None, 2)
    k("v_lshrrev_b32 v2, 2, v1\nv_lshlrev_b32 v2, 6, v2\nv_and_b32 v3, 3, v1\nv_lshl_add_u32 v2, v3, 3, v2\nv_bfe_u32 v3, v1, 4, 1")
    k("v_lshl_add_u32 v%d, v3, 5, v2\nv_xor_b32 v%d, 32, v%d" % (TM, TM + 1, TM))
    k("s_mov_b32 s33, 0x00003f80\ns_mov_b32 s34, 0x3f800000\ns_mov_b32 s35, 0x%x" % f2u(1.0 / D))
    for r in range(2):
        b = ST + 6 * r
        k("v_add_f32 v%d, v%d, v%d\nv_add_f32 v%d, v%d, v%d" % (b, b, b + 2, b + 1, b + 1, b + 3))
        k("v_add_f32 v%d, v%d, v%d\nv_add_f32 v%d, v%d, v%d" % (b, b, b + 4, b + 1, b + 1, b + 5))
        for sw in ("v_permlane16_swap_b32", "v_permlane32_swap_b32"):
            k("v_mov_b32 v%d, v%d\nv_mov_b32 v%d, v%d" % (b + 2, b, b + 3, b + 1))
            k("%s v%d, v%d\n%s v%d, v%d" % (sw, b, b + 2, sw, b + 1, b + 3))
            k("v_add_f32 v%d, v%d, v%d\nv_add_f32 v%d, v%d, v%d" % (b, b, b + 2, b + 1, b + 1, b + 3))
        k("v_mul_f32 v%d, s35, v%d" % (b, b))
        k("v_mul_f32 v%d, v%d, v%d" % (b + 2, b, b))
        k("v_fma_f32 v%d, v%d, s35, -v%d" % (b + 1, b + 1, b + 2))
        k("v_max_f32 v%d, 0, v%d" % (b + 1, b + 1))
        bf16_round(k, b, b)
        k("v_sub_f32 v%d, 0, v%d" % (10 + r, b))
        bf16_round(k, b + 1, b + 1)
        k("v_add_f32 v%d, 0x%x, v%d" % (b + 1, f2u(1e-5), b + 1))
        bf16_round(k, b + 1, b + 1)
        k("v_sqrt_f32 v%d, v%d" % (b + 1, b + 1))
        bf16_round(k, b + 1, b + 1)
        k("v_mul_f32 v%d, v%d, v%d" % (C2 + r, b + 1, b + 1))
        k("v_rcp_f32 v%d, v%d" % (b + 1, b + 1))
        k("v_mul_f32 v%d, 0x%x, v%d" % (C1 + r, f2u(-LOG2E), b + 1))
    def center(r, t):
        x = XF + 72 * r + 4 * t
        o = []
        for c in range(4):
            o.append("v_dot2_f32_bf16 v%d, v%d, s33, v%d" % (TMP + 2 * c, x + c, 10 + r))
            o.append("v_dot2_f32_bf16 v%d, v%d, s34, v%d" % (TMP + 2 * c + 1, x + c, 10 + r))
        for c in range(4):
            o.append("v_cvt_pk_bf16_f32 v%d, v%d, v%d" % (x + c, TMP + 2 * c, TMP + 2 * c + 1))
        return o
    d2 = dma(2)
    for t in range(18):
        for r in range(2): k.extend(center(r, t))
        if t % 2 == 0: k.extend(d2[t // 2])
    k.srd(8, 20, P_BYTES, WS_P)
    XCH = "xch" in OPT
    if not XCH:
        k("s_lshl_b32 s66, s23, 4\ns_add_u32 s66, s66, s24\ns_lshl_b32 s66, s66, 2\ns_add_u32 s66, s66, s22\ns_mul_i32 s66, s66, 36864")
    else:
        k("s_lshl_b32 s66, s23, 4\ns_lshl_b32 s67, s22, 2\ns_add_u32 s66, s66, s67\ns_mul_i32 s66, s66, 144\ns_add_u32 s66, s66, s24\ns_lshl_b32 s66, s66, 10")
        k("s_lshl_b32 s68, s23, 4\ns_add_u32 s68, s68, s24\ns_mul_i32 s68, s68, 147456\ns_lshl_b32 s67, s22, 8\ns_add_u32 s68, s68, s67")
        k("s_lshl_b32 s69, s23, 2\ns_add_u32 s69, s69, s22\ns_mul_i32 s69, s69, 576\ns_lshl_b32 s67, s24, 2\ns_add_u32 s69, s69, s67")
        k("s_lshl_b32 s70, s23, 2\ns_lshr_b32 s67, s24, 2\ns_add_u32 s70, s70, s67\ns_mul_i32 s70, s70, 576")
        k("s_lshl_b32 s71, s23, 3\ns_lshr_b32 s67, s24, 1\ns_add_u32 s67, s67, s71\ns_mul_i32 s71, s67, 18\ns_and_b32 s72, s24, 1\ns_add_u32 s71, s71, s72")
        k("s_lshl_b32 s71, s71, 10\ns_lshl_b32 s73, s22, 8\ns_add_u32 s71, s71, s73")
        k("s_mul_i32 s67, s67, 18432\ns_lshl_b32 s72, s72, 6\ns_add_u32 s72, s72, s67\ns_lshl_b32 s73, s22, 3\ns_add_u32 s72, s72, s73")
        k.srd(16, 20, FL_BYTES, WS_FL)
        k.srd(96, 38, X_BYTES)
        k("s_mov_b32 s65, 200000")
        k("v_lshlrev_b32 v12, 2, v6\nv_lshlrev_b32 v13, 4, v6\nv_lshl_add_u32 v13, v7, 10, v13")
        k("v_mov_b32 v2, 0x7fff0000\nv_cmp_gt_u32 vcc, 16, v1\nv_lshlrev_b32 v14, 4, v6\nv_cndmask_b32 v14, v2, v14, vcc")
        k("v_mul_u32_u24 v15, 1152, v6\nv_lshl_add_u32 v15, v7, 5, v15\nv_cmp_gt_u32 vcc, 32, v1\nv_cndmask_b32 v15, v2, v15, vcc")
        k("v_cmp_eq_u32 vcc, 0, v1\nv_cndmask_b32 v3, v2, v1, vcc\nv_mov_b32 v4, 1")
    stamp(k, 3, 1)

    cur_pair = [0, 0]
    def frag_reads(n, T):
        kind, B, kh = stages[n]
        gt = n * 4 + T
        f0 = AF + 36 * (gt & 1)
        sl = n % 4
        o = []
        if kind == "M":
            which, regs, nreg = 1, TM, 2
        else:
            which, regs, nreg = 0, TA, 4
        pre = []
        if cur_pair[which] != sl:
            d = (sl - cur_pair[which]) * SLOT
            for q in range(nreg):
                pre.append("v_add_u32 v%d, %d, v%d" % (regs + q, d, regs + q) if d > 0 else "v_subrev_u32 v%d, %d, v%d" % (regs + q, -d, regs + q))
            cur_pair[which] = sl
        for j in range(9):
            for h in range(2):
                if kind == "M":
                    a, off = TM + (T & 1), (T >> 1) * 18432 + j * 2048 + h * 1024
                else:
                    a, off = TA + T, j * 4096 + h * 2048
                o.append("ds_read_b64_tr_b16 %s, v%d offset:%d ;#f%d%s" % (ar(f0 + 4 * j + 2 * h, 2), a, off, gt, "a" if j < 4 else "b"))
        return pre, o
    def acc_of(n, T, r):
        kind, B, kh = stages[n]
        if kind == "G": return GA + 8 * T + 4 * r
        if kind == "U": return UA + 8 * T + 4 * r
        if kind == "M": return (GA if T < 2 else UA) + 8 * (T & 1) + 4 * r
        return GA + ((n * 8 + 2 * T + r) % 16) * 4
    main = []
    for n in range(NS):
        kind, B, kh = stages[n]
        for T in range(4):
            f0 = AF + 36 * ((n * 4 + T) & 1)
            for r in range(2):
                a = vr(acc_of(n, T, r), 4)
                for j in range(9):
                    if kind == "D": b = ar(HF + 36 * r + 4 * j, 4)
                    else: b = vr(XF + 72 * r + 4 * (9 * kh + j), 4)
                    c = "0" if (j == 0 and (kh == 0 or kind == "D")) else a
                    main.append("v_mfma_f32_16x16x32_bf16 %s, %s, %s, %s" % (a, ar(f0 + 4 * j, 4), b, c))
    NM = len(main)
    fill = {}
    load = [0.0] * (NM + 1)
    def put(g, items, cost=None):
        if isinstance(items, str): items = [items]
        fill.setdefault(g, []).extend(items)
        load[max(g, 0)] += len([x for x in items if not x.startswith("@")]) if cost is None else cost
    pre, o = frag_reads(0, 0)
    fill[-1] = ["@waitvm s0", "s_barrier"] + pre + o
    for n in range(NS):
        for T in range(4):
            g0 = (n * 4 + T) * 18
            gt = n * 4 + T
            put(g0 - 1, "@waitlds f%da" % gt, 1)
            if T < 3: put(g0 + 3, "@waitlds f%db" % gt, 1)
            nn, TT = (n, T + 1) if T < 3 else (n + 1, 0)
            if nn >= NS: continue
            pre, o = frag_reads(nn, TT)
            if T == 3:
                if STAMP2:
                    put(g0 - 1, ["s_memtime s[90:91]", "s_memrealtime s[92:93]", "s_waitcnt lgkmcnt(0)", "@waitvm s%d" % (n + 1), "s_memtime s[94:95]", "s_barrier", "s_waitcnt lgkmcnt(0)",
                                 "v_writelane_b32 v254, s90, %d" % n, "v_writelane_b32 v254, s92, %d" % (n + 32), "v_writelane_b32 v255, s94, %d" % n], 2)
                else:
                    put(g0 - 1, ["@waitlds all", "@waitvm s%d" % (n + 1), "s_barrier"], 2)
            if pre: put(g0, pre)
            for i, x in enumerate(o): put(g0 + (1 if pre else 0) + (i * 16) // 18, x)
    def place_dma(m, lo, hi):
        gs = dma(m)
        for i, x in enumerate(gs): put(lo + (i * (hi - lo + 1)) // len(gs), x)
    place_dma(3, 2, 50)
    for n in range(NS - 4):
        g = (n * 4 + 3) * 18
        place_dma(n + 4, g + 2, g + 52)
    work = []
    def done_gap(n, T, r): return (n * 4 + T) * 18 + 9 * r + 8
    tmpi = [0]
    for B in range(5):
        if B < 4: nG, nU, tiles, u0 = 4 * B + 1, 4 * B + 3, 4, 2 * B
        else: nG, nU, tiles, u0 = 17, 17, 2, 8
        nxt = nU + 1
        for T in range(tiles):
            for r in range(2):
                g = GA + 8 * T + 4 * r; u = UA + 8 * T + 4 * r
                e = done_gap(nG, T, r) + 3
                eu = done_gap(nU, T if B < 4 else T + 2, r) + 3
                if B < 3: dl = (nxt * 4 + T) * 18 + 9 * r - 2
                elif B == 3: dl = (nxt * 4 + T) * 18 + 9 * r - 2 if T < 2 else (nxt * 4 + 2) * 18 - 2
                else: dl = eu + 1
                t0 = TMP + 4 * (tmpi[0] & 1); tmpi[0] += 1
                ops = []
                for b in range(4): ops.append(("v_mul_f32 v%d, v%d, v%d" % (t0 + b, C1 + r, g + b), 1))
                for b in range(4): ops.append(("v_exp_f32 v%d, v%d" % (t0 + b, t0 + b), 2))
                for b in range(4): ops.append(("v_fma_f32 v%d, v%d, v%d, v%d" % (t0 + b, t0 + b, C2 + r, C2 + r), 1))
                for b in range(4): ops.append(("v_rcp_f32 v%d, v%d" % (t0 + b, t0 + b), 2))
                for b in range(4): ops.append(("v_mul_f32 v%d, v%d, v%d" % (g + b, g + b, t0 + b), 1))
                work.append(dict(e=e, dl=max(eu - 1, e + 8) if B < 4 else eu, ops=ops, key=("s", B, T, r)))
                ops = [("v_mul_f32 v%d, v%d, v%d" % (u + b, u + b, g + b), 1) for b in range(4)]
                work.append(dict(e=eu, dl=dl, ops=ops, key=("m", B, T, r), after=("s", B, T, r)))
                h = HF + 36 * r + 4 * (u0 + (T >> 1)) + 2 * (T & 1)
                ops = [("v_cvt_pk_bf16_f32 v%d, v%d, v%d" % (u + 2 * j, u + 2 * j, u + 2 * j + 1), 1) for j in range(2)]
                ops += [("v_accvgpr_write_b32 a%d, v%d" % (h + j, u + 2 * j), 1) for j in range(2)]
                if B < 3: dl2 = ((nxt + 2) * 4 + T) * 18 + 9 * r - 2
                elif B == 3: dl2 = (nxt * 4 + 2) * 18 - 2
                else: dl2 = eu + 3
                work.append(dict(e=eu, dl=dl2, ops=ops, key=("c", B, T, r), after=("m", B, T, r)))
    QS = XF
    for n in range(18, NS):
        c = stages[n][1]
        for T in range(4):
            for r in range(2):
                a = acc_of(n, T, r)
                q = QS + 4 * ((n * 4 + 2 * (T >> 1) + r) % 8) + 2 * (T & 1)
                e = done_gap(n, T, r) + 3
                ops = [("v_cvt_pk_bf16_f32 v%d, v%d, v%d" % (q + j, a + 2 * j, a + 2 * j + 1), 1) for j in range(2)]
                if "mockB" in OPT and n < NS - 2: ops = ops[:1]
                elif T & 1:
                    qi = r * 18 + 2 * c + (T >> 1)
                    if XCH: qi = ((2 * r + (T >> 1)) * 9 + c) * 16
                    ops.append(("s_add_u32 s67, s66, %d" % (qi * 1024), 1))
                    ops.append(("buffer_store_dwordx4 %s, v9, s[8:11], s67 offen %s ;#p%d" % (vr(q - 2, 4), SC, c), 1))
                work.append(dict(e=e, dl=e + 12, ops=ops, key=("d", n, T, r)))
    slow = []
    DP, DM = XP["dp"], XP["dm"]
    NB = XP["nb"]
    SEL, FLG, RA, PL = XF + 32, XF + 36, XF + 48, XF + 60
    def plbuf(c):
        first_tail = 9 - DP
        if c < first_tail: return PL + 20 * (c % NB)
        return TAILBUF[c - first_tail]
    TAILBUF = [GA, GA + 20, GA + 40, XF, 224, "a0", "a20", "a40", "a60"]
    def breg(b, o, n):
        if isinstance(b, str): return ar(int(b[1:]) + o, n)
        return vr(b + o, n)
    def x_flag(c): return ["@waitvm p%d" % c, "buffer_store_dword v4, v3, s[16:19], s69 offen offset:%d sc1" % (64 * c)]
    def x_poll(c): return ["buffer_load_dword v%d, v12, s[16:19], s70 offen offset:%d sc1" % (FLG + c, 64 * c)]
    def x_check(c):
        f = FLG + c
        slow.extend(["ffn_slow%d:" % c, "buffer_load_dword v%d, v12, s[16:19], s70 offen offset:%d sc1" % (f, 64 * c), "s_waitcnt vmcnt(0)",
                     "v_cmp_eq_u32 vcc, 0, v%d" % f, "s_sub_u32 s65, s65, 1", "s_cbranch_scc1 ffn_back%d" % c, "s_nop 2", "s_cbranch_vccnz ffn_slow%d" % c, "s_branch ffn_back%d" % c])
        return ["v_cmp_eq_u32 vcc, 0, v%d" % f, "s_nop 4", "s_cbranch_vccnz ffn_slow%d" % c, "ffn_back%d:" % c]
    def x_load(c):
        b = plbuf(c)
        o = []
        for p in range(4):
            o.append(["s_add_u32 s67, s68, %d" % (c * 16384 + p * 4096), "buffer_load_dwordx4 %s, v13, s[8:11], s67 offen sc1" % breg(b, 4 * p, 4)])
        o.append(["s_add_u32 s67, s71, %d" % (c * 2048), "buffer_load_dwordx4 %s, v14, s[12:15], s67 offen" % breg(b, 16, 4)])
        return o
    def x_mfma(c):
        b = plbuf(c); a = vr(RA + 4 * (c & 1), 4)
        return ["v_mfma_f32_16x16x32_bf16 %s, %s, %s, %s" % (a, vr(SEL, 4), breg(b, 4 * p, 4), a if p else "0") for p in range(5)]
    def x_out(c):
        a = RA + 4 * (c & 1); o = RA + 8 + 2 * (c & 1)
        return ["v_cvt_pk_bf16_f32 v%d, v%d, v%d" % (o, a, a + 1), "v_cvt_pk_bf16_f32 v%d, v%d, v%d" % (o + 1, a + 2, a + 3),
                "buffer_store_dwordx2 %s, v15, s[96:99], s72 offen offset:%d" % (vr(o, 2), 128 * c)]
    if "mockB" in OPT:
        k("s_lshl_b32 s94, s23, 4\ns_add_u32 s94, s94, s24\ns_lshl_b32 s94, s94, 2\ns_add_u32 s94, s94, s22\ns_mul_i32 s94, s94, 18432")
        k("s_and_b32 s95, s24, 12\ns_lshl_b32 s67, s23, 4\ns_add_u32 s95, s95, s67\ns_lshl_b32 s95, s95, 2\ns_add_u32 s95, s95, s22\ns_mul_i32 s95, s95, 18432")
        for n in range(18):
            put(n * 72 + 40, ["s_add_u32 s67, s94, %d" % (n * 1024), "buffer_store_dwordx4 v[16:19], v9, s[8:11], s67 offen sc1"])
        for n in range(16, 25):
            for i in range(8):
                q = (n - 16) * 8 + i
                put(n * 72 + 6 + 8 * i, ["s_add_u32 s67, s95, %d" % ((q % 4) * 4 * 18432 + (q // 4) * 1024), "buffer_load_dwordx4 %s, v9, s[8:11], s67 offen sc1" % ar(144 + 4 * (q % 24), 4)])
    if XCH:
        g18 = 18 * 72
        sel = ["v_lshrrev_b32 v2, 1, v6", "v_and_b32 v5, 1, v6", "v_lshlrev_b32 v5, 4, v5", "v_mov_b32 v8, 0x3f80", "v_lshlrev_b32 v5, v5, v8"]
        for q in range(4): sel += ["v_cmp_eq_u32 vcc, %d, v2" % q, "v_cndmask_b32 v%d, 0, v5, vcc" % (SEL + q)]
        for i, x in enumerate(sel): put(g18 + 20 + 2 * i, x)
        def timed(ops, lane):
            if "st3" not in OPT: return ops
            return ["s_memtime s[90:91]", "s_waitcnt lgkmcnt(0)"] + ops + ["s_memtime s[92:93]", "s_waitcnt lgkmcnt(0)", "s_sub_u32 s90, s92, s90", "v_writelane_b32 v255, s90, %d" % lane]
        _xf, _xc, _xm = x_flag, x_check, x_mfma
        x_flag = lambda c: timed(_xf(c), c)
        x_check = lambda c: timed(_xc(c), 16 + c)
        x_mfma = lambda c: timed(_xm(c), 32 + c)
        for j in range(9):
            g = g18 + 72 * j
            if j >= 1 and (j - 1 < 9 - DP or j - 1 == XP["mid"]): put(g + XP["flag"], x_flag(j - 1))
            if j >= DM:
                put(g + XP["mfma"], x_mfma(j - DM), 5); put(g + XP["mfma"] + 3, x_out(j - DM))
            if j >= DP:
                put(g + XP["poll"], x_poll(j - DP)); put(g + XP["check"], x_check(j - DP), 4)
                for i, x in enumerate(x_load(j - DP)): put(g + XP["check"] + 1 + i, x)
    CAP = 2.35
    done = {}
    pend = sorted(work, key=lambda w: (w["dl"], w["e"]))
    cur = None
    g = 0
    tail = []
    credit = 0.0
    while pend or cur:
        if g >= NM:
            if cur is None:
                cand = [w for w in pend if w.get("after") is None or w["after"] in done]
                cur = min(cand, key=lambda w: (w["dl"], w["e"])); pend.remove(cur); cur["i"] = 0
            tail += [o for o, _ in cur["ops"][cur["i"]:]]; done[cur["key"]] = g; cur = None
            continue
        credit = min(credit + CAP - load[g], 3.0)
        while True:
            if cur is None:
                cand = [w for w in pend if w["e"] <= g and (w.get("after") is None or w["after"] in done)]
                if not cand: break
                cur = min(cand, key=lambda w: (w["dl"], w["e"])); pend.remove(cur); cur["i"] = 0
            op, cost = cur["ops"][cur["i"]]
            urgent = cur["dl"] - g <= (len(cur["ops"]) - cur["i"]) // 3 or any(w["dl"] - g <= 2 for w in pend if w["e"] <= g)
            if credit < cost and not urgent: break
            fill.setdefault(g, []).append(op); credit -= cost
            cur["i"] += 1
            if cur["i"] == len(cur["ops"]):
                if g > cur["dl"] and cur["key"][0] in "mc": raise RuntimeError("deadline miss %s %d %d" % (cur["key"], g, cur["dl"]))
                done[cur["key"]] = g; cur = None
        g += 1
    body = weave(main, fill)
    if STAMP:
        idx = [i for i, x in enumerate(body) if x == main[18 * 72]][0]
        body.insert(idx, "s_memrealtime s[84:85]"); body.insert(idx + 1, "s_waitcnt lgkmcnt(0)")
    k.extend(body); k.extend(tail)
    if XCH:
        stamp(k, 3, 3)
        mid = XP["mid"]; ft = 9 - DP
        if "mockB" in OPT: ft = 7
        cons = list(range(max(9 - DM, 0), ft))
        if mid >= ft: k.extend(x_poll(mid))
        k.extend(x_flag(8))
        if mid >= ft:
            k.extend(x_check(mid))
            for c in range(ft, mid + 1):
                for x in x_load(c): k.extend(x)
        k.extend(x_poll(8))
        for c in cons: k.extend(x_mfma(c)); k.extend(x_out(c))
        k.extend(x_check(8))
        for c in range(max(ft, mid + 1), 9):
            for x in x_load(c): k.extend(x)
        for c in range(ft, 9): k.extend(x_mfma(c)); k.extend(x_out(c))
    if STAMP2 or 'st3' in OPT:
        k.srd(76, 20, 1 << 22, WS_TS + (1 << 20))
        k("s_lshl_b32 s75, s2, 2\ns_add_u32 s75, s75, s22\ns_lshl_b32 s75, s75, 9\nv_lshlrev_b32 v2, 3, v1")
        k("buffer_store_dwordx2 v[254:255], v2, s[76:79], s75 offen")
    if not XCH: stamp(k, 3, 3)
    stamp_flush(k, 3, 4, 20)
    k("ffn_end:\ns_endpgm")
    if slow:
        k("@reset"); k.extend(slow)
    if XCH: k("code_end:")
    return k, 256, 256, lds

def k5():
    k = K("red_kernel"); k.vgpr = 96; k.sgpr = 100
    k("s_cmp_ge_u32 s2, 576\ns_cbranch_scc1 red_end")
    stamp(k, 4, 0)
    k("s_load_dwordx2 s[4:5], s[0:1], 56\ns_load_dwordx2 s[20:21], s[0:1], 72")
    k("v_and_b32 v1, 63, v0\nv_lshrrev_b32 v2, 6, v0")
    k("v_readfirstlane_b32 s22, v2")
    k("s_lshl_b32 s23, s2, 2\ns_add_u32 s23, s23, s22")
    k("s_mul_i32 s24, s23, 58255\ns_lshr_b32 s24, s24, 21")
    k("s_mul_i32 s25, s24, 36\ns_sub_u32 s25, s23, s25")
    k("s_lshr_b32 s26, s24, 2\ns_and_b32 s27, s24, 3")
    k("s_lshl_b32 s28, s26, 6\ns_add_u32 s28, s28, s27\ns_mul_i32 s28, s28, 36\ns_add_u32 s28, s28, s25\ns_lshl_b32 s28, s28, 10")
    k("s_lshl_b32 s29, s23, 10")
    k("v_lshlrev_b32 v3, 4, v1")
    k("s_waitcnt lgkmcnt(0)")
    k.srd(8, 20, P_BYTES, WS_P)
    k.srd(12, 20, H_BYTES, WS_H)
    k.srd(16, 4, X_BYTES)
    for s in range(16):
        k("buffer_load_dwordx4 %s, v3, s[8:11], s28 offen" % vr(16 + 4 * s, 4))
        if s < 15: k("s_add_u32 s28, s28, %d" % (4 * 36864))
    k("buffer_load_dwordx4 v[80:83], v3, s[12:15], s29 offen")
    k("s_mov_b32 s33, 0x00003f80\ns_mov_b32 s34, 0x3f800000")
    k("s_cmp_ge_u32 s25, 18\ns_cselect_b32 s30, 1, 0\ns_mul_i32 s31, s30, 18\ns_sub_u32 s31, s25, s31")
    k("s_lshl_b32 s32, s24, 1\ns_add_u32 s32, s32, s30\ns_mul_i32 s32, s32, %d\ns_lshl_b32 s31, s31, 6\ns_add_u32 s32, s32, s31" % (16 * 1152))
    k("v_and_b32 v4, 15, v1\nv_mul_u32_u24 v4, 1152, v4\nv_bfe_u32 v5, v1, 4, 1\nv_lshl_add_u32 v4, v5, 5, v4\nv_lshrrev_b32 v5, 5, v1\nv_lshl_add_u32 v4, v5, 4, v4")
    for i in range(8): k("v_mov_b32 v%d, 0" % (8 + i))
    for s in range(16):
        for c in range(4):
            k("v_dot2c_f32_bf16 v%d, s33, v%d\nv_dot2c_f32_bf16 v%d, s34, v%d" % (8 + 2 * c, 16 + 4 * s + c, 9 + 2 * c, 16 + 4 * s + c))
    for c in range(4): k("v_cvt_pk_bf16_f32 v%d, v%d, v%d" % (84 + c, 8 + 2 * c, 9 + 2 * c))
    for c in range(4): k("v_lshlrev_b32 v%d, 16, v%d\nv_and_b32 v%d, 0xffff0000, v%d" % (8 + 2 * c, 84 + c, 9 + 2 * c, 84 + c))
    for c in range(4): k("v_dot2c_f32_bf16 v%d, s33, v%d\nv_dot2c_f32_bf16 v%d, s34, v%d" % (8 + 2 * c, 80 + c, 9 + 2 * c, 80 + c))
    for c in range(4): k("v_cvt_pk_bf16_f32 v%d, v%d, v%d" % (84 + c, 8 + 2 * c, 9 + 2 * c))
    k("v_permlane16_swap_b32 v84, v86\nv_permlane16_swap_b32 v85, v87")
    k("buffer_store_dwordx4 v[84:87], v4, s[16:19], s32 offen")
    if STAMP:
        k("s_cmp_ge_u32 s2, 256\ns_cbranch_scc1 red_end")
        stamp_init(k, 22)
        stamp_flush(k, 4, 1, 20)
    k("red_end:\ns_endpgm\ncode_end:")
    return k, 576, 256, 0

def edf_place(work, fill, load, NM, CAP=2.35):
    done = {}
    pend = sorted(work, key=lambda w: (w["dl"], w["e"]))
    cur = None
    g = 0
    tail = []
    credit = 0.0
    ready = lambda w: all(a in done for a in w.get("after", ()))
    while pend or cur:
        if g >= NM:
            if cur is None:
                cand = [w for w in pend if ready(w)]
                cur = min(cand, key=lambda w: (w["dl"], w["e"])); pend.remove(cur); cur["i"] = 0
            tail += [o for o, _ in cur["ops"][cur["i"]:]]; done[cur["key"]] = g; cur = None
            continue
        credit = min(credit + CAP - load[g], 3.0)
        while True:
            if cur is None:
                cand = [w for w in pend if w["e"] <= g and ready(w)]
                if not cand: break
                cur = min(cand, key=lambda w: (w["dl"], w["e"])); pend.remove(cur); cur["i"] = 0
            op, cost = cur["ops"][cur["i"]]
            urgent = cur["dl"] - g <= (len(cur["ops"]) - cur["i"]) // 3 or any(w["dl"] - g <= 2 for w in pend if w["e"] <= g)
            if credit < cost and not urgent: break
            fill.setdefault(g, []).append(op); credit -= cost
            cur["i"] += 1
            if cur["i"] == len(cur["ops"]):
                if g > cur["dl"] and cur.get("hard"): raise RuntimeError("deadline miss %s %d %d" % (cur["key"], g, cur["dl"]))
                done[cur["key"]] = g; cur = None
        g += 1
    return tail, done

def k4b():
    k = K("ffn_kernel"); k.vgpr = 256; k.agpr = 168; k.sgpr = 102
    SLOT = 36864
    lds = 4 * SLOT
    k("s_cmp_ge_u32 s2, 256\ns_cbranch_scc1 ffn_end")
    stamp(k, 3, 0)
    k("s_load_dwordx4 s[4:7], s[0:1], 32\ns_load_dwordx4 s[36:39], s[0:1], 48\ns_load_dwordx2 s[20:21], s[0:1], 72")
    k("v_and_b32 v1, 63, v0\nv_lshrrev_b32 v2, 6, v0")
    k("v_readfirstlane_b32 s22, v2")
    k("s_and_b32 s23, s2, 1\ns_lshl_b32 s23, s23, 3\ns_bfe_u32 s25, s2, 0x30003\ns_add_u32 s23, s23, s25")
    k("s_bfe_u32 s24, s2, 0x20001\ns_lshl_b32 s24, s24, 2\ns_lshr_b32 s25, s2, 6\ns_add_u32 s24, s24, s25")
    stamp_init(k, 22)
    XF, GA, UA = 16, 160, 192
    VG, VM, VW, TA, TM, C1, C2, TMP, VS, TS = 224, 228, 232, 236, 240, 242, 244, 246, 254, 255
    AF, HF = 0, 72
    WB = D * F * 2
    k("s_and_b32 s25, s24, 1\ns_mul_i32 s26, s24, 576\ns_lshl_b32 s27, s25, 6\ns_add_u32 s27, s27, s26")
    k("s_xor_b32 s25, s25, 1\ns_lshl_b32 s25, s25, 9\ns_add_u32 s28, s25, s26")
    k("s_lshl_b32 s29, s23, 3\ns_lshl_b32 s30, s22, 1\ns_add_u32 s29, s29, s30")
    k("v_and_b32 v6, 15, v1\nv_lshrrev_b32 v7, 4, v1")
    k("v_lshl_add_u32 v8, v7, 11, v6\nv_lshlrev_b32 v8, 3, v8\nv_lshlrev_b32 v9, 4, v1")
    k("v_add_u32 v12, 0x10000, v8\nv_add_u32 v13, 0x20000, v8")
    k("s_lshl_b32 s30, s29, 7\ns_mul_i32 s31, s29, 18432")
    dma_piece(k, 4, 1, 2)
    k("v_mul_u32_u24 v5, 9216, v2\nv_add_u32 v5, v5, v4")
    for a in range(4): k("v_add_u32 v%d, %d, v5" % (VG + a, a * (8 * 9216 - 1024)))
    k("s_waitcnt lgkmcnt(0)")
    k.srd(8, 20, ST_BYTES, WS_ST)
    k.srd(12, 20, H_BYTES, WS_H)
    ST = UA
    for r in range(2):
        for j in range(3):
            k("buffer_load_dwordx2 %s, v%d, s[8:11], s30 offen offset:%d" % (vr(ST + 6 * r + 2 * j, 2), (8, 12, 13)[j], 128 * r))
    k.srd(40, 4, WB)
    k.srd(44, 6, WB)
    k("s_mul_i32 s56, s22, %d\ns_add_u32 s56, s56, s27" % (64 * 9216))
    k("s_mul_i32 s57, s22, %d\ns_add_u32 s57, s57, s27\ns_add_u32 s57, s57, %d" % (8 * 9216, 256 * 9216))
    k("s_lshl_b32 s58, s22, 13\ns_lshl_b32 s59, s22, 10\ns_add_u32 s59, s59, 32768")
    stages = []
    for B in range(4): stages += [("G", B, 0), ("G", B, 1), ("U", B, 0), ("U", B, 1)]
    stages += [("M", 4, 0), ("M", 4, 1)]
    stages += [("D", c, 0) for c in range(9)]
    NS = len(stages)
    def dma(n):
        kind, B, kh = stages[n]
        sl = (n % 4) * SLOT
        o = []
        if kind in "GU":
            srd = "s[40:43]" if kind == "G" else "s[44:47]"
            off = 128 * B + kh * 288 * 9216
            for g in range(2):
                pre = ["s_add_u32 m0, s58, %d" % (sl + 4096 * g), "s_add_u32 s60, s56, %d" % (off + g * 32 * 9216)]
                for a in range(4):
                    o.append(pre + ["buffer_load_dwordx4 v%d, %s, s60 offen offset:%d lds ;#s%d" % (VG + a, srd, 1024 * a, n)]); pre = []
            o.append(["s_add_u32 m0, s59, %d" % sl, "s_add_u32 s60, s57, %d" % off, "buffer_load_dwordx4 v%d, %s, s60 offen lds ;#s%d" % (VG, srd, n)])
        elif kind == "M":
            for g in range(3):
                pre = ["s_add_u32 m0, s61, %d" % (sl + 4096 * g), "s_add_u32 s60, s62, %d" % (kh * 288 * 9216 + g * 64 * 9216)]
                for a in range(4 if g < 2 else 1):
                    o.append(pre + ["buffer_load_dwordx4 v%d, s[52:55], s60 offen offset:%d lds ;#s%d" % (VM + a, 1024 * a, n)]); pre = []
        else:
            base, off = ("s63", B * 32 * 1152) if B < 8 else ("s64", 0)
            for g in range(2):
                pre = ["s_add_u32 m0, s61, %d" % (sl + 4096 * g), "s_add_u32 s60, %s, %d" % (base, off + 128 * g)]
                for a in range(4):
                    o.append(pre + ["buffer_load_dwordx4 v%d, s[48:51], s60 offen offset:%d lds ;#s%d" % (VW + a, 1024 * a, n)]); pre = []
            o.append(["s_add_u32 m0, s61, %d" % (sl + 8192), "s_add_u32 s60, %s, %d" % (base, off),
                      "buffer_load_dwordx4 v%d, s[48:51], s60 offen lds ;#s%d" % (VS, n)])
        return o
    def xload(r, t):
        return ["s_add_u32 s32, s31, %d" % ((r * 18 + t) // 4 * 4096),
                "buffer_load_dwordx4 %s, v9, s[12:15], s32 offen offset:%d" % (vr(XF + 72 * r + 4 * t, 4), ((r * 18 + t) % 4) * 1024)]
    d0, d1 = dma(0), dma(1)
    for t in range(9):
        for r in range(2): k.extend(xload(r, t))
        k.extend(d0[t])
    for t in range(9, 18):
        for r in range(2): k.extend(xload(r, t))
        k.extend(d1[t - 9])
    k.srd(48, 36, WB)
    k("s_cmp_lt_u32 s22, 2\ns_cselect_b32 s52, s40, s44\ns_cselect_b32 s53, s41, s45\ns_mov_b32 s54, 0x%x\ns_mov_b32 s55, 0x20000" % WB)
    k("v_mul_u32_u24 v5, 1152, v2\nv_add_u32 v5, v5, v4")
    for a in range(4): k("v_add_u32 v%d, %d, v5" % (VW + a, a * (8 * 1152 - 1024)))
    k("v_lshrrev_b32 v2, 2, v1\nv_mul_u32_u24 v5, 9216, v2\nv_bfe_u32 v3, v1, 4, 1\nv_lshlrev_b32 v3, 1, v3\nv_and_b32 v4, 3, v1\nv_xor_b32 v3, v3, v4\nv_lshl_add_u32 v5, v3, 4, v5")
    for a in range(4): k("v_add_u32 v%d, %d, v5" % (VM + a, a * (16 * 9216 - 1024)))
    k("s_mul_i32 s61, s22, 9216\ns_and_b32 s62, s22, 1\ns_mul_i32 s62, s62, %d\ns_add_u32 s62, s62, s28" % (144 * 9216))
    k("s_lshr_b32 s25, s24, 2\ns_and_b32 s26, s24, 3\ns_and_b32 s35, s26, 1\ns_mul_i32 s34, s26, 288")
    k("s_lshl_b32 s67, s35, 5\ns_add_u32 s33, s34, s67\ns_xor_b32 s67, s35, 1\ns_lshl_b32 s67, s67, 8\ns_add_u32 s34, s34, s67")
    k("s_and_b32 s67, s24, 12\ns_add_u32 s67, s67, s22\ns_mul_i32 s63, s67, 288\ns_and_b32 s67, s22, 1")
    k("s_xor_b32 s64, s67, 1\ns_lshl_b32 s64, s64, 8\ns_add_u32 s64, s64, s63\ns_lshl_b32 s67, s67, 5\ns_add_u32 s63, s63, s67")
    k("s_mul_i32 s67, s26, 288\ns_mul_i32 s63, s63, 1152\ns_add_u32 s63, s63, s67\ns_mul_i32 s64, s64, 1152\ns_add_u32 s64, s64, s67")
    k("v_lshrrev_b32 v2, 1, v1\nv_mul_u32_u24 v2, 1152, v2\nv_and_b32 v3, 1, v1\nv_lshl_add_u32 v2, v3, 4, v2")
    k("s_sub_u32 s60, s34, s67\nv_add_u32 v%d, s60, v2\ns_sub_u32 s60, s33, s67" % VS)
    for a in range(4): k("v_add_u32 v%d, s60, v%d" % (VW + a, VW + a))
    tr_addrs(k, TA, 1, None, 2)
    k("v_lshrrev_b32 v2, 2, v1\nv_lshlrev_b32 v2, 6, v2\nv_and_b32 v3, 3, v1\nv_lshl_add_u32 v2, v3, 3, v2\nv_bfe_u32 v3, v1, 4, 1")
    k("v_lshl_add_u32 v%d, v3, 5, v2\nv_xor_b32 v%d, 32, v%d" % (TM, TM + 1, TM))
    k("v_lshlrev_b32 v%d, 3, v1\nv_add_u32 v%d, 8192, v%d" % (TS, TS, TS))
    k("s_mov_b32 s100, 0x00003f80\ns_mov_b32 s101, 0x3f800000\ns_mov_b32 s67, 0x%x" % f2u(1.0 / D))
    for r in range(2):
        b = ST + 6 * r
        k("v_add_f32 v%d, v%d, v%d\nv_add_f32 v%d, v%d, v%d" % (b, b, b + 2, b + 1, b + 1, b + 3))
        k("v_add_f32 v%d, v%d, v%d\nv_add_f32 v%d, v%d, v%d" % (b, b, b + 4, b + 1, b + 1, b + 5))
        for sw in ("v_permlane16_swap_b32", "v_permlane32_swap_b32"):
            k("v_mov_b32 v%d, v%d\nv_mov_b32 v%d, v%d" % (b + 2, b, b + 3, b + 1))
            k("%s v%d, v%d\n%s v%d, v%d" % (sw, b, b + 2, sw, b + 1, b + 3))
            k("v_add_f32 v%d, v%d, v%d\nv_add_f32 v%d, v%d, v%d" % (b, b, b + 2, b + 1, b + 1, b + 3))
        k("v_mul_f32 v%d, s67, v%d" % (b, b))
        k("v_mul_f32 v%d, v%d, v%d" % (b + 2, b, b))
        k("v_fma_f32 v%d, v%d, s67, -v%d" % (b + 1, b + 1, b + 2))
        k("v_max_f32 v%d, 0, v%d" % (b + 1, b + 1))
        bf16_round(k, b, b)
        k("v_sub_f32 v%d, 0, v%d" % (10 + r, b))
        bf16_round(k, b + 1, b + 1)
        k("v_add_f32 v%d, 0x%x, v%d" % (b + 1, f2u(1e-5), b + 1))
        bf16_round(k, b + 1, b + 1)
        k("v_sqrt_f32 v%d, v%d" % (b + 1, b + 1))
        bf16_round(k, b + 1, b + 1)
        k("v_mul_f32 v%d, v%d, v%d" % (C2 + r, b + 1, b + 1))
        k("v_rcp_f32 v%d, v%d" % (b + 1, b + 1))
        k("v_mul_f32 v%d, 0x%x, v%d" % (C1 + r, f2u(-LOG2E), b + 1))
    def center(r, t):
        x = XF + 72 * r + 4 * t
        o = []
        for c in range(4):
            o.append("v_dot2_f32_bf16 v%d, v%d, s100, v%d" % (TMP + 2 * c, x + c, 10 + r))
            o.append("v_dot2_f32_bf16 v%d, v%d, s101, v%d" % (TMP + 2 * c + 1, x + c, 10 + r))
        for c in range(4):
            o.append("v_cvt_pk_bf16_f32 v%d, v%d, v%d" % (x + c, TMP + 2 * c, TMP + 2 * c + 1))
        return o
    d2 = dma(2)
    NPRE = XP["npre"]
    for t in range(NPRE):
        for r in range(2): k.extend(center(r, t))
        if t < 9: k.extend(d2[t])
    k.srd(8, 20, HB_BYTES, WS_HB)
    k.srd(16, 20, FL_BYTES, WS_FL)
    k.srd(96, 38, X_BYTES)
    k("s_mov_b32 s65, 200000")
    k("s_lshl_b32 s67, s23, 4\ns_add_u32 s66, s67, s24\ns_lshl_b32 s66, s66, 2\ns_add_u32 s66, s66, s22\ns_mul_i32 s66, s66, 18432")
    k("s_and_b32 s68, s24, 12\ns_add_u32 s68, s68, s67\ns_lshl_b32 s68, s68, 2\ns_add_u32 s68, s68, s22\ns_mul_i32 s68, s68, 18432")
    k("s_lshl_b32 s69, s23, 2\ns_add_u32 s69, s69, s22\ns_lshl_b32 s69, s69, 6\ns_and_b32 s70, s24, 12\ns_lshl_b32 s70, s70, 2\ns_add_u32 s70, s70, s69")
    k("s_lshl_b32 s67, s24, 2\ns_add_u32 s69, s69, s67")
    k("v_and_b32 v12, 3, v1\nv_lshlrev_b32 v12, 2, v12")
    k("v_mov_b32 v2, 0x7fff0000\nv_cmp_eq_u32 vcc, 0, v1\nv_cndmask_b32 v3, v2, v1, vcc")
    if "wtouch" in OPT:
        k("buffer_store_dword v1, v3, s[8:11], s66 offen sc1")
    stamp(k, 3, 1)

    cur = {"TA": 0, "TM": 0, "TS": 0}
    def shift(name, regs, sl):
        pre = []
        if cur[name] != sl:
            d = (sl - cur[name]) * SLOT
            for q in regs:
                pre.append("v_add_u32 v%d, %d, v%d" % (q, d, q) if d > 0 else "v_subrev_u32 v%d, %d, v%d" % (q, -d, q))
            cur[name] = sl
        return pre
    tiles = []
    main = []
    DA = XF
    def hbuf(c): return HF + 32 * (c % 3)
    nt = 0
    for n in range(NS):
        kind, B, kh = stages[n]
        for T in range(9 if kind == "D" else 4):
            if kind == "D":
                nf = 4; f0 = AF + 16 * ((B * 9 + T) % 4) + (4 if False else 0)
            else:
                nf = 9; f0 = AF + 36 * (nt & 1)
            tiles.append(dict(n=n, T=T, g0=len(main), nf=nf, f0=f0, id=nt)); nt += 1
            for r in range(2):
                if kind == "G": a = GA + 8 * T + 4 * r
                elif kind == "U": a = UA + 8 * T + 4 * r
                elif kind == "M": a = (GA if T < 2 else UA) + 8 * (T & 1) + 4 * r
                else: a = DA + 8 * T + 4 * r
                a = vr(a, 4)
                for j in range(nf):
                    if kind == "D": b = ar(hbuf(B) + 8 * j + 4 * r, 4); first = (j == 0 and B == 0)
                    else: b = vr(XF + 72 * r + 4 * (9 * kh + j), 4); first = (j == 0 and kh == 0)
                    main.append("v_mfma_f32_16x16x32_bf16 %s, %s, %s, %s" % (a, ar(f0 + 4 * j, 4), b, "0" if first else a))
    NM = len(main)
    fill = {}
    load = [0.0] * (NM + 1)
    def put(g, items, cost=None):
        if isinstance(items, str): items = [items]
        fill.setdefault(g, []).extend(items)
        load[max(g, 0)] += len([x for x in items if not x.startswith("@") and not x.endswith(":")]) if cost is None else cost
    def frag_reads(t):
        n, T = t["n"], t["T"]; kind = stages[n][0]; sl = n % 4
        if kind == "M": pre = shift("TM", [TM, TM + 1], sl)
        elif kind == "D" and T == 8: pre = shift("TS", [TS], sl)
        else: pre = shift("TA", [TA + q for q in range(4)], sl)
        o = []
        for j in range(t["nf"]):
            for h in range(2):
                if kind == "M": a, off = TM + (T & 1), (T >> 1) * 18432 + j * 2048 + h * 1024
                elif kind == "D": a, off = (TA + (T & 3), j * 9216 + (T >> 2) * 4096 + h * 2048) if T < 8 else (TS, j * 9216 + h * 512)
                else: a, off = TA + T, j * 4096 + h * 2048
                o.append("ds_read_b64_tr_b16 %s, v%d offset:%d ;#f%d%s" % (ar(t["f0"] + 4 * j + 2 * h, 2), a, off, t["id"], "a" if (j < 4) else "b"))
        return pre, o
    pre, o = frag_reads(tiles[0])
    fill[-1] = ["@waitvm s0", "s_barrier"] + pre + o
    first_d = [i for i, t in enumerate(tiles) if stages[t["n"]][0] == "D"][0]
    bar_gap = {}
    for i, t in enumerate(tiles):
        g0 = t["g0"]; kind = stages[t["n"]][0]
        put(g0 - 1, "@waitlds f%da" % t["id"], 1)
        if kind != "D":
            if t["T"] < 3: put(g0 + 3, "@waitlds f%db" % t["id"], 1)
            nxt = [i + 1] if i + 1 < first_d else [i + 1, i + 2]
            span = 16
        else:
            nxt = [i + 2] if i + 2 < len(tiles) else []
            span = 6
        if nxt and tiles[nxt[0]]["n"] != t["n"] and tiles[nxt[0]]["T"] == 0:
            ex = ["s_memtime s[90:91]", "s_waitcnt lgkmcnt(0)", "v_writelane_b32 v0, s90, %d" % (32 + t["n"])] if "st3" in OPT else []
            put(g0 - 1, ["@waitlds all", "@waitvm s%d" % (t["n"] + 1), "s_barrier"] + ex, 2)
            bar_gap[t["n"]] = g0
        rd = []
        for q in nxt:
            pre, o = frag_reads(tiles[q]); rd += [pre + o[:1]] + [[x] for x in o[1:]]
        for q, x in enumerate(rd): put(g0 + (q * span) // len(rd), x)
    def place(gs, lo, hi):
        for i, x in enumerate(gs): put(lo + (i * (hi - lo + 1)) // len(gs), x)
    place(dma(3), 2, 50)
    for n in range(NS - 4): place(dma(n + 4), bar_gap[n] + 2, bar_gap[n] + 52)
    work = []
    for t in range(NPRE, 18):
        for r in range(2):
            work.append(dict(e=0, dl=72 + 9 * r + (t - 9) - 3 if t >= 9 else 0, ops=[(x, 1.3) for x in center(r, t)], key=("x", t, r), hard=True))
    def done_gap(n, T, r): return n * 72 + T * 18 + 9 * r + 8
    for B in range(5):
        if B < 4: nG, nU, nt_, u0 = 4 * B + 1, 4 * B + 3, 4, 2 * B
        else: nG, nU, nt_, u0 = 17, 17, 2, 8
        nxt = nU + 1
        for T in range(nt_):
            for r in range(2):
                g = GA + 8 * T + 4 * r; u = UA + 8 * T + 4 * r
                e = done_gap(nG, T, r) + 3
                eu = done_gap(nU, T if B < 4 else T + 2, r) + 3
                if B < 3: dl = (nxt * 4 + T) * 18 + 9 * r - 2
                elif B == 3: dl = (nxt * 4 + T) * 18 + 9 * r - 2 if T < 2 else (nxt * 4 + 2) * 18 - 2
                else: dl = eu + 6
                t0 = TMP
                ops = []
                for b in range(4): ops.append(("v_mul_f32 v%d, v%d, v%d" % (t0 + b, C1 + r, g + b), 1))
                for b in range(4): ops.append(("v_exp_f32 v%d, v%d" % (t0 + b, t0 + b), 2))
                for b in range(4): ops.append(("v_fma_f32 v%d, v%d, v%d, v%d" % (t0 + b, t0 + b, C2 + r, C2 + r), 1))
                for b in range(4): ops.append(("v_rcp_f32 v%d, v%d" % (t0 + b, t0 + b), 2))
                for b in range(4): ops.append(("v_mul_f32 v%d, v%d, v%d" % (g + b, g + b, t0 + b), 1))
                work.append(dict(e=e, dl=max(eu - 1, e + 8) if B < 4 else eu, ops=ops, key=("s", B, T, r)))
                ops = [("v_mul_f32 v%d, v%d, v%d" % (u + b, u + b, g + b), 1) for b in range(4)]
                work.append(dict(e=eu, dl=dl, ops=ops, key=("m", B, T, r), after=[("s", B, T, r)], hard=True))
                ue = UA + 8 * (T & ~1) + 4 * r
                ops = [("v_cvt_pk_bf16_f32 v%d, v%d, v%d" % (ue + 2 * (T & 1) + j, u + 2 * j, u + 2 * j + 1), 1) for j in range(2)]
                aft = [("m", B, T, r)]
                if T & 1:
                    aft.append(("c", B, T - 1, r))
                    ops.append(("s_add_u32 s67, s66, %d\nbuffer_store_dwordx4 %s, v9, s[8:11], s67 offen sc1 ;#h%d" % (((u0 + (T >> 1)) * 2 + r) * 1024, vr(ue, 4), B), 2))
                if B < 3: dl2 = (nxt + 1) * 72 + 10 + 8 * T + 4 * r
                elif B == 3: dl2 = (nxt * 4 + 2) * 18 - 4
                else: dl2 = eu + 10
                work.append(dict(e=eu, dl=dl2, ops=ops, key=("c", B, T, r), after=aft, hard=True))
    slow = []
    FLG = 13
    def x_flag(tag, val, soff): return ["@waitvm " + tag, "v_mov_b32 v4, %d" % val, "buffer_store_dword v4, v3, s[16:19], %s offen sc1" % soff]
    def x_poll(soff): return ["buffer_load_dword v%d, v12, s[16:19], %s offen sc1" % (FLG, soff)]
    def x_check(name, val, soff):
        slow.extend(["ffn_slow%s:" % name, "buffer_load_dword v%d, v12, s[16:19], %s offen sc1" % (FLG, soff), "s_waitcnt vmcnt(0)",
                     "v_cmp_gt_u32 vcc, %d, v%d" % (val, FLG), "s_sub_u32 s65, s65, 1", "s_cbranch_scc1 ffn_back%s" % name, "s_nop 2",
                     "s_cbranch_vccnz ffn_slow%s" % name, "s_branch ffn_back%s" % name])
        return ["v_cmp_gt_u32 vcc, %d, v%d" % (val, FLG), "s_nop 4", "s_cbranch_vccnz ffn_slow%s" % name, "ffn_back%s:" % name]
    def hloads(c):
        o = []
        for a in range(4):
            o.append(["s_add_u32 s27, s68, %d" % (a * 73728 + c * 2048), "buffer_load_dwordx4 %s, v9, s[8:11], s27 offen sc1" % ar(hbuf(c) + 8 * a, 4)])
            o.append(["buffer_load_dwordx4 %s, v9, s[8:11], s27 offen offset:1024 sc1" % ar(hbuf(c) + 8 * a + 4, 4)])
        return o
    tcount = [0]
    def timed(ops):
        if "st3" not in OPT: return ops
        lane = tcount[0]; tcount[0] += 1
        return ["s_memtime s[90:91]", "s_waitcnt lgkmcnt(0)"] + ops + ["s_memtime s[92:93]", "s_waitcnt lgkmcnt(0)", "s_sub_u32 s90, s92, s90", "v_writelane_b32 v0, s90, %d" % lane]
    _xf, _xc = x_flag, x_check
    x_flag = lambda *a: timed(_xf(*a))
    x_check = lambda *a: timed(_xc(*a))
    put(14 * 72 + 30, x_flag("h2", 3, "s69"))
    put(17 * 72 + 40, x_flag("h3", 4, "s69"))
    put(19 * 72 + 20, x_flag("h4", 5, "s69"))
    put(15 * 72 + 40, x_poll("s70")); put(16 * 72 + 4, x_check("a", 3, "s70"), 4)
    put(20 * 72 + 10, x_poll("s70")); put(21 * 72 + 2, x_check("b", 4, "s70"), 4)
    put(22 * 72 + 60, x_poll("s70")); put(23 * 72 + 60, x_check("c", 5, "s70"), 4)
    for c in range(9): place(hloads(c), (16 + c) * 72 + 8, (16 + c) * 72 + 66)
    QS, SEL, HR, PL, OO = 96, 136, GA, 200, 140
    g26 = 26 * 72
    sel = ["v_lshrrev_b32 v2, 1, v6", "v_and_b32 v5, 1, v6", "v_lshlrev_b32 v5, 4, v5", "v_mov_b32 v8, 0x3f80", "v_lshlrev_b32 v5, v5, v8"]
    for q in range(4): sel += ["v_cmp_eq_u32 vcc, %d, v2" % q, "v_cndmask_b32 v%d, 0, v5, vcc" % (SEL + q)]
    setup = sel + [
        "s_lshl_b32 s29, s23, 2", "s_add_u32 s29, s29, s26", "s_lshl_b32 s29, s29, 2", "s_add_u32 s71, s29, s22", "s_add_u32 s72, s29, s25",
        "s_lshl_b32 s73, s71, 4", "s_lshl_b32 s75, s72, 4",
        "s_mul_i32 s71, s71, 36", "s_add_u32 s71, s71, s25", "s_lshl_b32 s71, s71, 10",
        "s_mul_i32 s72, s72, 36864", "s_lshl_b32 s29, s22, 8", "s_add_u32 s72, s72, s29",
        "s_lshl_b32 s29, s25, 2", "s_add_u32 s73, s73, s29", "s_add_u32 s73, s73, 4096", "s_add_u32 s75, s75, 4096",
        "s_lshl_b32 s29, s23, 2", "s_add_u32 s29, s29, s25", "s_mul_i32 s94, s29, 36864", "s_mul_i32 s32, s29, %d" % (32 * 1152),
        "s_lshl_b32 s29, s22, 8", "s_add_u32 s94, s94, s29",
        "s_lshr_b32 s29, s34, 6", "s_lshl_b32 s29, s29, 10", "s_add_u32 s95, s94, s29", "s_lshl_b32 s29, s35, 3", "s_add_u32 s95, s95, s29",
        "s_lshl_b32 s29, s33, 4", "s_add_u32 s94, s94, s29",
        "s_lshl_b32 s29, s22, 3", "s_add_u32 s32, s32, s29", "s_add_u32 s31, s32, s33", "s_add_u32 s30, s32, s34",
        "v_lshlrev_b32 v14, 4, v6", "v_mov_b32 v2, 0x7fff0000", "v_cmp_gt_u32 vcc, 32, v1",
        "v_lshl_add_u32 v10, v7, 3, v14", "v_mul_u32_u24 v11, 18432, v7", "v_add_u32 v11, v11, v14", "v_lshl_add_u32 v14, v7, 10, v14",
        "v_cndmask_b32 v10, v2, v10, vcc", "v_cndmask_b32 v11, v2, v11, vcc",
        "v_mul_u32_u24 v15, 1152, v6", "v_mul_u32_u24 v8, 1152, v1", "v_lshl_add_u32 v15, v7, 5, v15",
        "v_cndmask_b32 v15, v2, v15, vcc", "v_cndmask_b32 v8, v2, v8, vcc"]
    place([[x] for x in setup], 19 * 72 + 30, 20 * 72 + 60)
    srd_p2 = ["s_add_u32 s40, s20, 0x%x" % WS_P2, "s_addc_u32 s41, s21, 0", "s_and_b32 s41, s41, 0xffff", "s_mov_b32 s42, 0x%x" % P2_BYTES, "s_mov_b32 s43, 0x20000"]
    put(21 * 72 + 30, srd_p2)
    hl = []
    for q in range(9):
        if q < 8: hl.append(["s_add_u32 s67, s94, %d" % ((q & 1) * 18432 + (q >> 1) * 1024), "buffer_load_dwordx2 %s, v10, s[12:15], s67 offen" % vr(HR + 4 * q + 2, 2)])
        else: hl.append(["buffer_load_dwordx2 %s, v11, s[12:15], s95 offen" % vr(HR + 4 * q + 2, 2)])
    place(hl, 24 * 72 + 4, 24 * 72 + 68)
    for q in range(9):
        h = HR + 4 * q
        ops = ["v_lshlrev_b32 v%d, 16, v%d" % (h, h + 2), "v_and_b32 v%d, 0xffff0000, v%d" % (h + 1, h + 2),
               "v_lshlrev_b32 v%d, 16, v%d" % (h + 2, h + 3), "v_and_b32 v%d, 0xffff0000, v%d" % (h + 3, h + 3)]
        work.append(dict(e=25 * 72 + 40 + q, dl=g26 + 40, ops=[(x, 1) for x in ops], key=("h", q)))
    for T in range(9):
        for r in range(2):
            a = DA + 8 * T + 4 * r
            q = 2 * (T >> 1) + r if T < 8 else 8
            o = QS + 4 * q + (2 * (T & 1) if T < 8 else 2 * r)
            e = g26 + 8 * T + 4 * r + 3 + 3
            ops = [("v_cvt_pk_bf16_f32 v%d, v%d, v%d" % (o + j, a + 2 * j, a + 2 * j + 1), 1) for j in range(2)]
            aft = []
            if (T < 8 and T & 1) or (T == 8 and r == 1):
                aft = [("d", T - 1, r)] if T < 8 else [("d", 8, 0)]
                ops.append(("s_add_u32 s67, s71, %d\nbuffer_store_dwordx4 %s, v9, s[40:43], s67 offen sc1 ;#p" % (q * 4096, vr(QS + 4 * q, 4)), 2))
            work.append(dict(e=e, dl=e + 4, ops=ops, key=("d", T, r), after=aft))
    tail, done = edf_place(work, fill, load, NM)
    body = weave(main, fill)
    if STAMP:
        idx = [i for i, x in enumerate(body) if x == main[18 * 72]][0]
        body.insert(idx, "s_memrealtime s[84:85]"); body.insert(idx + 1, "s_waitcnt lgkmcnt(0)")
    k.extend(body); k.extend(tail)
    stamp(k, 3, 3)
    k.extend(x_flag("p", 1, "s73")); k.extend(x_poll("s75")); k.extend(x_check("d", 1, "s75"))
    for q in range(9):
        k("s_add_u32 s67, s72, %d" % (q * 4096))
        k("buffer_load_dwordx4 %s, v14, s[40:43], s67 offen sc1" % vr(PL + 4 * q, 4))
    if "st3" in OPT: k.extend(timed(["s_waitcnt vmcnt(0)"]))
    for q in range(9):
        k("v_mfma_f32_16x16x32_bf16 %s, %s, %s, %s" % (vr(HR + 4 * q, 4), vr(SEL, 4), vr(PL + 4 * q, 4), vr(HR + 4 * q, 4)))
        if q >= 2: outq = q - 2
        else: continue
        k.extend(_outq(outq, HR, OO))
    k.extend(_outq(7, HR, OO)); k.extend(_outq(8, HR, OO))
    if "st3" in OPT:
        k.srd(76, 20, 1 << 22, WS_TS + (1 << 20))
        k("s_lshl_b32 s75, s2, 2\ns_add_u32 s75, s75, s22\ns_lshl_b32 s75, s75, 8\nv_lshlrev_b32 v2, 2, v1")
        k("buffer_store_dword v0, v2, s[76:79], s75 offen")
    stamp_flush(k, 3, 4, 20)
    k("ffn_end:\ns_endpgm")
    k("@reset"); k.extend(slow)
    k("code_end:")
    return k, 256, 256, lds

def _outq(q, HR, OO):
    a = HR + 4 * q; o = OO + 2 * q
    ops = ["v_cvt_pk_bf16_f32 v%d, v%d, v%d" % (o, a, a + 1), "v_cvt_pk_bf16_f32 v%d, v%d, v%d" % (o + 1, a + 2, a + 3)]
    if q < 8:
        ops += ["s_add_u32 s67, s31, %d" % ((q & 1) * 16 * 1152), "buffer_store_dwordx2 %s, v15, s[96:99], s67 offen offset:%d" % (vr(o, 2), (q >> 1) * 64)]
    else:
        ops += ["buffer_store_dwordx2 %s, v8, s[96:99], s30 offen" % vr(o, 2)]
    return ops

HEADER = """
Pre-LN transformer block (sliding-window attention + SwiGLU FFN), S=2048 D=576 H=32 F=4608, bf16.
Generated by work/gen.py (hand-written generator).  Kernarg: x, wqkv, wo, (unused), wg, wu, wd, out, dbg, ws.
"""
def build(path, stampit=False, st2=False):
    global STAMP, STAMP2
    STAMP = stampit; STAMP2 = st2
    ks = [k1(), k2(), k3(), k4b()] if 'k4b' in OPT else [k1(), k2(), k3(), k4()] + ([] if 'xch' in OPT else [k5()])
    txt = program(ks, [x[0] for x in ks], HEADER)
    open(path, "w").write(txt)
    for x in ks: print(x[0].name, x[0].stats)
    print(len(txt), "bytes")

if __name__ == "__main__":
    OPT.update(sys.argv[2:])
    for a in sys.argv[2:]:
        if '=' in a: XP[a.split('=')[0]] = int(a.split('=')[1])
    build(sys.argv[1] if len(sys.argv) > 1 else "full.s", "stamp" in sys.argv, "stamp2" in sys.argv)
```

```python
import sys, struct
from asmgen import *
from gen import edf_place, tr_addrs, dma_piece, bf16_round, f2u, LOG2E, _outq

S, D, F, NQKV, NH, DH = 2048, 576, 4608, 1728, 32, 18
NAME = "sequential_preLN__sliding_block__swiglu_ffn__prompt_kernel"
CGS = 16384 + 128
WS_Z, Z_BYTES = 0, 432 * CGS
WS_OP, OP_BYTES = 0x700000, 64 * 32768
WS_O2, O2_BYTES = 0x900000, 32 * 8192
WS_H, H_BYTES = 0xA00000, 128 * 18 * 1024
WS_ST, ST_BYTES = 0xD00000, 6 * 2048 * 8
WS_FL, FL_BYTES = 0xE00000, 36864
WS_HB, HB_BYTES = 0x1000000, 256 * 73728
WS_P2, P2_BYTES = 0x2400000, 256 * 36864
WS_TS = 0x4000000
F1, F2, F3, FH, FP, FEPOCH = 0, 4096, 8192, 12288, 24576, 32768
X_BYTES = S * D * 2
WB = D * F * 2
BIG = 0x7fff0000
OPT = set()
XP = dict(npre=9, dr0=5, drs=5, cap=235)
SLOW = []
NSTAMP = [0]
STAMPS = []

def stamp(k, name):
    if "stamp" not in OPT: return
    k("s_memrealtime s[94:95]\ns_waitcnt lgkmcnt(0)\nv_writelane_b32 v0, s94, %d" % NSTAMP[0])
    STAMPS.append(name); NSTAMP[0] += 1
def stamp_ops(name):
    if "stamp" not in OPT: return []
    o = ["s_memrealtime s[94:95]", "s_waitcnt lgkmcnt(0)", "v_writelane_b32 v0, s94, %d" % NSTAMP[0]]
    STAMPS.append(name); NSTAMP[0] += 1
    return o

def poll(vflag, vaddr, soff):
    return ["buffer_load_dword v%d, v%d, s[96:99], %s offen sc1" % (vflag, vaddr, soff)]
def check(name, vflag, vaddr, soff):
    SLOW.extend(["L_slow_%s:" % name] + poll(vflag, vaddr, soff) + ["s_waitcnt vmcnt(0)", "v_cmp_ne_u32 vcc, s3, v%d" % vflag,
                 "s_sub_u32 s100, s100, 1", "s_cbranch_scc1 L_back_%s" % name, "s_nop 2", "s_cbranch_vccnz L_slow_%s" % name, "s_branch L_back_%s" % name])
    return ["v_cmp_ne_u32 vcc, s3, v%d" % vflag, "s_nop 4", "s_cbranch_vccnz L_slow_%s" % name, "L_back_%s:" % name]
def spin(k, name, vflag, vaddr, soff):
    k("L_spin_%s:" % name)
    k.extend(poll(vflag, vaddr, soff))
    k("s_waitcnt vmcnt(0)\nv_cmp_ne_u32 vcc, s3, v%d\ns_sub_u32 s100, s100, 1\ns_cbranch_scc1 L_done_%s\ns_nop 2\ns_cbranch_vccnz L_spin_%s\nL_done_%s:" % (vflag, name, name, name))
def flag(tag, vtmp, vlane0, soff):
    return ["@waitvm " + tag, "v_mov_b32 v%d, s3" % vtmp, "buffer_store_dword v%d, v%d, s[96:99], %s offen sc1" % (vtmp, vlane0, soff)]
def lane0(k, dst, tmp):
    k("v_mov_b32 v%d, 0x%x\nv_cmp_eq_u32 vcc, 0, v1\nv_cndmask_b32 v%d, v%d, v1, vcc" % (tmp, BIG, dst, tmp))

def get_tag(k, vt, issued):
    k("v_readfirstlane_b32 s3, v%d" % vt)
    k("s_cmp_eq_u32 s3, 0\ns_cbranch_scc1 L_tagslow_%s\nL_tagback_%s:" % (issued, issued))
    SLOW.extend(["L_tagslow_%s:" % issued, "v_mov_b32 v%d, 0" % vt, "global_load_dword v%d, v%d, s[92:93] sc1" % (vt, vt), "s_waitcnt vmcnt(0)",
                 "v_readfirstlane_b32 s3, v%d" % vt, "s_sub_u32 s100, s100, 1", "s_cbranch_scc1 L_tagback_%s" % issued,
                 "s_cmp_eq_u32 s3, 0", "s_cbranch_scc1 L_tagslow_%s" % issued, "s_branch L_tagback_%s" % issued])

def prefetch_wg(k):
    k("L_pf:")
    k("s_load_dwordx2 s[8:9], s[0:1], 16\ns_load_dwordx4 s[12:15], s[0:1], 32")
    k("s_sub_u32 s23, s2, 224\ns_lshl_b32 s24, s23, 2\ns_add_u32 s24, s24, s22")
    k("v_lshlrev_b32 v2, 7, v1")
    k("s_waitcnt lgkmcnt(0)")
    k.srd(28, 6, D * NQKV * 2)
    k("s_mul_i32 s25, s24, 15616")
    k("buffer_load_dword v10, v2, s[28:31], s25 offen\ns_add_u32 s25, s25, 8192\nbuffer_load_dword v11, v2, s[28:31], s25 offen")
    k("s_cmp_lg_u32 s24, 0\ns_cbranch_scc1 L_pf_notag")
    k("v_mov_b32 v4, %d\nbuffer_load_dword v5, v4, s[96:99], 0 offen sc1\ns_waitcnt vmcnt(0)" % FEPOCH)
    k("v_add_u32 v5, 1, v5\nv_max_u32 v5, 1, v5\nv_mov_b32 v6, 0")
    k("global_store_dword v6, v5, s[92:93] sc1\nbuffer_store_dword v5, v4, s[96:99], 0 offen sc1")
    k("L_pf_notag:")
    k("s_getpc_b64 s[32:33]\nL_pc:\ns_sub_u32 s32, s32, L_pc-L_main\ns_subb_u32 s33, s33, 0")
    k("s_lshr_b32 s25, s23, 3\ns_lshl_b32 s25, s25, 2\ns_add_u32 s25, s25, s22\ns_lshl_b32 s25, s25, 13")
    k("v_add_u32 v3, s25, v2\ns_mov_b32 s25, L_code_end-L_main-4\nv_min_u32 v3, s25, v3")
    k("global_load_dword v12, v3, s[32:33]")
    k("s_waitcnt vmcnt(0)")
    k.srd(28, 8, D * D * 2)
    k("s_mul_i32 s25, s24, 5248\nbuffer_load_dword v10, v2, s[28:31], s25 offen")
    for m in range(2):
        k.srd(28, 12 + 2 * m, WB)
        k("s_mul_i32 s25, s24, 41472")
        for j in range(6):
            if j == 5: k("s_mov_b32 exec_hi, 0\ns_mov_b32 exec_lo, 15")
            k("buffer_load_dword v%d, v2, s[28:31], s25 offen\ns_add_u32 s25, s25, 8192\ns_waitcnt vmcnt(%d)" % (11 + j, XP.get("pfd", 2)))
        k("s_mov_b64 exec, -1")
    k("v_mov_b32 v20, 0\nglobal_load_dword v20, v20, s[92:93] sc1\ns_waitcnt vmcnt(0)")
    get_tag(k, 20, "pf")
    k("s_branch L_p2")

def p1(k):
    XL, RING, STL = 0, 73728, 73728 + 4 * 20480
    k("s_lshr_b32 s23, s2, 5")
    k("s_and_b32 s24, s2, 7\ns_lshl_b32 s24, s24, 2\ns_bfe_u32 s25, s2, 0x20003\ns_add_u32 s24, s24, s25")
    k("s_lshl_b32 s25, s23, 2\ns_add_u32 s25, s25, s22")
    k("v_lshrrev_b32 v3, 3, v1\nv_and_b32 v4, 7, v1")
    k("v_mul_u32_u24 v5, 1152, v3\nv_lshl_add_u32 v5, v4, 4, v5")
    k("s_lshl_b32 s26, s24, 6\ns_lshl_b32 s27, s22, 4\ns_add_u32 s26, s26, s27\ns_mul_i32 s26, s26, 1152")
    k("s_add_u32 s27, s26, %d" % (8 * 1152))
    VD = 232
    k("v_lshrrev_b32 v6, 2, v3\nv_lshlrev_b32 v6, 3, v6\nv_and_b32 v7, 3, v3\nv_add_u32 v6, v6, v7")
    k("v_mul_u32_u24 v6, 3456, v6")
    k("v_lshrrev_b32 v7, 1, v3\nv_lshlrev_b32 v7, 1, v7\nv_xor_b32 v7, v7, v4\nv_lshl_add_u32 v6, v7, 4, v6")
    base = [0, 16, 4, 20]
    for a in range(4):
        k("v_add_u32 v%d, %d, v6" % (VD + a, base[a] * 3456 - a * 1024))
    k("s_lshl_b32 s28, s25, 7")
    k("s_mul_i32 s29, s22, 20480\ns_add_u32 s29, s29, %d" % RING)
    k("s_waitcnt lgkmcnt(0)")
    k("s_cmp_ge_u32 s2, 224\ns_cbranch_scc1 L_pf0")
    k.srd(8, 4, X_BYTES)
    XR = 16
    for j in range(9):
        for h in range(2):
            k("buffer_load_dwordx4 %s, v5, s[8:11], s%d offen offset:%d" % (vr(XR + (h * 9 + j) * 4, 4), 26 + h, 128 * j))
    k.srd(12, 6, D * NQKV * 2)
    def dma(t):
        o = ["s_add_u32 m0, s29, %d" % ((t % 5) * 4096)]
        for a in range(4):
            o.append("buffer_load_dwordx4 v%d, s[12:15], s28 offen offset:%d lds ;#w%d" % (VD + a, 1024 * a, t))
        o.append("s_add_u32 s28, s28, %d" % (32 * 3456))
        return o
    for t in range(5): k.extend(dma(t))
    k.srd(96, 20, FL_BYTES, WS_FL)
    touch_chain(k, "L_c1", 22)
    k.srd(16, 20, Z_BYTES, WS_Z)
    k("s_lshr_b32 s30, s22, 1\ns_lshl_b32 s30, s30, 1")
    k("v_lshrrev_b32 v7, 5, v1\nv_add_u32 v7, s30, v7\nv_mul_u32_u24 v7, 18, v7")
    k("v_lshrrev_b32 v10, 2, v4\nv_add_u32 v7, v7, v10\nv_lshlrev_b32 v7, 10, v7")
    k("v_and_b32 v10, 3, v4\nv_lshl_add_u32 v7, v10, 8, v7")
    k("s_and_b32 s30, s22, 1\ns_lshl_b32 s30, s30, 3")
    k("v_and_b32 v10, 3, v3\nv_add_u32 v10, s30, v10")
    k("v_xor_b32 v11, v10, v4\nv_lshl_add_u32 v8, v11, 4, v7")
    k("v_add_u32 v10, 4, v10\nv_xor_b32 v11, v10, v4\nv_lshl_add_u32 v9, v11, 4, v7")
    k("v_and_b32 v10, 15, v1\nv_lshrrev_b32 v11, 4, v1")
    k("v_xor_b32 v12, v10, v11\nv_lshlrev_b32 v12, 4, v12\nv_lshl_add_u32 v236, v11, 8, v12")
    k("v_xor_b32 v237, 64, v236\nv_add_u32 v238, 36864, v236\nv_add_u32 v239, 36864, v237")
    tr_addrs(k, 240, 1, "s29", 12)
    k("s_mov_b32 s31, %d" % CGS)
    k("v_lshrrev_b32 v12, 2, v10\nv_mul_lo_u32 v12, v12, s31\nv_lshl_add_u32 v12, v11, 6, v12\nv_and_b32 v13, 3, v10\nv_lshl_add_u32 v244, v13, 4, v12")
    k("s_cmp_ge_u32 s25, 27\ns_cselect_b32 s30, 0x%x, 0\nv_add_u32 v244, s30, v244" % BIG)
    k("v_lshlrev_b32 v245, 5, v11\nv_add_u32 v245, %d, v245" % STL)
    k("s_lshl_b32 s30, s22, 6\ns_add_u32 s30, s30, %d\nv_lshl_add_u32 v246, v3, 2, s30" % STL)
    lane0(k, 247, 12)
    k("s_mov_b32 s32, 0x3f803f80\ns_mov_b32 s33, 0x00003f80\ns_mov_b32 s34, 0x3f800000\ns_mov_b32 s35, 0x%x" % f2u(1.0 / D))
    T0 = 88
    for i in range(8): k("v_mov_b32 v%d, 0" % (T0 + i))
    for j in range(9):
        for c in range(4):
            for h in range(2):
                k("v_dot2c_f32_bf16 v%d, s32, v%d" % (T0 + 2 * h + (c & 1), XR + (h * 9 + j) * 4 + c))
    stamp(k, "p1 x")
    k("v_add_f32 v%d, v%d, v%d\nv_add_f32 v%d, v%d, v%d" % (T0, T0, T0 + 1, T0 + 2, T0 + 2, T0 + 3))
    for ctl in ("quad_perm:[1,0,3,2]", "quad_perm:[2,3,0,1]", "row_half_mirror"):
        for r in (T0, T0 + 2):
            k("v_add_f32_dpp v%d, v%d, v%d %s row_mask:0xf bank_mask:0xf" % (r, r, r, ctl))
    for h in range(2):
        r = T0 + 2 * h
        k("v_mul_f32 v%d, s35, v%d" % (r, r))
        bf16_round(k, r + 1, r)
        k("v_sub_f32 v%d, v%d, v%d" % (r, r, r + 1))
        k("v_sub_f32 v%d, 0, v%d" % (r + 1, r + 1))
    ACC, XF, WF = 104, 168, 200
    def wreg(t, T): return ar(16 * t + 4 * T, 4) if t < 16 else vr(WF + 16 * (t - 16) + 4 * T, 4)
    def wreg2(t, T, j): return ar(16 * t + 4 * T + 2 * j, 2) if t < 16 else vr(WF + 16 * (t - 16) + 4 * T + 2 * j, 2)
    def drain(t):
        return ["@waitvm w%d" % t] + ["ds_read_b64_tr_b16 %s, v%d offset:%d ;#d%d" % (wreg2(t, T, j), 240 + T, (t % 5) * 4096 + j * 2048, t) for T in range(4) for j in range(2)]
    def refill(t):
        return (["@waitlds d%d" % t] + dma(t + 5)) if t + 5 < 18 else []
    T1 = T0 + 8
    nd = 0
    g = 0
    for j in range(9):
        for h in range(2):
            x = XR + (h * 9 + j) * 4
            for c in range(4):
                k("v_dot2_f32_bf16 v%d, v%d, s33, v%d" % (T1 + 2 * c, x + c, T0 + 2 * h + 1))
                k("v_dot2_f32_bf16 v%d, v%d, s34, v%d" % (T1 + 2 * c + 1, x + c, T0 + 2 * h + 1))
            for c in range(4):
                k("v_cvt_pk_bf16_f32 v%d, v%d, v%d" % (x + c, T1 + 2 * c, T1 + 2 * c + 1))
            k("ds_write_b128 v%d, %s offset:%d" % (8 + h, vr(x, 4), XL + 2048 * j))
            g += 1
            if g > XP["dr0"] and (g - 1 - XP["dr0"]) % XP["drs"] == 0: k.extend(refill(nd - 1))
            if g >= XP["dr0"] and (g - XP["dr0"]) % XP["drs"] == 0 and g < 18: k.extend(drain(nd)); nd += 1
    k("@waitlds all\ns_barrier")
    stamp(k, "p1 ln")
    def xreads(t):
        b = t & 1
        return ["ds_read_b128 %s, v%d offset:%d" % (vr(XF + 16 * b + 4 * r, 4), 236 + (t & 1) + 2 * (r >> 1), XL + ((r & 1) * 18 + t) * 1024) for r in range(4)]
    var = []
    for j in range(9):
        for c in range(4):
            for h in range(2):
                x = XR + (h * 9 + j) * 4 + c
                var.append("v_dot2c_f32_bf16 v%d, v%d, v%d" % (T0 + 4 + 2 * h + (c & 1), x, x))
    var += ["v_add_f32 v%d, v%d, v%d" % (T0 + 4, T0 + 4, T0 + 5), "v_add_f32 v%d, v%d, v%d" % (T0 + 6, T0 + 6, T0 + 7)]
    for ctl in ("quad_perm:[1,0,3,2]", "quad_perm:[2,3,0,1]", "row_half_mirror"):
        for r in (T0 + 4, T0 + 6):
            var.append("v_add_f32_dpp v%d, v%d, v%d %s row_mask:0xf bank_mask:0xf" % (r, r, r, ctl))
    rnd = lambda r: ["v_cvt_pk_bf16_f32 v%d, v%d, v%d" % (r, r, r), "v_and_b32 v%d, 0xffff0000, v%d" % (r, r)]
    for h in range(2):
        r = T0 + 4 + 2 * h; dl = T0 + 2 * h
        var += ["v_mul_f32 v%d, v%d, v%d" % (dl, dl, dl), "v_fma_f32 v%d, v%d, s35, -v%d" % (r, r, dl), "v_max_f32 v%d, 0, v%d" % (r, r)] + rnd(r)
        var += ["v_add_f32 v%d, 0x%x, v%d" % (r, f2u(1e-5), r)] + rnd(r) + ["v_sqrt_f32 v%d, v%d" % (r, r)] + rnd(r)
        var += ["v_rcp_f32 v%d, v%d" % (r, r), "ds_write_b32 v246, v%d offset:%d" % (r, 32 * h)]
    k.extend(xreads(0))
    main = []; fill = {}
    for t in range(18):
        b = t & 1
        for u in range(16):
            T, r = u >> 2, u & 3
            a = vr(ACC + 16 * T + 4 * r, 4)
            main.append("v_mfma_f32_16x16x32_bf16 %s, %s, %s, %s" % (a, vr(XF + 16 * b + 4 * r, 4), wreg(t, T), a if t else "0"))
        g0 = 16 * t
        if t + 1 < 18: spread(fill, xreads(t + 1), g0, g0 + 3)
        if nd < 18:
            d = drain(nd)
            spread(fill, [d[:2]] + d[2:], g0 + 4, g0 + 9)
            rf = refill(nd)
            if rf: spread(fill, [rf[:3]] + rf[3:], g0 + 12, g0 + 15)
            nd += 1
    spread(fill, var, 0, 16 * 8 - 1)
    fill.setdefault(16 * 9, []).extend(["v_mov_b32 v248, 0", "global_load_dword v248, v248, s[92:93] sc1"])
    fill.setdefault(16 * 12, []).extend(["@waitlds all", "s_barrier"])
    spread(fill, ["ds_read_b128 %s, v245 offset:%d" % (vr(XR + 4 * r, 4), 128 * (r >> 1) + 16 * (r & 1)) for r in range(4)], 16 * 17, 16 * 17 + 3)
    k.extend(weave(main, fill))
    stamp(k, "p1 mm")
    k("s_mul_i32 s28, s25, %d\ns_lshl_b32 s30, s24, 9\ns_add_u32 s28, s28, s30" % (16 * CGS))
    OUT = 40
    for T in range(4):
        o = OUT + 8 * T
        for r in range(4):
            a = ACC + 16 * T + 4 * r
            for b in range(0, 4, 2): k("v_pk_mul_f32 %s, %s, %s" % (vr(a + b, 2), vr(a + b, 2), vr(XR + 4 * r + b, 2)))
            k("v_cvt_pk_bf16_f32 v%d, v%d, v%d\nv_cvt_pk_bf16_f32 v%d, v%d, v%d" % (o + 2 * r, a, a + 1, o + 2 * r + 1, a + 2, a + 3))
        k("buffer_store_dwordx4 %s, v244, s[16:19], s28 offen sc1 ;#z" % vr(o, 4))
        k("buffer_store_dwordx4 %s, v244, s[16:19], s28 offen offset:256 sc1 ;#z" % vr(o + 4, 4))
        if T < 3: k("s_add_u32 s28, s28, %d" % (4 * CGS))
    get_tag(k, 248, "p1")
    k("s_lshl_b32 s30, s24, 7\ns_lshl_b32 s31, s25, 2\ns_add_u32 s30, s30, s31")
    stamp(k, "p1 st")
    k.extend(flag("z", 2, 247, "s30"))
    stamp(k, "p1 fl")

WOB = 53248
def p2(k):
    KB, VB, AUX, QB = 0, 20800, 41600, WOB
    k("L_p2:\n@reset")
    k("s_load_dwordx2 s[6:7], s[0:1], 16")
    touch_chain(k, "L_c2", 22)
    k("s_lshr_b32 s23, s2, 5")
    k("s_and_b32 s24, s2, 7\ns_lshl_b32 s24, s24, 2\ns_bfe_u32 s25, s2, 0x20003\ns_add_u32 s24, s24, s25")
    k("s_mul_i32 s27, s24, 18\ns_and_b32 s26, s27, 3\ns_lshr_b32 s25, s27, 2")
    k("v_lshrrev_b32 v2, 3, v1\ns_lshl_b32 s28, s23, 2\ns_cmp_eq_u32 s23, 0\ns_cselect_b32 s29, 3, 7\ns_cselect_b32 s30, 0, 4\ns_sub_u32 s28, s28, s30")
    k("v_and_b32 v2, s29, v2\nv_add_u32 v2, s28, v2\nv_lshlrev_b32 v2, 7, v2")
    k("v_and_b32 v3, 7, v1\nv_min_u32 v3, 5, v3\nv_and_b32 v4, 1, v3\nv_mul_u32_u24 v4, 17, v4\nv_add_u32 v4, s27, v4\nv_lshrrev_b32 v4, 6, v4")
    k("v_lshrrev_b32 v3, 1, v3\nv_mul_u32_u24 v3, 9, v3\nv_add_u32 v3, v3, v4\nv_lshl_add_u32 v14, v3, 2, v2")
    k("s_add_u32 s29, s25, 144\ns_mul_i32 s29, s29, %d" % CGS)
    k("s_lshl_b32 s30, s23, 1\ns_add_u32 s30, s30, s22\ns_cmp_lt_u32 s30, 2\ns_cselect_b32 s31, 0, 2\ns_sub_u32 s30, s30, s31")
    k("s_lshl_b32 s30, s30, 10\ns_add_u32 s29, s29, s30\ns_lshl_b32 s30, s22, 10")
    k("v_lshlrev_b32 v3, 4, v1")
    k("s_mov_b32 s31, %d" % CGS)
    k("v_lshrrev_b32 v5, 5, v1\nv_mul_lo_u32 v4, v5, s31\nv_and_b32 v10, 31, v1\nv_lshl_add_u32 v4, v10, 4, v4\nv_lshlrev_b32 v15, 4, v10")
    k("s_mul_i32 s32, s25, %d\ns_lshl_b32 s33, s23, 11\ns_add_u32 s32, s32, s33\ns_lshl_b32 s33, s22, 9\ns_add_u32 s32, s32, s33" % CGS)
    k("s_mul_i32 s33, s22, 3072\ns_add_u32 s33, s33, %d" % QB)
    k.srd(8, 20, Z_BYTES, WS_Z)
    k.srd(12, 20, OP_BYTES, WS_OP)
    k.srd(16, 20, O2_BYTES, WS_O2)
    k("v_bfe_u32 v6, v1, 4, 1\nv_bfe_u32 v7, v1, 2, 2\nv_and_b32 v8, 3, v1")
    k("v_and_b32 v9, 1, v8\nv_lshl_add_u32 v9, v6, 1, v9\nv_lshlrev_b32 v9, 6, v9\nv_lshrrev_b32 v11, 1, v8\nv_lshl_add_u32 v9, v11, 3, v9")
    k("v_lshrrev_b32 v13, 1, v8\nv_lshl_add_u32 v13, v6, 1, v13\nv_lshlrev_b32 v13, 6, v13\nv_and_b32 v11, 1, v8\nv_lshl_add_u32 v13, v11, 3, v13")
    AK1, AK3, AQ1, AQ3, AV, VO1, VO2, VL0 = 232, 233, 234, 235, 236, 237, 238, 239
    k("s_lshl_b32 s34, s22, 9")
    k("v_lshl_add_u32 v11, v5, 3, v7\nv_add_u32 v11, s26, v11")
    k("v_lshrrev_b32 v12, 2, v11\nv_and_b32 v11, 3, v11\nv_lshlrev_b32 v11, 4, v11")
    k("v_mul_u32_u24 v2, 4160, v12\nv_add3_u32 v2, v2, v11, v9\nv_add_u32 v%d, s34, v2" % AK1)
    k("v_lshl_add_u32 v2, v12, 9, v11\nv_add3_u32 v%d, v2, v13, s33" % AQ1)
    k("v_min_u32 v11, 1, v7\nv_add_u32 v11, s26, v11\nv_lshlrev_b32 v11, 4, v11")
    k("v_add3_u32 v2, v11, v9, s34\nv_add_u32 v2, %d, v2\nv_add_u32 v12, s34, v9\nv_add_u32 v12, %d, v12" % (4 * 4160, AUX))
    k("v_cmp_gt_u32 vcc, 2, v7\nv_cndmask_b32 v%d, v12, v2, vcc" % AK3)
    k("v_add3_u32 v2, v11, v13, s33\nv_add_u32 v%d, 2048, v2" % AQ3)
    k("v_add_u32 v11, s26, v10\nv_lshrrev_b32 v12, 2, v11\nv_and_b32 v11, 3, v11")
    k("v_mul_u32_u24 v12, 4160, v12\nv_lshl_add_u32 v12, v11, 4, v12\nv_add_u32 v12, %d, v12" % VB)
    k("v_mov_b32 v11, %d\nv_cmp_gt_u32 vcc, 18, v10\nv_cndmask_b32 v12, v11, v12, vcc" % (AUX + 16))
    k("v_lshl_add_u32 v12, v5, 6, v12\nv_add_u32 v%d, s34, v12" % AV)
    k("v_lshlrev_b32 v11, 3, v5\nv_sub_u32 v11, v10, v11")
    MK = 208
    k("v_mov_b32 v12, 0xffff\nv_mov_b32 v13, 0xffff0000")
    for rho in range(16):
        a, b = rho >> 2, rho & 3
        k("v_cmp_le_i32 s[%d:%d], %d, v11" % (36 + 2 * rho, 37 + 2 * rho, 16 * (a >> 1) + 4 * (a & 1) + b))
    for i in range(8):
        k("v_cndmask_b32 v2, 0, v12, s[%d:%d]\nv_cndmask_b32 v6, 0, v13, s[%d:%d]\nv_or_b32 v%d, v2, v6" % (36 + 4 * i, 37 + 4 * i, 38 + 4 * i, 39 + 4 * i, MK + i))
    k("s_lshl_b32 s68, s23, 8\ns_lshl_b32 s69, s22, 6\ns_add_u32 s68, s68, s69")
    k("v_lshl_add_u32 v%d, v5, 11, v10\nv_lshlrev_b32 v%d, 4, v%d" % (VO1, VO1, VO1))
    k("v_lshlrev_b32 v2, 2, v10\nv_mov_b32 v6, 0x%x\nv_cmp_gt_u32 vcc, 32, v1\nv_cndmask_b32 v%d, v6, v2, vcc" % (BIG, VO2))
    k("s_lshl_b32 s69, s24, 12\ns_add_u32 s69, s69, s68\ns_lshl_b32 s69, s69, 4")
    k("s_lshl_b32 s70, s24, 11\ns_add_u32 s70, s70, s68\ns_lshl_b32 s70, s70, 2")
    lane0(k, VL0, 2)
    KF, VF, QF, OA = 0, 80, 160, 176
    for n in range(10): k("v_accvgpr_write_b32 a%d, 0\nv_accvgpr_write_b32 a%d, 0" % (KF + 8 * n + 6, KF + 8 * n + 7))
    for u in range(2): k("v_accvgpr_write_b32 a%d, 0\nv_accvgpr_write_b32 a%d, 0" % (QF + 8 * u + 6, QF + 8 * u + 7))
    k("v_mov_b32 v2, 0x3f80\nv_cmp_gt_u32 vcc, 32, v1\nv_cndmask_b32 v2, 0, v2, vcc\nv_accvgpr_write_b32 a%d, v2\nv_accvgpr_write_b32 a%d, v2" % (QF + 5, QF + 13))
    SCO = 16
    VD, VE, VH, VHE = SCO + 176, SCO + 180, SCO + 184, SCO + 186
    dma_piece(k, 7, 1, 8)
    k("v_mul_u32_u24 v6, 1152, v8\nv_add_u32 v6, v6, v7")
    un = [0, 18, 8, 26]
    for a in range(4): k("v_add_u32 v%d, %d, v6" % (VD + a, un[a] * 1152 - a * 1024))
    k("v_lshrrev_b32 v6, 2, v8\nv_lshlrev_b32 v6, 2, v6\nv_bfe_u32 v9, v8, 1, 1\nv_add_u32 v6, v6, v9\nv_mul_u32_u24 v6, 18, v6\nv_and_b32 v9, 1, v8\nv_add_u32 v6, v6, v9")
    k("v_mul_u32_u24 v6, 1152, v6\nv_add_u32 v6, v6, v7")
    ue = [16, 18 * 8 + 16, 18 * 2 + 16, 18 * 10 + 16]
    for a in range(4): k("v_add_u32 v%d, %d, v6" % (VE + a, ue[a] * 1152 - a * 1024))
    k("v_lshrrev_b32 v8, 2, v1\nv_bfe_u32 v7, v1, 4, 1\nv_lshlrev_b32 v7, 1, v7\nv_and_b32 v9, 3, v1\nv_xor_b32 v7, v7, v9\nv_lshlrev_b32 v7, 4, v7")
    k("v_lshrrev_b32 v6, 3, v8\nv_mul_u32_u24 v6, 18, v6\nv_and_b32 v9, 7, v8\nv_add_u32 v6, v6, v9\nv_mul_u32_u24 v6, 1152, v6\nv_add_u32 v%d, v6, v7" % VH)
    k("v_add_u32 v%d, %d, v%d" % (VH + 1, 8 * 1152 - 1024, VH))
    k("v_lshrrev_b32 v6, 2, v8\nv_lshlrev_b32 v6, 2, v6\nv_bfe_u32 v9, v8, 1, 1\nv_add_u32 v6, v6, v9\nv_mul_u32_u24 v6, 18, v6\nv_and_b32 v9, 1, v8\nv_add3_u32 v6, v6, v9, 16")
    k("v_mul_u32_u24 v6, 1152, v6\nv_add_u32 v%d, v6, v7\nv_add_u32 v%d, %d, v%d" % (VHE, VHE + 1, 36 * 1152 - 1024, VHE))
    k("s_lshr_b32 s71, s2, 5\ns_mul_i32 s72, s71, 192\ns_and_b32 s73, s71, 1\ns_lshl_b32 s74, s73, 6\ns_xor_b32 s73, s73, 1\ns_lshl_b32 s73, s73, 7")
    k("s_add_u32 s73, s73, s72\ns_add_u32 s72, s72, s74")
    k("s_waitcnt lgkmcnt(0)")
    k.srd(76, 6, D * D * 2)
    k("s_barrier")
    k("v_and_b32 v2, 3, v1\nv_lshl_add_u32 v6, v1, 4, s30")
    k("s_lshl_b32 s35, s23, 1\ns_lshr_b32 s74, s22, 1\ns_add_u32 s35, s35, s74\ns_cmp_eq_u32 s35, 0\ns_cselect_b32 s35, 0xff7fff7f, 0")
    k("v_mov_b32 v7, s35\nv_mov_b32 v8, 0x3f803f80\nv_cmp_eq_u32 vcc, 0, v2\nv_cndmask_b32 v8, v8, v7, vcc")
    k("v_mov_b32 v9, v8\nv_mov_b32 v10, v8\nv_mov_b32 v11, v8")
    k("ds_write_b128 v6, v[8:11] offset:%d" % AUX)
    stamp(k, "p2 setup")
    spin(k, "p2", 2, 14, "0")
    stamp(k, "p2 go")
    k("s_mov_b32 m0, s33")
    k("buffer_load_dwordx4 v4, s[8:11], s32 offen sc1 lds ;#q")
    k("s_add_u32 m0, s33, 1024\ns_add_u32 s32, s32, %d" % (2 * CGS))
    k("buffer_load_dwordx4 v4, s[8:11], s32 offen sc1 lds ;#q")
    k("s_add_u32 m0, s33, 2048\ns_add_u32 s32, s32, %d" % (2 * CGS))
    k("buffer_load_dwordx4 v15, s[8:11], s32 offen sc1 lds ;#q")
    for m in range(2):
        for c in range(5):
            k("s_add_u32 m0, s30, %d" % (m * VB + c * 4160))
            k("buffer_load_dwordx4 v3, s[8:11], s29 offen sc1 lds ;#%s" % "kv"[m])
            k("s_add_u32 s29, s29, %d" % (CGS if c < 4 else 140 * CGS))
    k("@waitvm q")
    for u in range(2):
        k("ds_read_b64_tr_b16 %s, v%d offset:%d\nds_read_b64_tr_b16 %s, v%d offset:%d\nds_read_b64_tr_b16 %s, v%d offset:%d" % (
            ar(QF + 8 * u, 2), AQ1, 256 * u, ar(QF + 8 * u + 2, 2), AQ1, 512 + 256 * u, vr(6 + 2 * u, 2), AQ3, 256 * u))
    k("v_cmp_gt_u32 vcc, 32, v1")
    for u in range(2): k("v_cndmask_b32 v%d, 0, v%d, vcc\nv_accvgpr_write_b32 a%d, v%d" % (6 + 2 * u, 6 + 2 * u, QF + 8 * u + 4, 6 + 2 * u))
    k("@waitvm k\n@waitlds all\ns_barrier")
    stamp(k, "p2 k")
    def kread(n):
        f = KF + 8 * n
        return ["ds_read_b64_tr_b16 %s, v%d offset:%d" % (ar(f, 2), AK1, KB + 256 * n),
                "ds_read_b64_tr_b16 %s, v%d offset:%d" % (ar(f + 2, 2), AK1, KB + 256 * n + 4160),
                "ds_read_b64_tr_b16 %s, v%d offset:%d" % (ar(f + 4, 2), AK3, 256 * n)]
    def vread(n, s): return "ds_read_b128 %s, v%d offset:%d" % (ar(VF + 8 * n + 4 * s, 4), AV, 256 * n + 128 * s)
    order = [0, 8, 1, 2, 3, 4, 5, 6, 7]
    slot = [{j: j for j in range(9)}, dict(zip(order, [9, 10, 11, 0, 8, 1, 2, 3, 4]))]
    def sreg(u, j): return SCO + 16 * slot[u][j]
    def qk(u, j):
        s = vr(sreg(u, j), 16); f = KF + 8 * (j + u)
        return ["v_mfma_f32_32x32x16_bf16 %s, %s, %s, 0" % (s, ar(f, 4), ar(QF + 8 * u, 4)),
                "v_mfma_f32_32x32x16_bf16 %s, %s, %s, %s" % (s, ar(f + 4, 4), ar(QF + 8 * u + 4, 4), s)]
    MX = [216, 220]
    def maxops(u, j, first):
        b = sreg(u, j); m = MX[u]; o = []
        if j == 8: return []
        if j == 0:
            b8 = sreg(u, 8)
            o += ["v_cndmask_b32 v%d, v%d, v%d, s[%d:%d]" % (b + rho, b + rho, b8 + rho, 36 + 2 * rho, 37 + 2 * rho) for rho in range(16)]
            o += ["v_max3_f32 v%d, v%d, v%d, v%d" % (m, b, b + 1, b + 2), "v_max3_f32 v%d, v%d, v%d, v%d" % (m + 1, b + 3, b + 4, b + 5)]
            o += ["v_max3_f32 v%d, v%d, v%d, v%d" % (m + (i & 1), m + (i & 1), b + 6 + 2 * i, b + 7 + 2 * i) for i in range(5)]
        else:
            o += ["v_max3_f32 v%d, v%d, v%d, v%d" % (m + (i & 1), m + (i & 1), b + 2 * i, b + 2 * i + 1) for i in range(8)]
        return o
    def maxfin(u):
        m = MX[u]
        return ["v_max_f32 v%d, v%d, v%d" % (m, m, m + 1), "v_mov_b32 v%d, v%d" % (m + 1, m), "v_permlane32_swap_b32 v%d, v%d" % (m, m + 1),
                "v_max_f32 v%d, v%d, v%d" % (m, m, m + 1), "v_mul_f32 v%d, s75, v%d" % (m, m), "v_mov_b32 v%d, v%d" % (m + 1, m)]
    c = LOG2E * DH ** -0.5
    k("s_mov_b32 s74, 0x%x\ns_mov_b32 s75, 0x%x" % (f2u(c), f2u(-c)))
    k("s_mov_b32 s88, s74\ns_mov_b32 s89, s74")
    for n in (0, 8, 1, 2): k.extend(kread(n))
    wo = []
    wo.append("s_cmp_ge_u32 s2, 192"); wo.append("s_cbranch_scc1 L_nowo")
    wo += ["s_mul_i32 s90, s22, %d" % (36 * 1152), "s_mul_i32 s91, s22, 6144", "s_add_u32 s91, s91, %d" % WOB]
    for rnd in range(5):
        if rnd == 4:
            wo += ["s_cmp_ge_u32 s22, 2", "s_cbranch_scc1 L_nowo", "s_mul_i32 s90, s22, %d" % (18 * 16 * 1152)]
        vb, vh = (VD, VH) if rnd < 4 else (VE, VHE)
        wo += ["s_add_u32 m0, s91, %d" % (rnd * 4 * 6144), "s_add_u32 s35, s90, s72"]
        wo += ["buffer_load_dwordx4 v%d, s[76:79], s35 offen offset:%d lds ;#wo" % (vb + a, 1024 * a) for a in range(4)]
        wo += ["s_add_u32 m0, s91, %d" % (rnd * 4 * 6144 + 4096), "s_add_u32 s35, s90, s73"]
        wo += ["buffer_load_dwordx4 v%d, s[76:79], s35 offen offset:%d lds ;#wo" % (vh + a, 1024 * a) for a in range(2)]
        if rnd < 3: wo.append("s_add_u32 s90, s90, %d" % (4 * 36 * 1152))
    wo.append("L_nowo:")
    rest = [3, 4, 5, 6, 7, 9]
    pend = []
    for i, j in enumerate(order):
        q = qk(0, j)
        k(q[0])
        if i < len(rest): k.extend(kread(rest[i]))
        k(q[1])
        if i >= 2: k.extend(maxops(0, order[i - 2], False))
        if i == 1: k("@waitvm v\ns_barrier")
    k.extend(wo)
    k.extend(maxops(0, order[7], False))
    vr_list = [vread(n, s) for n in [0, 8, 1, 2, 3, 4, 5, 6, 7, 9] for s in range(2)]
    k.extend(vr_list[:6])
    k.extend(qk(1, 0)); k.extend(maxops(0, order[8], False)); k.extend(qk(1, 8))
    k.extend(maxfin(0))
    stamp(k, "p2 s")
    vr_list = vr_list[6:]
    first = [True, True]
    def pv(u, j):
        o = []
        for s in range(2):
            a = ar(OA + 16 * u, 16)
            o.append("v_mfma_f32_32x32x16_bf16 %s, %s, %s, %s" % (a, ar(VF + 8 * (j + u) + 4 * s, 4), vr(sreg(u, j) + 4 * s, 4), "0" if first[u] else a))
            first[u] = False
        return o
    def expops(u, j):
        b = sreg(u, j); m = MX[u]; o = []
        for hf in range(2):
            for i in range(0, 8, 2): o.append("v_pk_fma_f32 %s, %s, s[88:89], %s" % (vr(b + 8 * hf + i, 2), vr(b + 8 * hf + i, 2), vr(m, 2)))
            for i in range(8): o.append("v_exp_f32 v%d, v%d" % (b + 8 * hf + i, b + 8 * hf + i))
            for i in range(4): o.append("v_cvt_pk_bf16_f32 v%d, v%d, v%d" % (b + 4 * hf + i, b + 8 * hf + 2 * i, b + 8 * hf + 2 * i + 1))
        if j == 0:
            b8 = sreg(u, 8)
            for i in range(8): o += ["v_and_b32 v%d, v%d, v%d" % (b8 + i, b + i, MK + i), "v_xor_b32 v%d, v%d, v%d" % (b + i, b + i, b8 + i)]
        return o
    def outops(u):
        a = OA + 16 * u; t = 224 - 0
        o = ["v_accvgpr_read_b32 v2, a%d" % (a + 12), "v_rcp_f32 v2, v2"]
        o += ["v_accvgpr_read_b32 v%d, a%d" % (4 + i, a + i) for i in range(10)]
        o += ["v_mul_f32 v%d, v%d, v2" % (4 + i, 4 + i) for i in range(10)]
        o += ["v_cvt_pk_bf16_f32 v%d, v%d, v%d" % (t + i, 4 + 2 * i, 5 + 2 * i) for i in range(5)]
        o += ["buffer_store_dwordx4 %s, v%d, s[12:15], s69 offen offset:%d sc1 ;#o" % (vr(t, 4), VO1, 512 * u),
              "buffer_store_dword v%d, v%d, s[16:19], s70 offen offset:%d sc1 ;#o" % (t + 4, VO2, 128 * u)]
        return o
    steps = [0, 1, 2, 3, 4, 5, 6, 7]
    bq = {0: [1], 2: [2, 3], 3: [4], 4: [5], 5: [6], 6: [7]}
    bm = {0: [], 1: [0, 1], 3: [2, 3], 4: [4], 5: [5], 6: [6], 7: [7]}
    prev = []
    for e in steps:
        ops = expops(0, e)
        mf = list(prev)
        for j in bq.get(e, []): mf += qk(1, j)
        fill = {}
        if mf: spread(fill, mf, 2, len(ops) - 4)
        if vr_list: spread(fill, vr_list[:4], 0, 20); vr_list = vr_list[4:]
        k.extend(weave(ops, fill))
        for j in bm.get(e, []): k.extend(maxops(1, j, False))
        prev = pv(0, 0) + pv(0, 8) if e == 0 else pv(0, e)
    k.extend(maxfin(1))
    for e in steps:
        ops = expops(1, e)
        fill = {}
        spread(fill, prev, 2, len(ops) - 4)
        k.extend(weave(ops, fill))
        if e == 1: k.extend(outops(0))
        prev = pv(1, 0) + pv(1, 8) if e == 0 else pv(1, e)
    k.extend(prev)
    k.extend(outops(1))
    stamp(k, "p2 st")
    k("s_lshl_b32 s30, s23, 2\ns_add_u32 s30, s30, s22\ns_lshl_b32 s30, s30, 7\ns_lshl_b32 s31, s24, 2\ns_add_u32 s30, s30, s31\ns_add_u32 s30, s30, %d" % F2)
    k.extend(flag("o", 2, VL0, "s30"))
    stamp(k, "p2 fl")

def p3(k):
    k("L_p3:\n@reset")
    k("s_load_dwordx2 s[4:5], s[0:1], 0\ns_load_dwordx2 s[6:7], s[0:1], 48")
    touch_chain(k, "L_c3", 22)
    k("s_waitcnt vmcnt(0) lgkmcnt(0)\ns_barrier")
    k("s_cmp_lt_u32 s2, 192\ns_cbranch_scc1 L_p3go")
    k.srd(8, 6, WB)
    k("s_sub_u32 s23, s2, 192\ns_lshl_b32 s23, s23, 2\ns_add_u32 s23, s23, s22\ns_mul_i32 s23, s23, 20736\nv_lshlrev_b32 v2, 7, v1")
    k("buffer_load_dword v10, v2, s[8:11], s23 offen\ns_add_u32 s23, s23, 8192\nbuffer_load_dword v11, v2, s[8:11], s23 offen\ns_add_u32 s23, s23, 8192")
    k("s_mov_b32 exec_hi, 3\nbuffer_load_dword v12, v2, s[8:11], s23 offen\ns_mov_b64 exec, -1\ns_waitcnt vmcnt(0)\ns_branch L_p4")
    k("L_p3go:\n@reset")
    k("s_and_b32 s23, s2, 7\ns_lshl_b32 s23, s23, 2\ns_bfe_u32 s24, s2, 0x20003\ns_add_u32 s23, s23, s24")
    k("s_lshr_b32 s24, s2, 5\ns_lshl_b32 s25, s23, 2\ns_add_u32 s25, s25, s22")
    k("v_and_b32 v6, 15, v1\nv_lshrrev_b32 v7, 4, v1")
    k.srd(36, 4, X_BYTES)
    XR, BF, ACC, WV = 232, 16, 88, 112
    k("v_mul_u32_u24 v10, 1152, v6\nv_lshl_add_u32 v10, v7, 3, v10\ns_mul_i32 s40, s25, %d\ns_add_u32 s41, s40, s73\ns_add_u32 s40, s40, s72" % (16 * 1152))
    for T in range(6): k("buffer_load_dwordx2 %s, v10, s[36:39], s%d offen offset:%d" % (vr(XR + 2 * T, 2), 40 if T < 4 else 41, 32 * (T & 3)))
    TA, TM = 244, 248
    k("s_mov_b32 s26, %d" % WOB)
    tr_addrs(k, TA, 1, "s26", 2)
    k("v_lshrrev_b32 v2, 2, v1\nv_lshlrev_b32 v2, 6, v2\nv_and_b32 v3, 3, v1\nv_lshl_add_u32 v2, v3, 3, v2\nv_bfe_u32 v3, v1, 4, 1")
    k("v_lshl_add_u32 v%d, v3, 5, v2\nv_add_u32 v%d, %d, v%d\nv_xor_b32 v%d, 32, v%d" % (TM, TM, WOB + 4096, TM, TM + 1, TM))
    def wreg(t, T, o=0, n=4):
        if t < 10: return ar(24 * t + 4 * T + o, n)
        if t < 15: return vr(WV + 24 * (t - 10) + 4 * T + o, n)
        return ar(24 * (t - 15) + 4 * T + o, n)
    def wread(t):
        o = []
        if t == 10: o += ["v_add_u32 v%d, 61440, v%d" % (TA + q, TA + q) for q in range(6)]
        off = (t % 10) * 6144
        for T in range(6):
            for j in range(2):
                a, oo = (TA + T, off + 2048 * j) if T < 4 else (TM + T - 4, off + 1024 * j)
                o.append("ds_read_b64_tr_b16 %s, v%d offset:%d" % (wreg(t, T, 2 * j, 2), a, oo))
        return o
    for t in range(15): k.extend(wread(t))
    k("v_lshl_add_u32 v8, v7, 11, v6\nv_lshlrev_b32 v8, 4, v8")
    k("v_lshl_add_u32 v9, v7, 13, v6\nv_lshlrev_b32 v9, 2, v9")
    k("s_lshl_b32 s31, s25, 8\ns_lshl_b32 s32, s25, 6")
    k("v_and_b32 v11, 31, v1\nv_lshlrev_b32 v11, 2, v11\ns_lshl_b32 s30, s23, 7\ns_add_u32 s30, s30, %d" % F2)
    lane0(k, 12, 2)
    k.srd(8, 20, H_BYTES, WS_H)
    k.srd(44, 20, ST_BYTES, WS_ST)
    k("s_mov_b32 s41, 0x00003f80\ns_mov_b32 s42, 0x3f800000\ns_mov_b32 s43, 0x3f803f80")
    k("s_mul_i32 s48, s25, 18432\ns_lshl_b32 s49, s73, 4\ns_add_u32 s49, s49, s48\ns_lshl_b32 s50, s72, 4\ns_add_u32 s48, s48, s50")
    k("s_lshl_b32 s50, s24, 14\ns_lshl_b32 s51, s25, 7\ns_add_u32 s50, s50, s51")
    k("s_lshl_b32 s51, s25, 5\ns_lshl_b32 s52, s24, 2\ns_add_u32 s51, s51, s52\ns_add_u32 s51, s51, %d" % F3)
    k("v_lshlrev_b32 v13, 4, v1\nv_lshlrev_b32 v14, 3, v1\nv_mov_b32 v2, 0x%x\nv_cmp_gt_u32 vcc, 16, v1\nv_cndmask_b32 v14, v2, v14, vcc" % BIG)
    stamp(k, "p3 setup")
    spin(k, "p3", 2, 11, "s30")
    stamp(k, "p3 go")
    for t in range(18):
        if t < 16:
            k("buffer_load_dwordx4 %s, v8, s[12:15], s31 offen sc1" % vr(BF + 4 * t, 4))
            k("s_add_u32 s31, s31, %d" % (4 * 32768))
        else:
            for e in range(4):
                k("buffer_load_dword v%d, v9, s[16:19], s32 offen sc1" % (BF + 4 * t + e))
                k("s_add_u32 s32, s32, %d" % (8192 if e < 3 else 13 * 8192))
    main = []; fill = {}
    for t in range(18):
        for T in range(6):
            a = vr(ACC + 4 * T, 4)
            main.append("v_mfma_f32_16x16x32_bf16 %s, %s, %s, %s" % (a, wreg(t, T), vr(BF + 4 * t, 4), a if t else "0"))
    for t in range(15, 18): spread(fill, wread(t), 6 * (t - 14) + 12 * (t - 15), 6 * (t - 14) + 12 * (t - 15) + 11)
    k.extend(weave(main, fill))
    stamp(k, "p3 mm")
    HO, TT = 16, 32
    k("v_mov_b32 v4, 0\nv_mov_b32 v5, 0")
    for T in range(6):
        for j in range(2): k("v_cvt_pk_bf16_f32 v%d, v%d, v%d" % (TT + 2 * T + j, ACC + 4 * T + 2 * j, ACC + 4 * T + 2 * j + 1))
    for T in range(6):
        for j in range(2):
            p = TT + 2 * T + j; a = ACC + 4 * T + 2 * j
            k("v_lshlrev_b32 v%d, 16, v%d\nv_and_b32 v%d, 0xffff0000, v%d" % (a, p, a + 1, p))
    for T in range(6):
        for j in range(2):
            a = ACC + 4 * T + 2 * j
            k("v_dot2c_f32_bf16 v%d, s41, v%d\nv_dot2c_f32_bf16 v%d, s42, v%d" % (a, XR + 2 * T + j, a + 1, XR + 2 * T + j))
    for T in range(6):
        for j in range(2): k("v_cvt_pk_bf16_f32 v%d, v%d, v%d" % (HO + 2 * T + j, ACC + 4 * T + 2 * j, ACC + 4 * T + 2 * j + 1))
        if T & 1:
            k("buffer_store_dwordx4 %s, v13, s[8:11], s%d offen offset:%d sc1 ;#h" % (vr(HO + 2 * T - 2, 4), 48 if T < 4 else 49, 1024 if T == 3 else 0))
    for i in range(12):
        k("v_dot2c_f32_bf16 v4, s43, v%d\nv_dot2c_f32_bf16 v5, v%d, v%d" % (HO + i, HO + i, HO + i))
    for sw in ("v_permlane16_swap_b32", "v_permlane32_swap_b32"):
        k("v_mov_b32 v2, v4\nv_mov_b32 v3, v5")
        k("%s v4, v2\n%s v5, v3" % (sw, sw))
        k("v_add_f32 v4, v4, v2\nv_add_f32 v5, v5, v3")
    k("buffer_store_dwordx2 v[4:5], v14, s[44:47], s50 offen sc1 ;#h")
    stamp(k, "p3 st")
    k.extend(flag("h", 2, 12, "s51"))
    stamp(k, "p3 fl")

def p4(k):
    SLOT = 36864
    k("L_p4:\n@reset")
    k("s_load_dwordx4 s[4:7], s[0:1], 32\ns_load_dwordx4 s[36:39], s[0:1], 48")
    k("s_and_b32 s23, s2, 1\ns_lshl_b32 s23, s23, 3\ns_bfe_u32 s25, s2, 0x30003\ns_add_u32 s23, s23, s25")
    k("s_bfe_u32 s24, s2, 0x20001\ns_lshl_b32 s24, s24, 2\ns_lshr_b32 s25, s2, 6\ns_add_u32 s24, s24, s25")
    XF, GA, UA = 16, 160, 192
    VG, VM, VW, TA, TM, C1, C2, TMP, VS, TS = 224, 228, 232, 236, 240, 242, 244, 246, 254, 255
    AF, HF = 0, 72
    k("s_and_b32 s25, s24, 1\ns_mul_i32 s26, s24, 576\ns_lshl_b32 s27, s25, 6\ns_add_u32 s27, s27, s26")
    k("s_xor_b32 s25, s25, 1\ns_lshl_b32 s25, s25, 9\ns_add_u32 s28, s25, s26")
    k("s_lshl_b32 s29, s23, 3\ns_lshl_b32 s30, s22, 1\ns_add_u32 s29, s29, s30")
    dma_piece(k, 4, 1, 2)
    k("v_mul_u32_u24 v5, 9216, v2\nv_add_u32 v5, v5, v4")
    for a in range(4): k("v_add_u32 v%d, %d, v5" % (VG + a, a * (8 * 9216 - 1024)))
    k("s_mul_i32 s56, s22, %d\ns_add_u32 s56, s56, s27" % (64 * 9216))
    k("s_mul_i32 s57, s22, %d\ns_add_u32 s57, s57, s27\ns_add_u32 s57, s57, %d" % (8 * 9216, 256 * 9216))
    k("s_lshl_b32 s58, s22, 13\ns_lshl_b32 s59, s22, 10\ns_add_u32 s59, s59, 32768")
    k("s_waitcnt lgkmcnt(0)")
    k.srd(40, 4, WB)
    k.srd(44, 6, WB)
    stages = []
    for B in range(4): stages += [("G", B, 0), ("G", B, 1), ("U", B, 0), ("U", B, 1)]
    stages += [("M", 4, 0), ("M", 4, 1)]
    stages += [("D", c, 0) for c in range(9)]
    NS = len(stages)
    def dma(n):
        kind, B, kh = stages[n]
        sl = (n % 4) * SLOT
        o = []
        if kind in "GU":
            srd = "s[40:43]" if kind == "G" else "s[44:47]"
            off = 128 * B + kh * 288 * 9216
            for g in range(2):
                pre = ["s_add_u32 m0, s58, %d" % (sl + 4096 * g), "s_add_u32 s60, s56, %d" % (off + g * 32 * 9216)]
                for a in range(4):
                    o.append(pre + ["buffer_load_dwordx4 v%d, %s, s60 offen offset:%d lds ;#s%d" % (VG + a, srd, 1024 * a, n)]); pre = []
            o.append(["s_add_u32 m0, s59, %d" % sl, "s_add_u32 s60, s57, %d" % off, "buffer_load_dwordx4 v%d, %s, s60 offen lds ;#s%d" % (VG, srd, n)])
        elif kind == "M":
            for g in range(3):
                pre = ["s_add_u32 m0, s61, %d" % (sl + 4096 * g), "s_add_u32 s60, s62, %d" % (kh * 288 * 9216 + g * 64 * 9216)]
                for a in range(4 if g < 2 else 1):
                    o.append(pre + ["buffer_load_dwordx4 v%d, s[52:55], s60 offen offset:%d lds ;#s%d" % (VM + a, 1024 * a, n)]); pre = []
        else:
            base, off = ("s63", B * 32 * 1152) if B < 8 else ("s64", 0)
            for g in range(2):
                pre = ["s_add_u32 m0, s61, %d" % (sl + 4096 * g), "s_add_u32 s60, %s, %d" % (base, off + 128 * g)]
                for a in range(4):
                    o.append(pre + ["buffer_load_dwordx4 v%d, s[48:51], s60 offen offset:%d lds ;#s%d" % (VW + a, 1024 * a, n)]); pre = []
            o.append(["s_add_u32 m0, s61, %d" % (sl + 8192), "s_add_u32 s60, %s, %d" % (base, off),
                      "buffer_load_dwordx4 v%d, s[48:51], s60 offen lds ;#s%d" % (VS, n)])
        return o
    k("s_barrier")
    NPF = XP.get("npf", 2)
    for n in range(NPF):
        for x in dma(n): k.extend(x)
    touch_chain(k, "L_c4", 22)
    k("v_and_b32 v6, 15, v1\nv_lshrrev_b32 v7, 4, v1")
    k("v_lshl_add_u32 v8, v7, 11, v6\nv_lshlrev_b32 v8, 3, v8\nv_lshlrev_b32 v9, 4, v1")
    k("v_add_u32 v12, 0x10000, v8")
    k("s_lshl_b32 s30, s29, 7\ns_mul_i32 s31, s29, 18432")
    k.srd(8, 20, ST_BYTES, WS_ST)
    k.srd(12, 20, H_BYTES, WS_H)
    k.srd(48, 36, WB)
    k.srd(16, 38, X_BYTES)
    k("s_cmp_lt_u32 s22, 2\ns_cselect_b32 s52, s40, s44\ns_cselect_b32 s53, s41, s45\ns_mov_b32 s54, 0x%x\ns_mov_b32 s55, 0x20000" % WB)
    k("v_mul_u32_u24 v5, 1152, v2\nv_add_u32 v5, v5, v4")
    for a in range(4): k("v_add_u32 v%d, %d, v5" % (VW + a, a * (8 * 1152 - 1024)))
    k("v_lshrrev_b32 v2, 2, v1\nv_mul_u32_u24 v5, 9216, v2\nv_bfe_u32 v3, v1, 4, 1\nv_lshlrev_b32 v3, 1, v3\nv_and_b32 v4, 3, v1\nv_xor_b32 v3, v3, v4\nv_lshl_add_u32 v5, v3, 4, v5")
    for a in range(4): k("v_add_u32 v%d, %d, v5" % (VM + a, a * (16 * 9216 - 1024)))
    k("s_mul_i32 s61, s22, 9216\ns_and_b32 s62, s22, 1\ns_mul_i32 s62, s62, %d\ns_add_u32 s62, s62, s28" % (144 * 9216))
    k("s_lshr_b32 s25, s24, 2\ns_and_b32 s26, s24, 3\ns_and_b32 s35, s26, 1\ns_mul_i32 s34, s26, 288")
    k("s_lshl_b32 s67, s35, 5\ns_add_u32 s33, s34, s67\ns_xor_b32 s67, s35, 1\ns_lshl_b32 s67, s67, 8\ns_add_u32 s34, s34, s67")
    k("s_and_b32 s67, s24, 12\ns_add_u32 s67, s67, s22\ns_mul_i32 s63, s67, 288\ns_and_b32 s67, s22, 1")
    k("s_xor_b32 s64, s67, 1\ns_lshl_b32 s64, s64, 8\ns_add_u32 s64, s64, s63\ns_lshl_b32 s67, s67, 5\ns_add_u32 s63, s63, s67")
    k("s_mul_i32 s67, s26, 288\ns_mul_i32 s63, s63, 1152\ns_add_u32 s63, s63, s67\ns_mul_i32 s64, s64, 1152\ns_add_u32 s64, s64, s67")
    k("v_lshrrev_b32 v2, 1, v1\nv_mul_u32_u24 v2, 1152, v2\nv_and_b32 v3, 1, v1\nv_lshl_add_u32 v2, v3, 4, v2")
    k("s_sub_u32 s60, s34, s67\nv_add_u32 v%d, s60, v2\ns_sub_u32 s60, s33, s67" % VS)
    for a in range(4): k("v_add_u32 v%d, s60, v%d" % (VW + a, VW + a))
    tr_addrs(k, TA, 1, None, 2)
    k("v_lshrrev_b32 v2, 2, v1\nv_lshlrev_b32 v2, 6, v2\nv_and_b32 v3, 3, v1\nv_lshl_add_u32 v2, v3, 3, v2\nv_bfe_u32 v3, v1, 4, 1")
    k("v_lshl_add_u32 v%d, v3, 5, v2\nv_xor_b32 v%d, 32, v%d" % (TM, TM + 1, TM))
    k("v_lshlrev_b32 v%d, 3, v1\nv_add_u32 v%d, 8192, v%d" % (TS, TS, TS))
    k("s_mov_b32 s88, 0x00003f80\ns_mov_b32 s89, 0x3f800000\ns_mov_b32 s65, 0x%x" % f2u(1.0 / D))
    k("s_lshl_b32 s67, s23, 4\ns_add_u32 s66, s67, s24\ns_lshl_b32 s66, s66, 2\ns_add_u32 s66, s66, s22\ns_mul_i32 s66, s66, 18432")
    k("s_and_b32 s68, s24, 12\ns_add_u32 s68, s68, s67\ns_lshl_b32 s68, s68, 2\ns_add_u32 s68, s68, s22\ns_mul_i32 s68, s68, 18432")
    k("s_lshl_b32 s69, s23, 2\ns_add_u32 s69, s69, s22\ns_lshl_b32 s69, s69, 6\ns_add_u32 s69, s69, %d\ns_and_b32 s70, s24, 12\ns_lshl_b32 s70, s70, 2\ns_add_u32 s70, s70, s69" % FH)
    k("s_lshl_b32 s67, s24, 2\ns_add_u32 s69, s69, s67")
    lane0(k, 3, 2)
    k("v_and_b32 v14, 7, v1\nv_min_u32 v14, 5, v14\nv_lshlrev_b32 v14, 2, v14\nv_bfe_u32 v15, v1, 3, 1\nv_lshl_add_u32 v14, v15, 5, v14")
    k("s_lshl_b32 s67, s29, 5\ns_add_u32 s67, s67, %d" % F3)
    stamp(k, "p4 setup")
    spin(k, "p4", 13, 14, "s67")
    stamp(k, "p4 go")
    ST = UA
    for r in range(2):
        for j in range(2):
            k("buffer_load_dwordx2 %s, v%d, s[8:11], s30 offen offset:%d sc1" % (vr(ST + 6 * r + 2 * j, 2), (8, 12)[j], 128 * r))
    def xload(r, t):
        return ["s_add_u32 s32, s31, %d" % ((r * 18 + t) // 4 * 4096),
                "buffer_load_dwordx4 %s, v9, s[12:15], s32 offen offset:%d sc1" % (vr(XF + 72 * r + 4 * t, 4), ((r * 18 + t) % 4) * 1024)]
    for t in range(18):
        for r in range(2): k.extend(xload(r, t))
    k("v_and_b32 v12, 3, v1\nv_lshlrev_b32 v12, 2, v12")
    k.srd(8, 20, HB_BYTES, WS_HB)
    for r in range(2):
        b = ST + 6 * r
        k("v_add_f32 v%d, v%d, v%d\nv_add_f32 v%d, v%d, v%d" % (b, b, b + 2, b + 1, b + 1, b + 3))
        for sw in ("v_permlane16_swap_b32", "v_permlane32_swap_b32"):
            k("v_mov_b32 v%d, v%d\nv_mov_b32 v%d, v%d" % (b + 2, b, b + 3, b + 1))
            k("%s v%d, v%d\n%s v%d, v%d" % (sw, b, b + 2, sw, b + 1, b + 3))
            k("v_add_f32 v%d, v%d, v%d\nv_add_f32 v%d, v%d, v%d" % (b, b, b + 2, b + 1, b + 1, b + 3))
        k("v_mul_f32 v%d, s65, v%d" % (b, b))
        k("v_mul_f32 v%d, v%d, v%d" % (b + 2, b, b))
        k("v_fma_f32 v%d, v%d, s65, -v%d" % (b + 1, b + 1, b + 2))
        k("v_max_f32 v%d, 0, v%d" % (b + 1, b + 1))
        bf16_round(k, b, b)
        k("v_sub_f32 v%d, 0, v%d" % (10 + r, b))
        bf16_round(k, b + 1, b + 1)
        k("v_add_f32 v%d, 0x%x, v%d" % (b + 1, f2u(1e-5), b + 1))
        bf16_round(k, b + 1, b + 1)
        k("v_sqrt_f32 v%d, v%d" % (b + 1, b + 1))
        bf16_round(k, b + 1, b + 1)
        k("v_mul_f32 v%d, v%d, v%d" % (C2 + r, b + 1, b + 1))
        k("v_rcp_f32 v%d, v%d" % (b + 1, b + 1))
        k("v_mul_f32 v%d, 0x%x, v%d" % (C1 + r, f2u(-LOG2E), b + 1))
    def center(r, t):
        x = XF + 72 * r + 4 * t
        o = []
        for c in range(4):
            o.append("v_dot2_f32_bf16 v%d, v%d, s88, v%d" % (TMP + 2 * c, x + c, 10 + r))
            o.append("v_dot2_f32_bf16 v%d, v%d, s89, v%d" % (TMP + 2 * c + 1, x + c, 10 + r))
        for c in range(4):
            o.append("v_cvt_pk_bf16_f32 v%d, v%d, v%d" % (x + c, TMP + 2 * c, TMP + 2 * c + 1))
        return o
    NPRE = XP["npre"]
    for t in range(NPRE):
        for r in range(2): k.extend(center(r, t))
    stamp(k, "p4 x")

    cur = {"TA": 0, "TM": 0, "TS": 0}
    def shift(name, regs, sl):
        pre = []
        if cur[name] != sl:
            d = (sl - cur[name]) * SLOT
            for q in regs:
                pre.append("v_add_u32 v%d, %d, v%d" % (q, d, q) if d > 0 else "v_subrev_u32 v%d, %d, v%d" % (q, -d, q))
            cur[name] = sl
        return pre
    tiles = []
    main = []
    DA = XF
    def hbuf(c): return HF + 32 * (c % 3)
    nt = 0
    for n in range(NS):
        kind, B, kh = stages[n]
        for T in range(9 if kind == "D" else 4):
            if kind == "D": nf = 4; f0 = AF + 16 * ((B * 9 + T) % 4)
            else: nf = 9; f0 = AF + 36 * (nt & 1)
            tiles.append(dict(n=n, T=T, g0=len(main), nf=nf, f0=f0, id=nt)); nt += 1
            for r in range(2):
                if kind == "G": a = GA + 8 * T + 4 * r
                elif kind == "U": a = UA + 8 * T + 4 * r
                elif kind == "M": a = (GA if T < 2 else UA) + 8 * (T & 1) + 4 * r
                else: a = DA + 8 * T + 4 * r
                a = vr(a, 4)
                for j in range(nf):
                    if kind == "D": b = ar(hbuf(B) + 8 * j + 4 * r, 4); first = (j == 0 and B == 0)
                    else: b = vr(XF + 72 * r + 4 * (9 * kh + j), 4); first = (j == 0 and kh == 0)
                    main.append("v_mfma_f32_16x16x32_bf16 %s, %s, %s, %s" % (a, ar(f0 + 4 * j, 4), b, "0" if first else a))
    NM = len(main)
    fill = {}
    load = [0.0] * (NM + 1)
    def put(g, items, cost=None):
        if isinstance(items, str): items = [items]
        fill.setdefault(g, []).extend(items)
        load[max(g, 0)] += len([x for x in items if not x.startswith("@") and not x.endswith(":")]) if cost is None else cost
    def frag_reads(t):
        n, T = t["n"], t["T"]; kind = stages[n][0]; sl = n % 4
        if kind == "M": pre = shift("TM", [TM, TM + 1], sl)
        elif kind == "D" and T == 8: pre = shift("TS", [TS], sl)
        else: pre = shift("TA", [TA + q for q in range(4)], sl)
        o = []
        for j in range(t["nf"]):
            for h in range(2):
                if kind == "M": a, off = TM + (T & 1), (T >> 1) * 18432 + j * 2048 + h * 1024
                elif kind == "D": a, off = (TA + (T & 3), j * 9216 + (T >> 2) * 4096 + h * 2048) if T < 8 else (TS, j * 9216 + h * 512)
                else: a, off = TA + T, j * 4096 + h * 2048
                o.append("ds_read_b64_tr_b16 %s, v%d offset:%d ;#f%d%s" % (ar(t["f0"] + 4 * j + 2 * h, 2), a, off, t["id"], "a" if (j < 4) else "b"))
        return pre, o
    pre, o = frag_reads(tiles[0])
    fill[-1] = ["s_barrier"] + pre + o
    first_d = [i for i, t in enumerate(tiles) if stages[t["n"]][0] == "D"][0]
    bar_gap = {}
    for i, t in enumerate(tiles):
        g0 = t["g0"]; kind = stages[t["n"]][0]
        put(g0 - 1, "@waitlds f%da" % t["id"], 1)
        if kind != "D":
            if t["T"] < 3: put(g0 + 3, "@waitlds f%db" % t["id"], 1)
            nxt = [i + 1] if i + 1 < first_d else [i + 1, i + 2]
            span = 16
        else:
            nxt = [i + 2] if i + 2 < len(tiles) else []
            span = 6
        if nxt and tiles[nxt[0]]["n"] != t["n"] and tiles[nxt[0]]["T"] == 0:
            ex = ["s_memtime s[94:95]", "s_waitcnt lgkmcnt(0)", "v_writelane_b32 v0, s94, %d" % (32 + t["n"])] if "st3" in OPT else []
            put(g0 - 1, ["@waitlds all", "@waitvm s%d" % (t["n"] + 1), "s_barrier"] + ex, 2)
            bar_gap[t["n"]] = g0
        rd = []
        for q in nxt:
            pre, o = frag_reads(tiles[q]); rd += [pre + o[:1]] + [[x] for x in o[1:]]
        for q, x in enumerate(rd): put(g0 + (q * span) // len(rd), x)
    def place(gs, lo, hi):
        for i, x in enumerate(gs): put(lo + (i * (hi - lo + 1)) // len(gs), x)
    early = []
    for n in range(NPF, 4): early += dma(n)
    if early: place(early, 1, 52)
    for n in range(NS - 4): place(dma(n + 4), bar_gap[n] + 2, bar_gap[n] + 52)
    work = []
    for t in range(NPRE, 18):
        for r in range(2):
            work.append(dict(e=0, dl=72 + 9 * r + (t - 9) - 3 if t >= 9 else 0, ops=[(x, 1.3) for x in center(r, t)], key=("x", t, r), hard=True))
    def done_gap(n, T, r): return n * 72 + T * 18 + 9 * r + 8
    for B in range(5):
        if B < 4: nG, nU, nt_, u0 = 4 * B + 1, 4 * B + 3, 4, 2 * B
        else: nG, nU, nt_, u0 = 17, 17, 2, 8
        nxt = nU + 1
        for T in range(nt_):
            for r in range(2):
                g = GA + 8 * T + 4 * r; u = UA + 8 * T + 4 * r
                e = done_gap(nG, T, r) + 3
                eu = done_gap(nU, T if B < 4 else T + 2, r) + 3
                if B < 3: dl = (nxt * 4 + T) * 18 + 9 * r - 2
                elif B == 3: dl = (nxt * 4 + T) * 18 + 9 * r - 2 if T < 2 else (nxt * 4 + 2) * 18 - 2
                else: dl = eu + 6
                t0 = TMP
                ops = []
                for b in range(4): ops.append(("v_mul_f32 v%d, v%d, v%d" % (t0 + b, C1 + r, g + b), 1))
                for b in range(4): ops.append(("v_exp_f32 v%d, v%d" % (t0 + b, t0 + b), 2))
                for b in range(4): ops.append(("v_fma_f32 v%d, v%d, v%d, v%d" % (t0 + b, t0 + b, C2 + r, C2 + r), 1))
                for b in range(4): ops.append(("v_rcp_f32 v%d, v%d" % (t0 + b, t0 + b), 2))
                for b in range(4): ops.append(("v_mul_f32 v%d, v%d, v%d" % (g + b, g + b, t0 + b), 1))
                work.append(dict(e=e, dl=max(eu - 1, e + 8) if B < 4 else eu, ops=ops, key=("s", B, T, r)))
                ops = [("v_mul_f32 v%d, v%d, v%d" % (u + b, u + b, g + b), 1) for b in range(4)]
                work.append(dict(e=eu, dl=dl, ops=ops, key=("m", B, T, r), after=[("s", B, T, r)], hard=True))
                ue = UA + 8 * (T & ~1) + 4 * r
                ops = [("v_cvt_pk_bf16_f32 v%d, v%d, v%d" % (ue + 2 * (T & 1) + j, u + 2 * j, u + 2 * j + 1), 1) for j in range(2)]
                aft = [("m", B, T, r)]
                if T & 1:
                    aft.append(("c", B, T - 1, r))
                    ops.append(("s_add_u32 s67, s66, %d\nbuffer_store_dwordx4 %s, v9, s[8:11], s67 offen sc1 ;#h%d" % (((u0 + (T >> 1)) * 2 + r) * 1024, vr(ue, 4), B), 2))
                if B < 3: dl2 = (nxt + 1) * 72 + 10 + 8 * T + 4 * r
                elif B == 3: dl2 = (nxt * 4 + 2) * 18 - 4
                else: dl2 = eu + 10
                work.append(dict(e=eu, dl=dl2, ops=ops, key=("c", B, T, r), after=aft, hard=True))
    FLG = 13
    def hloads(c):
        o = []
        for a in range(4):
            o.append(["s_add_u32 s27, s68, %d" % (a * 73728 + c * 2048), "buffer_load_dwordx4 %s, v9, s[8:11], s27 offen sc1" % ar(hbuf(c) + 8 * a, 4)])
            o.append(["buffer_load_dwordx4 %s, v9, s[8:11], s27 offen offset:1024 sc1" % ar(hbuf(c) + 8 * a + 4, 4)])
        return o
    adv = lambda r: ["s_add_u32 %s, %s, 4096" % (r, r)]
    put(14 * 72 + 30, flag("h2", 4, 3, "s69") + adv("s69"))
    put(17 * 72 + 40, flag("h3", 4, 3, "s69") + adv("s69"))
    put(19 * 72 + 20, flag("h4", 4, 3, "s69"))
    put(15 * 72 + 40, poll(FLG, 12, "s70")); put(16 * 72 + 4, check("a", FLG, 12, "s70") + adv("s70"), 4)
    put(20 * 72 + 10, poll(FLG, 12, "s70")); put(21 * 72 + 2, check("b", FLG, 12, "s70") + adv("s70"), 4)
    put(22 * 72 + 60, poll(FLG, 12, "s70")); put(23 * 72 + 60, check("c", FLG, 12, "s70"), 4)
    for c in range(9): place(hloads(c), (16 + c) * 72 + 8, (16 + c) * 72 + 66)
    QS, SEL, HR, PL, OO = 96, 136, GA, 200, 140
    g26 = 26 * 72
    sel = ["v_lshrrev_b32 v2, 1, v6", "v_and_b32 v5, 1, v6", "v_lshlrev_b32 v5, 4, v5", "v_mov_b32 v8, 0x3f80", "v_lshlrev_b32 v5, v5, v8"]
    for q in range(4): sel += ["v_cmp_eq_u32 vcc, %d, v2" % q, "v_cndmask_b32 v%d, 0, v5, vcc" % (SEL + q)]
    setup = sel + [
        "s_lshl_b32 s29, s23, 2", "s_add_u32 s29, s29, s26", "s_lshl_b32 s29, s29, 2", "s_add_u32 s71, s29, s22", "s_add_u32 s72, s29, s25",
        "s_lshl_b32 s73, s71, 4", "s_lshl_b32 s75, s72, 4",
        "s_mul_i32 s71, s71, 36", "s_add_u32 s71, s71, s25", "s_lshl_b32 s71, s71, 10",
        "s_mul_i32 s72, s72, 36864", "s_lshl_b32 s29, s22, 8", "s_add_u32 s72, s72, s29",
        "s_lshl_b32 s29, s25, 2", "s_add_u32 s73, s73, s29", "s_add_u32 s73, s73, %d" % FP, "s_add_u32 s75, s75, %d" % FP,
        "s_lshl_b32 s29, s23, 2", "s_add_u32 s29, s29, s25", "s_mul_i32 s90, s29, 36864", "s_mul_i32 s32, s29, %d" % (32 * 1152),
        "s_lshl_b32 s29, s22, 8", "s_add_u32 s90, s90, s29",
        "s_lshr_b32 s29, s34, 6", "s_lshl_b32 s29, s29, 10", "s_add_u32 s91, s90, s29", "s_lshl_b32 s29, s35, 3", "s_add_u32 s91, s91, s29",
        "s_lshl_b32 s29, s33, 4", "s_add_u32 s90, s90, s29",
        "s_lshl_b32 s29, s22, 3", "s_add_u32 s32, s32, s29", "s_add_u32 s31, s32, s33", "s_add_u32 s30, s32, s34",
        "v_lshlrev_b32 v14, 4, v6", "v_mov_b32 v2, 0x%x" % BIG, "v_cmp_gt_u32 vcc, 32, v1",
        "v_lshl_add_u32 v10, v7, 3, v14", "v_mul_u32_u24 v11, 18432, v7", "v_add_u32 v11, v11, v14", "v_lshl_add_u32 v14, v7, 10, v14",
        "v_cndmask_b32 v10, v2, v10, vcc", "v_cndmask_b32 v11, v2, v11, vcc",
        "v_mul_u32_u24 v15, 1152, v6", "v_mul_u32_u24 v8, 1152, v1", "v_lshl_add_u32 v15, v7, 5, v15",
        "v_cndmask_b32 v15, v2, v15, vcc", "v_cndmask_b32 v8, v2, v8, vcc"]
    place([[x] for x in setup], 19 * 72 + 30, 20 * 72 + 60)
    put(21 * 72 + 30, ["s_add_u32 s40, s20, 0x%x" % WS_P2, "s_addc_u32 s41, s21, 0", "s_and_b32 s41, s41, 0xffff", "s_mov_b32 s42, 0x%x" % P2_BYTES, "s_mov_b32 s43, 0x20000"])
    hl = []
    for q in range(9):
        if q < 8: hl.append(["s_add_u32 s67, s90, %d" % ((q & 1) * 18432 + (q >> 1) * 1024), "buffer_load_dwordx2 %s, v10, s[12:15], s67 offen sc1" % vr(HR + 4 * q + 2, 2)])
        else: hl.append(["buffer_load_dwordx2 %s, v11, s[12:15], s91 offen sc1" % vr(HR + 4 * q + 2, 2)])
    place(hl, 24 * 72 + 4, 24 * 72 + 68)
    for q in range(9):
        h = HR + 4 * q
        ops = ["v_lshlrev_b32 v%d, 16, v%d" % (h, h + 2), "v_and_b32 v%d, 0xffff0000, v%d" % (h + 1, h + 2),
               "v_lshlrev_b32 v%d, 16, v%d" % (h + 2, h + 3), "v_and_b32 v%d, 0xffff0000, v%d" % (h + 3, h + 3)]
        work.append(dict(e=25 * 72 + 40 + q, dl=g26 + 40, ops=[(x, 1) for x in ops], key=("h", q)))
    for T in range(9):
        for r in range(2):
            a = DA + 8 * T + 4 * r
            q = 2 * (T >> 1) + r if T < 8 else 8
            o = QS + 4 * q + (2 * (T & 1) if T < 8 else 2 * r)
            e = g26 + 8 * T + 4 * r + 3 + 3
            ops = [("v_cvt_pk_bf16_f32 v%d, v%d, v%d" % (o + j, a + 2 * j, a + 2 * j + 1), 1) for j in range(2)]
            aft = []
            if (T < 8 and T & 1) or (T == 8 and r == 1):
                aft = [("d", T - 1, r)] if T < 8 else [("d", 8, 0)]
                ops.append(("s_add_u32 s67, s71, %d\nbuffer_store_dwordx4 %s, v9, s[40:43], s67 offen sc1 ;#p" % (q * 4096, vr(QS + 4 * q, 4)), 2))
            work.append(dict(e=e, dl=e + 4, ops=ops, key=("d", T, r), after=aft))
    put(18 * 72 - 1, stamp_ops("p4 A"), 0)
    tail, done = edf_place(work, fill, load, NM, XP["cap"] / 100.0)
    k.extend(weave(main, fill)); k.extend(tail)
    stamp(k, "p4 D")
    k.extend(flag("p", 4, 3, "s73"))
    stamp(k, "p4 fl")
    spin(k, "p5", FLG, 12, "s75")
    stamp(k, "p4 go2")
    for q in range(9):
        k("s_add_u32 s67, s72, %d" % (q * 4096))
        k("buffer_load_dwordx4 %s, v14, s[40:43], s67 offen sc1" % vr(PL + 4 * q, 4))
    fix = lambda ops: [o.replace("s[96:99]", "s[16:19]") for o in ops]
    for q in range(9):
        k("v_mfma_f32_16x16x32_bf16 %s, %s, %s, %s" % (vr(HR + 4 * q, 4), vr(SEL, 4), vr(PL + 4 * q, 4), vr(HR + 4 * q, 4)))
        if q >= 2: k.extend(fix(_outq(q - 2, HR, OO)))
    k.extend(fix(_outq(7, HR, OO))); k.extend(fix(_outq(8, HR, OO)))

def build(path):
    k = K(NAME); k.vgpr = 256; k.agpr = 256; k.sgpr = 102
    k("s_cmp_ge_u32 s2, 256\ns_cbranch_scc0 L_main\ns_endpgm\n.p2align 12\nL_main:\nL_s1:")
    k("s_load_dwordx4 s[4:7], s[0:1], 0\ns_load_dwordx2 s[92:93], s[0:1], 64\ns_load_dwordx2 s[20:21], s[0:1], 72")
    k("v_and_b32 v1, 63, v0\nv_lshrrev_b32 v2, 6, v0")
    k("v_readfirstlane_b32 s22, v2\ns_mov_b32 s100, 400000")
    if "stamp" in OPT: k("v_mov_b32 v0, 0")
    stamp(k, "start")
    p1(k)
    k("L_s2:")
    p2(k)
    k("L_s3:")
    p3(k)
    k("L_s4:")
    p4(k)
    if "stamp" in OPT:
        k("s_waitcnt vmcnt(0)")
        stamp(k, "end")
        k.srd(76, 20, 1 << 22, WS_TS)
        k("s_lshl_b32 s75, s2, 2\ns_add_u32 s75, s75, s22\ns_lshl_b32 s75, s75, 8\nv_lshlrev_b32 v2, 2, v1")
        k("buffer_store_dword v0, v2, s[76:79], s75 offen")
    k("s_endpgm\n@reset")
    kp = K("tmp")
    kp.srd(96, 20, FL_BYTES, WS_FL)
    prefetch_wg(kp)
    k.extend(SLOW)
    k("L_s5:\nL_pf0:\n@reset")
    k.ins += kp.ins
    k("L_code_end:")
    add_page_stubs(k, "L_main", [("L_c1", "L_s1", "L_s2"), ("L_c2", "L_s2", "L_s3"), ("L_c3", "L_s3", "L_s4"), ("L_c4", "L_s4", "L_s5")])
    hdr = """Pre-LN transformer block (sliding-window attention + SwiGLU FFN), S=2048 D=576 H=32 F=4608, bf16.
One persistent launch, one workgroup per CU; phases hand data over through d_ws with per-launch tagged flags.
Generated by work/gen2.py.  Kernarg: x, wqkv, wo, (unused), w_gate, w_up, w_down, out, dbg, ws."""
    txt = program([(k, 256, 256, 163840)], [k], hdr)
    if "single" in OPT:
        txt = txt.replace("; @launch kernel=%s grid" % NAME, "; @launch grid")
    open(path, "w").write(txt)
    print(k.stats, len(txt), "bytes")
    import json
    json.dump(STAMPS, open(path[:-2] + ".stamps.json", "w"))

if __name__ == "__main__":
    OPT.update(sys.argv[2:])
    for a in sys.argv[2:]:
        if "=" in a: XP[a.split("=")[0]] = int(a.split("=")[1])
    build(sys.argv[1])
```

```python
import sys, struct, re
from asmgen import *
from gen import edf_place, tr_addrs, dma_piece, bf16_round, f2u, LOG2E, _outq

S, D, F, NQKV, NH, DH = 2048, 576, 4608, 1728, 32, 18
NAME = "sequential_preLN__sliding_block__swiglu_ffn__prompt_kernel"
CGS = 16384 + 128
WS_Z, Z_BYTES = 0, 432 * CGS
WS_OP, OP_BYTES = 0x700000, 64 * 32768
WS_O2, O2_BYTES = 0x900000, 32 * 8192
WS_H, H_BYTES = 0xA00000, 128 * 18 * 1024
WS_ST, ST_BYTES = 0xD00000, 6 * 2048 * 8
WS_FL, FL_BYTES = 0xE00000, 0xE0080
WS_HB, HB_BYTES = 0x1000000, 256 * 73728
WS_P2, P2_BYTES = 0x2400000, 256 * 36864
WS_TS = 0x4000000
F1, F2, F3, FH, FP, FEPOCH = 0, 0x20000, 0x40000, 0x60000, 0xC0000, 0xE0000
X_BYTES = S * D * 2
WB = D * F * 2
BIG = 0x7fff0000
OPT = set()
XP = dict(npre=9, dr0=12, drs=3, cap=300, slp=0, wearly=2, wj=3)
SLOW = []
NSTAMP = [0]
STAMPS = []

def stamp(k, name):
    if "stamp" not in OPT: return
    k("s_memrealtime s[94:95]\ns_waitcnt lgkmcnt(0)\nv_writelane_b32 v0, s94, %d" % NSTAMP[0])
    STAMPS.append(name); NSTAMP[0] += 1
def stamp_ops(name):
    if "stamp" not in OPT: return []
    o = ["s_memrealtime s[94:95]", "s_waitcnt lgkmcnt(0)", "v_writelane_b32 v0, s94, %d" % NSTAMP[0]]
    STAMPS.append(name); NSTAMP[0] += 1
    return o

def poll(vflag, vaddr, soff):
    return ["buffer_load_dword v%d, v%d, s[96:99], %s offen sc1" % (vflag, vaddr, soff)]
def check(name, vflag, vaddr, soff, gate=True):
    slp = ["s_sleep %d" % XP["slp"]] if XP.get("slp") else []
    if gate and "nogate" not in OPT:
        SLOW.extend(["L_slow_%s:" % name, "s_ff1_i32_b64 s94, vcc", "s_lshl_b64 exec, 1, s94", "L_gate_%s:" % name] + poll(vflag, vaddr, soff) +
                    ["s_waitcnt vmcnt(0)", "v_cmp_ne_u32 vcc, s3, v%d" % vflag, "s_sub_u32 s100, s100, 1", "s_cbranch_scc1 L_full_%s" % name, "s_nop 2",
                     "s_cbranch_vccz L_full_%s" % name] + slp + ["s_branch L_gate_%s" % name, "L_full_%s:" % name, "s_mov_b64 exec, -1"] + poll(vflag, vaddr, soff) +
                    ["s_waitcnt vmcnt(0)", "v_cmp_ne_u32 vcc, s3, v%d" % vflag, "s_sub_u32 s100, s100, 1", "s_cbranch_scc1 L_back_%s" % name, "s_nop 2",
                     "s_cbranch_vccnz L_slow_%s" % name, "s_branch L_back_%s" % name])
    else:
        SLOW.extend(["L_slow_%s:" % name] + poll(vflag, vaddr, soff) + ["s_waitcnt vmcnt(0)", "v_cmp_ne_u32 vcc, s3, v%d" % vflag,
                     "s_sub_u32 s100, s100, 1", "s_cbranch_scc1 L_back_%s" % name, "s_nop 2", "s_cbranch_vccz L_back_%s" % name] + slp + ["s_branch L_slow_%s" % name])
    return ["v_cmp_ne_u32 vcc, s3, v%d" % vflag, "s_nop 4", "s_cbranch_vccnz L_slow_%s" % name, "L_back_%s:" % name]
def spin(k, name, vflag, vaddr, soff, gate=True):
    k.extend(poll(vflag, vaddr, soff))
    k("s_waitcnt vmcnt(0)")
    k.extend(check(name, vflag, vaddr, soff, gate))
def flag(tag, vtmp, vlane0, soff):
    return ["@waitvm " + tag, "v_mov_b32 v%d, s3" % vtmp, "buffer_store_dword v%d, v%d, s[96:99], %s offen sc1" % (vtmp, vlane0, soff)]
def lane0(k, dst, tmp):
    k("v_mov_b32 v%d, 0x%x\nv_cmp_eq_u32 vcc, 0, v1\nv_cndmask_b32 v%d, v%d, v1, vcc" % (tmp, BIG, dst, tmp))

def get_tag(k, vt, issued):
    k("v_readfirstlane_b32 s3, v%d" % vt)
    k("s_cmp_eq_u32 s3, 0\ns_cbranch_scc1 L_tagslow_%s\nL_tagback_%s:" % (issued, issued))
    SLOW.extend(["L_tagslow_%s:" % issued, "v_mov_b32 v%d, 0" % vt, "global_load_dword v%d, v%d, s[92:93] sc1" % (vt, vt), "s_waitcnt vmcnt(0)",
                 "v_readfirstlane_b32 s3, v%d" % vt, "s_sub_u32 s100, s100, 1", "s_cbranch_scc1 L_tagback_%s" % issued,
                 "s_cmp_eq_u32 s3, 0", "s_cbranch_scc1 L_tagslow_%s" % issued, "s_branch L_tagback_%s" % issued])

def prefetch_wg(k):
    k("L_pf:")
    k("s_load_dwordx2 s[8:9], s[0:1], 16\ns_load_dwordx4 s[12:15], s[0:1], 32")
    k("s_sub_u32 s23, s2, 224\ns_lshl_b32 s24, s23, 2\ns_add_u32 s24, s24, s22")
    k("v_lshlrev_b32 v2, 7, v1")
    if "nopfq" not in OPT:
        k.srd(28, 6, D * NQKV * 2)
        k("s_mul_i32 s25, s24, 15616")
        k("buffer_load_dword v10, v2, s[28:31], s25 offen\ns_add_u32 s25, s25, 8192\nbuffer_load_dword v11, v2, s[28:31], s25 offen")
    k("s_cmp_lg_u32 s24, 0\ns_cbranch_scc1 L_pf_notag")
    k("v_mov_b32 v4, %d\nbuffer_load_dword v5, v4, s[96:99], 0 offen sc1\ns_waitcnt vmcnt(0)" % FEPOCH)
    k("v_add_u32 v5, 1, v5\nv_max_u32 v5, 1, v5\nv_mov_b32 v6, 0")
    k("global_store_dword v6, v5, s[92:93] sc1\nbuffer_store_dword v5, v4, s[96:99], 0 offen sc1")
    k("L_pf_notag:")
    k("s_getpc_b64 s[32:33]\nL_pc:\ns_sub_u32 s32, s32, L_pc-L_main\ns_subb_u32 s33, s33, 0")
    k("s_lshr_b32 s25, s23, 3\ns_lshl_b32 s25, s25, 2\ns_add_u32 s25, s25, s22\ns_lshl_b32 s25, s25, 13")
    k("v_add_u32 v3, s25, v2\ns_mov_b32 s25, L_code_end-L_main-4\nv_min_u32 v3, s25, v3")
    if "nocode" not in OPT: k("global_load_dword v12, v3, s[32:33]")
    k("s_waitcnt vmcnt(0) lgkmcnt(0)")
    k.srd(28, 8, D * D * 2)
    k("s_mul_i32 s25, s24, 5248\nv_cmp_gt_u32 vcc, 41, v1\nv_mov_b32 v4, 0x%x\nv_cndmask_b32 v4, v4, v2, vcc\nbuffer_load_dword v10, v4, s[28:31], s25 offen" % BIG)
    k("s_waitcnt vmcnt(0)")
    k.srd(28, 12, WB)
    k("s_lshl_b32 s25, s24, 15")
    for j in range(4):
        k("buffer_load_dword v%d, v2, s[28:31], s25 offen\ns_add_u32 s25, s25, 8192" % (11 + j))
    lane0(k, 250, 2)
    p2_scalar(k)
    k("v_mov_b32 v248, 0\nglobal_load_dword v248, v248, s[92:93] sc1\ns_waitcnt vmcnt(0)")
    get_tag(k, 248, "pf")
    k("s_branch L_p2v")

_tc = touch_chain
def touch_chain(k, name, w):
    if 'notouch' in OPT: k('%s_ret:' % name)
    else: _tc(k, name, w)

def p1(k):
    XL, RING, STL = 0, 73728, 73728 + 4 * 20480
    k("s_lshr_b32 s23, s2, 5")
    k("s_and_b32 s24, s2, 7\ns_lshl_b32 s24, s24, 2\ns_bfe_u32 s25, s2, 0x20003\ns_add_u32 s24, s24, s25")
    k("s_lshl_b32 s25, s23, 2\ns_add_u32 s25, s25, s22")
    k("v_lshrrev_b32 v3, 3, v1\nv_and_b32 v4, 7, v1")
    k("v_mul_u32_u24 v5, 1152, v3\nv_lshl_add_u32 v5, v4, 4, v5")
    k("s_lshl_b32 s26, s24, 6\ns_lshl_b32 s27, s22, 4\ns_add_u32 s26, s26, s27\ns_mul_i32 s26, s26, 1152")
    k("v_add_u32 v15, %d, v5" % (8 * 1152))
    k("s_and_b32 s27, s24, 3\ns_mul_i32 s27, s27, 5\ns_lshr_b32 s27, s27, 1")
    if "rot" not in OPT: k("s_mov_b32 s27, 0")
    VD = 232
    k("v_lshrrev_b32 v6, 2, v3\nv_lshlrev_b32 v6, 3, v6\nv_and_b32 v7, 3, v3\nv_add_u32 v6, v6, v7")
    k("v_mul_u32_u24 v6, 3456, v6")
    k("v_lshrrev_b32 v7, 1, v3\nv_lshlrev_b32 v7, 1, v7\nv_xor_b32 v7, v7, v4\nv_lshl_add_u32 v6, v7, 4, v6")
    base = [0, 16, 4, 20]
    for a in range(4):
        k("v_add_u32 v%d, %d, v6" % (VD + a, base[a] * 3456 - a * 1024))
    k("s_lshl_b32 s30, s25, 7\ns_mul_i32 s28, s27, %d\ns_add_u32 s28, s28, s30\ns_add_u32 s31, s30, %d" % (64 * 3456, 576 * 3456))
    k("s_lshl_b32 s27, s27, 7\ns_add_u32 s27, s27, s26\ns_add_u32 s101, s26, 1152")
    k("s_mul_i32 s29, s22, 20480\ns_add_u32 s29, s29, %d" % RING)
    k("s_waitcnt lgkmcnt(0)")
    k("s_cmp_ge_u32 s2, 224\ns_cbranch_scc1 L_pf0")
    k.srd(8, 4, X_BYTES)
    XR = 16
    for j in range(9):
        for h in range(2):
            k("buffer_load_dwordx4 %s, v%d, s[8:11], s27 offen" % (vr(XR + (h * 9 + j) * 4, 4), (5, 15)[h]))
        if j < 8: k("s_add_u32 s27, s27, 128\ns_cmp_eq_u32 s27, s101\ns_cselect_b32 s27, s26, s27")
    k("s_mov_b32 s26, s30\ns_mov_b32 s27, s31")
    k.srd(12, 6, D * NQKV * 2)
    def dma(t):
        o = ["s_add_u32 m0, s29, %d" % ((t % 5) * 4096)]
        for a in range(4):
            o.append("buffer_load_dwordx4 v%d, s[12:15], s28 offen offset:%d lds ;#w%d" % (VD + a, 1024 * a, t))
        o.append("s_add_u32 s28, s28, %d\ns_cmp_eq_u32 s28, s27\ns_cselect_b32 s28, s26, s28" % (32 * 3456))
        return o
    WEARLY = XP.get("wearly", 0)
    for t in range(WEARLY): k.extend(dma(t))
    k.srd(96, 20, FL_BYTES, WS_FL)
    if "c1late" in OPT:
        k("s_getpc_b64 s[32:33]\nv_lshlrev_b32 v7, 5, v1\ns_lshl_b32 s34, s22, 11\ns_add_u32 s34, s34, 2048\nv_add_u32 v7, s34, v7\nglobal_load_dword v249, v7, s[32:33]")
    else: touch_chain(k, "L_c1", 22)
    p2_scalar(k)
    k.srd(16, 20, Z_BYTES, WS_Z)
    k("s_lshr_b32 s30, s22, 1\ns_lshl_b32 s30, s30, 1")
    k("v_lshrrev_b32 v7, 5, v1\nv_add_u32 v7, s30, v7\nv_mul_u32_u24 v7, 18, v7")
    k("v_lshrrev_b32 v10, 2, v4\nv_add_u32 v7, v7, v10\nv_lshlrev_b32 v7, 10, v7")
    k("v_and_b32 v10, 3, v4\nv_lshl_add_u32 v7, v10, 8, v7")
    k("s_and_b32 s30, s22, 1\ns_lshl_b32 s30, s30, 3")
    k("v_and_b32 v10, 3, v3\nv_add_u32 v10, s30, v10")
    k("v_xor_b32 v11, v10, v4\nv_lshl_add_u32 v8, v11, 4, v7")
    k("v_add_u32 v10, 4, v10\nv_xor_b32 v11, v10, v4\nv_lshl_add_u32 v9, v11, 4, v7")
    k("v_and_b32 v10, 15, v1\nv_lshrrev_b32 v11, 4, v1")
    k("v_xor_b32 v12, v10, v11\nv_lshlrev_b32 v12, 4, v12\nv_lshl_add_u32 v236, v11, 8, v12")
    k("v_xor_b32 v237, 64, v236\nv_add_u32 v238, 36864, v236\nv_add_u32 v239, 36864, v237")
    tr_addrs(k, 240, 1, "s29", 12)
    k("s_mov_b32 s31, %d" % CGS)
    k("v_lshrrev_b32 v12, 2, v10\nv_mul_lo_u32 v12, v12, s31\nv_lshl_add_u32 v12, v11, 6, v12\nv_and_b32 v13, 3, v10\nv_lshl_add_u32 v244, v13, 4, v12")
    k("s_cmp_ge_u32 s25, 27\ns_cselect_b32 s30, 0x%x, 0\nv_add_u32 v244, s30, v244" % BIG)
    k("v_lshlrev_b32 v245, 5, v11\nv_add_u32 v245, %d, v245" % STL)
    k("s_lshl_b32 s30, s22, 6\ns_add_u32 s30, s30, %d\nv_lshl_add_u32 v246, v3, 2, s30" % STL)
    lane0(k, 250, 12)
    k("s_mov_b32 s32, 0x3f803f80\ns_mov_b32 s33, 0x00003f80\ns_mov_b32 s34, 0x3f800000\ns_mov_b32 s35, 0x%x" % f2u(1.0 / D))
    T0 = 88
    for i in range(8): k("v_mov_b32 v%d, 0" % (T0 + i))
    for j in range(9):
        for c in range(4):
            for h in range(2):
                k("v_dot2c_f32_bf16 v%d, s32, v%d" % (T0 + 2 * h + (c & 1), XR + (h * 9 + j) * 4 + c))
        if j == 0 and "c1late" in OPT: touch_chain(k, "L_c1", 22)
        jw = j - XP.get("wj", 1)
        if 0 <= jw and WEARLY + jw < 5: k.extend(dma(WEARLY + jw))
    stamp(k, "p1 x")
    k("v_add_f32 v%d, v%d, v%d\nv_add_f32 v%d, v%d, v%d" % (T0, T0, T0 + 1, T0 + 2, T0 + 2, T0 + 3))
    for ctl in ("quad_perm:[1,0,3,2]", "quad_perm:[2,3,0,1]", "row_half_mirror"):
        for r in (T0, T0 + 2):
            k("v_add_f32_dpp v%d, v%d, v%d %s row_mask:0xf bank_mask:0xf" % (r, r, r, ctl))
    for h in range(2):
        r = T0 + 2 * h
        k("v_mul_f32 v%d, s35, v%d" % (r, r))
        bf16_round(k, r + 1, r)
        k("v_sub_f32 v%d, v%d, v%d" % (r, r, r + 1))
        k("v_sub_f32 v%d, 0, v%d" % (r + 1, r + 1))
    ACC, XF, WF = 104, 168, 200
    def wreg(t, T): return ar(16 * t + 4 * T, 4) if t < 16 else vr(WF + 16 * (t - 16) + 4 * T, 4)
    def wreg2(t, T, j): return ar(16 * t + 4 * T + 2 * j, 2) if t < 16 else vr(WF + 16 * (t - 16) + 4 * T + 2 * j, 2)
    def drain(t):
        return ["@waitvm w%d" % t] + ["ds_read_b64_tr_b16 %s, v%d offset:%d ;#d%d" % (wreg2(t, T, j), 240 + T, (t % 5) * 4096 + j * 2048, t) for T in range(4) for j in range(2)]
    def refill(t):
        return (["@waitlds d%d" % t] + dma(t + 5)) if t + 5 < 18 else []
    T1 = T0 + 8
    nd = 0
    g = 0
    for j in range(9):
        for h in range(2):
            x = XR + (h * 9 + j) * 4
            for c in range(4):
                k("v_dot2_f32_bf16 v%d, v%d, s33, v%d" % (T1 + 2 * c, x + c, T0 + 2 * h + 1))
                k("v_dot2_f32_bf16 v%d, v%d, s34, v%d" % (T1 + 2 * c + 1, x + c, T0 + 2 * h + 1))
            for c in range(4):
                k("v_cvt_pk_bf16_f32 v%d, v%d, v%d" % (x + c, T1 + 2 * c, T1 + 2 * c + 1))
            k("ds_write_b128 v%d, %s offset:%d" % (8 + h, vr(x, 4), XL + 2048 * j))
            g += 1
            if g > XP["dr0"] and (g - 1 - XP["dr0"]) % XP["drs"] == 0: k.extend(refill(nd - 1))
            if g >= XP["dr0"] and (g - XP["dr0"]) % XP["drs"] == 0 and g < 18: k.extend(drain(nd)); nd += 1
    LNEND = len(k.ins)
    def xreads(t):
        b = t & 1
        return ["ds_read_b128 %s, v%d offset:%d" % (vr(XF + 16 * b + 4 * r, 4), 236 + (t & 1) + 2 * (r >> 1), XL + ((r & 1) * 18 + t) * 1024) for r in range(4)]
    var = []
    for j in range(9):
        for c in range(4):
            for h in range(2):
                x = XR + (h * 9 + j) * 4 + c
                var.append("v_dot2c_f32_bf16 v%d, v%d, v%d" % (T0 + 4 + 2 * h + (c & 1), x, x))
    var += ["v_add_f32 v%d, v%d, v%d" % (T0 + 4, T0 + 4, T0 + 5), "v_add_f32 v%d, v%d, v%d" % (T0 + 6, T0 + 6, T0 + 7)]
    for ctl in ("quad_perm:[1,0,3,2]", "quad_perm:[2,3,0,1]", "row_half_mirror"):
        for r in (T0 + 4, T0 + 6):
            var.append("v_add_f32_dpp v%d, v%d, v%d %s row_mask:0xf bank_mask:0xf" % (r, r, r, ctl))
    rnd = lambda r: ["v_cvt_pk_bf16_f32 v%d, v%d, v%d" % (r, r, r), "v_and_b32 v%d, 0xffff0000, v%d" % (r, r)]
    for h in range(2):
        r = T0 + 4 + 2 * h; dl = T0 + 2 * h
        var += ["v_mul_f32 v%d, v%d, v%d" % (dl, dl, dl), "v_fma_f32 v%d, v%d, s35, -v%d" % (r, r, dl), "v_max_f32 v%d, 0, v%d" % (r, r)] + rnd(r)
        var += ["v_add_f32 v%d, 0x%x, v%d" % (r, f2u(1e-5), r)] + rnd(r) + ["v_sqrt_f32 v%d, v%d" % (r, r)] + rnd(r)
        var += ["v_rcp_f32 v%d, v%d" % (r, r), "ds_write_b32 v246, v%d offset:%d" % (r, 32 * h)]
    if "varlate" not in OPT:
        k.extend(var); var = []
    k("@waitlds all\ns_barrier")
    stamp(k, "p1 ln")
    k.extend(xreads(0))
    main = []; fill = {}
    for t in range(18):
        b = t & 1
        for u in range(16):
            T, r = u >> 2, u & 3
            a = vr(ACC + 16 * T + 4 * r, 4)
            main.append("v_mfma_f32_16x16x32_bf16 %s, %s, %s, %s" % (a, vr(XF + 16 * b + 4 * r, 4), wreg(t, T), a if t else "0"))
        g0 = 16 * t
        if t + 1 < 18: spread(fill, xreads(t + 1), g0, g0 + 3)
        if nd < 18:
            d = drain(nd)
            spread(fill, [d[:2]] + d[2:], g0 + 6, g0 + 12)
            rf = refill(nd)
            if rf:
                for q, x in enumerate([rf[:3], rf[3:4], rf[4:5], rf[5:]]): fill.setdefault(g0 + 16 + 1 + 4 * q, []).extend(x)
            nd += 1
    if "st1" in OPT:
        for t in range(18): fill.setdefault(16 * t + 15, []).extend(["s_memtime s[94:95]", "s_waitcnt lgkmcnt(0)", "v_writelane_b32 v0, s94, %d" % (32 + t)])
    if var: spread(fill, var, 0, 16 * 8 - 1)
    fill.setdefault(16 * 9, []).extend(["v_mov_b32 v248, 0", "global_load_dword v248, v248, s[92:93] sc1"])
    if var: fill.setdefault(16 * 12, []).extend(["@waitlds all", "s_barrier"])
    spread(fill, ["ds_read_b128 %s, v245 offset:%d" % (vr(XR + 4 * r, 4), 128 * (r >> 1) + 16 * (r & 1)) for r in range(4)], 16 * 17, 16 * 17 + 3)
    k.extend(weave(main, fill))
    stamp(k, "p1 mm")
    k("s_mul_i32 s28, s25, %d\ns_lshl_b32 s30, s24, 9\ns_add_u32 s28, s28, s30" % (16 * CGS))
    OUT = 40
    for T in range(4):
        o = OUT + 8 * T
        for r in range(4):
            a = ACC + 16 * T + 4 * r
            for b in range(0, 4, 2): k("v_pk_mul_f32 %s, %s, %s" % (vr(a + b, 2), vr(a + b, 2), vr(XR + 4 * r + b, 2)))
            k("v_cvt_pk_bf16_f32 v%d, v%d, v%d\nv_cvt_pk_bf16_f32 v%d, v%d, v%d" % (o + 2 * r, a, a + 1, o + 2 * r + 1, a + 2, a + 3))
        k("buffer_store_dwordx4 %s, v244, s[16:19], s28 offen sc1 ;#z" % vr(o, 4))
        k("buffer_store_dwordx4 %s, v244, s[16:19], s28 offen offset:256 sc1 ;#z" % vr(o + 4, 4))
        if T < 3: k("s_add_u32 s28, s28, %d" % (4 * CGS))
    get_tag(k, 248, "p1")
    k("s_lshl_b32 s30, s24, 12\ns_lshl_b32 s31, s25, 7\ns_add_u32 s30, s30, s31")
    stamp(k, "p1 st")
    k("L_p2v:")
    p2_vector(k)
    k("s_cmp_ge_u32 s2, 224\ns_cbranch_scc1 L_p2")
    k.extend(flag("z", 2, 250, "s30"))
    stamp(k, "p1 fl")

WOB = 53248
KB, VB, AUX, QB = 0, 20800, 41600, WOB
AK1, AK3, AQ1, AQ3, AV, VO1, VO2 = 232, 233, 234, 235, 236, 237, 238
VD2, VE2, VH2, VHE2 = 240, 244, 248, 251
MK = 208
KF, VF, QF, OA = 0, 80, 160, 176
def p2_scalar(k):
    k("s_load_dwordx2 s[90:91], s[0:1], 16")
    k("s_lshr_b32 s80, s2, 5")
    k("s_and_b32 s81, s2, 7\ns_lshl_b32 s81, s81, 2\ns_bfe_u32 s68, s2, 0x20003\ns_add_u32 s81, s81, s68")
    k("s_mul_i32 s68, s81, 18\ns_and_b32 s82, s68, 3\ns_lshr_b32 s68, s68, 2")
    k("s_add_u32 s83, s68, 144\ns_mul_i32 s83, s83, %d" % CGS)
    k("s_lshl_b32 s84, s80, 1\ns_add_u32 s84, s84, s22\ns_cmp_lt_u32 s84, 2\ns_cselect_b32 s69, 0, 2\ns_sub_u32 s84, s84, s69")
    k("s_lshl_b32 s84, s84, 10\ns_add_u32 s83, s83, s84\ns_lshl_b32 s84, s22, 10")
    k("s_mul_i32 s85, s68, %d\ns_lshl_b32 s69, s80, 11\ns_add_u32 s85, s85, s69\ns_lshl_b32 s87, s22, 9\ns_add_u32 s85, s85, s87" % CGS)
    k("s_mul_i32 s86, s22, 3072\ns_add_u32 s86, s86, %d" % QB)
    k("v_lshrrev_b32 v12, 5, v1\nv_lshlrev_b32 v12, 3, v12\nv_and_b32 v13, 31, v1\nv_sub_u32 v12, v13, v12")
    for rho in range(16):
        a, b = rho >> 2, rho & 3
        k("v_cmp_le_i32 s[%d:%d], %d, v12" % (36 + 2 * rho, 37 + 2 * rho, 16 * (a >> 1) + 4 * (a & 1) + b))
    k("s_lshl_b32 s68, s80, 8\ns_lshl_b32 s69, s22, 6\ns_add_u32 s68, s68, s69")
    k("s_lshl_b32 s69, s81, 12\ns_add_u32 s69, s69, s68\ns_lshl_b32 s69, s69, 4")
    k("s_lshl_b32 s70, s81, 11\ns_add_u32 s70, s70, s68\ns_lshl_b32 s70, s70, 2")
    k("s_mul_i32 s72, s80, 192\ns_and_b32 s73, s80, 1\ns_lshl_b32 s74, s73, 6\ns_xor_b32 s73, s73, 1\ns_lshl_b32 s73, s73, 7")
    k("s_add_u32 s73, s73, s72\ns_add_u32 s72, s72, s74")
    k("s_lshl_b32 s71, s80, 1\ns_lshr_b32 s74, s22, 1\ns_add_u32 s71, s71, s74\ns_cmp_eq_u32 s71, 0\ns_cselect_b32 s71, 0xff7fff7f, 0")
    c = LOG2E * DH ** -0.5
    k("s_mov_b32 s75, 0x%x\ns_mov_b32 s88, 0x%x\ns_mov_b32 s89, s88" % (f2u(-c), f2u(c)))
    k("s_waitcnt lgkmcnt(0)")
    k.srd(76, 90, D * D * 2)
    k("s_cmp_ge_u32 s2, 192\ns_cselect_b32 s78, 0, s78")
    k("s_mul_i32 s90, s22, %d\ns_mul_i32 s91, s22, 6144\ns_add_u32 s91, s91, %d" % (36 * 1152, WOB))

def p2_vector(k):
    touch_chain(k, "L_c2", 22)
    k("v_lshrrev_b32 v2, 3, v1\ns_lshl_b32 s28, s80, 2\ns_cmp_eq_u32 s80, 0\ns_cselect_b32 s29, 3, 7\ns_cselect_b32 s27, 0, 4\ns_sub_u32 s28, s28, s27")
    k("v_and_b32 v2, s29, v2\nv_add_u32 v2, s28, v2\nv_lshlrev_b32 v2, 12, v2\ns_mul_i32 s27, s81, 18")
    k("v_and_b32 v3, 7, v1\nv_min_u32 v3, 5, v3\nv_and_b32 v4, 1, v3\nv_mul_u32_u24 v4, 17, v4\nv_add_u32 v4, s27, v4\nv_lshrrev_b32 v4, 6, v4")
    k("v_lshrrev_b32 v3, 1, v3\nv_mul_u32_u24 v3, 9, v3\nv_add_u32 v3, v3, v4\nv_lshl_add_u32 v14, v3, 7, v2")
    k("v_lshlrev_b32 v3, 4, v1")
    k("v_lshrrev_b32 v5, 5, v1\nv_mul_u32_u24 v4, %d, v5\nv_and_b32 v10, 31, v1\nv_lshl_add_u32 v4, v10, 4, v4\nv_lshlrev_b32 v15, 4, v10" % CGS)
    k("v_bfe_u32 v6, v1, 4, 1\nv_bfe_u32 v7, v1, 2, 2\nv_and_b32 v8, 3, v1")
    k("v_and_b32 v9, 1, v8\nv_lshl_add_u32 v9, v6, 1, v9\nv_lshlrev_b32 v9, 6, v9\nv_lshrrev_b32 v11, 1, v8\nv_lshl_add_u32 v9, v11, 3, v9")
    k("v_lshrrev_b32 v13, 1, v8\nv_lshl_add_u32 v13, v6, 1, v13\nv_lshlrev_b32 v13, 6, v13\nv_and_b32 v11, 1, v8\nv_lshl_add_u32 v13, v11, 3, v13")
    k("v_lshl_add_u32 v11, v5, 3, v7\nv_add_u32 v11, s82, v11")
    k("v_lshrrev_b32 v12, 2, v11\nv_and_b32 v11, 3, v11\nv_lshlrev_b32 v11, 4, v11")
    k("v_mul_u32_u24 v2, 4160, v12\nv_add3_u32 v2, v2, v11, v9\nv_add_u32 v%d, s87, v2" % AK1)
    k("v_lshl_add_u32 v2, v12, 9, v11\nv_add3_u32 v%d, v2, v13, s86" % AQ1)
    k("v_min_u32 v11, 1, v7\nv_add_u32 v11, s82, v11\nv_lshlrev_b32 v11, 4, v11")
    k("v_add3_u32 v2, v11, v9, s87\nv_add_u32 v2, %d, v2\nv_add_u32 v12, s87, v9\nv_add_u32 v12, %d, v12" % (4 * 4160, AUX))
    k("v_cmp_gt_u32 vcc, 2, v7\nv_cndmask_b32 v%d, v12, v2, vcc" % AK3)
    k("v_add3_u32 v2, v11, v13, s86\nv_add_u32 v%d, 2048, v2" % AQ3)
    k("v_add_u32 v11, s82, v10\nv_lshrrev_b32 v12, 2, v11\nv_and_b32 v11, 3, v11")
    k("v_mul_u32_u24 v12, 4160, v12\nv_lshl_add_u32 v12, v11, 4, v12\nv_add_u32 v12, %d, v12" % VB)
    k("v_mov_b32 v11, %d\nv_cmp_gt_u32 vcc, 18, v10\nv_cndmask_b32 v12, v11, v12, vcc" % (AUX + 16))
    k("v_lshl_add_u32 v12, v5, 6, v12\nv_add_u32 v%d, s87, v12" % AV)
    k("v_lshl_add_u32 v%d, v5, 11, v10\nv_lshlrev_b32 v%d, 4, v%d" % (VO1, VO1, VO1))
    k("v_lshlrev_b32 v2, 2, v10\nv_mov_b32 v6, 0x%x\nv_cmp_gt_u32 vcc, 32, v1\nv_cndmask_b32 v%d, v6, v2, vcc" % (BIG, VO2))

def p2(k):
    SCO = 16
    k("L_p2:\n@reset")
    k.srd(8, 20, Z_BYTES, WS_Z)
    k.srd(12, 20, OP_BYTES, WS_OP)
    k.srd(16, 20, O2_BYTES, WS_O2)
    k("s_barrier")
    k("v_and_b32 v2, 3, v1\nv_lshl_add_u32 v6, v1, 4, s84")
    k("v_mov_b32 v7, s71\nv_mov_b32 v8, 0x3f803f80\nv_cmp_eq_u32 vcc, 0, v2\nv_cndmask_b32 v8, v8, v7, vcc")
    k("v_mov_b32 v9, v8\nv_mov_b32 v10, v8\nv_mov_b32 v11, v8")
    k("ds_write_b128 v6, v[8:11] offset:%d" % AUX)
    k.extend(poll(16, 14, "0"))
    k("v_mov_b32 v12, 0xffff\nv_mov_b32 v13, 0xffff0000")
    for i in range(8):
        k("v_cndmask_b32 v2, 0, v12, s[%d:%d]\nv_cndmask_b32 v6, 0, v13, s[%d:%d]\nv_or_b32 v%d, v2, v6" % (36 + 4 * i, 37 + 4 * i, 38 + 4 * i, 39 + 4 * i, MK + i))
    for n in range(10): k("v_accvgpr_write_b32 a%d, 0\nv_accvgpr_write_b32 a%d, 0" % (KF + 8 * n + 6, KF + 8 * n + 7))
    for u in range(2): k("v_accvgpr_write_b32 a%d, 0\nv_accvgpr_write_b32 a%d, 0" % (QF + 8 * u + 6, QF + 8 * u + 7))
    k("v_mov_b32 v2, 0x3f80\nv_cmp_gt_u32 vcc, 32, v1\nv_cndmask_b32 v2, 0, v2, vcc\nv_accvgpr_write_b32 a%d, v2\nv_accvgpr_write_b32 a%d, v2" % (QF + 5, QF + 13))
    touch_chain(k, "L_c3", 22)
    stamp(k, "p2 setup")
    k.extend(check("p2", 16, 14, "0"))
    stamp(k, "p2 go")
    k("s_mov_b32 m0, s86")
    k("buffer_load_dwordx4 v4, s[8:11], s85 offen sc1 lds ;#q")
    k("s_add_u32 m0, s86, 1024\ns_add_u32 s85, s85, %d" % (2 * CGS))
    k("buffer_load_dwordx4 v4, s[8:11], s85 offen sc1 lds ;#q")
    k("s_add_u32 m0, s86, 2048\ns_add_u32 s85, s85, %d" % (2 * CGS))
    k("buffer_load_dwordx4 v15, s[8:11], s85 offen sc1 lds ;#q")
    for m in range(2):
        for c in range(5):
            k("s_add_u32 m0, s84, %d" % (m * VB + c * 4160))
            k("buffer_load_dwordx4 v3, s[8:11], s83 offen sc1 lds ;#%s" % "kv"[m])
            k("s_add_u32 s83, s83, %d" % (CGS if c < 4 else 140 * CGS))
    k("s_load_dwordx4 s[4:7], s[0:1], 32\ns_lshl_b32 s26, s2, 2\ns_add_u32 s26, s26, s22\ns_mul_i32 s27, s26, 1088\ns_and_b32 s27, s27, 0xffffff80\ns_add_u32 s27, s27, 0x400000")
    k("s_mul_i32 s26, s26, 5184\ns_and_b32 s26, s26, 0xffffff80")
    k("v_lshlrev_b32 v229, 7, v1\nv_mov_b32 v6, 0x%x\nv_cmp_gt_u32 vcc, 14, v1\nv_cndmask_b32 v229, v6, v229, vcc" % BIG)
    VD, VE, VH, VHE = VD2, VE2, VH2, VHE2
    dma_piece(k, 7, 1, 8)
    k("v_mul_u32_u24 v6, 1152, v8\nv_add_u32 v6, v6, v7")
    un = [0, 18, 8, 26]
    for a in range(4): k("v_add_u32 v%d, %d, v6" % (VD + a, un[a] * 1152 - a * 1024))
    k("v_lshrrev_b32 v6, 2, v8\nv_lshlrev_b32 v6, 2, v6\nv_bfe_u32 v9, v8, 1, 1\nv_add_u32 v6, v6, v9\nv_mul_u32_u24 v6, 18, v6\nv_and_b32 v9, 1, v8\nv_add_u32 v6, v6, v9")
    k("v_mul_u32_u24 v6, 1152, v6\nv_add_u32 v6, v6, v7")
    ue = [16, 18 * 8 + 16, 18 * 2 + 16, 18 * 10 + 16]
    for a in range(4): k("v_add_u32 v%d, %d, v6" % (VE + a, ue[a] * 1152 - a * 1024))
    k("v_lshrrev_b32 v8, 2, v1\nv_bfe_u32 v7, v1, 4, 1\nv_lshlrev_b32 v7, 1, v7\nv_and_b32 v9, 3, v1\nv_xor_b32 v7, v7, v9\nv_lshlrev_b32 v7, 4, v7")
    k("v_lshrrev_b32 v6, 3, v8\nv_mul_u32_u24 v6, 18, v6\nv_and_b32 v9, 7, v8\nv_add_u32 v6, v6, v9\nv_mul_u32_u24 v6, 1152, v6\nv_add_u32 v%d, v6, v7" % VH)
    k("v_add_u32 v%d, %d, v%d" % (VH + 1, 8 * 1152 - 1024, VH))
    k("v_lshrrev_b32 v6, 2, v8\nv_lshlrev_b32 v6, 2, v6\nv_bfe_u32 v9, v8, 1, 1\nv_add_u32 v6, v6, v9\nv_mul_u32_u24 v6, 18, v6\nv_and_b32 v9, 1, v8\nv_add3_u32 v6, v6, v9, 16")
    k("v_mul_u32_u24 v6, 1152, v6\nv_add_u32 v%d, v6, v7\nv_add_u32 v%d, %d, v%d" % (VHE, VHE + 1, 36 * 1152 - 1024, VHE))
    k("@waitvm q")
    for u in range(2):
        k("ds_read_b64_tr_b16 %s, v%d offset:%d\nds_read_b64_tr_b16 %s, v%d offset:%d\nds_read_b64_tr_b16 %s, v%d offset:%d" % (
            ar(QF + 8 * u, 2), AQ1, 256 * u, ar(QF + 8 * u + 2, 2), AQ1, 512 + 256 * u, vr(6 + 2 * u, 2), AQ3, 256 * u))
    k("v_cmp_gt_u32 vcc, 32, v1")
    for u in range(2): k("v_cndmask_b32 v%d, 0, v%d, vcc\nv_accvgpr_write_b32 a%d, v%d" % (6 + 2 * u, 6 + 2 * u, QF + 8 * u + 4, 6 + 2 * u))
    k("@waitvm k\n@waitlds all\ns_barrier")
    stamp(k, "p2 k")
    def kread(n):
        f = KF + 8 * n
        return ["ds_read_b64_tr_b16 %s, v%d offset:%d" % (ar(f, 2), AK1, KB + 256 * n),
                "ds_read_b64_tr_b16 %s, v%d offset:%d" % (ar(f + 2, 2), AK1, KB + 256 * n + 4160),
                "ds_read_b64_tr_b16 %s, v%d offset:%d" % (ar(f + 4, 2), AK3, 256 * n)]
    def vread(n, s): return "ds_read_b128 %s, v%d offset:%d" % (ar(VF + 8 * n + 4 * s, 4), AV, 256 * n + 128 * s)
    order = [0, 8, 1, 2, 3, 4, 5, 6, 7]
    slot = [{j: j for j in range(9)}, dict(zip(order, [9, 10, 11, 0, 8, 1, 2, 3, 4]))]
    def sreg(u, j): return SCO + 16 * slot[u][j]
    def qk(u, j):
        s = vr(sreg(u, j), 16); f = KF + 8 * (j + u)
        return ["v_mfma_f32_32x32x16_bf16 %s, %s, %s, 0" % (s, ar(f, 4), ar(QF + 8 * u, 4)),
                "v_mfma_f32_32x32x16_bf16 %s, %s, %s, %s" % (s, ar(f + 4, 4), ar(QF + 8 * u + 4, 4), s)]
    MX = [216, 220]
    def maxops(u, j, first):
        b = sreg(u, j); m = MX[u]; o = []
        if j == 8: return []
        if j == 0:
            b8 = sreg(u, 8)
            o += ["v_cndmask_b32 v%d, v%d, v%d, s[%d:%d]" % (b + rho, b + rho, b8 + rho, 36 + 2 * rho, 37 + 2 * rho) for rho in range(16)]
            o += ["v_max3_f32 v%d, v%d, v%d, v%d" % (m, b, b + 1, b + 2), "v_max3_f32 v%d, v%d, v%d, v%d" % (m + 1, b + 3, b + 4, b + 5)]
            o += ["v_max3_f32 v%d, v%d, v%d, v%d" % (m + (i & 1), m + (i & 1), b + 6 + 2 * i, b + 7 + 2 * i) for i in range(5)]
        else:
            o += ["v_max3_f32 v%d, v%d, v%d, v%d" % (m + (i & 1), m + (i & 1), b + 2 * i, b + 2 * i + 1) for i in range(8)]
        return o
    def maxfin(u):
        m = MX[u]
        return ["v_max_f32 v%d, v%d, v%d" % (m, m, m + 1), "v_mov_b32 v%d, v%d" % (m + 1, m), "v_permlane32_swap_b32 v%d, v%d" % (m, m + 1),
                "v_max_f32 v%d, v%d, v%d" % (m, m, m + 1), "v_mul_f32 v%d, s75, v%d" % (m, m), "v_mov_b32 v%d, v%d" % (m + 1, m)]
    for n in (0, 8, 1, 2): k.extend(kread(n))
    wo = []
    for rnd in range(5):
        vb, vh = (VD, VH) if rnd < 4 else (VE, VHE)
        pre = []
        if rnd == 4:
            pre = ["s_and_b32 s90, s22, 1", "s_mul_i32 s91, s90, 6144", "s_add_u32 s91, s91, %d" % WOB, "s_mul_i32 s90, s90, %d" % (18 * 16 * 1152)]
        pre += ["s_add_u32 m0, s91, %d" % (rnd * 4 * 6144), "s_add_u32 s101, s90, s72"]
        for a in range(4):
            wo.append(pre + ["buffer_load_dwordx4 v%d, s[76:79], s101 offen offset:%d lds ;#wo" % (vb + a, 1024 * a)]); pre = []
        pre = ["s_add_u32 m0, s91, %d" % (rnd * 4 * 6144 + 4096), "s_add_u32 s101, s90, s73"]
        for a in range(2):
            wo.append(pre + ["buffer_load_dwordx4 v%d, s[76:79], s101 offen offset:%d lds ;#wo" % (vh + a, 1024 * a)]); pre = []
        if rnd < 3: wo[-1].append("s_add_u32 s90, s90, %d" % (4 * 36 * 1152))
    rest = [3, 4, 5, 6, 7, 9]
    for i, j in enumerate(order):
        q = qk(0, j)
        k(q[0])
        if i < len(rest): k.extend(kread(rest[i]))
        k(q[1])
        if i >= 2: k.extend(maxops(0, order[i - 2], False))
    k.extend(qk(1, 0)); k.extend(maxops(0, order[7], False)); k.extend(qk(1, 8)); k.extend(maxops(0, order[8], False))
    k("@waitvm v\ns_barrier")
    k.srd(28, 4, WB)
    k.srd(32, 6, WB)
    pfl = [["buffer_load_dword a240, v229, s[28:31], s27 offen"]] + [["buffer_load_dword a%d, v229, s[32:35], s26 offen offset:%d" % (241 + j, 1792 * j)] for j in range(3)]
    if "nopf2" in OPT: pfl = []
    vr_list = [vread(n, s) for n in [0, 8, 1, 2, 3, 4, 5, 6, 7, 9] for s in range(2)]
    k.extend(vr_list[:6])
    k.extend(maxfin(0))
    stamp(k, "p2 s")
    vr_list = vr_list[6:]
    first = [True, True]
    def pv(u, j):
        o = []
        for s in range(2):
            a = ar(OA + 16 * u, 16)
            o.append("v_mfma_f32_32x32x16_bf16 %s, %s, %s, %s" % (a, ar(VF + 8 * (j + u) + 4 * s, 4), vr(sreg(u, j) + 4 * s, 4), "0" if first[u] else a))
            first[u] = False
        return o
    def expops(u, j):
        b = sreg(u, j); m = MX[u]; o = []
        for hf in range(2):
            if "pk" not in OPT:
                for i in range(8): o.append("v_fma_f32 v%d, v%d, s88, v%d" % (b + 8 * hf + i, b + 8 * hf + i, m))
            else:
                for i in range(0, 8, 2): o.append("v_pk_fma_f32 %s, %s, s[88:89], %s" % (vr(b + 8 * hf + i, 2), vr(b + 8 * hf + i, 2), vr(m, 2)))
            for i in range(8): o.append("v_exp_f32 v%d, v%d" % (b + 8 * hf + i, b + 8 * hf + i))
            for i in range(4): o.append("v_cvt_pk_bf16_f32 v%d, v%d, v%d" % (b + 4 * hf + i, b + 8 * hf + 2 * i, b + 8 * hf + 2 * i + 1))
        if j == 0:
            b8 = sreg(u, 8)
            for i in range(8): o += ["v_and_b32 v%d, v%d, v%d" % (b8 + i, b + i, MK + i), "v_xor_b32 v%d, v%d, v%d" % (b + i, b + i, b8 + i)]
        return o
    def outops(u):
        a = OA + 16 * u; t = 224 if u else 240
        o = ["v_accvgpr_read_b32 v2, a%d" % (a + 12), "v_rcp_f32 v2, v2"]
        o += ["v_accvgpr_read_b32 v%d, a%d" % (4 + i, a + i) for i in range(10)]
        o += ["v_mul_f32 v%d, v%d, v2" % (4 + i, 4 + i) for i in range(10)]
        o += ["v_cvt_pk_bf16_f32 v%d, v%d, v%d" % (t + i, 4 + 2 * i, 5 + 2 * i) for i in range(5)]
        o += ["buffer_store_dwordx4 %s, v%d, s[12:15], s69 offen offset:%d sc1 ;#o" % (vr(t, 4), VO1, 512 * u),
              "buffer_store_dword v%d, v%d, s[16:19], s70 offen offset:%d sc1 ;#o" % (t + 4, VO2, 128 * u)]
        return o
    steps = [0, 1, 2, 3, 4, 5, 6, 7]
    bq = {0: [1], 2: [2, 3], 3: [4], 4: [5], 5: [6], 6: [7]}
    bm = {0: [], 1: [0, 1], 3: [2, 3], 4: [4], 5: [5], 6: [6], 7: [7]}
    prev = []
    for e in steps:
        ops = expops(0, e)
        mf = list(prev)
        for j in bq.get(e, []): mf += qk(1, j)
        fill = {}
        if mf: spread(fill, mf, 2, len(ops) - 4)
        if vr_list: spread(fill, vr_list[:4], 0, 20); vr_list = vr_list[4:]
        NWO = XP.get("nwo", 8)
        if wo: spread(fill, wo[:NWO], 3, len(ops) - 1); wo = wo[NWO:]
        elif pfl: spread(fill, pfl[:2], 1, len(ops) - 1); pfl = pfl[2:]
        k.extend(weave(ops, fill))
        for j in bm.get(e, []): k.extend(maxops(1, j, False))
        prev = pv(0, 0) + pv(0, 8) if e == 0 else pv(0, e)
    k.extend(maxfin(1))
    for e in steps:
        ops = expops(1, e)
        fill = {}
        spread(fill, prev, 2, len(ops) - 4)
        k.extend(weave(ops, fill))
        if e == 1: o0 = outops(0); k.extend(o0[:-2])
        prev = pv(1, 0) + pv(1, 8) if e == 0 else pv(1, e)
    k.extend(o0[-2:])
    k.extend(prev)
    k.extend(outops(1))
    assert not wo
    stamp(k, "p2 st")

def p3(k):
    k("s_load_dwordx2 s[56:57], s[0:1], 0\ns_load_dwordx4 s[36:39], s[0:1], 48")
    k("s_lshl_b32 s30, s80, 2\ns_add_u32 s30, s30, s22\ns_lshl_b32 s30, s30, 12\ns_lshl_b32 s31, s81, 7\ns_add_u32 s30, s30, s31\ns_add_u32 s30, s30, %d" % F2)
    k("s_lshl_b32 s82, s81, 2\ns_add_u32 s82, s82, s22")
    k("v_and_b32 v6, 15, v1\nv_lshrrev_b32 v7, 4, v1")
    XR, BF, ACC, WV = 208, 16, 88, 112
    TA, TM = 220, 246
    k("s_mov_b32 s26, %d" % WOB)
    tr_addrs(k, TA, 1, "s26", 2)
    k("v_lshrrev_b32 v2, 2, v1\nv_lshlrev_b32 v2, 6, v2\nv_and_b32 v3, 3, v1\nv_lshl_add_u32 v2, v3, 3, v2\nv_bfe_u32 v3, v1, 4, 1")
    k("v_lshl_add_u32 v%d, v3, 5, v2\nv_add_u32 v%d, %d, v%d\nv_xor_b32 v%d, 32, v%d" % (TM, TM, WOB + 4096, TM, TM + 1, TM))
    k("v_mul_u32_u24 v10, 1152, v6\nv_lshl_add_u32 v10, v7, 3, v10\ns_mul_i32 s28, s82, %d\ns_add_u32 s29, s28, s73\ns_add_u32 s28, s28, s72" % (16 * 1152))
    k.extend(flag("o", 2, 250, "s30"))
    stamp(k, "p2 fl")
    k("s_waitcnt lgkmcnt(0)\ns_barrier")
    k("s_cmp_ge_u32 s2, 192\ns_cbranch_scc1 L_pf3")
    kp = K("tmp")
    kp("L_pf3:")
    kp("s_sub_u32 s23, s2, 192\ns_lshl_b32 s23, s23, 2\ns_add_u32 s23, s23, s22\ns_mul_i32 s23, s23, 20736\nv_lshlrev_b32 v2, 7, v1\nv_add_u32 v3, 8192, v2\nv_add_u32 v4, 16384, v2")
    kp.srd(8, 36, WB)
    kp("buffer_load_dword a240, v2, s[8:11], s23 offen\nbuffer_load_dword a241, v3, s[8:11], s23 offen")
    kp("s_mov_b32 exec_hi, 3\nbuffer_load_dword a242, v4, s[8:11], s23 offen\ns_mov_b64 exec, -1")
    kp("s_branch L_p4early")
    SLOW.extend(i.text for i in kp.ins)
    k.srd(52, 56, X_BYTES)
    for T in range(6): k("buffer_load_dwordx2 %s, v10, s[52:55], s%d offen offset:%d" % (vr(XR + 2 * T, 2), 28 if T < 4 else 29, 32 * (T & 3)))
    def wreg(t, T, o=0, n=4):
        if t < 10: return ar(24 * t + 4 * T + o, n)
        if t < 14: return vr(WV + 24 * (t - 10) + 4 * T + o, n)
        return ar(24 * (t - 14) + 4 * T + o, n)
    def wread(t):
        o = []
        if t == 10: o += ["v_add_u32 v%d, 61440, v%d" % (q, q) for q in (TA, TA + 1, TA + 2, TA + 3, TM, TM + 1)]
        off = (t % 10) * 6144
        for T in range(6):
            for j in range(2):
                a, oo = (TA + T, off + 2048 * j) if T < 4 else (TM + T - 4, off + 1024 * j)
                o.append("ds_read_b64_tr_b16 %s, v%d offset:%d" % (wreg(t, T, 2 * j, 2), a, oo))
        return o
    for t in range(14): k.extend(wread(t))
    k("v_lshl_add_u32 v8, v7, 11, v6\nv_lshlrev_b32 v8, 4, v8")
    k("v_lshl_add_u32 v9, v7, 13, v6\nv_lshlrev_b32 v9, 2, v9")
    k("s_lshl_b32 s84, s82, 8\ns_lshl_b32 s85, s82, 6")
    k("v_and_b32 v11, 31, v1\nv_lshlrev_b32 v11, 7, v11\ns_lshl_b32 s83, s81, 12\ns_add_u32 s83, s83, %d" % F2)
    k.srd(8, 20, H_BYTES, WS_H)
    k.srd(76, 20, ST_BYTES, WS_ST)
    k("s_mov_b32 s86, 0x3f803f80")
    k("s_mul_i32 s91, s82, 18432\ns_lshl_b32 s71, s73, 4\ns_add_u32 s71, s71, s91\ns_lshl_b32 s74, s72, 4\ns_add_u32 s91, s91, s74")
    k("s_lshl_b32 s74, s80, 14\ns_lshl_b32 s87, s82, 7\ns_add_u32 s74, s74, s87")
    k("s_lshl_b32 s101, s82, 10\ns_lshl_b32 s87, s80, 7\ns_add_u32 s101, s101, s87\ns_add_u32 s101, s101, %d" % F3)
    k("v_lshlrev_b32 v13, 4, v1\nv_lshlrev_b32 v14, 3, v1\nv_mov_b32 v2, 0x%x\nv_cmp_gt_u32 vcc, 16, v1\nv_cndmask_b32 v14, v2, v14, vcc" % BIG)
    k.extend(poll(15, 11, "s83"))
    k("L_p4early:")
    p4_early(k)
    k("s_cmp_ge_u32 s2, 192\ns_cbranch_scc1 L_p4")
    stamp(k, "p3 setup")
    k.extend(check("p3", 15, 11, "s83"))
    stamp(k, "p3 go")
    for t in range(18):
        if t < 16:
            k("buffer_load_dwordx4 %s, v8, s[12:15], s84 offen sc1" % vr(BF + 4 * t, 4))
            k("s_add_u32 s84, s84, %d" % (4 * 32768))
        else:
            for e in range(4):
                k("buffer_load_dword v%d, v9, s[16:19], s85 offen sc1" % (BF + 4 * t + e))
                k("s_add_u32 s85, s85, %d" % (8192 if e < 3 else 13 * 8192))
    main = []; fill = {}
    for t in range(18):
        for T in range(6):
            a = vr(ACC + 4 * T, 4)
            main.append("v_mfma_f32_16x16x32_bf16 %s, %s, %s, %s" % (a, wreg(t, T), vr(BF + 4 * t, 4), a if t else "0"))
    for t in range(14, 18): spread(fill, wread(t), 6 + 14 * (t - 14), 6 + 14 * (t - 14) + 11)
    fill.setdefault(6 * 14 - 1, []).extend(["@waitlds all", "s_barrier"])
    k.extend(weave(main, fill))
    stamp(k, "p3 mm")
    HO, TT = 16, 32
    k("v_mov_b32 v4, 0\nv_mov_b32 v5, 0")
    for T in range(6):
        for j in range(2): k("v_cvt_pk_bf16_f32 v%d, v%d, v%d" % (TT + 2 * T + j, ACC + 4 * T + 2 * j, ACC + 4 * T + 2 * j + 1))
    for T in range(6):
        for j in range(2):
            p = TT + 2 * T + j; a = ACC + 4 * T + 2 * j
            k("v_lshlrev_b32 v%d, 16, v%d\nv_and_b32 v%d, 0xffff0000, v%d" % (a, p, a + 1, p))
    for T in range(6):
        for j in range(2):
            a = ACC + 4 * T + 2 * j
            k("v_dot2c_f32_bf16 v%d, s88, v%d\nv_dot2c_f32_bf16 v%d, s89, v%d" % (a, XR + 2 * T + j, a + 1, XR + 2 * T + j))
    for T in range(6):
        for j in range(2): k("v_cvt_pk_bf16_f32 v%d, v%d, v%d" % (HO + 2 * T + j, ACC + 4 * T + 2 * j, ACC + 4 * T + 2 * j + 1))
        if T & 1:
            k("buffer_store_dwordx4 %s, v13, s[8:11], s%d offen offset:%d sc1 ;#h" % (vr(HO + 2 * T - 2, 4), 91 if T < 4 else 71, 1024 if T == 3 else 0))
    for i in range(12):
        k("v_dot2c_f32_bf16 v4, s86, v%d\nv_dot2c_f32_bf16 v5, v%d, v%d" % (HO + i, HO + i, HO + i))
    for sw in ("v_permlane16_swap_b32", "v_permlane32_swap_b32"):
        k("v_mov_b32 v2, v4\nv_mov_b32 v3, v5")
        k("%s v4, v2\n%s v5, v3" % (sw, sw))
        k("v_add_f32 v4, v4, v2\nv_add_f32 v5, v5, v3")
    k("buffer_store_dwordx2 v[4:5], v14, s[76:79], s74 offen sc1 ;#h")
    stamp(k, "p3 st")

XF4, GA4, UA4 = 16, 160, 192
VG, VM, VW, TA4, TM4, C1, C2, TMP, VS, TS = 224, 228, 232, 236, 240, 242, 244, 246, 254, 255
def p4_early(k):
    TA, TM = TA4, TM4
    if "map16" in OPT:
        k("s_lshr_b32 s23, s2, 4\ns_and_b32 s24, s2, 15")
    else:
        k("s_and_b32 s23, s2, 1\ns_lshl_b32 s23, s23, 3\ns_bfe_u32 s25, s2, 0x30003\ns_add_u32 s23, s23, s25")
        k("s_bfe_u32 s24, s2, 0x20001\ns_lshl_b32 s24, s24, 2\ns_lshr_b32 s25, s2, 6\ns_add_u32 s24, s24, s25")
    k("s_and_b32 s25, s24, 1\ns_mul_i32 s26, s24, 576\ns_lshl_b32 s27, s25, 6\ns_add_u32 s27, s27, s26")
    k("s_xor_b32 s25, s25, 1\ns_lshl_b32 s25, s25, 9\ns_add_u32 s28, s25, s26")
    k("s_lshl_b32 s29, s23, 3\ns_lshl_b32 s30, s22, 1\ns_add_u32 s29, s29, s30")
    dma_piece(k, 4, 1, 2)
    k("v_mul_u32_u24 v5, 9216, v2\nv_add_u32 v5, v5, v4")
    for a in range(4): k("v_add_u32 v%d, %d, v5" % (VG + a, a * (8 * 9216 - 1024)))
    k("s_mul_i32 s56, s22, %d\ns_add_u32 s56, s56, s27" % (64 * 9216))
    k("s_mul_i32 s57, s22, %d\ns_add_u32 s57, s57, s27\ns_add_u32 s57, s57, %d" % (8 * 9216, 256 * 9216))
    k("s_lshl_b32 s58, s22, 13\ns_lshl_b32 s59, s22, 10\ns_add_u32 s59, s59, 32768")
    k.srd(40, 4, WB)
    k.srd(44, 6, WB)
    k("s_lshl_b32 s30, s29, 7\ns_mul_i32 s31, s29, 18432")
    k.srd(48, 36, WB)
    k("s_cmp_lt_u32 s22, 2\ns_cselect_b32 s52, s40, s44\ns_cselect_b32 s53, s41, s45\ns_mov_b32 s54, 0x%x\ns_mov_b32 s55, 0x20000" % WB)
    k("v_mul_u32_u24 v5, 1152, v2\nv_add_u32 v5, v5, v4")
    for a in range(4): k("v_add_u32 v%d, %d, v5" % (VW + a, a * (8 * 1152 - 1024)))
    k("v_lshrrev_b32 v2, 2, v1\nv_mul_u32_u24 v5, 9216, v2\nv_bfe_u32 v3, v1, 4, 1\nv_lshlrev_b32 v3, 1, v3\nv_and_b32 v4, 3, v1\nv_xor_b32 v3, v3, v4\nv_lshl_add_u32 v5, v3, 4, v5")
    for a in range(4): k("v_add_u32 v%d, %d, v5" % (VM + a, a * (16 * 9216 - 1024)))
    k("s_mul_i32 s61, s22, 9216\ns_and_b32 s62, s22, 1\ns_mul_i32 s62, s62, %d\ns_add_u32 s62, s62, s28" % (144 * 9216))
    k("s_lshr_b32 s25, s24, 2\ns_and_b32 s26, s24, 3\ns_and_b32 s35, s26, 1\ns_mul_i32 s34, s26, 288")
    k("s_lshl_b32 s67, s35, 5\ns_add_u32 s33, s34, s67\ns_xor_b32 s67, s35, 1\ns_lshl_b32 s67, s67, 8\ns_add_u32 s34, s34, s67")
    k("s_and_b32 s67, s24, 12\ns_add_u32 s67, s67, s22\ns_mul_i32 s63, s67, 288\ns_and_b32 s67, s22, 1")
    k("s_xor_b32 s64, s67, 1\ns_lshl_b32 s64, s64, 8\ns_add_u32 s64, s64, s63\ns_lshl_b32 s67, s67, 5\ns_add_u32 s63, s63, s67")
    k("s_mul_i32 s67, s26, 288\ns_mul_i32 s63, s63, 1152\ns_add_u32 s63, s63, s67\ns_mul_i32 s64, s64, 1152\ns_add_u32 s64, s64, s67")
    k("v_lshrrev_b32 v2, 1, v1\nv_mul_u32_u24 v2, 1152, v2\nv_and_b32 v3, 1, v1\nv_lshl_add_u32 v2, v3, 4, v2")
    k("s_sub_u32 s60, s34, s67\nv_add_u32 v%d, s60, v2\ns_sub_u32 s60, s33, s67" % VS)
    for a in range(4): k("v_add_u32 v%d, s60, v%d" % (VW + a, VW + a))
    tr_addrs(k, TA, 1, None, 2)
    k("v_lshrrev_b32 v2, 2, v1\nv_lshlrev_b32 v2, 6, v2\nv_and_b32 v3, 3, v1\nv_lshl_add_u32 v2, v3, 3, v2\nv_bfe_u32 v3, v1, 4, 1")
    k("v_lshl_add_u32 v%d, v3, 5, v2\nv_xor_b32 v%d, 32, v%d" % (TM, TM + 1, TM))
    k("v_lshlrev_b32 v%d, 3, v1\nv_add_u32 v%d, 8192, v%d" % (TS, TS, TS))
    k("s_mov_b32 s88, 0x00003f80\ns_mov_b32 s89, 0x3f800000\ns_mov_b32 s65, 0x%x" % f2u(1.0 / D))
    k("s_lshl_b32 s67, s23, 4\ns_add_u32 s66, s67, s24\ns_lshl_b32 s66, s66, 2\ns_add_u32 s66, s66, s22\ns_mul_i32 s66, s66, 18432")
    k("s_and_b32 s68, s24, 12\ns_add_u32 s68, s68, s67\ns_lshl_b32 s68, s68, 2\ns_add_u32 s68, s68, s22\ns_mul_i32 s68, s68, 18432")
    k("s_lshl_b32 s69, s23, 2\ns_add_u32 s69, s69, s22\ns_lshl_b32 s69, s69, 11\ns_add_u32 s69, s69, %d\ns_and_b32 s70, s24, 12\ns_lshl_b32 s70, s70, 7\ns_add_u32 s70, s70, s69" % FH)
    k("s_lshl_b32 s67, s24, 7\ns_add_u32 s69, s69, s67")
    k("s_lshl_b32 s75, s29, 10\ns_add_u32 s75, s75, %d" % F3)

def p4(k):
    SLOT = 36864
    k("L_p4:")
    XF, GA, UA, TA, TM = XF4, GA4, UA4, TA4, TM4
    AF, HF = 0, 72
    stages = []
    for B in range(4): stages += [("G", B, 0), ("G", B, 1), ("U", B, 0), ("U", B, 1)]
    stages += [("M", 4, 0), ("M", 4, 1)]
    stages += [("D", c, 0) for c in range(9)]
    NS = len(stages)
    def dma(n):
        kind, B, kh = stages[n]
        sl = (n % 4) * SLOT
        o = []
        if kind in "GU":
            srd = "s[40:43]" if kind == "G" else "s[44:47]"
            off = 128 * B + kh * 288 * 9216
            for g in range(2):
                pre = ["s_add_u32 m0, s58, %d" % (sl + 4096 * g), "s_add_u32 s60, s56, %d" % (off + g * 32 * 9216)]
                for a in range(4):
                    o.append(pre + ["buffer_load_dwordx4 v%d, %s, s60 offen offset:%d lds ;#s%d" % (VG + a, srd, 1024 * a, n)]); pre = []
            o.append(["s_add_u32 m0, s59, %d" % sl, "s_add_u32 s60, s57, %d" % off, "buffer_load_dwordx4 v%d, %s, s60 offen lds ;#s%d" % (VG, srd, n)])
        elif kind == "M":
            for g in range(3):
                pre = ["s_add_u32 m0, s61, %d" % (sl + 4096 * g), "s_add_u32 s60, s62, %d" % (kh * 288 * 9216 + g * 64 * 9216)]
                for a in range(4 if g < 2 else 1):
                    o.append(pre + ["buffer_load_dwordx4 v%d, s[52:55], s60 offen offset:%d lds ;#s%d" % (VM + a, 1024 * a, n)]); pre = []
        else:
            base, off = ("s63", B * 32 * 1152) if B < 8 else ("s64", 0)
            for g in range(2):
                pre = ["s_add_u32 m0, s61, %d" % (sl + 4096 * g), "s_add_u32 s60, %s, %d" % (base, off + 128 * g)]
                for a in range(4):
                    o.append(pre + ["buffer_load_dwordx4 v%d, s[48:51], s60 offen offset:%d lds ;#s%d" % (VW + a, 1024 * a, n)]); pre = []
            o.append(["s_add_u32 m0, s61, %d" % (sl + 8192), "s_add_u32 s60, %s, %d" % (base, off),
                      "buffer_load_dwordx4 v%d, s[48:51], s60 offen lds ;#s%d" % (VS, n)])
        return o
    NPF = XP.get("npf", 2)
    dm = [x for n in range(NPF) for x in dma(n)]
    NB4 = XP.get("nb4", 4)
    for x in dm[:NB4]: k.extend(x)
    k("s_cmp_ge_u32 s2, 192\ns_cbranch_scc1 L_p4nf")
    k.extend(flag("h", 5, 250, "s101"))
    k("L_p4nf:")
    stamp(k, "p3 fl")
    for x in dm[NB4:]: k.extend(x)
    k("v_lshl_add_u32 v8, v7, 11, v6\nv_lshlrev_b32 v8, 3, v8\nv_lshlrev_b32 v9, 4, v1")
    k("v_add_u32 v12, 0x10000, v8\nv_mov_b32 v3, v250")
    k.srd(8, 20, ST_BYTES, WS_ST)
    k.srd(12, 20, H_BYTES, WS_H)
    k.srd(16, 38, X_BYTES)
    k("v_and_b32 v14, 7, v1\nv_min_u32 v14, 5, v14\nv_lshlrev_b32 v14, 7, v14\nv_bfe_u32 v15, v1, 3, 1\nv_lshl_add_u32 v14, v15, 10, v14")
    k.extend(poll(13, 14, "s75"))
    touch_chain(k, "L_c4", 22)
    stamp(k, "p4 setup")
    k("s_waitcnt vmcnt(0)")
    k.extend(check("p4", 13, 14, "s75"))
    stamp(k, "p4 go")
    ST = UA
    for r in range(2):
        for j in range(2):
            k("buffer_load_dwordx2 %s, v%d, s[8:11], s30 offen offset:%d sc1" % (vr(ST + 6 * r + 2 * j, 2), (8, 12)[j], 128 * r))
    def xload(r, t):
        return ["s_add_u32 s32, s31, %d" % ((r * 18 + t) // 4 * 4096),
                "buffer_load_dwordx4 %s, v9, s[12:15], s32 offen offset:%d sc1" % (vr(XF + 72 * r + 4 * t, 4), ((r * 18 + t) % 4) * 1024)]
    NX0 = XP.get("nx0", 9)
    for t in range(NX0):
        for r in range(2): k.extend(xload(r, t))
    if XP.get("pf4", 0):
        k("s_lshl_b32 s67, s2, 2\ns_add_u32 s67, s67, s22\ns_mul_i32 s32, s67, 5184\nv_lshlrev_b32 v15, 7, v1\nv_mov_b32 v14, 0x%x" % BIG)
        k("v_cmp_gt_u32 vcc, 41, v1\nv_cndmask_b32 v15, v14, v15, vcc\ns_and_b32 s32, s32, 0xffffff80")
        k("v_mul_u32_u24 v2, 13, v1\nv_lshrrev_b32 v2, 6, v2\nv_mul_u32_u24 v4, 5, v2\nv_sub_u32 v4, v1, v4")
        k("v_cmp_lt_u32 vcc, 2, v4\nv_addc_co_u32 v5, vcc, v4, 2, vcc\nv_cmp_lt_u32 vcc, 2, v4\nv_addc_co_u32 v5, vcc, v5, 0, vcc")
        k("v_mul_u32_u24 v2, 9, v2\nv_add_u32 v2, v2, v5\nv_lshlrev_b32 v2, 7, v2\nv_cmp_gt_u32 vcc, 45, v1\nv_cndmask_b32 v2, v14, v2, vcc")
        k("s_lshr_b32 s60, s2, 0\ns_lshl_b32 s60, s60, 1\ns_and_b32 s67, s22, 1\ns_add_u32 s60, s60, s67\ns_mul_i32 s60, s60, %d" % (9 * 9 * 128))
        k("buffer_load_dword a200, v2, s[52:55], s60 offen\nbuffer_load_dword a201, v15, s[48:51], s32 offen")
    k("v_and_b32 v12, 3, v1\nv_lshlrev_b32 v12, 7, v12")
    k.srd(8, 20, HB_BYTES, WS_HB)
    for r in range(2):
        b = ST + 6 * r
        k("v_add_f32 v%d, v%d, v%d\nv_add_f32 v%d, v%d, v%d" % (b, b, b + 2, b + 1, b + 1, b + 3))
        for sw in ("v_permlane16_swap_b32", "v_permlane32_swap_b32"):
            k("v_mov_b32 v%d, v%d\nv_mov_b32 v%d, v%d" % (b + 2, b, b + 3, b + 1))
            k("%s v%d, v%d\n%s v%d, v%d" % (sw, b, b + 2, sw, b + 1, b + 3))
            k("v_add_f32 v%d, v%d, v%d\nv_add_f32 v%d, v%d, v%d" % (b, b, b + 2, b + 1, b + 1, b + 3))
        k("v_mul_f32 v%d, s65, v%d" % (b, b))
        k("v_mul_f32 v%d, v%d, v%d" % (b + 2, b, b))
        k("v_fma_f32 v%d, v%d, s65, -v%d" % (b + 1, b + 1, b + 2))
        k("v_max_f32 v%d, 0, v%d" % (b + 1, b + 1))
        bf16_round(k, b, b)
        k("v_sub_f32 v%d, 0, v%d" % (10 + r, b))
        bf16_round(k, b + 1, b + 1)
        k("v_add_f32 v%d, 0x%x, v%d" % (b + 1, f2u(1e-5), b + 1))
        bf16_round(k, b + 1, b + 1)
        k("v_sqrt_f32 v%d, v%d" % (b + 1, b + 1))
        bf16_round(k, b + 1, b + 1)
        k("v_mul_f32 v%d, v%d, v%d" % (C2 + r, b + 1, b + 1))
        k("v_rcp_f32 v%d, v%d" % (b + 1, b + 1))
        k("v_mul_f32 v%d, 0x%x, v%d" % (C1 + r, f2u(-LOG2E), b + 1))
    def center(r, t):
        x = XF + 72 * r + 4 * t
        o = []
        for c in range(4):
            o.append("v_dot2_f32_bf16 v%d, v%d, s88, v%d" % (TMP + 2 * c, x + c, 10 + r))
            o.append("v_dot2_f32_bf16 v%d, v%d, s89, v%d" % (TMP + 2 * c + 1, x + c, 10 + r))
        for c in range(4):
            o.append("v_cvt_pk_bf16_f32 v%d, v%d, v%d" % (x + c, TMP + 2 * c, TMP + 2 * c + 1))
        return o
    NPRE = XP["npre"]
    for t in range(NPRE):
        for r in range(2):
            if NX0 + t < 18: k.extend(xload(r, NX0 + t))
            k.extend(center(r, t))
    stamp(k, "p4 x")

    cur = {"TA": 0, "TM": 0, "TS": 0}
    def shift(name, regs, sl):
        pre = []
        if cur[name] != sl:
            d = (sl - cur[name]) * SLOT
            for q in regs:
                pre.append("v_add_u32 v%d, %d, v%d" % (q, d, q) if d > 0 else "v_subrev_u32 v%d, %d, v%d" % (q, -d, q))
            cur[name] = sl
        return pre
    tiles = []
    main = []
    DA = XF
    def hbuf(c): return HF + 32 * (c % 3)
    nt = 0
    for n in range(NS):
        kind, B, kh = stages[n]
        for T in range(9 if kind == "D" else 4):
            if kind == "D": nf = 4; f0 = AF + 16 * ((B * 9 + T) % 4)
            else: nf = 9; f0 = AF + 36 * (nt & 1)
            tiles.append(dict(n=n, T=T, g0=len(main), nf=nf, f0=f0, id=nt)); nt += 1
            for r in range(2):
                if kind == "G": a = GA + 8 * T + 4 * r
                elif kind == "U": a = UA + 8 * T + 4 * r
                elif kind == "M": a = (GA if T < 2 else UA) + 8 * (T & 1) + 4 * r
                else: a = DA + 8 * T + 4 * r
                a = vr(a, 4)
                for j in range(nf):
                    if kind == "D": b = ar(hbuf(B) + 8 * j + 4 * r, 4); first = (j == 0 and B == 0)
                    else: b = vr(XF + 72 * r + 4 * (9 * kh + j), 4); first = (j == 0 and kh == 0)
                    main.append("v_mfma_f32_16x16x32_bf16 %s, %s, %s, %s" % (a, ar(f0 + 4 * j, 4), b, "0" if first else a))
    NM = len(main)
    fill = {}
    load = [0.0] * (NM + 1)
    def put(g, items, cost=None):
        if isinstance(items, str): items = [items]
        fill.setdefault(g, []).extend(items)
        load[max(g, 0)] += len([x for x in items if not x.startswith("@") and not x.endswith(":")]) if cost is None else cost
    def frag_reads(t):
        n, T = t["n"], t["T"]; kind = stages[n][0]; sl = n % 4
        if kind == "M": pre = shift("TM", [TM, TM + 1], sl)
        elif kind == "D" and T == 8: pre = shift("TS", [TS], sl)
        else: pre = shift("TA", [TA + q for q in range(4)], sl)
        o = []
        for j in range(t["nf"]):
            for h in range(2):
                if kind == "M": a, off = TM + (T & 1), (T >> 1) * 18432 + j * 2048 + h * 1024
                elif kind == "D": a, off = (TA + (T & 3), j * 9216 + (T >> 2) * 4096 + h * 2048) if T < 8 else (TS, j * 9216 + h * 512)
                else: a, off = TA + T, j * 4096 + h * 2048
                o.append("ds_read_b64_tr_b16 %s, v%d offset:%d ;#f%d%s" % (ar(t["f0"] + 4 * j + 2 * h, 2), a, off, t["id"], "a" if (j < 4) else "b"))
        return pre, o
    pre, o = frag_reads(tiles[0])
    fill[-1] = ["s_barrier"] + pre + o
    first_d = [i for i, t in enumerate(tiles) if stages[t["n"]][0] == "D"][0]
    bar_gap = {}
    for i, t in enumerate(tiles):
        g0 = t["g0"]; kind = stages[t["n"]][0]
        put(g0 - 1, "@waitlds f%da" % t["id"], 1)
        if kind != "D":
            if t["T"] < 3: put(g0 + 3, "@waitlds f%db" % t["id"], 1)
            nxt = [i + 1] if i + 1 < first_d else [i + 1, i + 2]
            span = 16
        else:
            nxt = [i + 2] if i + 2 < len(tiles) else []
            span = 6
        if nxt and tiles[nxt[0]]["n"] != t["n"] and tiles[nxt[0]]["T"] == 0:
            ex = ["s_memtime s[94:95]", "s_waitcnt lgkmcnt(0)", "v_writelane_b32 v0, s94, %d" % (32 + t["n"])] if "st3" in OPT else []
            put(g0 - 1, ["@waitlds all", "@waitvm s%d" % (t["n"] + 1), "s_barrier"] + ex, 2)
            bar_gap[t["n"]] = g0
        rd = []
        for q in nxt:
            pre, o = frag_reads(tiles[q]); rd += [pre + o[:1]] + [[x] for x in o[1:]]
        for q, x in enumerate(rd): put(g0 + (q * span) // len(rd), x)
    def place(gs, lo, hi):
        for i, x in enumerate(gs): put(lo + (i * (hi - lo + 1)) // len(gs), x)
    early = []
    for n in range(NPF, 4): early += dma(n)
    if early: place(early, 1, 52)
    for n in range(NS - 4): place(dma(n + 4), bar_gap[n] + 2, bar_gap[n] + 52)
    work = []
    for t in range(NPRE, 18):
        for r in range(2):
            work.append(dict(e=0, dl=72 + 9 * r + (t - 9) - 3 if t >= 9 else 0, ops=[(x, 1.3) for x in center(r, t)], key=("x", t, r), hard=True))
    def done_gap(n, T, r): return n * 72 + T * 18 + 9 * r + 8
    for B in range(5):
        if B < 4: nG, nU, nt_, u0 = 4 * B + 1, 4 * B + 3, 4, 2 * B
        else: nG, nU, nt_, u0 = 17, 17, 2, 8
        nxt = nU + 1
        for T in range(nt_):
            for r in range(2):
                g = GA + 8 * T + 4 * r; u = UA + 8 * T + 4 * r
                e = done_gap(nG, T, r) + 3
                eu = done_gap(nU, T if B < 4 else T + 2, r) + 3
                if B < 3: dl = (nxt * 4 + T) * 18 + 9 * r - 2
                elif B == 3: dl = (nxt * 4 + T) * 18 + 9 * r - 2 if T < 2 else (nxt * 4 + 2) * 18 - 2
                else: dl = eu + 6
                t0 = TMP
                ops = []
                for b in range(4): ops.append(("v_mul_f32 v%d, v%d, v%d" % (t0 + b, C1 + r, g + b), 1))
                for b in range(4): ops.append(("v_exp_f32 v%d, v%d" % (t0 + b, t0 + b), 2))
                for b in range(4): ops.append(("v_fma_f32 v%d, v%d, v%d, v%d" % (t0 + b, t0 + b, C2 + r, C2 + r), 1))
                for b in range(4): ops.append(("v_rcp_f32 v%d, v%d" % (t0 + b, t0 + b), 2))
                for b in range(4): ops.append(("v_mul_f32 v%d, v%d, v%d" % (g + b, g + b, t0 + b), 1))
                work.append(dict(e=e, dl=max(eu - 1, e + 8) if B < 4 else eu, ops=ops, key=("s", B, T, r)))
                ops = [("v_mul_f32 v%d, v%d, v%d" % (u + b, u + b, g + b), 1) for b in range(4)]
                work.append(dict(e=eu, dl=dl, ops=ops, key=("m", B, T, r), after=[("s", B, T, r)], hard=True))
                ue = UA + 8 * (T & ~1) + 4 * r
                ops = [("v_cvt_pk_bf16_f32 v%d, v%d, v%d" % (ue + 2 * (T & 1) + j, u + 2 * j, u + 2 * j + 1), 1) for j in range(2)]
                aft = [("m", B, T, r)]
                if T & 1:
                    aft.append(("c", B, T - 1, r))
                    ops.append(("s_add_u32 s67, s66, %d\nbuffer_store_dwordx4 %s, v9, s[8:11], s67 offen sc1 ;#h%d" % (((u0 + (T >> 1)) * 2 + r) * 1024, vr(ue, 4), B), 2))
                if B < 3: dl2 = (nxt + 1) * 72 + 10 + 8 * T + 4 * r
                elif B == 3: dl2 = (nxt * 4 + 2) * 18 - 4
                else: dl2 = eu + 10
                work.append(dict(e=eu, dl=dl2, ops=ops, key=("c", B, T, r), after=aft, hard=True))
    FLG = 13
    def hloads(c):
        o = []
        for a in range(4):
            o.append(["s_add_u32 s27, s68, %d" % (a * 73728 + c * 2048), "buffer_load_dwordx4 %s, v9, s[8:11], s27 offen sc1" % ar(hbuf(c) + 8 * a, 4)])
            o.append(["buffer_load_dwordx4 %s, v9, s[8:11], s27 offen offset:1024 sc1" % ar(hbuf(c) + 8 * a + 4, 4)])
        return o
    adv = lambda r: ["s_add_u32 %s, %s, 0x20000" % (r, r)]
    put(14 * 72 + 30, flag("h2", 4, 3, "s69") + adv("s69"))
    put(17 * 72 + 40, flag("h3", 4, 3, "s69") + adv("s69"))
    put(19 * 72 + 20, flag("h4", 4, 3, "s69"))
    put(15 * 72 + 40, poll(FLG, 12, "s70")); put(16 * 72 + 4, check("a", FLG, 12, "s70", False) + adv("s70"), 4)
    put(20 * 72 + 10, poll(FLG, 12, "s70")); put(21 * 72 + 2, check("b", FLG, 12, "s70", False) + adv("s70"), 4)
    put(22 * 72 + 60, poll(FLG, 12, "s70")); put(23 * 72 + 60, check("c", FLG, 12, "s70", False), 4)
    for c in range(9): place(hloads(c), (16 + c) * 72 + 8, (16 + c) * 72 + 66)
    QS, SEL, HR, PL, OO = 96, 136, GA, 200, 140
    g26 = 26 * 72
    sel = ["v_lshrrev_b32 v2, 1, v6", "v_and_b32 v5, 1, v6", "v_lshlrev_b32 v5, 4, v5", "v_mov_b32 v8, 0x3f80", "v_lshlrev_b32 v5, v5, v8"]
    for q in range(4): sel += ["v_cmp_eq_u32 vcc, %d, v2" % q, "v_cndmask_b32 v%d, 0, v5, vcc" % (SEL + q)]
    setup = sel + [
        "s_lshl_b32 s29, s23, 2", "s_add_u32 s29, s29, s26", "s_lshl_b32 s29, s29, 2", "s_add_u32 s71, s29, s22", "s_add_u32 s72, s29, s25",
        "s_lshl_b32 s73, s71, 9", "s_lshl_b32 s75, s72, 9",
        "s_mul_i32 s71, s71, 36", "s_add_u32 s71, s71, s25", "s_lshl_b32 s71, s71, 10",
        "s_mul_i32 s72, s72, 36864", "s_lshl_b32 s29, s22, 8", "s_add_u32 s72, s72, s29",
        "s_lshl_b32 s29, s25, 7", "s_add_u32 s73, s73, s29", "s_add_u32 s73, s73, %d" % FP, "s_add_u32 s75, s75, %d" % FP,
        "s_lshl_b32 s29, s23, 2", "s_add_u32 s29, s29, s25", "s_mul_i32 s90, s29, 36864", "s_mul_i32 s32, s29, %d" % (32 * 1152),
        "s_lshl_b32 s29, s22, 8", "s_add_u32 s90, s90, s29",
        "s_lshr_b32 s29, s34, 6", "s_lshl_b32 s29, s29, 10", "s_add_u32 s91, s90, s29", "s_lshl_b32 s29, s35, 3", "s_add_u32 s91, s91, s29",
        "s_lshl_b32 s29, s33, 4", "s_add_u32 s90, s90, s29",
        "s_lshl_b32 s29, s22, 3", "s_add_u32 s32, s32, s29", "s_add_u32 s31, s32, s33", "s_add_u32 s30, s32, s34",
        "v_lshlrev_b32 v14, 4, v6", "v_mov_b32 v2, 0x%x" % BIG, "v_cmp_gt_u32 vcc, 32, v1",
        "v_lshl_add_u32 v10, v7, 3, v14", "v_mul_u32_u24 v11, 18432, v7", "v_add_u32 v11, v11, v14", "v_lshl_add_u32 v14, v7, 10, v14",
        "v_cndmask_b32 v10, v2, v10, vcc", "v_cndmask_b32 v11, v2, v11, vcc",
        "v_mul_u32_u24 v15, 1152, v6", "v_mul_u32_u24 v8, 1152, v1", "v_lshl_add_u32 v15, v7, 5, v15",
        "v_cndmask_b32 v15, v2, v15, vcc", "v_cndmask_b32 v8, v2, v8, vcc"]
    place([[x] for x in setup], 19 * 72 + 30, 20 * 72 + 60)
    put(21 * 72 + 30, ["s_add_u32 s40, s20, 0x%x" % WS_P2, "s_addc_u32 s41, s21, 0", "s_and_b32 s41, s41, 0xffff", "s_mov_b32 s42, 0x%x" % P2_BYTES, "s_mov_b32 s43, 0x20000"])
    hl = []
    for q in range(9):
        if q < 8: hl.append(["s_add_u32 s67, s90, %d" % ((q & 1) * 18432 + (q >> 1) * 1024), "buffer_load_dwordx2 %s, v10, s[12:15], s67 offen sc1" % vr(HR + 4 * q + 2, 2)])
        else: hl.append(["buffer_load_dwordx2 %s, v11, s[12:15], s91 offen sc1" % vr(HR + 4 * q + 2, 2)])
    place(hl, 24 * 72 + 4, 24 * 72 + 68)
    for q in range(9):
        h = HR + 4 * q
        ops = ["v_lshlrev_b32 v%d, 16, v%d" % (h, h + 2), "v_and_b32 v%d, 0xffff0000, v%d" % (h + 1, h + 2),
               "v_lshlrev_b32 v%d, 16, v%d" % (h + 2, h + 3), "v_and_b32 v%d, 0xffff0000, v%d" % (h + 3, h + 3)]
        work.append(dict(e=25 * 72 + 40 + q, dl=g26 + 40, ops=[(x, 1) for x in ops], key=("h", q)))
    for T in range(9):
        for r in range(2):
            a = DA + 8 * T + 4 * r
            q = 2 * (T >> 1) + r if T < 8 else 8
            o = QS + 4 * q + (2 * (T & 1) if T < 8 else 2 * r)
            e = g26 + 8 * T + 4 * r + 3 + 3
            ops = [("v_cvt_pk_bf16_f32 v%d, v%d, v%d" % (o + j, a + 2 * j, a + 2 * j + 1), 1) for j in range(2)]
            aft = []
            if (T < 8 and T & 1) or (T == 8 and r == 1):
                aft = [("d", T - 1, r)] if T < 8 else [("d", 8, 0)]
                ops.append(("s_add_u32 s67, s71, %d\nbuffer_store_dwordx4 %s, v9, s[40:43], s67 offen sc1 ;#p" % (q * 4096, vr(QS + 4 * q, 4)), 2))
            work.append(dict(e=e, dl=e + 4, ops=ops, key=("d", T, r), after=aft))
    put(18 * 72 - 1, stamp_ops("p4 A"), 0)
    put(XP.get("csplit", 11) * 72, ["L_s4:"], 0)
    tail, done = edf_place(work, fill, load, NM, XP["cap"] / 100.0)
    body = []
    for x in weave(main, fill): body += x.split("\n")
    if "xvalu" in OPT: body = [x for x in body if not re.match(r"v_(mul_f32|exp|fma_f32|rcp)", x)]
    if "xdma" in OPT: body = [x for x in body if " lds" not in x]
    if "xds" in OPT: body = [x for x in body if not x.startswith("ds_read")]
    if "xb128" in OPT:
        nb = []
        for x in body:
            m = re.match(r"ds_read_b64_tr_b16 a\[(\d+):\d+\], (v\d+) (offset:\d+)(.*)", x)
            if m:
                a = int(m.group(1))
                if a % 4 == 0: nb.append("ds_read_b128 a[%d:%d], v9 %s%s" % (a, a + 3, m.group(3), m.group(4)))
            else: nb.append(x)
        body = nb
    if "xswap" in OPT:
        nb = []
        for x in body:
            m = re.match(r"(v_mfma\S+ \S+), (\S+), (\S+), (.*)", x)
            nb.append("%s, %s, %s, %s" % (m.group(1), m.group(3), m.group(2), m.group(4)) if m else x)
        body = nb
    if "xmfma" in OPT: body = [x for x in body if not x.startswith("v_mfma")]
    k.extend(body); k.extend(tail)
    stamp(k, "p4 D")
    k.extend(flag("p", 4, 3, "s73"))
    stamp(k, "p4 fl")
    spin(k, "p5", FLG, 12, "s75", False)
    stamp(k, "p4 go2")
    for q in range(9):
        k("s_add_u32 s67, s72, %d" % (q * 4096))
        k("buffer_load_dwordx4 %s, v14, s[40:43], s67 offen sc1" % vr(PL + 4 * q, 4))
    fix = lambda ops: [o.replace("s[96:99]", "s[16:19]") for o in ops]
    for q in range(9):
        k("v_mfma_f32_16x16x32_bf16 %s, %s, %s, %s" % (vr(HR + 4 * q, 4), vr(SEL, 4), vr(PL + 4 * q, 4), vr(HR + 4 * q, 4)))
        if q >= 2: k.extend(fix(_outq(q - 2, HR, OO)))
    k.extend(fix(_outq(7, HR, OO))); k.extend(fix(_outq(8, HR, OO)))

def build(path):
    k = K(NAME); k.vgpr = 256; k.agpr = 256; k.sgpr = 102
    k.page_align = True
    k("L_main:\nL_s1:\ns_cmp_ge_u32 s2, 256\ns_cbranch_scc1 L_exit")
    k("s_load_dwordx4 s[4:7], s[0:1], 0\ns_load_dwordx2 s[92:93], s[0:1], 64\ns_load_dwordx2 s[20:21], s[0:1], 72")
    k("v_and_b32 v1, 63, v0\nv_lshrrev_b32 v2, 6, v0")
    k("v_readfirstlane_b32 s22, v2\ns_mov_b32 s100, 400000")
    if "stamp" in OPT: k("v_mov_b32 v0, 0")
    stamp(k, "start")
    p1(k)
    k("L_s2:")
    p2(k)
    k("L_s3:")
    p3(k)
    p4(k)
    if "stamp" in OPT:
        k("s_waitcnt vmcnt(0)")
        stamp(k, "end")
        k.srd(76, 20, 1 << 22, WS_TS)
        k("s_lshl_b32 s75, s2, 2\ns_add_u32 s75, s75, s22\ns_lshl_b32 s75, s75, 8\nv_lshlrev_b32 v2, 2, v1")
        k("buffer_store_dword v0, v2, s[76:79], s75 offen")
        if "dbgst" in OPT:
            sel = XP.get("sel") or ["start", "p1 x", "p1 ln", "p1 mm", "p1 fl", "p2 go", "p2 st", "p3 go", "p3 fl", "p4 go", "p4 x", "p4 A", "p4 D", "p4 go2", "end"]
            k("v_mov_b32 v4, 0")
            for j, n in enumerate(sel):
                k("v_readlane_b32 s75, v0, %d" % STAMPS.index(n))
                if j == 0: k("s_not_b32 s75, s75")
                k("v_writelane_b32 v4, s75, %d" % (j + 1))
            k.srd(76, 92, 256)
            k("s_mov_b32 exec_hi, 0\ns_mov_b32 exec_lo, 0xfffe")
            k("buffer_atomic_umax v4, v2, s[76:79], 0 offen sc1")
    k("L_exit:\ns_endpgm\n@reset")
    kp = K("tmp")
    kp.srd(96, 20, FL_BYTES, WS_FL)
    prefetch_wg(kp)
    k.extend(SLOW)
    k("L_s5:\nL_pf0:\n@reset")
    k.ins += kp.ins
    k("L_code_end:")
    add_page_stubs(k, "L_main", [("L_c1", "L_s1", "L_s2"), ("L_c2", "L_s2", "L_s3"), ("L_c3", "L_s3", "L_s4"), ("L_c4", "L_s4", "L_s5")], base=XP.get("base", 768))
    hdr = """Pre-LN transformer block (sliding-window attention + SwiGLU FFN), S=2048 D=576 H=32 F=4608, bf16.
One persistent launch, one workgroup per CU; phases hand data over through d_ws with per-launch tagged flags.
Generated by work/gen2.py.  Kernarg: x, wqkv, wo, (unused), w_gate, w_up, w_down, out, dbg, ws."""
    txt = program([(k, 256, 256, 163840)], [k], hdr)
    if "single" in OPT:
        txt = txt.replace("; @launch kernel=%s grid" % NAME, "; @launch grid")
    open(path, "w").write(txt)
    print(k.stats, len(txt), "bytes")
    import json
    json.dump(STAMPS, open(path[:-2] + ".stamps.json", "w"))

if __name__ == "__main__":
    OPT.update(sys.argv[2:])
    for a in sys.argv[2:]:
        if "=" in a: XP[a.split("=")[0]] = int(a.split("=")[1])
    build(sys.argv[1])
```

```python
import sys, struct, re
from asmgen import *
from gen import edf_place, tr_addrs, dma_piece, bf16_round, f2u, LOG2E, _outq

S, D, F, NQKV, NH, DH = 2048, 576, 4608, 1728, 32, 18
NAME = "sequential_preLN__sliding_block__swiglu_ffn__prompt_kernel"
CGS = 16384 + 128
WS_Z, Z_BYTES = 0, 432 * CGS
WS_OP, OP_BYTES = 0x700000, 64 * 32768
WS_O2, O2_BYTES = 0x900000, 32 * 8192
WS_H, H_BYTES = 0xA00000, 128 * 18 * 1024
WS_ST, ST_BYTES = 0xD00000, 6 * 2048 * 8
WS_FL, FL_BYTES = 0xE00000, 0xE0080
WS_HB, HB_BYTES = 0x1000000, 256 * 73728
WS_P2, P2_BYTES = 0x2400000, 256 * 36864
WS_TS = 0x4000000
F1, F2, F3, FH, FP, FEPOCH = 0, 0x20000, 0x40000, 0x60000, 0xC0000, 0xE0000
X_BYTES = S * D * 2
WB = D * F * 2
BIG = 0x7fff0000
OPT = set()
XP = dict(npre=9, dr0=12, drs=3, cap=300, slp=0, wearly=0, wj=2, nwe=0, nw0=8)
SLOW = []
NSTAMP = [0]
STAMPS = []

def stamp(k, name):
    if "stamp" not in OPT: return
    k("s_memrealtime s[94:95]\ns_waitcnt lgkmcnt(0)\nv_writelane_b32 v0, s94, %d" % NSTAMP[0])
    STAMPS.append(name); NSTAMP[0] += 1
def stamp_ops(name):
    if "stamp" not in OPT: return []
    o = ["s_memrealtime s[94:95]", "s_waitcnt lgkmcnt(0)", "v_writelane_b32 v0, s94, %d" % NSTAMP[0]]
    STAMPS.append(name); NSTAMP[0] += 1
    return o

def poll(vflag, vaddr, soff):
    return ["buffer_load_dword v%d, v%d, s[96:99], %s offen sc1" % (vflag, vaddr, soff)]
def check(name, vflag, vaddr, soff, gate=True):
    slp = ["s_sleep %d" % XP["slp"]] if XP.get("slp") else []
    if "gate" not in OPT:
        SLOW.extend(["L_slow_%s:" % name, "s_mov_b64 exec, vcc"] + poll(vflag, vaddr, soff) + ["s_waitcnt vmcnt(0)", "v_cmp_ne_u32 vcc, s3, v%d" % vflag,
                     "s_sub_u32 s100, s100, 1", "s_cbranch_scc1 L_out_%s" % name, "s_nop 2", "s_cbranch_vccnz L_slow_%s" % name,
                     "L_out_%s:" % name, "s_mov_b64 exec, -1", "s_branch L_back_%s" % name])
    elif gate:
        SLOW.extend(["L_slow_%s:" % name, "s_ff1_i32_b64 s94, vcc", "s_lshl_b64 exec, 1, s94", "L_gate_%s:" % name] + poll(vflag, vaddr, soff) +
                    ["s_waitcnt vmcnt(0)", "v_cmp_ne_u32 vcc, s3, v%d" % vflag, "s_sub_u32 s100, s100, 1", "s_cbranch_scc1 L_full_%s" % name, "s_nop 2",
                     "s_cbranch_vccz L_full_%s" % name] + slp + ["s_branch L_gate_%s" % name, "L_full_%s:" % name, "s_mov_b64 exec, -1"] + poll(vflag, vaddr, soff) +
                    ["s_waitcnt vmcnt(0)", "v_cmp_ne_u32 vcc, s3, v%d" % vflag, "s_sub_u32 s100, s100, 1", "s_cbranch_scc1 L_back_%s" % name, "s_nop 2",
                     "s_cbranch_vccnz L_slow_%s" % name, "s_branch L_back_%s" % name])
    else:
        SLOW.extend(["L_slow_%s:" % name] + poll(vflag, vaddr, soff) + ["s_waitcnt vmcnt(0)", "v_cmp_ne_u32 vcc, s3, v%d" % vflag,
                     "s_sub_u32 s100, s100, 1", "s_cbranch_scc1 L_back_%s" % name, "s_nop 2", "s_cbranch_vccz L_back_%s" % name] + slp + ["s_branch L_slow_%s" % name])
    return ["v_cmp_ne_u32 vcc, s3, v%d" % vflag, "s_nop 4", "s_cbranch_vccnz L_slow_%s" % name, "L_back_%s:" % name]
def spin(k, name, vflag, vaddr, soff, gate=True):
    k.extend(poll(vflag, vaddr, soff))
    k("s_waitcnt vmcnt(0)")
    k.extend(check(name, vflag, vaddr, soff, gate))
def flag(tag, vtmp, vlane0, soff):
    return ["@waitvm " + tag, "v_mov_b32 v%d, s3" % vtmp, "buffer_store_dword v%d, v%d, s[96:99], %s offen sc1" % (vtmp, vlane0, soff)]
def lane0(k, dst, tmp):
    k("v_mov_b32 v%d, 0x%x\nv_cmp_eq_u32 vcc, 0, v1\nv_cndmask_b32 v%d, v%d, v1, vcc" % (tmp, BIG, dst, tmp))

def get_tag(k, vt, issued):
    k("v_readfirstlane_b32 s3, v%d" % vt)
    k("s_cmp_eq_u32 s3, 0\ns_cbranch_scc1 L_tagslow_%s\nL_tagback_%s:" % (issued, issued))
    SLOW.extend(["L_tagslow_%s:" % issued, "v_mov_b32 v%d, 0" % vt, "global_load_dword v%d, v%d, s[92:93] sc1" % (vt, vt), "s_waitcnt vmcnt(0)",
                 "v_readfirstlane_b32 s3, v%d" % vt, "s_sub_u32 s100, s100, 1", "s_cbranch_scc1 L_tagback_%s" % issued,
                 "s_cmp_eq_u32 s3, 0", "s_cbranch_scc1 L_tagslow_%s" % issued, "s_branch L_tagback_%s" % issued])

def prefetch_wg(k):
    k("L_pf:")
    k("s_load_dwordx2 s[8:9], s[0:1], 16\ns_load_dwordx4 s[12:15], s[0:1], 32")
    k("s_sub_u32 s23, s2, 224\ns_lshl_b32 s24, s23, 2\ns_add_u32 s24, s24, s22")
    k("v_lshlrev_b32 v2, 7, v1")
    if "nopfq" not in OPT:
        k.srd(28, 6, D * NQKV * 2)
        k("s_mul_i32 s25, s24, 15616")
        k("buffer_load_dword v10, v2, s[28:31], s25 offen\ns_add_u32 s25, s25, 8192\nbuffer_load_dword v11, v2, s[28:31], s25 offen")
    k("s_cmp_lg_u32 s24, 0\ns_cbranch_scc1 L_pf_notag")
    k("v_mov_b32 v4, %d\nbuffer_load_dword v5, v4, s[96:99], 0 offen sc1\ns_waitcnt vmcnt(0)" % FEPOCH)
    k("v_add_u32 v5, 1, v5\nv_max_u32 v5, 1, v5\nv_mov_b32 v6, 0")
    k("global_store_dword v6, v5, s[92:93] sc1\nbuffer_store_dword v5, v4, s[96:99], 0 offen sc1")
    k("L_pf_notag:")
    k("s_getpc_b64 s[32:33]\nL_pc:\ns_sub_u32 s32, s32, L_pc-L_main\ns_subb_u32 s33, s33, 0")
    k("s_lshr_b32 s25, s23, 3\ns_lshl_b32 s25, s25, 2\ns_add_u32 s25, s25, s22\ns_lshl_b32 s25, s25, 13")
    k("v_add_u32 v3, s25, v2\ns_mov_b32 s25, L_code_end-L_main-4\nv_min_u32 v3, s25, v3")
    if "nocode" not in OPT: k("global_load_dword v12, v3, s[32:33]")
    k("s_waitcnt vmcnt(0) lgkmcnt(0)")
    k.srd(28, 8, D * D * 2)
    k("s_mul_i32 s25, s24, 5248\nv_cmp_gt_u32 vcc, 41, v1\nv_mov_b32 v4, 0x%x\nv_cndmask_b32 v4, v4, v2, vcc\nbuffer_load_dword v10, v4, s[28:31], s25 offen" % BIG)
    k("s_waitcnt vmcnt(0)")
    k.srd(28, 12, WB)
    k("s_lshl_b32 s25, s24, 15")
    for j in range(4):
        k("buffer_load_dword v%d, v2, s[28:31], s25 offen\ns_add_u32 s25, s25, 8192" % (11 + j))
    lane0(k, 250, 2)
    p2_scalar(k)
    k("v_mov_b32 v248, 0\nglobal_load_dword v248, v248, s[92:93] sc1\ns_waitcnt vmcnt(0)")
    get_tag(k, 248, "pf")
    k("s_branch L_p2v")

_tc = touch_chain
def touch_chain(k, name, w):
    if 'notouch' in OPT: k('%s_ret:' % name)
    else: _tc(k, name, w)

def p1(k):
    XL, RING, STL = 0, 73728, 73728 + 4 * 20480
    k("s_lshr_b32 s23, s2, 5")
    k("s_and_b32 s24, s2, 7\ns_lshl_b32 s24, s24, 2\ns_bfe_u32 s25, s2, 0x20003\ns_add_u32 s24, s24, s25")
    k("s_lshl_b32 s25, s23, 2\ns_add_u32 s25, s25, s22")
    k("v_lshrrev_b32 v3, 3, v1\nv_and_b32 v4, 7, v1")
    k("v_mul_u32_u24 v5, 1152, v3\nv_lshl_add_u32 v5, v4, 4, v5")
    k("s_lshl_b32 s26, s24, 6\ns_lshl_b32 s27, s22, 4\ns_add_u32 s26, s26, s27\ns_mul_i32 s26, s26, 1152")
    k("v_add_u32 v15, %d, v5" % (8 * 1152))
    k("s_and_b32 s27, s24, 3\ns_mul_i32 s27, s27, 5\ns_lshr_b32 s27, s27, 1")
    if "norot" in OPT: k("s_mov_b32 s27, 0")
    VD = 251
    k("v_lshrrev_b32 v6, 2, v3\nv_lshlrev_b32 v6, 3, v6\nv_and_b32 v7, 3, v3\nv_add_u32 v6, v6, v7")
    k("v_mul_u32_u24 v6, 3456, v6")
    k("v_lshrrev_b32 v7, 1, v3\nv_lshlrev_b32 v7, 1, v7\nv_xor_b32 v7, v7, v4\nv_lshl_add_u32 v6, v7, 4, v6")
    base = [0, 16, 4, 20]
    for a in range(4):
        k("v_add_u32 v%d, %d, v6" % (VD + a, base[a] * 3456 - a * 1024))
    k("s_lshl_b32 s30, s25, 7\ns_mul_i32 s28, s27, %d\ns_add_u32 s28, s28, s30\ns_add_u32 s31, s30, %d" % (64 * 3456, 576 * 3456))
    k("s_lshl_b32 s27, s27, 7\ns_add_u32 s27, s27, s26\ns_add_u32 s101, s26, 1152")
    k("s_mul_i32 s29, s22, 20480\ns_add_u32 s29, s29, %d" % RING)
    k("s_waitcnt lgkmcnt(0)")
    k("s_cmp_ge_u32 s2, 224\ns_cbranch_scc1 L_pf0")
    k.srd(8, 4, X_BYTES)
    XR = 16
    for j in range(9):
        for h in range(2):
            k("buffer_load_dwordx4 %s, v%d, s[8:11], s27 offen" % (vr(XR + (h * 9 + j) * 4, 4), (5, 15)[h]))
        if j < 8: k("s_add_u32 s27, s27, 128\ns_cmp_eq_u32 s27, s101\ns_cselect_b32 s27, s26, s27")
    k("s_mov_b32 s26, s30\ns_mov_b32 s27, s31")
    k.srd(12, 6, D * NQKV * 2)
    def dma(t):
        o = ["s_add_u32 m0, s29, %d" % ((t % 5) * 4096)]
        for a in range(4):
            o.append("buffer_load_dwordx4 v%d, s[12:15], s28 offen offset:%d lds ;#w%d" % (VD + a, 1024 * a, t))
        o.append("s_add_u32 s28, s28, %d\ns_cmp_eq_u32 s28, s27\ns_cselect_b32 s28, s26, s28" % (32 * 3456))
        return o
    WEARLY = XP.get("wearly", 0)
    for t in range(WEARLY): k.extend(dma(t))
    k.srd(96, 20, FL_BYTES, WS_FL)
    if "c1late" in OPT:
        k("s_getpc_b64 s[32:33]\nv_lshlrev_b32 v7, 5, v1\ns_lshl_b32 s34, s22, 11\ns_add_u32 s34, s34, 2048\nv_add_u32 v7, s34, v7\nglobal_load_dword v249, v7, s[32:33]")
    else: touch_chain(k, "L_c1", 22)
    p2_scalar(k)
    k.srd(16, 20, Z_BYTES, WS_Z)
    k("s_lshr_b32 s30, s22, 1\ns_lshl_b32 s30, s30, 1")
    k("v_lshrrev_b32 v7, 5, v1\nv_add_u32 v7, s30, v7\nv_mul_u32_u24 v7, 18, v7")
    k("v_lshrrev_b32 v10, 2, v4\nv_add_u32 v7, v7, v10\nv_lshlrev_b32 v7, 10, v7")
    k("v_and_b32 v10, 3, v4\nv_lshl_add_u32 v7, v10, 8, v7")
    k("s_and_b32 s30, s22, 1\ns_lshl_b32 s30, s30, 3")
    k("v_and_b32 v10, 3, v3\nv_add_u32 v10, s30, v10")
    k("v_xor_b32 v11, v10, v4\nv_lshl_add_u32 v8, v11, 4, v7")
    k("v_add_u32 v10, 4, v10\nv_xor_b32 v11, v10, v4\nv_lshl_add_u32 v9, v11, 4, v7")
    k("v_and_b32 v10, 15, v1\nv_lshrrev_b32 v11, 4, v1")
    k("v_xor_b32 v12, v10, v11\nv_lshlrev_b32 v12, 4, v12\nv_lshl_add_u32 v247, v11, 8, v12")
    tr_addrs(k, 240, 1, "s29", 12)
    k("s_mov_b32 s31, %d" % CGS)
    k("v_lshrrev_b32 v12, 2, v10\nv_mul_lo_u32 v12, v12, s31\nv_lshl_add_u32 v12, v11, 6, v12\nv_and_b32 v13, 3, v10\nv_lshl_add_u32 v244, v13, 4, v12")
    k("s_cmp_ge_u32 s25, 27\ns_cselect_b32 s30, 0x%x, 0\nv_add_u32 v244, s30, v244" % BIG)
    k("v_lshlrev_b32 v245, 5, v11\nv_add_u32 v245, %d, v245" % STL)
    k("s_lshl_b32 s30, s22, 6\ns_add_u32 s30, s30, %d\nv_lshl_add_u32 v246, v3, 2, s30" % STL)
    lane0(k, 250, 12)
    k("s_mov_b32 s32, 0x3f803f80\ns_mov_b32 s33, 0x00003f80\ns_mov_b32 s34, 0x3f800000\ns_mov_b32 s35, 0x%x" % f2u(1.0 / D))
    T0 = 88
    for i in range(8): k("v_mov_b32 v%d, 0" % (T0 + i))
    for j in range(9):
        for c in range(4):
            for h in range(2):
                k("v_dot2c_f32_bf16 v%d, s32, v%d" % (T0 + 2 * h + (c & 1), XR + (h * 9 + j) * 4 + c))
        if j == 0 and "c1late" in OPT: touch_chain(k, "L_c1", 22)
        jw = j - XP.get("wj", 1)
        if 0 <= jw and WEARLY + jw < 5: k.extend(dma(WEARLY + jw))
    stamp(k, "p1 x")
    k("v_add_f32 v%d, v%d, v%d\nv_add_f32 v%d, v%d, v%d" % (T0, T0, T0 + 1, T0 + 2, T0 + 2, T0 + 3))
    for ctl in ("quad_perm:[1,0,3,2]", "quad_perm:[2,3,0,1]", "row_half_mirror"):
        for r in (T0, T0 + 2):
            k("v_add_f32_dpp v%d, v%d, v%d %s row_mask:0xf bank_mask:0xf" % (r, r, r, ctl))
    for h in range(2):
        r = T0 + 2 * h
        k("v_mul_f32 v%d, s35, v%d" % (r, r))
        bf16_round(k, r + 1, r)
        k("v_sub_f32 v%d, v%d, v%d" % (r, r, r + 1))
        k("v_sub_f32 v%d, 0, v%d" % (r + 1, r + 1))
    WF = 208
    def wreg(t, T): return ar(16 * t + 4 * T, 4) if t < 16 else vr(WF + 16 * (t - 16) + 4 * T, 4)
    def wreg2(t, T, j): return ar(16 * t + 4 * T + 2 * j, 2) if t < 16 else vr(WF + 16 * (t - 16) + 4 * T + 2 * j, 2)
    def drain(t):
        return ["@waitvm w%d" % t] + ["ds_read_b64_tr_b16 %s, v%d offset:%d ;#d%d" % (wreg2(t, T, j), 240 + T, (t % 5) * 4096 + j * 2048, t) for T in range(4) for j in range(2)]
    def refill(t):
        return (["@waitlds d%d" % t] + dma(t + 5)) if t + 5 < 18 else []
    T1 = T0 + 8
    nd = 0
    g = 0
    for j in range(9):
        for h in range(2):
            x = XR + (h * 9 + j) * 4
            for c in range(4):
                k("v_dot2_f32_bf16 v%d, v%d, s33, v%d" % (T1 + 2 * c, x + c, T0 + 2 * h + 1))
                k("v_dot2_f32_bf16 v%d, v%d, s34, v%d" % (T1 + 2 * c + 1, x + c, T0 + 2 * h + 1))
            for c in range(4):
                k("v_cvt_pk_bf16_f32 v%d, v%d, v%d" % (x + c, T1 + 2 * c, T1 + 2 * c + 1))
            k("ds_write_b128 v%d, %s offset:%d" % (8 + h, vr(x, 4), XL + 2048 * j))
            g += 1
            if g > XP["dr0"] and (g - 1 - XP["dr0"]) % XP["drs"] == 0: k.extend(refill(nd - 1))
            if g >= XP["dr0"] and (g - XP["dr0"]) % XP["drs"] == 0 and g < 18: k.extend(drain(nd)); nd += 1
    var = []
    for j in range(9):
        for c in range(4):
            for h in range(2):
                x = XR + (h * 9 + j) * 4 + c
                var.append("v_dot2c_f32_bf16 v%d, v%d, v%d" % (T0 + 4 + 2 * h + (c & 1), x, x))
    var += ["v_add_f32 v%d, v%d, v%d" % (T0 + 4, T0 + 4, T0 + 5), "v_add_f32 v%d, v%d, v%d" % (T0 + 6, T0 + 6, T0 + 7)]
    for ctl in ("quad_perm:[1,0,3,2]", "quad_perm:[2,3,0,1]", "row_half_mirror"):
        for r in (T0 + 4, T0 + 6):
            var.append("v_add_f32_dpp v%d, v%d, v%d %s row_mask:0xf bank_mask:0xf" % (r, r, r, ctl))
    rnd = lambda r: ["v_cvt_pk_bf16_f32 v%d, v%d, v%d" % (r, r, r), "v_and_b32 v%d, 0xffff0000, v%d" % (r, r)]
    for h in range(2):
        r = T0 + 4 + 2 * h; dl = T0 + 2 * h
        var += ["v_mul_f32 v%d, v%d, v%d" % (dl, dl, dl), "v_fma_f32 v%d, v%d, s35, -v%d" % (r, r, dl), "v_max_f32 v%d, 0, v%d" % (r, r)] + rnd(r)
        var += ["v_add_f32 v%d, 0x%x, v%d" % (r, f2u(1e-5), r)] + rnd(r) + ["v_sqrt_f32 v%d, v%d" % (r, r)] + rnd(r)
        var += ["v_rcp_f32 v%d, v%d" % (r, r), "ds_write_b32 v246, v%d offset:%d" % (r, 32 * h)]
    k.extend(var)
    k("v_mov_b32 v10, v247\nv_xor_b32 v11, 64, v247\nv_add_u32 v12, 36864, v10\nv_add_u32 v13, 36864, v11")
    k("@waitlds all\ns_barrier")
    stamp(k, "p1 ln")
    X2, ACC1, XF1, RR = 16, 160, 192, 2
    def xa(r, t): return "v%d offset:%d" % (10 + (t & 1) + 2 * (r >> 1), XL + ((r & 1) * 18 + t) * 1024)
    def x1reads(t): return ["ds_read_b128 %s, %s" % (vr(XF1 + 8 * (t & 1) + 4 * r, 4), xa(r, t)) for r in range(2)]
    def x2reads(t): return ["ds_read_b128 %s, %s" % (vr(X2 + 72 * r + 4 * t, 4), xa(r + 2, t)) for r in range(2)]
    k.extend(x1reads(0))
    main = []; fill = {}
    for t in range(18):
        g0 = 8 * t
        for u in range(8):
            T, r = u >> 1, u & 1
            a = vr(ACC1 + 8 * T + 4 * r, 4)
            main.append("v_mfma_f32_16x16x32_bf16 %s, %s, %s, %s" % (a, vr(XF1 + 8 * (t & 1) + 4 * r, 4), wreg(t, T), a if t else "0"))
        if t + 1 < 18: spread(fill, x1reads(t + 1), g0, g0 + 1)
        spread(fill, x2reads(t), g0 + 6, g0 + 7)
        if nd < 18:
            d = drain(nd)
            spread(fill, [d[:2]] + d[2:], g0 + 2, g0 + 5)
            rf = refill(nd)
            if rf:
                for q, x in enumerate([rf[:3], rf[3:4], rf[4:5], rf[5:]]): fill.setdefault(g0 + 8 + 2 * q, []).extend(x)
            nd += 1
    assert nd == 18
    fill.setdefault(8 * 12, []).extend(["v_mov_b32 v248, 0", "global_load_dword v248, v248, s[92:93] sc1"])
    def rread(h): return ["ds_read_b128 %s, v245 offset:%d" % (vr(RR + 4 * r, 4), 128 * h + 16 * r) for r in range(2)]
    spread(fill, rread(0), 8 * 17, 8 * 17 + 1)
    fill.setdefault(8 * 17 + 2, []).append("s_mul_i32 s28, s25, %d\ns_lshl_b32 s30, s24, 9\ns_add_u32 s28, s28, s30" % (16 * CGS))
    def epi(a, T, h):
        o = []
        for r in range(2):
            o += ["v_mul_f32 v%d, v%d, v%d" % (a + 4 * r + b, a + 4 * r + b, RR + 4 * r + b) for b in range(4)]
        o += ["v_cvt_pk_bf16_f32 v%d, v%d, v%d" % (a + j, a + 2 * j, a + 2 * j + 1) for j in range(4)]
        o.append("s_add_u32 s30, s28, %d\nbuffer_store_dwordx4 %s, v244, s[16:19], s30 offen offset:%d sc1 ;#z" % (4 * T * CGS, vr(a, 4), 256 * h))
        return o
    G2 = len(main)
    if "stamp" in OPT: fill.setdefault(G2 - 1, []).extend(stamp_ops("p1 m1"))
    for T in range(4):
        for r in range(2):
            a = vr(XF1 + 8 * (T & 1) + 4 * r, 4)
            for t in range(18):
                main.append("v_mfma_f32_16x16x32_bf16 %s, %s, %s, %s" % (a, vr(X2 + 72 * r + 4 * t, 4), wreg(t, T), a if t else "0"))
    e1 = []
    for T in range(4): e1 += epi(ACC1 + 8 * T, T, 0)
    spread(fill, e1 + rread(1), G2 + 2, G2 + 35)
    for T in range(3): spread(fill, epi(XF1 + 8 * (T & 1), T, 1), G2 + 36 * (T + 1) + 3, G2 + 36 * (T + 1) + 20)
    if "wo1" in OPT:
        kw = K("tmp"); wo_offsets(kw, "main", 10)
        fill.setdefault(G2 + 1, []).extend(["@waitlds all", "s_barrier"])
        spread(fill, [i.text for i in kw.ins], G2 + 2, G2 + 20)
        spread(fill, wo_dmas()[:24], G2 + XP.get("wo0", 24), G2 + XP.get("wo9", 120))
    k.extend(weave(main, fill))
    stamp(k, "p1 mm")
    k.extend(epi(XF1 + 8, 3, 1))
    get_tag(k, 248, "p1")
    k("s_lshl_b32 s30, s24, 12\ns_lshl_b32 s31, s25, 7\ns_add_u32 s30, s30, s31")
    stamp(k, "p1 st")
    k("L_p2v:")
    p2_vector(k)
    k("s_cmp_ge_u32 s2, 224\ns_cbranch_scc1 L_p2")
    k.extend(flag("z", 2, 250, "s30"))
    stamp(k, "p1 fl")

WOB = 53248
KB, VB, AUX, QB = 0, 20800, 41600, WOB + 16 * 6144
AK1, AK3, AQ1, AQ3, AV, VO1, VO2 = 232, 233, 234, 235, 236, 237, 238
VD2, VE2, VH2, VHE2 = 240, 244, 251, 253
MK = 208
KF, VF, QF, OA = 0, 80, 160, 176
def p2_scalar(k):
    k("s_load_dwordx2 s[90:91], s[0:1], 16")
    k("s_lshr_b32 s80, s2, 5")
    k("s_and_b32 s81, s2, 7\ns_lshl_b32 s81, s81, 2\ns_bfe_u32 s68, s2, 0x20003\ns_add_u32 s81, s81, s68")
    k("s_mul_i32 s68, s81, 18\ns_and_b32 s82, s68, 3\ns_lshr_b32 s68, s68, 2")
    k("s_add_u32 s83, s68, 144\ns_mul_i32 s83, s83, %d" % CGS)
    k("s_lshl_b32 s84, s80, 1\ns_add_u32 s84, s84, s22\ns_cmp_lt_u32 s84, 2\ns_cselect_b32 s69, 0, 2\ns_sub_u32 s84, s84, s69")
    k("s_lshl_b32 s84, s84, 10\ns_add_u32 s83, s83, s84\ns_lshl_b32 s84, s22, 10")
    k("s_mul_i32 s85, s68, %d\ns_lshl_b32 s69, s80, 11\ns_add_u32 s85, s85, s69\ns_lshl_b32 s87, s22, 9\ns_add_u32 s85, s85, s87" % CGS)
    k("s_mul_i32 s86, s22, 3072\ns_add_u32 s86, s86, %d" % QB)
    k("v_lshrrev_b32 v12, 5, v1\nv_lshlrev_b32 v12, 3, v12\nv_and_b32 v13, 31, v1\nv_sub_u32 v12, v13, v12")
    for rho in range(16):
        a, b = rho >> 2, rho & 3
        k("v_cmp_le_i32 s[%d:%d], %d, v12" % (36 + 2 * rho, 37 + 2 * rho, 16 * (a >> 1) + 4 * (a & 1) + b))
    k("s_lshl_b32 s68, s80, 8\ns_lshl_b32 s69, s22, 6\ns_add_u32 s68, s68, s69")
    k("s_lshl_b32 s69, s81, 12\ns_add_u32 s69, s69, s68\ns_lshl_b32 s69, s69, 4")
    k("s_lshl_b32 s70, s81, 11\ns_add_u32 s70, s70, s68\ns_lshl_b32 s70, s70, 2")
    k("s_mul_i32 s72, s80, 192\ns_and_b32 s73, s80, 1\ns_lshl_b32 s74, s73, 6\ns_xor_b32 s73, s73, 1\ns_lshl_b32 s73, s73, 7")
    k("s_add_u32 s73, s73, s72\ns_add_u32 s72, s72, s74")
    k("s_lshl_b32 s71, s80, 1\ns_lshr_b32 s74, s22, 1\ns_add_u32 s71, s71, s74\ns_cmp_eq_u32 s71, 0\ns_cselect_b32 s71, 0xff7fff7f, 0")
    c = LOG2E * DH ** -0.5
    k("s_mov_b32 s75, 0x%x\ns_mov_b32 s88, 0x%x\ns_mov_b32 s89, s88" % (f2u(-c), f2u(c)))
    k("s_waitcnt lgkmcnt(0)")
    k.srd(76, 90, D * D * 2)
    k("s_cmp_ge_u32 s2, 192\ns_cselect_b32 s78, 0, s78")
    k("s_mul_i32 s90, s22, %d\ns_mul_i32 s91, s22, 6144\ns_add_u32 s91, s91, %d" % (36 * 1152, WOB))

def p2_vector(k):
    touch_chain(k, "L_c2", 22)
    k("v_lshrrev_b32 v2, 3, v1\ns_lshl_b32 s28, s80, 2\ns_cmp_eq_u32 s80, 0\ns_cselect_b32 s29, 3, 7\ns_cselect_b32 s27, 0, 4\ns_sub_u32 s28, s28, s27")
    k("v_and_b32 v2, s29, v2\nv_add_u32 v2, s28, v2\nv_lshlrev_b32 v2, 12, v2\ns_mul_i32 s27, s81, 18")
    k("v_and_b32 v3, 7, v1\nv_min_u32 v3, 5, v3\nv_and_b32 v4, 1, v3\nv_mul_u32_u24 v4, 17, v4\nv_add_u32 v4, s27, v4\nv_lshrrev_b32 v4, 6, v4")
    k("v_lshrrev_b32 v3, 1, v3\nv_mul_u32_u24 v3, 9, v3\nv_add_u32 v3, v3, v4\nv_lshl_add_u32 v14, v3, 7, v2")
    k("v_lshlrev_b32 v3, 4, v1")
    k("v_lshrrev_b32 v5, 5, v1\nv_mul_u32_u24 v4, %d, v5\nv_and_b32 v10, 31, v1\nv_lshl_add_u32 v4, v10, 4, v4\nv_lshlrev_b32 v15, 4, v10" % CGS)
    k("v_bfe_u32 v6, v1, 4, 1\nv_bfe_u32 v7, v1, 2, 2\nv_and_b32 v8, 3, v1")
    k("v_and_b32 v9, 1, v8\nv_lshl_add_u32 v9, v6, 1, v9\nv_lshlrev_b32 v9, 6, v9\nv_lshrrev_b32 v11, 1, v8\nv_lshl_add_u32 v9, v11, 3, v9")
    k("v_lshrrev_b32 v13, 1, v8\nv_lshl_add_u32 v13, v6, 1, v13\nv_lshlrev_b32 v13, 6, v13\nv_and_b32 v11, 1, v8\nv_lshl_add_u32 v13, v11, 3, v13")
    k("v_lshl_add_u32 v11, v5, 3, v7\nv_add_u32 v11, s82, v11")
    k("v_lshrrev_b32 v12, 2, v11\nv_and_b32 v11, 3, v11\nv_lshlrev_b32 v11, 4, v11")
    k("v_mul_u32_u24 v2, 4160, v12\nv_add3_u32 v2, v2, v11, v9\nv_add_u32 v%d, s87, v2" % AK1)
    k("v_lshl_add_u32 v2, v12, 9, v11\nv_add3_u32 v%d, v2, v13, s86" % AQ1)
    k("v_min_u32 v11, 1, v7\nv_add_u32 v11, s82, v11\nv_lshlrev_b32 v11, 4, v11")
    k("v_add3_u32 v2, v11, v9, s87\nv_add_u32 v2, %d, v2\nv_add_u32 v12, s87, v9\nv_add_u32 v12, %d, v12" % (4 * 4160, AUX))
    k("v_cmp_gt_u32 vcc, 2, v7\nv_cndmask_b32 v%d, v12, v2, vcc" % AK3)
    k("v_add3_u32 v2, v11, v13, s86\nv_add_u32 v%d, 2048, v2" % AQ3)
    k("v_add_u32 v11, s82, v10\nv_lshrrev_b32 v12, 2, v11\nv_and_b32 v11, 3, v11")
    k("v_mul_u32_u24 v12, 4160, v12\nv_lshl_add_u32 v12, v11, 4, v12\nv_add_u32 v12, %d, v12" % VB)
    k("v_mov_b32 v11, %d\nv_cmp_gt_u32 vcc, 18, v10\nv_cndmask_b32 v12, v11, v12, vcc" % (AUX + 16))
    k("v_lshl_add_u32 v12, v5, 6, v12\nv_add_u32 v%d, s87, v12" % AV)
    k("v_lshl_add_u32 v%d, v5, 11, v10\nv_lshlrev_b32 v%d, 4, v%d" % (VO1, VO1, VO1))
    k("v_lshlrev_b32 v2, 2, v10\nv_mov_b32 v6, 0x%x\nv_cmp_gt_u32 vcc, 32, v1\nv_cndmask_b32 v%d, v6, v2, vcc" % (BIG, VO2))

def wo_offsets(k, which, t=6):
    VD, VE, VH, VHE = VD2, VE2, VH2, VHE2
    a, b, c, d = t, t + 1, t + 2, t + 3
    dma_piece(k, b, 1, c)
    if which != "ext":
        k("v_mul_u32_u24 v%d, 1152, v%d\nv_add_u32 v%d, v%d, v%d" % (a, c, a, a, b))
        un = [0, 18, 8, 26]
        for q in range(4): k("v_add_u32 v%d, %d, v%d" % (VD + q, un[q] * 1152 - q * 1024, a))
    if which != "main":
        k("v_lshrrev_b32 v{a}, 2, v{c}\nv_lshlrev_b32 v{a}, 2, v{a}\nv_bfe_u32 v{d}, v{c}, 1, 1\nv_add_u32 v{a}, v{a}, v{d}\nv_mul_u32_u24 v{a}, 18, v{a}\nv_and_b32 v{d}, 1, v{c}\nv_add_u32 v{a}, v{a}, v{d}".format(a=a, c=c, d=d))
        k("v_mul_u32_u24 v%d, 1152, v%d\nv_add_u32 v%d, v%d, v%d" % (a, a, a, a, b))
        ue = [16, 18 * 8 + 16, 18 * 2 + 16, 18 * 10 + 16]
        for q in range(4): k("v_add_u32 v%d, %d, v%d" % (VE + q, ue[q] * 1152 - q * 1024, a))
    k("v_lshrrev_b32 v{c}, 2, v1\nv_bfe_u32 v{b}, v1, 4, 1\nv_lshlrev_b32 v{b}, 1, v{b}\nv_and_b32 v{d}, 3, v1\nv_xor_b32 v{b}, v{b}, v{d}\nv_lshlrev_b32 v{b}, 4, v{b}".format(b=b, c=c, d=d))
    if which != "ext":
        k("v_lshrrev_b32 v{a}, 3, v{c}\nv_mul_u32_u24 v{a}, 18, v{a}\nv_and_b32 v{d}, 7, v{c}\nv_add_u32 v{a}, v{a}, v{d}\nv_mul_u32_u24 v{a}, 1152, v{a}\nv_add_u32 v{h}, v{a}, v{b}".format(a=a, b=b, c=c, d=d, h=VH))
        k("v_add_u32 v%d, %d, v%d" % (VH + 1, 8 * 1152 - 1024, VH))
    if which != "main":
        k("v_lshrrev_b32 v{a}, 2, v{c}\nv_lshlrev_b32 v{a}, 2, v{a}\nv_bfe_u32 v{d}, v{c}, 1, 1\nv_add_u32 v{a}, v{a}, v{d}\nv_mul_u32_u24 v{a}, 18, v{a}\nv_and_b32 v{d}, 1, v{c}\nv_add3_u32 v{a}, v{a}, v{d}, 16".format(a=a, c=c, d=d))
        k("v_mul_u32_u24 v%d, 1152, v%d\nv_add_u32 v%d, v%d, v%d\nv_add_u32 v%d, %d, v%d" % (a, a, VHE, a, b, VHE + 1, 36 * 1152 - 1024, VHE))

def wo_dmas():
    VD, VE, VH, VHE = VD2, VE2, VH2, VHE2
    wo = []
    for rnd in range(5):
        vb, vh = (VD, VH) if rnd < 4 else (VE, VHE)
        pre = []
        if rnd == 4:
            pre = ["s_and_b32 s90, s22, 1", "s_mul_i32 s91, s90, 6144", "s_add_u32 s91, s91, %d" % WOB, "s_mul_i32 s90, s90, %d" % (18 * 16 * 1152)]
        pre += ["s_add_u32 m0, s91, %d" % (rnd * 4 * 6144), "s_add_u32 s101, s90, s72"]
        for a in range(4):
            wo.append(pre + ["buffer_load_dwordx4 v%d, s[76:79], s101 offen offset:%d lds ;#wo" % (vb + a, 1024 * a)]); pre = []
        pre = ["s_add_u32 m0, s91, %d" % (rnd * 4 * 6144 + 4096), "s_add_u32 s101, s90, s73"]
        for a in range(2):
            wo.append(pre + ["buffer_load_dwordx4 v%d, s[76:79], s101 offen offset:%d lds ;#wo" % (vh + a, 1024 * a)]); pre = []
        if rnd < 3: wo[-1].append("s_add_u32 s90, s90, %d" % (4 * 36 * 1152))
    return wo

def p2(k):
    SCO = 16
    k("L_p2:\n@reset")
    k.srd(8, 20, Z_BYTES, WS_Z)
    k.srd(12, 20, OP_BYTES, WS_OP)
    k.srd(16, 20, O2_BYTES, WS_O2)
    k("s_barrier")
    k("v_and_b32 v2, 3, v1\nv_lshl_add_u32 v6, v1, 4, s84")
    k("v_mov_b32 v7, s71\nv_mov_b32 v8, 0x3f803f80\nv_cmp_eq_u32 vcc, 0, v2\nv_cndmask_b32 v8, v8, v7, vcc")
    k("v_mov_b32 v9, v8\nv_mov_b32 v10, v8\nv_mov_b32 v11, v8")
    k("ds_write_b128 v6, v[8:11] offset:%d" % AUX)
    kw = K("tmp"); wo_offsets(kw, "ext" if "wo1" in OPT else "both"); k.ins += kw.ins
    wo = wo_dmas()
    if "wo1" in OPT: wo = wo[24:]
    if "earlypoll" in OPT: k.extend(poll(16, 14, "0"))
    NWE = XP.get("nwe", 24)
    for x in wo[:NWE]: k.extend(x)
    wo = wo[NWE:]
    k("v_mov_b32 v12, 0xffff\nv_mov_b32 v13, 0xffff0000")
    for i in range(8):
        k("v_cndmask_b32 v2, 0, v12, s[%d:%d]\nv_cndmask_b32 v6, 0, v13, s[%d:%d]\nv_or_b32 v%d, v2, v6" % (36 + 4 * i, 37 + 4 * i, 38 + 4 * i, 39 + 4 * i, MK + i))
    for n in range(10): k("v_accvgpr_write_b32 a%d, 0\nv_accvgpr_write_b32 a%d, 0" % (KF + 8 * n + 6, KF + 8 * n + 7))
    for u in range(2): k("v_accvgpr_write_b32 a%d, 0\nv_accvgpr_write_b32 a%d, 0" % (QF + 8 * u + 6, QF + 8 * u + 7))
    k("v_mov_b32 v2, 0x3f80\nv_cmp_gt_u32 vcc, 32, v1\nv_cndmask_b32 v2, 0, v2, vcc\nv_accvgpr_write_b32 a%d, v2\nv_accvgpr_write_b32 a%d, v2" % (QF + 5, QF + 13))
    touch_chain(k, "L_c3", 22)
    if "earlypoll" not in OPT: k.extend(poll(16, 14, "0"))
    stamp(k, "p2 setup")
    k.extend(check("p2", 16, 14, "0"))
    stamp(k, "p2 go")
    k("s_mov_b32 m0, s86")
    k("buffer_load_dwordx4 v4, s[8:11], s85 offen sc1 lds ;#q")
    k("s_add_u32 m0, s86, 1024\ns_add_u32 s85, s85, %d" % (2 * CGS))
    k("buffer_load_dwordx4 v4, s[8:11], s85 offen sc1 lds ;#q")
    k("s_add_u32 m0, s86, 2048\ns_add_u32 s85, s85, %d" % (2 * CGS))
    k("buffer_load_dwordx4 v15, s[8:11], s85 offen sc1 lds ;#q")
    for m in range(2):
        for c in range(5):
            k("s_add_u32 m0, s84, %d" % (m * VB + c * 4160))
            k("buffer_load_dwordx4 v3, s[8:11], s83 offen sc1 lds ;#%s" % "kv"[m])
            k("s_add_u32 s83, s83, %d" % (CGS if c < 4 else 140 * CGS))
    k("s_load_dwordx4 s[4:7], s[0:1], 32\ns_lshl_b32 s26, s2, 2\ns_add_u32 s26, s26, s22\ns_mul_i32 s27, s26, 1088\ns_and_b32 s27, s27, 0xffffff80\ns_add_u32 s27, s27, 0x400000")
    k("s_mul_i32 s26, s26, 5184\ns_and_b32 s26, s26, 0xffffff80")
    k("v_lshlrev_b32 v229, 7, v1\nv_mov_b32 v6, 0x%x\nv_cmp_gt_u32 vcc, 14, v1\nv_cndmask_b32 v229, v6, v229, vcc" % BIG)
    k("@waitvm q")
    for u in range(2):
        k("ds_read_b64_tr_b16 %s, v%d offset:%d\nds_read_b64_tr_b16 %s, v%d offset:%d\nds_read_b64_tr_b16 %s, v%d offset:%d" % (
            ar(QF + 8 * u, 2), AQ1, 256 * u, ar(QF + 8 * u + 2, 2), AQ1, 512 + 256 * u, vr(6 + 2 * u, 2), AQ3, 256 * u))
    k("v_cmp_gt_u32 vcc, 32, v1")
    for u in range(2): k("v_cndmask_b32 v%d, 0, v%d, vcc\nv_accvgpr_write_b32 a%d, v%d" % (6 + 2 * u, 6 + 2 * u, QF + 8 * u + 4, 6 + 2 * u))
    k("@waitvm k\n@waitlds all\ns_barrier")
    stamp(k, "p2 k")
    def kread(n):
        f = KF + 8 * n
        return ["ds_read_b64_tr_b16 %s, v%d offset:%d" % (ar(f, 2), AK1, KB + 256 * n),
                "ds_read_b64_tr_b16 %s, v%d offset:%d" % (ar(f + 2, 2), AK1, KB + 256 * n + 4160),
                "ds_read_b64_tr_b16 %s, v%d offset:%d" % (ar(f + 4, 2), AK3, 256 * n)]
    def vread(n, s): return "ds_read_b128 %s, v%d offset:%d" % (ar(VF + 8 * n + 4 * s, 4), AV, 256 * n + 128 * s)
    order = [0, 8, 1, 2, 3, 4, 5, 6, 7]
    slot = [{j: j for j in range(9)}, dict(zip(order, [9, 10, 11, 0, 8, 1, 2, 3, 4]))]
    def sreg(u, j): return SCO + 16 * slot[u][j]
    def qk(u, j):
        s = vr(sreg(u, j), 16); f = KF + 8 * (j + u)
        return ["v_mfma_f32_32x32x16_bf16 %s, %s, %s, 0" % (s, ar(f, 4), ar(QF + 8 * u, 4)),
                "v_mfma_f32_32x32x16_bf16 %s, %s, %s, %s" % (s, ar(f + 4, 4), ar(QF + 8 * u + 4, 4), s)]
    MX = [216, 220]
    def maxops(u, j, first):
        b = sreg(u, j); m = MX[u]; o = []
        if j == 8: return []
        if j == 0:
            b8 = sreg(u, 8)
            o += ["v_cndmask_b32 v%d, v%d, v%d, s[%d:%d]" % (b + rho, b + rho, b8 + rho, 36 + 2 * rho, 37 + 2 * rho) for rho in range(16)]
            o += ["v_max3_f32 v%d, v%d, v%d, v%d" % (m, b, b + 1, b + 2), "v_max3_f32 v%d, v%d, v%d, v%d" % (m + 1, b + 3, b + 4, b + 5)]
            o += ["v_max3_f32 v%d, v%d, v%d, v%d" % (m + (i & 1), m + (i & 1), b + 6 + 2 * i, b + 7 + 2 * i) for i in range(5)]
        else:
            o += ["v_max3_f32 v%d, v%d, v%d, v%d" % (m + (i & 1), m + (i & 1), b + 2 * i, b + 2 * i + 1) for i in range(8)]
        return o
    def maxfin(u):
        m = MX[u]
        return ["v_max_f32 v%d, v%d, v%d" % (m, m, m + 1), "v_mov_b32 v%d, v%d" % (m + 1, m), "v_permlane32_swap_b32 v%d, v%d" % (m, m + 1),
                "v_max_f32 v%d, v%d, v%d" % (m, m, m + 1)] + (["v_mul_f32 v%d, s75, v%d" % (m, m), "v_mov_b32 v%d, v%d" % (m + 1, m)] if "qs" not in OPT else [])
    for n in (0, 8, 1, 2): k.extend(kread(n))
    rest = [3, 4, 5, 6, 7, 9]
    for i, j in enumerate(order):
        q = qk(0, j)
        k(q[0])
        if i < len(rest): k.extend(kread(rest[i]))
        k(q[1])
        if i >= 2: k.extend(maxops(0, order[i - 2], False))
    k.extend(qk(1, 0)); k.extend(maxops(0, order[7], False)); k.extend(qk(1, 8)); k.extend(maxops(0, order[8], False))
    k("@waitvm v\ns_barrier")
    k.srd(28, 4, WB)
    k.srd(32, 6, WB)
    pfl = [["buffer_load_dword a240, v229, s[28:31], s27 offen"]] + [["buffer_load_dword a%d, v229, s[32:35], s26 offen offset:%d" % (241 + j, 1792 * j)] for j in range(3)]
    if "nopf2" in OPT: pfl = []
    vr_list = [vread(n, s) for n in [0, 8, 1, 2, 3, 4, 5, 6, 7, 9] for s in range(2)]
    k.extend(vr_list[:6])
    k.extend(maxfin(0))
    stamp(k, "p2 s")
    vr_list = vr_list[6:]
    first = [True, True]
    def pv(u, j):
        o = []
        for s in range(2):
            a = ar(OA + 16 * u, 16)
            o.append("v_mfma_f32_32x32x16_bf16 %s, %s, %s, %s" % (a, ar(VF + 8 * (j + u) + 4 * s, 4), vr(sreg(u, j) + 4 * s, 4), "0" if first[u] else a))
            first[u] = False
        return o
    def expops(u, j):
        b = sreg(u, j); m = MX[u]; o = []
        for hf in range(2):
            if "qs" in OPT:
                for i in range(8): o.append("v_sub_f32 v%d, v%d, v%d" % (b + 8 * hf + i, b + 8 * hf + i, m))
            elif "pk" not in OPT:
                for i in range(8): o.append("v_fma_f32 v%d, v%d, s88, v%d" % (b + 8 * hf + i, b + 8 * hf + i, m))
            else:
                for i in range(0, 8, 2): o.append("v_pk_fma_f32 %s, %s, s[88:89], %s" % (vr(b + 8 * hf + i, 2), vr(b + 8 * hf + i, 2), vr(m, 2)))
            for i in range(8): o.append("v_exp_f32 v%d, v%d" % (b + 8 * hf + i, b + 8 * hf + i))
            for i in range(4): o.append("v_cvt_pk_bf16_f32 v%d, v%d, v%d" % (b + 4 * hf + i, b + 8 * hf + 2 * i, b + 8 * hf + 2 * i + 1))
        if j == 0:
            b8 = sreg(u, 8)
            for i in range(8): o += ["v_and_b32 v%d, v%d, v%d" % (b8 + i, b + i, MK + i), "v_xor_b32 v%d, v%d, v%d" % (b + i, b + i, b8 + i)]
        return o
    def outops(u):
        a = OA + 16 * u; t = 224 if u else 240
        o = ["v_accvgpr_read_b32 v2, a%d" % (a + 12), "v_rcp_f32 v2, v2"]
        o += ["v_accvgpr_read_b32 v%d, a%d" % (4 + i, a + i) for i in range(10)]
        o += ["v_mul_f32 v%d, v%d, v2" % (4 + i, 4 + i) for i in range(10)]
        o += ["v_cvt_pk_bf16_f32 v%d, v%d, v%d" % (t + i, 4 + 2 * i, 5 + 2 * i) for i in range(5)]
        o += ["buffer_store_dwordx4 %s, v%d, s[12:15], s69 offen offset:%d sc1 ;#o" % (vr(t, 4), VO1, 512 * u),
              "buffer_store_dword v%d, v%d, s[16:19], s70 offen offset:%d sc1 ;#o" % (t + 4, VO2, 128 * u)]
        return o
    steps = [0, 1, 2, 3, 4, 5, 6, 7]
    bq = {0: [1], 2: [2, 3], 3: [4], 4: [5], 5: [6], 6: [7]}
    bm = {0: [], 1: [0, 1], 3: [2, 3], 4: [4], 5: [5], 6: [6], 7: [7]}
    prev = []
    for e in steps:
        ops = expops(0, e)
        mf = list(prev)
        for j in bq.get(e, []): mf += qk(1, j)
        fill = {}
        if mf: spread(fill, mf, 2, len(ops) - 4)
        if vr_list: spread(fill, vr_list[:4], 0, 20); vr_list = vr_list[4:]
        NWO = XP.get("nwo", 8)
        if wo: spread(fill, wo[:NWO], 3, len(ops) - 1); wo = wo[NWO:]
        elif pfl: spread(fill, pfl[:2], 1, len(ops) - 1); pfl = pfl[2:]
        k.extend(weave(ops, fill))
        for j in bm.get(e, []): k.extend(maxops(1, j, False))
        prev = pv(0, 0) + pv(0, 8) if e == 0 else pv(0, e)
    k.extend(maxfin(1))
    for e in steps:
        ops = expops(1, e)
        fill = {}
        spread(fill, prev, 2, len(ops) - 4)
        k.extend(weave(ops, fill))
        if e == 1: o0 = outops(0); k.extend(o0[:-2])
        prev = pv(1, 0) + pv(1, 8) if e == 0 else pv(1, e)
    k.extend(o0[-2:])
    k.extend(prev)
    k.extend(outops(1))
    assert not wo
    stamp(k, "p2 st")

def p3(k):
    k("s_load_dwordx2 s[56:57], s[0:1], 0\ns_load_dwordx4 s[36:39], s[0:1], 48")
    k("s_lshl_b32 s30, s80, 2\ns_add_u32 s30, s30, s22\ns_lshl_b32 s30, s30, 12\ns_lshl_b32 s31, s81, 7\ns_add_u32 s30, s30, s31\ns_add_u32 s30, s30, %d" % F2)
    k("s_lshl_b32 s82, s81, 2\ns_add_u32 s82, s82, s22")
    k("v_and_b32 v6, 15, v1\nv_lshrrev_b32 v7, 4, v1")
    XR, BF, ACC, WV = 208, 16, 88, 112
    TA, TM = 220, 246
    k("s_mov_b32 s26, %d" % WOB)
    tr_addrs(k, TA, 1, "s26", 2)
    k("v_lshrrev_b32 v2, 2, v1\nv_lshlrev_b32 v2, 6, v2\nv_and_b32 v3, 3, v1\nv_lshl_add_u32 v2, v3, 3, v2\nv_bfe_u32 v3, v1, 4, 1")
    k("v_lshl_add_u32 v%d, v3, 5, v2\nv_add_u32 v%d, %d, v%d\nv_xor_b32 v%d, 32, v%d" % (TM, TM, WOB + 4096, TM, TM + 1, TM))
    k("v_mul_u32_u24 v10, 1152, v6\nv_lshl_add_u32 v10, v7, 3, v10\ns_mul_i32 s28, s82, %d\ns_add_u32 s29, s28, s73\ns_add_u32 s28, s28, s72" % (16 * 1152))
    k.extend(flag("o", 2, 250, "s30"))
    stamp(k, "p2 fl")
    k("s_waitcnt lgkmcnt(0)\ns_barrier")
    k("s_cmp_ge_u32 s2, 192\ns_cbranch_scc1 L_pf3")
    kp = K("tmp")
    kp("L_pf3:")
    kp("s_sub_u32 s23, s2, 192\ns_lshl_b32 s23, s23, 2\ns_add_u32 s23, s23, s22\ns_mul_i32 s23, s23, 20736\nv_lshlrev_b32 v2, 7, v1\nv_add_u32 v3, 8192, v2\nv_add_u32 v4, 16384, v2")
    kp.srd(8, 36, WB)
    kp("buffer_load_dword a240, v2, s[8:11], s23 offen\nbuffer_load_dword a241, v3, s[8:11], s23 offen")
    kp("s_mov_b32 exec_hi, 3\nbuffer_load_dword a242, v4, s[8:11], s23 offen\ns_mov_b64 exec, -1")
    p4_early(kp)
    kp("s_branch L_p4")
    SLOW.extend(i.text for i in kp.ins)
    k.srd(52, 56, X_BYTES)
    for T in range(6): k("buffer_load_dwordx2 %s, v10, s[52:55], s%d offen offset:%d" % (vr(XR + 2 * T, 2), 28 if T < 4 else 29, 32 * (T & 3)))
    def wreg(t, T, o=0, n=4):
        if t < 10: return ar(24 * t + 4 * T + o, n)
        if t < 14: return vr(WV + 24 * (t - 10) + 4 * T + o, n)
        return ar(24 * (t - 14) + 4 * T + o, n)
    def wread(t):
        o = []
        if t == 10: o += ["v_add_u32 v%d, 61440, v%d" % (q, q) for q in (TA, TA + 1, TA + 2, TA + 3, TM, TM + 1)]
        off = (t % 10) * 6144
        for T in range(6):
            for j in range(2):
                a, oo = (TA + T, off + 2048 * j) if T < 4 else (TM + T - 4, off + 1024 * j)
                o.append("ds_read_b64_tr_b16 %s, v%d offset:%d" % (wreg(t, T, 2 * j, 2), a, oo))
        return o
    NW0 = XP.get("nw0", 8)
    for t in range(NW0): k.extend(wread(t))
    k("v_lshl_add_u32 v8, v7, 11, v6\nv_lshlrev_b32 v8, 4, v8")
    k("v_lshl_add_u32 v9, v7, 13, v6\nv_lshlrev_b32 v9, 2, v9")
    k("s_lshl_b32 s84, s82, 8\ns_lshl_b32 s85, s82, 6")
    k("v_and_b32 v11, 31, v1\nv_lshlrev_b32 v11, 7, v11\ns_lshl_b32 s83, s81, 12\ns_add_u32 s83, s83, %d" % F2)
    k.srd(8, 20, H_BYTES, WS_H)
    k.srd(76, 20, ST_BYTES, WS_ST)
    k("s_mov_b32 s86, 0x3f803f80")
    k("s_mul_i32 s91, s82, 18432\ns_lshl_b32 s71, s73, 4\ns_add_u32 s71, s71, s91\ns_lshl_b32 s74, s72, 4\ns_add_u32 s91, s91, s74")
    k("s_lshl_b32 s74, s80, 14\ns_lshl_b32 s87, s82, 7\ns_add_u32 s74, s74, s87")
    k("s_lshl_b32 s101, s82, 10\ns_lshl_b32 s87, s80, 7\ns_add_u32 s101, s101, s87\ns_add_u32 s101, s101, %d" % F3)
    k("v_lshlrev_b32 v13, 4, v1\nv_lshlrev_b32 v14, 3, v1\nv_mov_b32 v2, 0x%x\nv_cmp_gt_u32 vcc, 16, v1\nv_cndmask_b32 v14, v2, v14, vcc" % BIG)
    if "early4" in OPT: p4_early(k)
    k.extend(poll(15, 11, "s83"))
    stamp(k, "p3 setup")
    k.extend(check("p3", 15, 11, "s83"))
    stamp(k, "p3 go")
    lds_ = []
    for t in range(18):
        if t < 16:
            lds_.append("s_nop 0\nbuffer_load_dwordx4 %s, v8, s[12:15], s84 offen sc1" % vr(BF + 4 * t, 4))
        else:
            for e in range(4):
                lds_.append("s_nop 0\nbuffer_load_dword v%d, v9, s[16:19], s85 offen sc1" % (BF + 4 * t + e))
    ke = K("tmp")
    if "early4" not in OPT: p4_early(ke)
    ext = []
    grp = []
    for i in ke.ins:
        grp.append(i.text)
        if not (i.op.startswith("s_cmp") or i.op in ("s_add_u32", "s_cselect_b32")): ext.append("\n".join(grp)); grp = []
    if grp: ext.append("\n".join(grp))
    for t in range(NW0, 14): ext += wread(t)
    steps = []
    for n, x in enumerate(lds_):
        inc = ("s84", 4 * 32768) if n < 16 else ("s85", 8192 if (n - 16) % 4 < 3 else 13 * 8192)
        steps.append(x.split("\n")[1] + "\ns_add_u32 %s, %s, %d" % (inc[0], inc[0], inc[1]))
    fill = {}
    if ext: spread(fill, ext, XP.get("ex0", 3), len(steps) - 1)
    k.extend(weave(steps, fill))
    main = []; fill = {}
    for t in range(18):
        for T in range(6):
            a = vr(ACC + 4 * T, 4)
            main.append("v_mfma_f32_16x16x32_bf16 %s, %s, %s, %s" % (a, wreg(t, T), vr(BF + 4 * t, 4), a if t else "0"))
    for t in range(14, 18): spread(fill, wread(t), 6 + 14 * (t - 14), 6 + 14 * (t - 14) + 11)
    fill.setdefault(6 * 14 - 1, []).extend(["@waitlds all", "s_barrier"])
    k.extend(weave(main, fill))
    stamp(k, "p3 mm")
    HO, TT = 16, 32
    k("v_mov_b32 v4, 0\nv_mov_b32 v5, 0")
    for T in range(6):
        for j in range(2): k("v_cvt_pk_bf16_f32 v%d, v%d, v%d" % (TT + 2 * T + j, ACC + 4 * T + 2 * j, ACC + 4 * T + 2 * j + 1))
    for T in range(6):
        for j in range(2):
            p = TT + 2 * T + j; a = ACC + 4 * T + 2 * j
            k("v_lshlrev_b32 v%d, 16, v%d\nv_and_b32 v%d, 0xffff0000, v%d" % (a, p, a + 1, p))
    for T in range(6):
        for j in range(2):
            a = ACC + 4 * T + 2 * j
            k("v_dot2c_f32_bf16 v%d, s88, v%d\nv_dot2c_f32_bf16 v%d, s89, v%d" % (a, XR + 2 * T + j, a + 1, XR + 2 * T + j))
    for T in range(6):
        for j in range(2): k("v_cvt_pk_bf16_f32 v%d, v%d, v%d" % (HO + 2 * T + j, ACC + 4 * T + 2 * j, ACC + 4 * T + 2 * j + 1))
        if T & 1:
            k("buffer_store_dwordx4 %s, v13, s[8:11], s%d offen offset:%d sc1 ;#h" % (vr(HO + 2 * T - 2, 4), 91 if T < 4 else 71, 1024 if T == 3 else 0))
    for i in range(12):
        k("v_dot2c_f32_bf16 v4, s86, v%d\nv_dot2c_f32_bf16 v5, v%d, v%d" % (HO + i, HO + i, HO + i))
    for sw in ("v_permlane16_swap_b32", "v_permlane32_swap_b32"):
        k("v_mov_b32 v2, v4\nv_mov_b32 v3, v5")
        k("%s v4, v2\n%s v5, v3" % (sw, sw))
        k("v_add_f32 v4, v4, v2\nv_add_f32 v5, v5, v3")
    k("buffer_store_dwordx2 v[4:5], v14, s[76:79], s74 offen sc1 ;#h")
    stamp(k, "p3 st")

XF4, GA4, UA4 = 16, 160, 192
VG, VM, VW, TA4, TM4, C1, C2, TMP, VS, TS = 224, 228, 232, 236, 240, 242, 244, 246, 254, 255
def p4_early(k):
    TA, TM = TA4, TM4
    if "map16" in OPT:
        k("s_lshr_b32 s23, s2, 4\ns_and_b32 s24, s2, 15")
    else:
        k("s_and_b32 s23, s2, 1\ns_lshl_b32 s23, s23, 3\ns_bfe_u32 s25, s2, 0x30003\ns_add_u32 s23, s23, s25")
        k("s_bfe_u32 s24, s2, 0x20001\ns_lshl_b32 s24, s24, 2\ns_lshr_b32 s25, s2, 6\ns_add_u32 s24, s24, s25")
    k("s_and_b32 s25, s24, 1\ns_mul_i32 s26, s24, 576\ns_lshl_b32 s27, s25, 6\ns_add_u32 s27, s27, s26")
    k("s_xor_b32 s25, s25, 1\ns_lshl_b32 s25, s25, 9\ns_add_u32 s28, s25, s26")
    k("s_lshl_b32 s29, s23, 3\ns_lshl_b32 s30, s22, 1\ns_add_u32 s29, s29, s30")
    dma_piece(k, 4, 1, 2)
    k("v_mul_u32_u24 v5, 9216, v2\nv_add_u32 v5, v5, v4")
    for a in range(4): k("v_add_u32 v%d, %d, v5" % (VG + a, a * (8 * 9216 - 1024)))
    k("s_mul_i32 s56, s22, %d\ns_add_u32 s56, s56, s27" % (64 * 9216))
    k("s_mul_i32 s57, s22, %d\ns_add_u32 s57, s57, s27\ns_add_u32 s57, s57, %d" % (8 * 9216, 256 * 9216))
    k("s_lshl_b32 s58, s22, 13\ns_lshl_b32 s59, s22, 10\ns_add_u32 s59, s59, 32768")
    k.srd(40, 4, WB)
    k.srd(44, 6, WB)
    k("s_lshl_b32 s30, s29, 7\ns_mul_i32 s31, s29, 18432")
    k.srd(48, 36, WB)
    k("s_cmp_lt_u32 s22, 2\ns_cselect_b32 s52, s40, s44\ns_cselect_b32 s53, s41, s45\ns_mov_b32 s54, 0x%x\ns_mov_b32 s55, 0x20000" % WB)
    k("v_mul_u32_u24 v5, 1152, v2\nv_add_u32 v5, v5, v4")
    for a in range(4): k("v_add_u32 v%d, %d, v5" % (VW + a, a * (8 * 1152 - 1024)))
    k("v_lshrrev_b32 v2, 2, v1\nv_mul_u32_u24 v5, 9216, v2\nv_bfe_u32 v3, v1, 4, 1\nv_lshlrev_b32 v3, 1, v3\nv_and_b32 v4, 3, v1\nv_xor_b32 v3, v3, v4\nv_lshl_add_u32 v5, v3, 4, v5")
    for a in range(4): k("v_add_u32 v%d, %d, v5" % (VM + a, a * (16 * 9216 - 1024)))
    k("s_mul_i32 s61, s22, 9216\ns_and_b32 s62, s22, 1\ns_mul_i32 s62, s62, %d\ns_add_u32 s62, s62, s28" % (144 * 9216))
    k("s_lshr_b32 s25, s24, 2\ns_and_b32 s26, s24, 3\ns_and_b32 s35, s26, 1\ns_mul_i32 s34, s26, 288")
    k("s_lshl_b32 s67, s35, 5\ns_add_u32 s33, s34, s67\ns_xor_b32 s67, s35, 1\ns_lshl_b32 s67, s67, 8\ns_add_u32 s34, s34, s67")
    k("s_and_b32 s67, s24, 12\ns_add_u32 s67, s67, s22\ns_mul_i32 s63, s67, 288\ns_and_b32 s67, s22, 1")
    k("s_xor_b32 s64, s67, 1\ns_lshl_b32 s64, s64, 8\ns_add_u32 s64, s64, s63\ns_lshl_b32 s67, s67, 5\ns_add_u32 s63, s63, s67")
    k("s_mul_i32 s67, s26, 288\ns_mul_i32 s63, s63, 1152\ns_add_u32 s63, s63, s67\ns_mul_i32 s64, s64, 1152\ns_add_u32 s64, s64, s67")
    k("v_lshrrev_b32 v2, 1, v1\nv_mul_u32_u24 v2, 1152, v2\nv_and_b32 v3, 1, v1\nv_lshl_add_u32 v2, v3, 4, v2")
    k("s_sub_u32 s60, s34, s67\nv_add_u32 v%d, s60, v2\ns_sub_u32 s60, s33, s67" % VS)
    for a in range(4): k("v_add_u32 v%d, s60, v%d" % (VW + a, VW + a))
    tr_addrs(k, TA, 1, None, 2)
    k("v_lshrrev_b32 v2, 2, v1\nv_lshlrev_b32 v2, 6, v2\nv_and_b32 v3, 3, v1\nv_lshl_add_u32 v2, v3, 3, v2\nv_bfe_u32 v3, v1, 4, 1")
    k("v_lshl_add_u32 v%d, v3, 5, v2\nv_xor_b32 v%d, 32, v%d" % (TM, TM + 1, TM))
    k("v_lshlrev_b32 v%d, 3, v1\nv_add_u32 v%d, 8192, v%d" % (TS, TS, TS))
    k("s_mov_b32 s88, 0x00003f80\ns_mov_b32 s89, 0x3f800000\ns_mov_b32 s65, 0x%x" % f2u(1.0 / D))
    k("s_lshl_b32 s67, s23, 4\ns_add_u32 s66, s67, s24\ns_lshl_b32 s66, s66, 2\ns_add_u32 s66, s66, s22\ns_mul_i32 s66, s66, 18432")
    k("s_and_b32 s68, s24, 12\ns_add_u32 s68, s68, s67\ns_lshl_b32 s68, s68, 2\ns_add_u32 s68, s68, s22\ns_mul_i32 s68, s68, 18432")
    k("s_lshl_b32 s69, s23, 2\ns_add_u32 s69, s69, s22\ns_lshl_b32 s69, s69, 11\ns_add_u32 s69, s69, %d\ns_and_b32 s70, s24, 12\ns_lshl_b32 s70, s70, 7\ns_add_u32 s70, s70, s69" % FH)
    k("s_lshl_b32 s67, s24, 7\ns_add_u32 s69, s69, s67")
    k("s_lshl_b32 s75, s29, 10\ns_add_u32 s75, s75, %d" % F3)

def p4(k):
    SLOT = 36864
    k("L_p4:")
    XF, GA, UA, TA, TM = XF4, GA4, UA4, TA4, TM4
    AF, HF = 0, 72
    stages = []
    for B in range(4): stages += [("G", B, 0), ("G", B, 1), ("U", B, 0), ("U", B, 1)]
    stages += [("M", 4, 0), ("M", 4, 1)]
    stages += [("D", c, 0) for c in range(9)]
    NS = len(stages)
    def dma(n):
        kind, B, kh = stages[n]
        sl = (n % 4) * SLOT
        o = []
        if kind in "GU":
            srd = "s[40:43]" if kind == "G" else "s[44:47]"
            off = 128 * B + kh * 288 * 9216
            for g in range(2):
                pre = ["s_add_u32 m0, s58, %d" % (sl + 4096 * g), "s_add_u32 s60, s56, %d" % (off + g * 32 * 9216)]
                for a in range(4):
                    o.append(pre + ["buffer_load_dwordx4 v%d, %s, s60 offen offset:%d lds ;#s%d" % (VG + a, srd, 1024 * a, n)]); pre = []
            o.append(["s_add_u32 m0, s59, %d" % sl, "s_add_u32 s60, s57, %d" % off, "buffer_load_dwordx4 v%d, %s, s60 offen lds ;#s%d" % (VG, srd, n)])
        elif kind == "M":
            for g in range(3):
                pre = ["s_add_u32 m0, s61, %d" % (sl + 4096 * g), "s_add_u32 s60, s62, %d" % (kh * 288 * 9216 + g * 64 * 9216)]
                for a in range(4 if g < 2 else 1):
                    o.append(pre + ["buffer_load_dwordx4 v%d, s[52:55], s60 offen offset:%d lds ;#s%d" % (VM + a, 1024 * a, n)]); pre = []
        else:
            base, off = ("s63", B * 32 * 1152) if B < 8 else ("s64", 0)
            for g in range(2):
                pre = ["s_add_u32 m0, s61, %d" % (sl + 4096 * g), "s_add_u32 s60, %s, %d" % (base, off + 128 * g)]
                for a in range(4):
                    o.append(pre + ["buffer_load_dwordx4 v%d, s[48:51], s60 offen offset:%d lds ;#s%d" % (VW + a, 1024 * a, n)]); pre = []
            o.append(["s_add_u32 m0, s61, %d" % (sl + 8192), "s_add_u32 s60, %s, %d" % (base, off),
                      "buffer_load_dwordx4 v%d, s[48:51], s60 offen lds ;#s%d" % (VS, n)])
        return o
    NPF = XP.get("npf", 2)
    dm = [x for n in range(NPF) for x in dma(n)]
    NB4 = XP.get("nb4", 4)
    for x in dm[:NB4]: k.extend(x)
    k("s_cmp_ge_u32 s2, 192\ns_cbranch_scc1 L_p4nf")
    k.extend(flag("h", 5, 250, "s101"))
    k("L_p4nf:")
    stamp(k, "p3 fl")
    for x in dm[NB4:]: k.extend(x)
    k("v_lshl_add_u32 v8, v7, 11, v6\nv_lshlrev_b32 v8, 3, v8\nv_lshlrev_b32 v9, 4, v1")
    k("v_add_u32 v12, 0x10000, v8\nv_mov_b32 v3, v250")
    k.srd(8, 20, ST_BYTES, WS_ST)
    k.srd(12, 20, H_BYTES, WS_H)
    k.srd(16, 38, X_BYTES)
    k("v_and_b32 v14, 7, v1\nv_min_u32 v14, 5, v14\nv_lshlrev_b32 v14, 7, v14\nv_bfe_u32 v15, v1, 3, 1\nv_lshl_add_u32 v14, v15, 10, v14")
    if "earlypoll" in OPT: k.extend(poll(13, 14, "s75"))
    touch_chain(k, "L_c4", 22)
    if "earlypoll" not in OPT: k.extend(poll(13, 14, "s75"))
    stamp(k, "p4 setup")
    k("s_waitcnt vmcnt(0)")
    k.extend(check("p4", 13, 14, "s75"))
    stamp(k, "p4 go")
    ST = UA
    for r in range(2):
        for j in range(2):
            k("buffer_load_dwordx2 %s, v%d, s[8:11], s30 offen offset:%d sc1" % (vr(ST + 6 * r + 2 * j, 2), (8, 12)[j], 128 * r))
    def xload(r, t):
        return ["s_add_u32 s32, s31, %d" % ((r * 18 + t) // 4 * 4096),
                "buffer_load_dwordx4 %s, v9, s[12:15], s32 offen offset:%d sc1" % (vr(XF + 72 * r + 4 * t, 4), ((r * 18 + t) % 4) * 1024)]
    NX0 = XP.get("nx0", 9)
    for t in range(NX0):
        for r in range(2): k.extend(xload(r, t))
    if XP.get("pf4", 0):
        k("s_lshl_b32 s67, s2, 2\ns_add_u32 s67, s67, s22\ns_mul_i32 s32, s67, 5184\nv_lshlrev_b32 v15, 7, v1\nv_mov_b32 v14, 0x%x" % BIG)
        k("v_cmp_gt_u32 vcc, 41, v1\nv_cndmask_b32 v15, v14, v15, vcc\ns_and_b32 s32, s32, 0xffffff80")
        k("v_mul_u32_u24 v2, 13, v1\nv_lshrrev_b32 v2, 6, v2\nv_mul_u32_u24 v4, 5, v2\nv_sub_u32 v4, v1, v4")
        k("v_cmp_lt_u32 vcc, 2, v4\nv_addc_co_u32 v5, vcc, v4, 2, vcc\nv_cmp_lt_u32 vcc, 2, v4\nv_addc_co_u32 v5, vcc, v5, 0, vcc")
        k("v_mul_u32_u24 v2, 9, v2\nv_add_u32 v2, v2, v5\nv_lshlrev_b32 v2, 7, v2\nv_cmp_gt_u32 vcc, 45, v1\nv_cndmask_b32 v2, v14, v2, vcc")
        k("s_lshr_b32 s60, s2, 0\ns_lshl_b32 s60, s60, 1\ns_and_b32 s67, s22, 1\ns_add_u32 s60, s60, s67\ns_mul_i32 s60, s60, %d" % (9 * 9 * 128))
        k("buffer_load_dword a200, v2, s[52:55], s60 offen\nbuffer_load_dword a201, v15, s[48:51], s32 offen")
    k("v_and_b32 v12, 3, v1\nv_lshlrev_b32 v12, 7, v12")
    k.srd(8, 20, HB_BYTES, WS_HB)
    for r in range(2):
        b = ST + 6 * r
        k("v_add_f32 v%d, v%d, v%d\nv_add_f32 v%d, v%d, v%d" % (b, b, b + 2, b + 1, b + 1, b + 3))
        for sw in ("v_permlane16_swap_b32", "v_permlane32_swap_b32"):
            k("v_mov_b32 v%d, v%d\nv_mov_b32 v%d, v%d" % (b + 2, b, b + 3, b + 1))
            k("%s v%d, v%d\n%s v%d, v%d" % (sw, b, b + 2, sw, b + 1, b + 3))
            k("v_add_f32 v%d, v%d, v%d\nv_add_f32 v%d, v%d, v%d" % (b, b, b + 2, b + 1, b + 1, b + 3))
        k("v_mul_f32 v%d, s65, v%d" % (b, b))
        k("v_mul_f32 v%d, v%d, v%d" % (b + 2, b, b))
        k("v_fma_f32 v%d, v%d, s65, -v%d" % (b + 1, b + 1, b + 2))
        k("v_max_f32 v%d, 0, v%d" % (b + 1, b + 1))
        bf16_round(k, b, b)
        k("v_sub_f32 v%d, 0, v%d" % (10 + r, b))
        bf16_round(k, b + 1, b + 1)
        k("v_add_f32 v%d, 0x%x, v%d" % (b + 1, f2u(1e-5), b + 1))
        bf16_round(k, b + 1, b + 1)
        k("v_sqrt_f32 v%d, v%d" % (b + 1, b + 1))
        bf16_round(k, b + 1, b + 1)
        k("v_mul_f32 v%d, v%d, v%d" % (C2 + r, b + 1, b + 1))
        k("v_rcp_f32 v%d, v%d" % (b + 1, b + 1))
        k("v_mul_f32 v%d, 0x%x, v%d" % (C1 + r, f2u(-LOG2E), b + 1))
    def center(r, t):
        x = XF + 72 * r + 4 * t
        o = []
        for c in range(4):
            o.append("v_dot2_f32_bf16 v%d, v%d, s88, v%d" % (TMP + 2 * c, x + c, 10 + r))
            o.append("v_dot2_f32_bf16 v%d, v%d, s89, v%d" % (TMP + 2 * c + 1, x + c, 10 + r))
        for c in range(4):
            o.append("v_cvt_pk_bf16_f32 v%d, v%d, v%d" % (x + c, TMP + 2 * c, TMP + 2 * c + 1))
        return o
    NPRE = XP["npre"]
    for t in range(NPRE):
        for r in range(2):
            if NX0 + t < 18: k.extend(xload(r, NX0 + t))
            k.extend(center(r, t))
    stamp(k, "p4 x")

    cur = {"TA": 0, "TM": 0, "TS": 0}
    def shift(name, regs, sl):
        pre = []
        if cur[name] != sl:
            d = (sl - cur[name]) * SLOT
            for q in regs:
                pre.append("v_add_u32 v%d, %d, v%d" % (q, d, q) if d > 0 else "v_subrev_u32 v%d, %d, v%d" % (q, -d, q))
            cur[name] = sl
        return pre
    tiles = []
    main = []
    DA = XF
    def hbuf(c): return HF + 32 * (c % 3)
    nt = 0
    for n in range(NS):
        kind, B, kh = stages[n]
        for T in range(9 if kind == "D" else 4):
            if kind == "D": nf = 4; f0 = AF + 16 * ((B * 9 + T) % 4)
            else: nf = 9; f0 = AF + 36 * (nt & 1)
            tiles.append(dict(n=n, T=T, g0=len(main), nf=nf, f0=f0, id=nt)); nt += 1
            for r in range(2):
                if kind == "G": a = GA + 8 * T + 4 * r
                elif kind == "U": a = UA + 8 * T + 4 * r
                elif kind == "M": a = (GA if T < 2 else UA) + 8 * (T & 1) + 4 * r
                else: a = DA + 8 * T + 4 * r
                a = vr(a, 4)
                for j in range(nf):
                    if kind == "D": b = ar(hbuf(B) + 8 * j + 4 * r, 4); first = (j == 0 and B == 0)
                    else: b = vr(XF + 72 * r + 4 * (9 * kh + j), 4); first = (j == 0 and kh == 0)
                    main.append("v_mfma_f32_16x16x32_bf16 %s, %s, %s, %s" % (a, ar(f0 + 4 * j, 4), b, "0" if first else a))
    NM = len(main)
    fill = {}
    load = [0.0] * (NM + 1)
    def put(g, items, cost=None):
        if isinstance(items, str): items = [items]
        fill.setdefault(g, []).extend(items)
        load[max(g, 0)] += len([x for x in items if not x.startswith("@") and not x.endswith(":")]) if cost is None else cost
    def frag_reads(t):
        n, T = t["n"], t["T"]; kind = stages[n][0]; sl = n % 4
        if kind == "M": pre = shift("TM", [TM, TM + 1], sl)
        elif kind == "D" and T == 8: pre = shift("TS", [TS], sl)
        else: pre = shift("TA", [TA + q for q in range(4)], sl)
        o = []
        for j in range(t["nf"]):
            for h in range(2):
                if kind == "M": a, off = TM + (T & 1), (T >> 1) * 18432 + j * 2048 + h * 1024
                elif kind == "D": a, off = (TA + (T & 3), j * 9216 + (T >> 2) * 4096 + h * 2048) if T < 8 else (TS, j * 9216 + h * 512)
                else: a, off = TA + T, j * 4096 + h * 2048
                o.append("ds_read_b64_tr_b16 %s, v%d offset:%d ;#f%d%s" % (ar(t["f0"] + 4 * j + 2 * h, 2), a, off, t["id"], "a" if (j < 4) else "b"))
        return pre, o
    pre, o = frag_reads(tiles[0])
    fill[-1] = ["s_barrier"] + pre + o
    first_d = [i for i, t in enumerate(tiles) if stages[t["n"]][0] == "D"][0]
    bar_gap = {}
    for i, t in enumerate(tiles):
        g0 = t["g0"]; kind = stages[t["n"]][0]
        put(g0 - 1, "@waitlds f%da" % t["id"], 1)
        if kind != "D":
            if t["T"] < 3: put(g0 + 3, "@waitlds f%db" % t["id"], 1)
            nxt = [i + 1] if i + 1 < first_d else [i + 1, i + 2]
            span = 16
        else:
            nxt = [i + 2] if i + 2 < len(tiles) else []
            span = 6
        if nxt and tiles[nxt[0]]["n"] != t["n"] and tiles[nxt[0]]["T"] == 0:
            ex = ["s_memtime s[94:95]", "s_waitcnt lgkmcnt(0)", "v_writelane_b32 v0, s94, %d" % (32 + t["n"])] if "st3" in OPT else []
            put(g0 - 1, ["@waitlds all", "@waitvm s%d" % (t["n"] + 1), "s_barrier"] + ex, 2)
            bar_gap[t["n"]] = g0
        rd = []
        for q in nxt:
            pre, o = frag_reads(tiles[q]); rd += [pre + o[:1]] + [[x] for x in o[1:]]
        for q, x in enumerate(rd): put(g0 + (q * span) // len(rd), x)
    def place(gs, lo, hi):
        for i, x in enumerate(gs): put(lo + (i * (hi - lo + 1)) // len(gs), x)
    early = []
    for n in range(NPF, 4): early += dma(n)
    if early: place(early, 1, 52)
    for n in range(NS - 4): place(dma(n + 4), bar_gap[n] + 2, bar_gap[n] + 52)
    work = []
    for t in range(NPRE, 18):
        for r in range(2):
            work.append(dict(e=0, dl=72 + 9 * r + (t - 9) - 3 if t >= 9 else 0, ops=[(x, 1.3) for x in center(r, t)], key=("x", t, r), hard=True))
    def done_gap(n, T, r): return n * 72 + T * 18 + 9 * r + 8
    for B in range(5):
        if B < 4: nG, nU, nt_, u0 = 4 * B + 1, 4 * B + 3, 4, 2 * B
        else: nG, nU, nt_, u0 = 17, 17, 2, 8
        nxt = nU + 1
        for T in range(nt_):
            for r in range(2):
                g = GA + 8 * T + 4 * r; u = UA + 8 * T + 4 * r
                e = done_gap(nG, T, r) + 3
                eu = done_gap(nU, T if B < 4 else T + 2, r) + 3
                if B < 3: dl = (nxt * 4 + T) * 18 + 9 * r - 2
                elif B == 3: dl = (nxt * 4 + T) * 18 + 9 * r - 2 if T < 2 else (nxt * 4 + 2) * 18 - 2
                else: dl = eu + 6
                t0 = TMP
                ops = []
                for b in range(4): ops.append(("v_mul_f32 v%d, v%d, v%d" % (t0 + b, C1 + r, g + b), 1))
                for b in range(4): ops.append(("v_exp_f32 v%d, v%d" % (t0 + b, t0 + b), 2))
                for b in range(4): ops.append(("v_fma_f32 v%d, v%d, v%d, v%d" % (t0 + b, t0 + b, C2 + r, C2 + r), 1))
                for b in range(4): ops.append(("v_rcp_f32 v%d, v%d" % (t0 + b, t0 + b), 2))
                for b in range(4): ops.append(("v_mul_f32 v%d, v%d, v%d" % (g + b, g + b, t0 + b), 1))
                work.append(dict(e=e, dl=max(eu - 1, e + 8) if B < 4 else eu, ops=ops, key=("s", B, T, r)))
                ops = [("v_mul_f32 v%d, v%d, v%d" % (u + b, u + b, g + b), 1) for b in range(4)]
                work.append(dict(e=eu, dl=dl, ops=ops, key=("m", B, T, r), after=[("s", B, T, r)], hard=True))
                ue = UA + 8 * (T & ~1) + 4 * r
                ops = [("v_cvt_pk_bf16_f32 v%d, v%d, v%d" % (ue + 2 * (T & 1) + j, u + 2 * j, u + 2 * j + 1), 1) for j in range(2)]
                aft = [("m", B, T, r)]
                if T & 1:
                    aft.append(("c", B, T - 1, r))
                    ops.append(("s_add_u32 s67, s66, %d\nbuffer_store_dwordx4 %s, v9, s[8:11], s67 offen sc1 ;#h%d" % (((u0 + (T >> 1)) * 2 + r) * 1024, vr(ue, 4), B), 2))
                if B < 3: dl2 = (nxt + 1) * 72 + 10 + 8 * T + 4 * r
                elif B == 3: dl2 = (nxt * 4 + 2) * 18 - 4
                else: dl2 = eu + 10
                work.append(dict(e=eu, dl=dl2, ops=ops, key=("c", B, T, r), after=aft, hard=True))
    FLG = 13
    def hloads(c):
        o = []
        for a in range(4):
            o.append(["s_add_u32 s27, s68, %d" % (a * 73728 + c * 2048), "buffer_load_dwordx4 %s, v9, s[8:11], s27 offen sc1" % ar(hbuf(c) + 8 * a, 4)])
            o.append(["buffer_load_dwordx4 %s, v9, s[8:11], s27 offen offset:1024 sc1" % ar(hbuf(c) + 8 * a + 4, 4)])
        return o
    adv = lambda r: ["s_add_u32 %s, %s, 0x20000" % (r, r)]
    put(14 * 72 + 30, flag("h2", 4, 3, "s69") + adv("s69"))
    put(17 * 72 + 40, flag("h3", 4, 3, "s69") + adv("s69"))
    put(19 * 72 + 20, flag("h4", 4, 3, "s69"))
    put(15 * 72 + 40, poll(FLG, 12, "s70")); put(16 * 72 + 4, check("a", FLG, 12, "s70", False) + adv("s70"), 4)
    put(20 * 72 + 10, poll(FLG, 12, "s70")); put(21 * 72 + 2, check("b", FLG, 12, "s70", False) + adv("s70"), 4)
    put(22 * 72 + 60, poll(FLG, 12, "s70")); put(23 * 72 + 60, check("c", FLG, 12, "s70", False), 4)
    for c in range(9): place(hloads(c), (16 + c) * 72 + 8, (16 + c) * 72 + 66)
    QS, SEL, HR, PL, OO = 96, 136, GA, 200, 140
    g26 = 26 * 72
    sel = ["v_lshrrev_b32 v2, 1, v6", "v_and_b32 v5, 1, v6", "v_lshlrev_b32 v5, 4, v5", "v_mov_b32 v8, 0x3f80", "v_lshlrev_b32 v5, v5, v8"]
    for q in range(4): sel += ["v_cmp_eq_u32 vcc, %d, v2" % q, "v_cndmask_b32 v%d, 0, v5, vcc" % (SEL + q)]
    setup = sel + [
        "s_lshl_b32 s29, s23, 2", "s_add_u32 s29, s29, s26", "s_lshl_b32 s29, s29, 2", "s_add_u32 s71, s29, s22", "s_add_u32 s72, s29, s25",
        "s_lshl_b32 s73, s71, 9", "s_lshl_b32 s75, s72, 9",
        "s_mul_i32 s71, s71, 36", "s_add_u32 s71, s71, s25", "s_lshl_b32 s71, s71, 10",
        "s_mul_i32 s72, s72, 36864", "s_lshl_b32 s29, s22, 8", "s_add_u32 s72, s72, s29",
        "s_lshl_b32 s29, s25, 7", "s_add_u32 s73, s73, s29", "s_add_u32 s73, s73, %d" % FP, "s_add_u32 s75, s75, %d" % FP,
        "s_lshl_b32 s29, s23, 2", "s_add_u32 s29, s29, s25", "s_mul_i32 s90, s29, 36864", "s_mul_i32 s32, s29, %d" % (32 * 1152),
        "s_lshl_b32 s29, s22, 8", "s_add_u32 s90, s90, s29",
        "s_lshr_b32 s29, s34, 6", "s_lshl_b32 s29, s29, 10", "s_add_u32 s91, s90, s29", "s_lshl_b32 s29, s35, 3", "s_add_u32 s91, s91, s29",
        "s_lshl_b32 s29, s33, 4", "s_add_u32 s90, s90, s29",
        "s_lshl_b32 s29, s22, 3", "s_add_u32 s32, s32, s29", "s_add_u32 s31, s32, s33", "s_add_u32 s30, s32, s34",
        "v_lshlrev_b32 v14, 4, v6", "v_mov_b32 v2, 0x%x" % BIG, "v_cmp_gt_u32 vcc, 32, v1",
        "v_lshl_add_u32 v10, v7, 3, v14", "v_mul_u32_u24 v11, 18432, v7", "v_add_u32 v11, v11, v14", "v_lshl_add_u32 v14, v7, 10, v14",
        "v_cndmask_b32 v10, v2, v10, vcc", "v_cndmask_b32 v11, v2, v11, vcc",
        "v_mul_u32_u24 v15, 1152, v6", "v_mul_u32_u24 v8, 1152, v1", "v_lshl_add_u32 v15, v7, 5, v15",
        "v_cndmask_b32 v15, v2, v15, vcc", "v_cndmask_b32 v8, v2, v8, vcc"]
    place([[x] for x in setup], 19 * 72 + 30, 20 * 72 + 60)
    put(21 * 72 + 30, ["s_add_u32 s40, s20, 0x%x" % WS_P2, "s_addc_u32 s41, s21, 0", "s_and_b32 s41, s41, 0xffff", "s_mov_b32 s42, 0x%x" % P2_BYTES, "s_mov_b32 s43, 0x20000"])
    hl = []
    for q in range(9):
        if q < 8: hl.append(["s_add_u32 s67, s90, %d" % ((q & 1) * 18432 + (q >> 1) * 1024), "buffer_load_dwordx2 %s, v10, s[12:15], s67 offen sc1" % vr(HR + 4 * q + 2, 2)])
        else: hl.append(["buffer_load_dwordx2 %s, v11, s[12:15], s91 offen sc1" % vr(HR + 4 * q + 2, 2)])
    place(hl, 24 * 72 + 4, 24 * 72 + 68)
    for q in range(9):
        h = HR + 4 * q
        ops = ["v_lshlrev_b32 v%d, 16, v%d" % (h, h + 2), "v_and_b32 v%d, 0xffff0000, v%d" % (h + 1, h + 2),
               "v_lshlrev_b32 v%d, 16, v%d" % (h + 2, h + 3), "v_and_b32 v%d, 0xffff0000, v%d" % (h + 3, h + 3)]
        work.append(dict(e=25 * 72 + 40 + q, dl=g26 + 40, ops=[(x, 1) for x in ops], key=("h", q)))
    for T in range(9):
        for r in range(2):
            a = DA + 8 * T + 4 * r
            q = 2 * (T >> 1) + r if T < 8 else 8
            o = QS + 4 * q + (2 * (T & 1) if T < 8 else 2 * r)
            e = g26 + 8 * T + 4 * r + 3 + 3
            ops = [("v_cvt_pk_bf16_f32 v%d, v%d, v%d" % (o + j, a + 2 * j, a + 2 * j + 1), 1) for j in range(2)]
            aft = []
            if (T < 8 and T & 1) or (T == 8 and r == 1):
                aft = [("d", T - 1, r)] if T < 8 else [("d", 8, 0)]
                ops.append(("s_add_u32 s67, s71, %d\nbuffer_store_dwordx4 %s, v9, s[40:43], s67 offen sc1 ;#p" % (q * 4096, vr(QS + 4 * q, 4)), 2))
            work.append(dict(e=e, dl=e + 4, ops=ops, key=("d", T, r), after=aft))
    put(18 * 72 - 1, stamp_ops("p4 A"), 0)
    put(XP.get("csplit", 11) * 72, ["L_s4:"], 0)
    tail, done = edf_place(work, fill, load, NM, XP["cap"] / 100.0)
    body = []
    for x in weave(main, fill): body += x.split("\n")
    if "xvalu" in OPT: body = [x for x in body if not re.match(r"v_(mul_f32|exp|fma_f32|rcp)", x)]
    if "xdma" in OPT: body = [x for x in body if " lds" not in x]
    if "xds" in OPT: body = [x for x in body if not x.startswith("ds_read")]
    if "xb128" in OPT:
        nb = []
        for x in body:
            m = re.match(r"ds_read_b64_tr_b16 a\[(\d+):\d+\], (v\d+) (offset:\d+)(.*)", x)
            if m:
                a = int(m.group(1))
                if a % 4 == 0: nb.append("ds_read_b128 a[%d:%d], v9 %s%s" % (a, a + 3, m.group(3), m.group(4)))
            else: nb.append(x)
        body = nb
    if "xswap" in OPT:
        nb = []
        for x in body:
            m = re.match(r"(v_mfma\S+ \S+), (\S+), (\S+), (.*)", x)
            nb.append("%s, %s, %s, %s" % (m.group(1), m.group(3), m.group(2), m.group(4)) if m else x)
        body = nb
    if "xmfma" in OPT: body = [x for x in body if not x.startswith("v_mfma")]
    k.extend(body); k.extend(tail)
    stamp(k, "p4 D")
    k.extend(flag("p", 4, 3, "s73"))
    stamp(k, "p4 fl")
    spin(k, "p5", FLG, 12, "s75", False)
    stamp(k, "p4 go2")
    for q in range(9):
        k("s_add_u32 s67, s72, %d" % (q * 4096))
        k("buffer_load_dwordx4 %s, v14, s[40:43], s67 offen sc1" % vr(PL + 4 * q, 4))
    fix = lambda ops: [o.replace("s[96:99]", "s[16:19]") for o in ops]
    for q in range(9):
        k("v_mfma_f32_16x16x32_bf16 %s, %s, %s, %s" % (vr(HR + 4 * q, 4), vr(SEL, 4), vr(PL + 4 * q, 4), vr(HR + 4 * q, 4)))
        if q >= 2: k.extend(fix(_outq(q - 2, HR, OO)))
    k.extend(fix(_outq(7, HR, OO))); k.extend(fix(_outq(8, HR, OO)))

def build(path):
    k = K(NAME); k.vgpr = 256; k.agpr = 256; k.sgpr = 102
    k.page_align = True
    k("L_main:\nL_s1:\ns_cmp_ge_u32 s2, 256\ns_cbranch_scc1 L_exit")
    k("s_load_dwordx4 s[4:7], s[0:1], 0\ns_load_dwordx2 s[92:93], s[0:1], 64\ns_load_dwordx2 s[20:21], s[0:1], 72")
    k("v_and_b32 v1, 63, v0\nv_lshrrev_b32 v2, 6, v0")
    k("v_readfirstlane_b32 s22, v2\ns_mov_b32 s100, 400000")
    if "stamp" in OPT: k("v_mov_b32 v0, 0")
    stamp(k, "start")
    p1(k)
    k("L_s2:")
    p2(k)
    k("L_s3:")
    p3(k)
    p4(k)
    if "stamp" in OPT:
        k("s_waitcnt vmcnt(0)")
        stamp(k, "end")
        k.srd(76, 20, 1 << 22, WS_TS)
        k("s_lshl_b32 s75, s2, 2\ns_add_u32 s75, s75, s22\ns_lshl_b32 s75, s75, 8\nv_lshlrev_b32 v2, 2, v1")
        k("buffer_store_dword v0, v2, s[76:79], s75 offen")
        if "dbgst" in OPT:
            sel = XP.get("sel") or ["start", "p1 x", "p1 ln", "p1 mm", "p1 fl", "p2 go", "p2 st", "p3 go", "p3 fl", "p4 go", "p4 x", "p4 A", "p4 D", "p4 go2", "end"]
            k("v_mov_b32 v4, 0")
            for j, n in enumerate(sel):
                k("v_readlane_b32 s75, v0, %d" % STAMPS.index(n))
                if j == 0: k("s_not_b32 s75, s75")
                k("v_writelane_b32 v4, s75, %d" % (j + 1))
            k.srd(76, 92, 256)
            k("s_mov_b32 exec_hi, 0\ns_mov_b32 exec_lo, 0xfffe")
            k("buffer_atomic_umax v4, v2, s[76:79], 0 offen sc1")
    k("L_exit:\ns_endpgm\n@reset")
    kp = K("tmp")
    kp.srd(96, 20, FL_BYTES, WS_FL)
    prefetch_wg(kp)
    k.extend(SLOW)
    k("L_s5:\nL_pf0:\n@reset")
    k.ins += kp.ins
    k("L_code_end:")
    add_page_stubs(k, "L_main", [("L_c1", "L_s1", "L_s2"), ("L_c2", "L_s2", "L_s3"), ("L_c3", "L_s3", "L_s4"), ("L_c4", "L_s4", "L_s5")], base=XP.get("base", 768))
    hdr = """Pre-LN transformer block (sliding-window attention + SwiGLU FFN), S=2048 D=576 H=32 F=4608, bf16.
One persistent launch, one workgroup per CU; phases hand data over through d_ws with per-launch tagged flags.
Generated by work/gen2.py.  Kernarg: x, wqkv, wo, (unused), w_gate, w_up, w_down, out, dbg, ws."""
    txt = program([(k, 256, 256, 163840)], [k], hdr)
    if "single" in OPT:
        txt = txt.replace("; @launch kernel=%s grid" % NAME, "; @launch grid")
    open(path, "w").write(txt)
    print(k.stats, len(txt), "bytes")
    import json
    json.dump(STAMPS, open(path[:-2] + ".stamps.json", "w"))

if __name__ == "__main__":
    OPT.update(sys.argv[2:])
    for a in sys.argv[2:]:
        if "=" in a: XP[a.split("=")[0]] = int(a.split("=")[1])
    build(sys.argv[1])
```

```python
import sys, struct, re
from asmgen import *
from gen import edf_place, tr_addrs, dma_piece, bf16_round, f2u, LOG2E, _outq

S, D, F, NQKV, NH, DH = 2048, 576, 4608, 1728, 32, 18
NAME = "sequential_preLN__sliding_block__swiglu_ffn__prompt_kernel"
CGS = 16384 + 128
WS_Z, Z_BYTES = 0, 432 * CGS
import os
OPS = int(os.environ.get("OPS", 32768 + 1024 + 256))
O2S = int(os.environ.get("O2S", 8192 + 256))
WS_OP, OP_BYTES = 0x700000, 64 * OPS
WS_O2, O2_BYTES = 0x940000, 32 * O2S
WS_H, H_BYTES = 0xA00000, 128 * 18 * 1024
WS_ST, ST_BYTES = 0xD00000, 6 * 2048 * 8
WS_FL, FL_BYTES = 0xE00000, 0xE0080
WS_HB, HB_BYTES = 0x1000000, 256 * 73728
WS_P2, P2_BYTES = 0x2400000, 256 * 53248
WS_TS = 0x4000000
F1, F2, F3, FH, FP, FEPOCH = 0, 0x20000, 0x40000, 0x60000, 0xC0000, 0xE0000
X_BYTES = S * D * 2
WB = D * F * 2
BIG = 0x7fff0000
OPT = set()
OPT.update(['msub', 'wo1', 'ownh', 'split'])
XP = dict(npre=18, dr0=17, drs=3, cap=300, slp=0, wearly=0, wj=5, nwe=0, nw0=14, nx0=6)
SLOW = []
NSTAMP = [0]
STAMPS = []

def stamp(k, name):
    if "stamp" not in OPT: return
    k("s_memrealtime s[94:95]\ns_waitcnt lgkmcnt(0)\nv_writelane_b32 v0, s94, %d" % NSTAMP[0])
    STAMPS.append(name); NSTAMP[0] += 1
def stamp_ops(name):
    if "stamp" not in OPT: return []
    o = ["s_memrealtime s[94:95]", "s_waitcnt lgkmcnt(0)", "v_writelane_b32 v0, s94, %d" % NSTAMP[0]]
    STAMPS.append(name); NSTAMP[0] += 1
    return o

def poll(vflag, vaddr, soff):
    return ["buffer_load_dword v%d, v%d, s[96:99], %s offen sc1" % (vflag, vaddr, soff)]
def check(name, vflag, vaddr, soff, gate=True, ptmp=None):
    slp = ["s_sleep %d" % XP["slp"]] if XP.get("slp") else []
    if "pipe" in OPT and ptmp is not None:
        t = ptmp
        SLOW.extend(["L_slow_%s:" % name, "s_mov_b64 exec, vcc"] + poll(vflag, vaddr, soff) + ["s_nop 15", "s_nop 15", "s_nop 15", "s_nop 15", "L_loop_%s:" % name] +
                    poll(t, vaddr, soff) + ["s_waitcnt vmcnt(1)", "v_cmp_ne_u32 vcc, s3, v%d" % vflag, "s_nop 4", "s_cbranch_vccz L_out_%s" % name] +
                    poll(vflag, vaddr, soff) + ["s_waitcnt vmcnt(1)", "v_cmp_ne_u32 vcc, s3, v%d" % t, "s_sub_u32 s100, s100, 1", "s_cbranch_scc1 L_out_%s" % name, "s_nop 2",
                     "s_cbranch_vccnz L_loop_%s" % name, "L_out_%s:" % name, "s_mov_b64 exec, -1", "s_branch L_back_%s" % name])
    elif "gate" not in OPT:
        one = ["s_ff1_i32_b64 s94, vcc", "s_lshl_b64 exec, 1, s94"] if False else ["s_mov_b64 exec, vcc"]
        SLOW.extend(["L_slow_%s:" % name] + one + slp + poll(vflag, vaddr, soff) + ["s_waitcnt vmcnt(0)", "v_cmp_ne_u32 vcc, s3, v%d" % vflag,
                     "s_sub_u32 s100, s100, 1", "s_cbranch_scc1 L_out_%s" % name, "s_nop 2", "s_cbranch_vccnz L_slow_%s" % name,
                     "L_out_%s:" % name, "s_mov_b64 exec, -1", "s_branch L_back_%s" % name])
    elif gate:
        SLOW.extend(["L_slow_%s:" % name, "s_ff1_i32_b64 s94, vcc", "s_lshl_b64 exec, 1, s94", "L_gate_%s:" % name] + poll(vflag, vaddr, soff) +
                    ["s_waitcnt vmcnt(0)", "v_cmp_ne_u32 vcc, s3, v%d" % vflag, "s_sub_u32 s100, s100, 1", "s_cbranch_scc1 L_full_%s" % name, "s_nop 2",
                     "s_cbranch_vccz L_full_%s" % name] + slp + ["s_branch L_gate_%s" % name, "L_full_%s:" % name, "s_mov_b64 exec, -1"] + poll(vflag, vaddr, soff) +
                    ["s_waitcnt vmcnt(0)", "v_cmp_ne_u32 vcc, s3, v%d" % vflag, "s_sub_u32 s100, s100, 1", "s_cbranch_scc1 L_back_%s" % name, "s_nop 2",
                     "s_cbranch_vccnz L_slow_%s" % name, "s_branch L_back_%s" % name])
    else:
        SLOW.extend(["L_slow_%s:" % name] + poll(vflag, vaddr, soff) + ["s_waitcnt vmcnt(0)", "v_cmp_ne_u32 vcc, s3, v%d" % vflag,
                     "s_sub_u32 s100, s100, 1", "s_cbranch_scc1 L_back_%s" % name, "s_nop 2", "s_cbranch_vccz L_back_%s" % name] + slp + ["s_branch L_slow_%s" % name])
    return ["v_cmp_ne_u32 vcc, s3, v%d" % vflag, "s_nop 4", "s_cbranch_vccnz L_slow_%s" % name, "L_back_%s:" % name]
def spin(k, name, vflag, vaddr, soff, gate=True, ptmp=None):
    k.extend(poll(vflag, vaddr, soff))
    k("s_waitcnt vmcnt(0)")
    k.extend(check(name, vflag, vaddr, soff, gate, ptmp))
def flag(tag, vtmp, vlane0, soff):
    return ["@waitvm " + tag, "v_mov_b32 v%d, s3" % vtmp, "buffer_store_dword v%d, v%d, s[96:99], %s offen sc1" % (vtmp, vlane0, soff)]
def lane0(k, dst, tmp):
    k("v_mov_b32 v%d, 0x%x\nv_cmp_eq_u32 vcc, 0, v1\nv_cndmask_b32 v%d, v%d, v1, vcc" % (tmp, BIG, dst, tmp))

def get_tag(k, vt, issued):
    k("v_readfirstlane_b32 s3, v%d" % vt)
    k("s_cmp_eq_u32 s3, 0\ns_cbranch_scc1 L_tagslow_%s\nL_tagback_%s:" % (issued, issued))
    SLOW.extend(["L_tagslow_%s:" % issued, "v_mov_b32 v%d, 0" % vt, "global_load_dword v%d, v%d, s[92:93] sc1" % (vt, vt), "s_waitcnt vmcnt(0)",
                 "v_readfirstlane_b32 s3, v%d" % vt, "s_sub_u32 s100, s100, 1", "s_cbranch_scc1 L_tagback_%s" % issued,
                 "s_cmp_eq_u32 s3, 0", "s_cbranch_scc1 L_tagslow_%s" % issued, "s_branch L_tagback_%s" % issued])

def prefetch_wg(k):
    k("L_pf:")
    k("s_load_dwordx2 s[8:9], s[0:1], 16\ns_load_dwordx4 s[12:15], s[0:1], 32\ns_load_dwordx2 s[16:17], s[0:1], 48")
    k("s_sub_u32 s23, s2, 224\ns_lshl_b32 s24, s23, 2\ns_add_u32 s24, s24, s22")
    k("v_lshlrev_b32 v2, 7, v1")
    if "nopfq" not in OPT:
        k.srd(28, 6, D * NQKV * 2)
        k("s_mul_i32 s25, s24, 15616")
        k("buffer_load_dword v10, v2, s[28:31], s25 offen\ns_add_u32 s25, s25, 8192\nbuffer_load_dword v11, v2, s[28:31], s25 offen")
    k("s_cmp_lg_u32 s24, 0\ns_cbranch_scc1 L_pf_notag")
    k("v_mov_b32 v4, %d\nbuffer_load_dword v5, v4, s[96:99], 0 offen sc1\ns_waitcnt vmcnt(0)" % FEPOCH)
    k("v_add_u32 v5, 1, v5\nv_max_u32 v5, 1, v5\nv_mov_b32 v6, 0")
    k("global_store_dword v6, v5, s[92:93] sc1\nbuffer_store_dword v5, v4, s[96:99], 0 offen sc1")
    k("L_pf_notag:")
    k("s_getpc_b64 s[32:33]\nL_pc:\ns_sub_u32 s32, s32, L_pc-L_main\ns_subb_u32 s33, s33, 0")
    k("s_lshr_b32 s25, s23, 3\ns_lshl_b32 s25, s25, 2\ns_add_u32 s25, s25, s22\ns_lshl_b32 s25, s25, 13")
    k("v_add_u32 v3, s25, v2\ns_mov_b32 s25, L_code_end-L_main-4\nv_min_u32 v3, s25, v3")
    if "nocode" not in OPT: k("global_load_dword v12, v3, s[32:33]")
    k("s_waitcnt vmcnt(0) lgkmcnt(0)")
    k.srd(28, 8, D * D * 2)
    k("s_mul_i32 s25, s24, 5248\nv_cmp_gt_u32 vcc, 41, v1\nv_mov_b32 v4, 0x%x\nv_cndmask_b32 v4, v4, v2, vcc\nbuffer_load_dword v10, v4, s[28:31], s25 offen" % BIG)
    k("s_waitcnt vmcnt(0)")
    k.srd(28, 12, WB)
    k("s_lshl_b32 s25, s24, 15")
    for j in range(4):
        k("buffer_load_dword v%d, v2, s[28:31], s25 offen\ns_add_u32 s25, s25, 8192" % (11 + j))
    ND1 = XP.get("nd1", 0)
    if ND1:
        k.srd(28, 16, WB)
        k("s_mul_i32 s25, s24, %d" % (8192 * ND1))
        for j in range(ND1):
            k("buffer_load_dword v%d, v2, s[28:31], s25 offen\ns_add_u32 s25, s25, 8192" % (16 + j))
    lane0(k, 250, 2)
    p2_scalar(k)
    k("v_mov_b32 v248, 0\nglobal_load_dword v248, v248, s[92:93] sc1\ns_waitcnt vmcnt(0)")
    get_tag(k, 248, "pf")
    k("s_branch L_p2v")

_tc = touch_chain
def touch_chain(k, name, w):
    if 'notouch' in OPT: k('%s_ret:' % name)
    else: _tc(k, name, w)

def p1(k):
    XL, RING, STL = 0, 73728, 73728 + 4 * 20480
    if "map47" in OPT:
        k("s_lshr_b32 s23, s2, 5")
        k("s_and_b32 s24, s2, 7\ns_lshl_b32 s24, s24, 2\ns_bfe_u32 s25, s2, 0x20003\ns_add_u32 s24, s24, s25")
    else:
        k("s_and_b32 s26, s2, 1\ns_lshl_b32 s26, s26, 2\ns_lshr_b32 s23, s2, 6\ns_add_u32 s23, s23, s26")
        k("s_bfe_u32 s24, s2, 0x30003\ns_bfe_u32 s25, s2, 0x20003\ns_add_u32 s25, s25, s26")
        k("s_cmp_ge_u32 s2, 192\ns_cselect_b32 s23, 3, s23\ns_cselect_b32 s24, s25, s24")
        k("s_bfe_u32 s25, s2, 0x20001\ns_lshl_b32 s25, s25, 3\ns_add_u32 s24, s24, s25")
    k("s_lshl_b32 s25, s23, 2\ns_add_u32 s25, s25, s22")
    k("v_lshrrev_b32 v3, 3, v1\nv_and_b32 v4, 7, v1")
    k("v_mul_u32_u24 v5, 1152, v3\nv_lshl_add_u32 v5, v4, 4, v5")
    k("s_lshl_b32 s26, s24, 6\ns_lshl_b32 s27, s22, 4\ns_add_u32 s26, s26, s27\ns_mul_i32 s26, s26, 1152")
    k("v_add_u32 v15, %d, v5" % (8 * 1152))
    k("s_and_b32 s27, s24, 3\ns_mul_i32 s27, s27, 5\ns_lshr_b32 s27, s27, 1")
    if "norot" in OPT: k("s_mov_b32 s27, 0")
    VD = 251
    k("v_lshrrev_b32 v6, 2, v3\nv_lshlrev_b32 v6, 3, v6\nv_and_b32 v7, 3, v3\nv_add_u32 v6, v6, v7")
    k("v_mul_u32_u24 v6, 3456, v6")
    k("v_lshrrev_b32 v7, 1, v3\nv_lshlrev_b32 v7, 1, v7\nv_xor_b32 v7, v7, v4\nv_lshl_add_u32 v6, v7, 4, v6")
    base = [0, 16, 4, 20]
    for a in range(4):
        k("v_add_u32 v%d, %d, v6" % (VD + a, base[a] * 3456 - a * 1024))
    k("s_lshl_b32 s30, s25, 7\ns_mul_i32 s28, s27, %d\ns_add_u32 s28, s28, s30\ns_add_u32 s31, s30, %d" % (64 * 3456, 576 * 3456))
    k("s_lshl_b32 s27, s27, 7\ns_add_u32 s27, s27, s26\ns_add_u32 s101, s26, 1152")
    k("s_mul_i32 s29, s22, 20480\ns_add_u32 s29, s29, %d" % RING)
    k("s_waitcnt lgkmcnt(0)")
    stamp(k, "karg")
    k("s_cmp_ge_u32 s2, 224\ns_cbranch_scc1 L_pf0")
    k.srd(8, 4, X_BYTES)
    XR = 16
    for j in range(9):
        for h in range(2):
            k("buffer_load_dwordx4 %s, v%d, s[8:11], s27 offen" % (vr(XR + (h * 9 + j) * 4, 4), (5, 15)[h]))
        if j < 8: k("s_add_u32 s27, s27, 128\ns_cmp_eq_u32 s27, s101\ns_cselect_b32 s27, s26, s27")
    k("s_mov_b32 s26, s30\ns_mov_b32 s27, s31")
    k.srd(12, 6, D * NQKV * 2)
    def dma(t):
        o = ["s_add_u32 m0, s29, %d" % ((t % 5) * 4096)]
        for a in range(4):
            o.append("buffer_load_dwordx4 v%d, s[12:15], s28 offen offset:%d lds ;#w%d" % (VD + a, 1024 * a, t))
        o.append("s_add_u32 s28, s28, %d\ns_cmp_eq_u32 s28, s27\ns_cselect_b32 s28, s26, s28" % (32 * 3456))
        return o
    WEARLY = XP.get("wearly", 0)
    for t in range(WEARLY): k.extend(dma(t))
    k.srd(96, 20, FL_BYTES, WS_FL)
    if "c1late" in OPT:
        k("s_getpc_b64 s[32:33]\nv_lshlrev_b32 v7, 5, v1\ns_lshl_b32 s34, s22, 11\ns_add_u32 s34, s34, 2048\nv_add_u32 v7, s34, v7\nglobal_load_dword v249, v7, s[32:33]")
    elif "c1first" not in OPT: touch_chain(k, "L_c1", 22)
    p2_scalar(k)
    k.srd(16, 20, Z_BYTES, WS_Z)
    k("s_lshr_b32 s30, s22, 1\ns_lshl_b32 s30, s30, 1")
    k("v_lshrrev_b32 v7, 5, v1\nv_add_u32 v7, s30, v7\nv_mul_u32_u24 v7, 18, v7")
    k("v_lshrrev_b32 v10, 2, v4\nv_add_u32 v7, v7, v10\nv_lshlrev_b32 v7, 10, v7")
    k("v_and_b32 v10, 3, v4\nv_lshl_add_u32 v7, v10, 8, v7")
    k("s_and_b32 s30, s22, 1\ns_lshl_b32 s30, s30, 3")
    k("v_and_b32 v10, 3, v3\nv_add_u32 v10, s30, v10")
    k("v_xor_b32 v11, v10, v4\nv_lshl_add_u32 v8, v11, 4, v7")
    k("v_add_u32 v10, 4, v10\nv_xor_b32 v11, v10, v4\nv_lshl_add_u32 v9, v11, 4, v7")
    k("v_and_b32 v10, 15, v1\nv_lshrrev_b32 v11, 4, v1")
    k("v_xor_b32 v12, v10, v11\nv_lshlrev_b32 v12, 4, v12\nv_lshl_add_u32 v247, v11, 8, v12")
    tr_addrs(k, 240, 1, "s29", 12)
    k("s_mov_b32 s31, %d" % CGS)
    k("v_lshrrev_b32 v12, 2, v10\nv_mul_lo_u32 v12, v12, s31\nv_lshl_add_u32 v12, v11, 6, v12\nv_and_b32 v13, 3, v10\nv_lshl_add_u32 v244, v13, 4, v12")
    k("s_cmp_ge_u32 s25, 27\ns_cselect_b32 s30, 0x%x, 0\nv_add_u32 v244, s30, v244" % BIG)
    k("v_lshlrev_b32 v245, 5, v11\nv_add_u32 v245, %d, v245" % STL)
    k("s_lshl_b32 s30, s22, 6\ns_add_u32 s30, s30, %d\nv_lshl_add_u32 v246, v3, 2, s30" % STL)
    lane0(k, 250, 12)
    k("s_mov_b32 s32, 0x3f803f80\ns_mov_b32 s33, 0x00003f80\ns_mov_b32 s34, 0x3f800000\ns_mov_b32 s35, 0x%x" % f2u(1.0 / D))
    T0 = 88
    winit = []
    for t in range(WEARLY, 5):
        d = dma(t); winit += [d[:2], d[2:3], d[3:4], d[4:]]
    for i in range(8): k("v_mov_b32 v%d, 0" % (T0 + i))
    if "c1first" in OPT:
        k("v_mov_b32 v249, v249")
        touch_chain(k, "L_c1", 22)
    for j in range(9):
        for c in range(4):
            for h in range(2):
                k("v_dot2c_f32_bf16 v%d, s32, v%d" % (T0 + 2 * h + (c & 1), XR + (h * 9 + j) * 4 + c))
                if "varold" not in OPT:
                    x = XR + (h * 9 + j) * 4 + c
                    k("v_dot2c_f32_bf16 v%d, v%d, v%d" % (T0 + 4 + 2 * h + (c & 1), x, x))
        if j == 0 and "c1late" in OPT: touch_chain(k, "L_c1", 22)
        jw = j - XP.get("wj", 1)
        if jw >= 0:
            for _ in range(XP.get("wa", 1)):
                if winit: k.extend(winit.pop(0))
        if j == 0: stamp(k, "p1 x0")
    stamp(k, "p1 x")
    k("v_add_f32 v%d, v%d, v%d\nv_add_f32 v%d, v%d, v%d" % (T0, T0, T0 + 1, T0 + 2, T0 + 2, T0 + 3))
    for ctl in ("quad_perm:[1,0,3,2]", "quad_perm:[2,3,0,1]", "row_half_mirror"):
        for r in (T0, T0 + 2):
            k("v_add_f32_dpp v%d, v%d, v%d %s row_mask:0xf bank_mask:0xf" % (r, r, r, ctl))
    for h in range(2):
        r = T0 + 2 * h
        k("v_mul_f32 v%d, s35, v%d" % (r, r))
        bf16_round(k, r + 1, r)
        if "varold" in OPT: k("v_sub_f32 v%d, v%d, v%d" % (r, r, r + 1))
        k("v_sub_f32 v%d, 0, v%d" % (r + 1, r + 1))
    WF = 208
    def wreg(t, T): return ar(16 * t + 4 * T, 4) if t < 16 else vr(WF + 16 * (t - 16) + 4 * T, 4)
    def wreg2(t, T, j): return ar(16 * t + 4 * T + 2 * j, 2) if t < 16 else vr(WF + 16 * (t - 16) + 4 * T + 2 * j, 2)
    def drain(t):
        return ["@waitvm w%d" % t] + ["ds_read_b64_tr_b16 %s, v%d offset:%d ;#d%d" % (wreg2(t, T, j), 240 + T, (t % 5) * 4096 + j * 2048, t) for T in range(4) for j in range(2)]
    def refill(t):
        return (["@waitlds d%d" % t] + dma(t + 5)) if t + 5 < 18 else []
    T1 = T0 + 8
    nd = 0
    g = 0
    VARPOS = len(k.ins)
    for j in range(9):
        for h in range(2):
            x = XR + (h * 9 + j) * 4
            for c in range(4):
                k("v_dot2_f32_bf16 v%d, v%d, s33, v%d" % (T1 + 2 * c, x + c, T0 + 2 * h + 1))
                k("v_dot2_f32_bf16 v%d, v%d, s34, v%d" % (T1 + 2 * c + 1, x + c, T0 + 2 * h + 1))
            for c in range(4):
                k("v_cvt_pk_bf16_f32 v%d, v%d, v%d" % (x + c, T1 + 2 * c, T1 + 2 * c + 1))
            k("ds_write_b128 v%d, %s offset:%d" % (8 + h, vr(x, 4), XL + 2048 * j))
            g += 1
            for _ in range(XP.get("wb", 1)):
                if winit: k.extend(winit.pop(0))
            if g >= XP["dr0"]: assert not winit
            if g > XP["dr0"] and (g - 1 - XP["dr0"]) % XP["drs"] == 0: k.extend(refill(nd - 1))
            if g >= XP["dr0"] and (g - XP["dr0"]) % XP["drs"] == 0 and g < 18: k.extend(drain(nd)); nd += 1
    var = []
    for j in range(9):
        for c in range(4):
            for h in range(2):
                x = XR + (h * 9 + j) * 4 + c
                if "varold" in OPT: var.append("v_dot2c_f32_bf16 v%d, v%d, v%d" % (T0 + 4 + 2 * h + (c & 1), x, x))
    var += ["v_add_f32 v%d, v%d, v%d" % (T0 + 4, T0 + 4, T0 + 5), "v_add_f32 v%d, v%d, v%d" % (T0 + 6, T0 + 6, T0 + 7)]
    for ctl in ("quad_perm:[1,0,3,2]", "quad_perm:[2,3,0,1]", "row_half_mirror"):
        for r in (T0 + 4, T0 + 6):
            var.append("v_add_f32_dpp v%d, v%d, v%d %s row_mask:0xf bank_mask:0xf" % (r, r, r, ctl))
    rnd = lambda r: ["v_cvt_pk_bf16_f32 v%d, v%d, v%d" % (r, r, r), "v_and_b32 v%d, 0xffff0000, v%d" % (r, r)]
    for h in range(2):
        r = T0 + 4 + 2 * h; dl = T0 + 2 * h
        var += ["v_mul_f32 v%d, v%d, v%d" % (dl, dl, dl), "v_fma_f32 v%d, v%d, s35, -v%d" % (r, r, dl), "v_max_f32 v%d, 0, v%d" % (r, r)] + rnd(r)
        var += ["v_add_f32 v%d, 0x%x, v%d" % (r, f2u(1e-5), r)] + rnd(r) + ["v_sqrt_f32 v%d, v%d" % (r, r)] + rnd(r)
        var += ["v_rcp_f32 v%d, v%d" % (r, r), "ds_write_b32 v246, v%d offset:%d" % (r, 32 * h)]
    if "varold" in OPT: k.extend(var)
    else:
        body = k.ins[VARPOS:]; k.ins = k.ins[:VARPOS]
        step = max(1, (len(body) - 20) // len(var)); vi = 0
        for n, ins in enumerate(body):
            k.ins.append(ins)
            if n % step == step - 1 and vi < len(var) and not ins.op.startswith("s_"): k(var[vi]); vi += 1
        k.extend(var[vi:])
    k("v_mov_b32 v10, v247\nv_xor_b32 v11, 64, v247\nv_add_u32 v12, 36864, v10\nv_add_u32 v13, 36864, v11")
    k("@waitlds all\ns_barrier")
    stamp(k, "p1 ln")
    X2, ACC1, XF1, RR = 16, 160, 192, 2
    def xa(r, t): return "v%d offset:%d" % (10 + (t & 1) + 2 * (r >> 1), XL + ((r & 1) * 18 + t) * 1024)
    def x1reads(t): return ["ds_read_b128 %s, %s" % (vr(XF1 + 8 * (t & 1) + 4 * r, 4), xa(r, t)) for r in range(2)]
    def x2reads(t): return ["ds_read_b128 %s, %s" % (vr(X2 + 72 * r + 4 * t, 4), xa(r + 2, t)) for r in range(2)]
    k.extend(x1reads(0))
    main = []; fill = {}
    for t in range(18):
        g0 = 8 * t
        for u in range(8):
            T, r = u >> 1, u & 1
            a = vr(ACC1 + 8 * T + 4 * r, 4)
            main.append("v_mfma_f32_16x16x32_bf16 %s, %s, %s, %s" % (a, vr(XF1 + 8 * (t & 1) + 4 * r, 4), wreg(t, T), a if t else "0"))
        if t + 1 < 18: spread(fill, x1reads(t + 1), g0, g0 + 1)
        spread(fill, x2reads(t), g0 + 6, g0 + 7)
        if nd < 18:
            d = drain(nd)
            spread(fill, [d[:2]] + d[2:], g0 + 2, g0 + 5)
            rf = refill(nd)
            if rf:
                for q, x in enumerate([rf[:3], rf[3:4], rf[4:5], rf[5:]]): fill.setdefault(g0 + 8 + 2 * q, []).extend(x)
            nd += 1
    assert nd == 18
    fill.setdefault(8 * 12, []).extend(["v_mov_b32 v248, 0", "global_load_dword v248, v248, s[92:93] sc1"])
    def rread(h): return ["ds_read_b128 %s, v245 offset:%d" % (vr(RR + 4 * r, 4), 128 * h + 16 * r) for r in range(2)]
    QS_ = "msub" in OPT or "qs" in OPT
    def rscale(): return ["v_mul_f32 v%d, s31, v%d" % (RR + i, RR + i) for i in range(8)] if QS_ else []
    if QS_: fill.setdefault(8 * 16, []).append("s_cmp_lt_u32 s25, 9\ns_cselect_b32 s31, s88, 1.0")
    spread(fill, rread(0), 8 * 17, 8 * 17 + 1)
    fill.setdefault(8 * 17 + 2, []).append("s_mul_i32 s28, s25, %d\ns_lshl_b32 s30, s24, 9\ns_add_u32 s28, s28, s30" % (16 * CGS))
    def epi(a, T, h):
        o = []
        for r in range(2):
            o += ["v_mul_f32 v%d, v%d, v%d" % (a + 4 * r + b, a + 4 * r + b, RR + 4 * r + b) for b in range(4)]
        o += ["v_cvt_pk_bf16_f32 v%d, v%d, v%d" % (a + j, a + 2 * j, a + 2 * j + 1) for j in range(4)]
        o.append("s_add_u32 s30, s28, %d\nbuffer_store_dwordx4 %s, v244, s[16:19], s30 offen offset:%d sc1 ;#z" % (4 * T * CGS, vr(a, 4), 256 * h))
        return o
    G2 = len(main)
    if "stamp" in OPT: fill.setdefault(G2 - 1, []).extend(stamp_ops("p1 m1"))
    for T in range(4):
        for r in range(2):
            a = vr(XF1 + 8 * (T & 1) + 4 * r, 4)
            for t in range(18):
                main.append("v_mfma_f32_16x16x32_bf16 %s, %s, %s, %s" % (a, vr(X2 + 72 * r + 4 * t, 4), wreg(t, T), a if t else "0"))
    e1 = rscale()
    for T in range(4): e1 += epi(ACC1 + 8 * T, T, 0)
    spread(fill, e1 + rread(1), G2 + 2, G2 + 33)
    if QS_: spread(fill, rscale(), G2 + 35, G2 + 38)
    for T in range(3): spread(fill, epi(XF1 + 8 * (T & 1), T, 1), G2 + 36 * (T + 1) + 3, G2 + 36 * (T + 1) + 20)
    if "wo1" in OPT:
        kw = K("tmp"); wo_offsets(kw, "main", 10)
        fill.setdefault(G2 + 1, []).extend(["@waitlds all", "s_barrier"])
        spread(fill, [i.text for i in kw.ins], G2 + 2, G2 + 20)
        spread(fill, wo_dmas()[:24], G2 + XP.get("wo0", 24), G2 + XP.get("wo9", 120))
    k.extend(weave(main, fill))
    stamp(k, "p1 mm")
    k.extend(epi(XF1 + 8, 3, 1))
    get_tag(k, 248, "p1")
    k("s_lshl_b32 s30, s24, 12\ns_lshl_b32 s31, s25, 7\ns_add_u32 s30, s30, s31")
    stamp(k, "p1 st")
    k("L_p2v:")
    p2_vector(k)
    k("s_cmp_ge_u32 s2, 224\ns_cbranch_scc1 L_p2")
    k.extend(flag("z", 2, 250, "s30"))
    stamp(k, "p1 fl")

WOB = 53248
KB, VB, AUX, QB = 0, 20800, 41600, WOB + 16 * 6144
AK1, AK3, AQ1, AQ3, AV, VO1, VO2 = 232, 233, 234, 235, 236, 237, 238
VD2, VE2, VH2, VHE2 = 240, 244, 251, 253
MK = 208
KF, VF, QF, OA = 0, 80, 160, 176
def p2_scalar(k):
    k("s_load_dwordx2 s[90:91], s[0:1], 16")
    k("s_lshr_b32 s80, s2, 5")
    k("s_and_b32 s81, s2, 7\ns_lshl_b32 s81, s81, 2\ns_bfe_u32 s68, s2, 0x20003\ns_add_u32 s81, s81, s68")
    k("s_mul_i32 s68, s81, 18\ns_and_b32 s82, s68, 3\ns_lshr_b32 s68, s68, 2")
    k("s_add_u32 s83, s68, 144\ns_mul_i32 s83, s83, %d" % CGS)
    k("s_lshl_b32 s84, s80, 1\ns_add_u32 s84, s84, s22\ns_cmp_lt_u32 s84, 2\ns_cselect_b32 s69, 0, 2\ns_sub_u32 s84, s84, s69")
    k("s_lshl_b32 s84, s84, 10\ns_add_u32 s83, s83, s84\ns_lshl_b32 s84, s22, 10")
    k("s_mul_i32 s85, s68, %d\ns_lshl_b32 s69, s80, 11\ns_add_u32 s85, s85, s69\ns_lshl_b32 s87, s22, 9\ns_add_u32 s85, s85, s87" % CGS)
    k("s_mul_i32 s86, s22, 3072\ns_add_u32 s86, s86, %d" % QB)
    k("v_lshrrev_b32 v12, 5, v1\nv_lshlrev_b32 v12, 3, v12\nv_and_b32 v13, 31, v1\nv_sub_u32 v12, v13, v12")
    for rho in range(16):
        a, b = rho >> 2, rho & 3
        k("v_cmp_le_i32 s[%d:%d], %d, v12" % (36 + 2 * rho, 37 + 2 * rho, 16 * (a >> 1) + 4 * (a & 1) + b))
    k("s_lshl_b32 s68, s80, 8\ns_lshl_b32 s69, s22, 6\ns_add_u32 s68, s68, s69")
    k("s_mul_i32 s69, s81, %d\ns_lshl_b32 s70, s68, 4\ns_add_u32 s69, s69, s70" % (2 * OPS))
    k("s_mul_i32 s70, s81, %d\ns_lshl_b32 s68, s68, 2\ns_add_u32 s70, s70, s68" % O2S)
    k("s_mul_i32 s72, s80, 192\ns_and_b32 s73, s80, 1\ns_lshl_b32 s74, s73, 6\ns_xor_b32 s73, s73, 1\ns_lshl_b32 s73, s73, 7")
    k("s_add_u32 s73, s73, s72\ns_add_u32 s72, s72, s74")
    k("s_lshl_b32 s71, s80, 1\ns_lshr_b32 s74, s22, 1\ns_add_u32 s71, s71, s74\ns_cmp_eq_u32 s71, 0\ns_cselect_b32 s71, 0xff7fff7f, 0")
    c = LOG2E * DH ** -0.5
    k("s_mov_b32 s75, 0x%x\ns_mov_b32 s88, 0x%x\ns_mov_b32 s89, s88" % (f2u(-c), f2u(c)))
    k("s_waitcnt lgkmcnt(0)")
    k.srd(76, 90, D * D * 2)
    k("s_cmp_ge_u32 s2, 192\ns_cselect_b32 s78, 0, s78")
    k("s_mul_i32 s90, s22, %d\ns_mul_i32 s91, s22, 6144\ns_add_u32 s91, s91, %d" % (36 * 1152, WOB))

def p2_vector(k):
    touch_chain(k, "L_c2", 22)
    k("v_lshrrev_b32 v2, 3, v1\ns_lshl_b32 s28, s80, 2\ns_cmp_eq_u32 s80, 0\ns_cselect_b32 s29, 3, 7\ns_cselect_b32 s27, 0, 4\ns_sub_u32 s28, s28, s27")
    k("v_and_b32 v2, s29, v2\nv_add_u32 v2, s28, v2\nv_lshlrev_b32 v2, 12, v2\ns_mul_i32 s27, s81, 18")
    k("v_and_b32 v3, 7, v1\nv_min_u32 v3, 5, v3\nv_and_b32 v4, 1, v3\nv_mul_u32_u24 v4, 17, v4\nv_add_u32 v4, s27, v4\nv_lshrrev_b32 v4, 6, v4")
    k("v_lshrrev_b32 v3, 1, v3\nv_mul_u32_u24 v3, 9, v3\nv_add_u32 v3, v3, v4\nv_lshl_add_u32 v14, v3, 7, v2")
    k("v_lshlrev_b32 v3, 4, v1")
    k("v_lshrrev_b32 v5, 5, v1\nv_mul_u32_u24 v4, %d, v5\nv_and_b32 v10, 31, v1\nv_lshl_add_u32 v4, v10, 4, v4\nv_lshlrev_b32 v15, 4, v10" % CGS)
    k("v_bfe_u32 v6, v1, 4, 1\nv_bfe_u32 v7, v1, 2, 2\nv_and_b32 v8, 3, v1")
    k("v_and_b32 v9, 1, v8\nv_lshl_add_u32 v9, v6, 1, v9\nv_lshlrev_b32 v9, 6, v9\nv_lshrrev_b32 v11, 1, v8\nv_lshl_add_u32 v9, v11, 3, v9")
    k("v_lshrrev_b32 v13, 1, v8\nv_lshl_add_u32 v13, v6, 1, v13\nv_lshlrev_b32 v13, 6, v13\nv_and_b32 v11, 1, v8\nv_lshl_add_u32 v13, v11, 3, v13")
    k("v_lshl_add_u32 v11, v5, 3, v7\nv_add_u32 v11, s82, v11")
    k("v_lshrrev_b32 v12, 2, v11\nv_and_b32 v11, 3, v11\nv_lshlrev_b32 v11, 4, v11")
    k("v_mul_u32_u24 v2, 4160, v12\nv_add3_u32 v2, v2, v11, v9\nv_add_u32 v%d, s87, v2" % AK1)
    k("v_lshl_add_u32 v2, v12, 9, v11\nv_add3_u32 v%d, v2, v13, s86" % AQ1)
    k("v_min_u32 v11, 1, v7\nv_add_u32 v11, s82, v11\nv_lshlrev_b32 v11, 4, v11")
    k("v_add3_u32 v2, v11, v9, s87\nv_add_u32 v2, %d, v2\nv_add_u32 v12, s87, v9\nv_add_u32 v12, %d, v12" % (4 * 4160, AUX))
    k("v_cmp_gt_u32 vcc, 2, v7\nv_cndmask_b32 v%d, v12, v2, vcc" % AK3)
    k("v_add3_u32 v2, v11, v13, s86\nv_add_u32 v%d, 2048, v2" % AQ3)
    k("v_add_u32 v11, s82, v10\nv_lshrrev_b32 v12, 2, v11\nv_and_b32 v11, 3, v11")
    k("v_mul_u32_u24 v12, 4160, v12\nv_lshl_add_u32 v12, v11, 4, v12\nv_add_u32 v12, %d, v12" % VB)
    k("v_mov_b32 v11, %d\nv_cmp_gt_u32 vcc, 18, v10\nv_cndmask_b32 v12, v11, v12, vcc" % (AUX + 16))
    k("v_lshl_add_u32 v12, v5, 6, v12\nv_add_u32 v%d, s87, v12" % AV)
    k("v_mul_u32_u24 v%d, %d, v5\nv_lshl_add_u32 v%d, v10, 4, v%d" % (VO1, OPS, VO1, VO1))
    k("v_lshlrev_b32 v2, 2, v10\nv_mov_b32 v6, 0x%x\nv_cmp_gt_u32 vcc, 32, v1\nv_cndmask_b32 v%d, v6, v2, vcc" % (BIG, VO2))

def wo_offsets(k, which, t=6):
    VD, VE, VH, VHE = VD2, VE2, VH2, VHE2
    a, b, c, d = t, t + 1, t + 2, t + 3
    dma_piece(k, b, 1, c)
    if which != "ext":
        k("v_mul_u32_u24 v%d, 1152, v%d\nv_add_u32 v%d, v%d, v%d" % (a, c, a, a, b))
        un = [0, 18, 8, 26]
        for q in range(4): k("v_add_u32 v%d, %d, v%d" % (VD + q, un[q] * 1152 - q * 1024, a))
    if which != "main":
        k("v_lshrrev_b32 v{a}, 2, v{c}\nv_lshlrev_b32 v{a}, 2, v{a}\nv_bfe_u32 v{d}, v{c}, 1, 1\nv_add_u32 v{a}, v{a}, v{d}\nv_mul_u32_u24 v{a}, 18, v{a}\nv_and_b32 v{d}, 1, v{c}\nv_add_u32 v{a}, v{a}, v{d}".format(a=a, c=c, d=d))
        k("v_mul_u32_u24 v%d, 1152, v%d\nv_add_u32 v%d, v%d, v%d" % (a, a, a, a, b))
        ue = [16, 18 * 8 + 16, 18 * 2 + 16, 18 * 10 + 16]
        for q in range(4): k("v_add_u32 v%d, %d, v%d" % (VE + q, ue[q] * 1152 - q * 1024, a))
    k("v_lshrrev_b32 v{c}, 2, v1\nv_bfe_u32 v{b}, v1, 4, 1\nv_lshlrev_b32 v{b}, 1, v{b}\nv_and_b32 v{d}, 3, v1\nv_xor_b32 v{b}, v{b}, v{d}\nv_lshlrev_b32 v{b}, 4, v{b}".format(b=b, c=c, d=d))
    if which != "ext":
        k("v_lshrrev_b32 v{a}, 3, v{c}\nv_mul_u32_u24 v{a}, 18, v{a}\nv_and_b32 v{d}, 7, v{c}\nv_add_u32 v{a}, v{a}, v{d}\nv_mul_u32_u24 v{a}, 1152, v{a}\nv_add_u32 v{h}, v{a}, v{b}".format(a=a, b=b, c=c, d=d, h=VH))
        k("v_add_u32 v%d, %d, v%d" % (VH + 1, 8 * 1152 - 1024, VH))
    if which != "main":
        k("v_lshrrev_b32 v{a}, 2, v{c}\nv_lshlrev_b32 v{a}, 2, v{a}\nv_bfe_u32 v{d}, v{c}, 1, 1\nv_add_u32 v{a}, v{a}, v{d}\nv_mul_u32_u24 v{a}, 18, v{a}\nv_and_b32 v{d}, 1, v{c}\nv_add3_u32 v{a}, v{a}, v{d}, 16".format(a=a, c=c, d=d))
        k("v_mul_u32_u24 v%d, 1152, v%d\nv_add_u32 v%d, v%d, v%d\nv_add_u32 v%d, %d, v%d" % (a, a, VHE, a, b, VHE + 1, 36 * 1152 - 1024, VHE))

def wo_dmas():
    VD, VE, VH, VHE = VD2, VE2, VH2, VHE2
    wo = []
    for rnd in range(5):
        vb, vh = (VD, VH) if rnd < 4 else (VE, VHE)
        pre = []
        if rnd == 4:
            pre = ["s_and_b32 s90, s22, 1", "s_mul_i32 s91, s90, 6144", "s_add_u32 s91, s91, %d" % WOB, "s_mul_i32 s90, s90, %d" % (18 * 16 * 1152)]
        pre += ["s_add_u32 m0, s91, %d" % (rnd * 4 * 6144), "s_add_u32 s101, s90, s72"]
        for a in range(4):
            wo.append(pre + ["buffer_load_dwordx4 v%d, s[76:79], s101 offen offset:%d lds ;#wo" % (vb + a, 1024 * a)]); pre = []
        pre = ["s_add_u32 m0, s91, %d" % (rnd * 4 * 6144 + 4096), "s_add_u32 s101, s90, s73"]
        for a in range(2):
            wo.append(pre + ["buffer_load_dwordx4 v%d, s[76:79], s101 offen offset:%d lds ;#wo" % (vh + a, 1024 * a)]); pre = []
        if rnd < 3: wo[-1].append("s_add_u32 s90, s90, %d" % (4 * 36 * 1152))
    return wo

def p2(k):
    SCO = 16
    k("L_p2:\n@reset")
    k.srd(8, 20, Z_BYTES, WS_Z)
    k.srd(12, 20, OP_BYTES, WS_OP)
    k.srd(16, 20, O2_BYTES, WS_O2)
    k("s_barrier")
    k("v_and_b32 v2, 3, v1\nv_lshl_add_u32 v6, v1, 4, s84")
    k("v_mov_b32 v7, s71\nv_mov_b32 v8, 0x3f803f80\nv_cmp_eq_u32 vcc, 0, v2\nv_cndmask_b32 v8, v8, v7, vcc")
    k("v_mov_b32 v9, v8\nv_mov_b32 v10, v8\nv_mov_b32 v11, v8")
    k("ds_write_b128 v6, v[8:11] offset:%d" % AUX)
    kw = K("tmp"); wo_offsets(kw, "ext" if "wo1" in OPT else "both"); k.ins += kw.ins
    wo = wo_dmas()
    if "wo1" in OPT: wo = wo[24:]
    if "earlypoll" in OPT: k.extend(poll(16, 14, "0"))
    NWE = XP.get("nwe", 24)
    for x in wo[:NWE]: k.extend(x)
    wo = wo[NWE:]
    k("v_mov_b32 v12, 0xffff\nv_mov_b32 v13, 0xffff0000")
    for i in range(8):
        k("v_cndmask_b32 v2, 0, v12, s[%d:%d]\nv_cndmask_b32 v6, 0, v13, s[%d:%d]\nv_or_b32 v%d, v2, v6" % (36 + 4 * i, 37 + 4 * i, 38 + 4 * i, 39 + 4 * i, MK + i))
    for n in range(10): k("v_accvgpr_write_b32 a%d, 0\nv_accvgpr_write_b32 a%d, 0" % (KF + 8 * n + 6, KF + 8 * n + 7))
    for u in range(2): k("v_accvgpr_write_b32 a%d, 0\nv_accvgpr_write_b32 a%d, 0" % (QF + 8 * u + 6, QF + 8 * u + 7))
    k("v_mov_b32 v2, 0x3f80\nv_cmp_gt_u32 vcc, 32, v1\nv_cndmask_b32 v2, 0, v2, vcc\nv_accvgpr_write_b32 a%d, v2\nv_accvgpr_write_b32 a%d, v2" % (QF + 5, QF + 13))
    if "msub" in OPT:
        k("v_accvgpr_write_b32 a209, v2\nv_mov_b32 v6, 0x3f803f80\nv_cndmask_b32 v6, 0, v6, vcc\nv_accvgpr_write_b32 a208, v6")
        for a in (210, 211, 214, 215, 218, 219): k("v_accvgpr_write_b32 a%d, 0" % a)
    touch_chain(k, "L_c3", 22)
    if "earlypoll" not in OPT: k.extend(poll(16, 14, "0"))
    stamp(k, "p2 setup")
    k.extend(check("p2", 16, 14, "0", ptmp=17))
    stamp(k, "p2 go")
    k("s_mov_b32 m0, s86")
    k("buffer_load_dwordx4 v4, s[8:11], s85 offen sc1 lds ;#q")
    k("s_add_u32 m0, s86, 1024\ns_add_u32 s85, s85, %d" % (2 * CGS))
    k("buffer_load_dwordx4 v4, s[8:11], s85 offen sc1 lds ;#q")
    k("s_add_u32 m0, s86, 2048\ns_add_u32 s85, s85, %d" % (2 * CGS))
    k("buffer_load_dwordx4 v15, s[8:11], s85 offen sc1 lds ;#q")
    for m in range(2):
        for c in range(5):
            k("s_add_u32 m0, s84, %d" % (m * VB + c * 4160))
            k("buffer_load_dwordx4 v3, s[8:11], s83 offen sc1 lds ;#%s" % "kv"[m])
            k("s_add_u32 s83, s83, %d" % (CGS if c < 4 else 140 * CGS))
    k("s_load_dwordx4 s[4:7], s[0:1], 32\ns_lshl_b32 s26, s2, 2\ns_add_u32 s26, s26, s22\ns_mul_i32 s27, s26, 1088\ns_and_b32 s27, s27, 0xffffff80\ns_add_u32 s27, s27, 0x400000")
    k("s_mul_i32 s26, s26, 5184\ns_and_b32 s26, s26, 0xffffff80")
    k("v_lshlrev_b32 v229, 7, v1\nv_mov_b32 v6, 0x%x\nv_cmp_gt_u32 vcc, 14, v1\nv_cndmask_b32 v229, v6, v229, vcc" % BIG)
    k("@waitvm q")
    for u in range(2):
        k("ds_read_b64_tr_b16 %s, v%d offset:%d\nds_read_b64_tr_b16 %s, v%d offset:%d\nds_read_b64_tr_b16 %s, v%d offset:%d" % (
            ar(QF + 8 * u, 2), AQ1, 256 * u, ar(QF + 8 * u + 2, 2), AQ1, 512 + 256 * u, vr(6 + 2 * u, 2), AQ3, 256 * u))
    k("v_cmp_gt_u32 vcc, 32, v1")
    for u in range(2): k("v_cndmask_b32 v%d, 0, v%d, vcc\nv_accvgpr_write_b32 a%d, v%d" % (6 + 2 * u, 6 + 2 * u, QF + 8 * u + 4, 6 + 2 * u))
    k("@waitvm k\n@waitlds all\ns_barrier")
    stamp(k, "p2 k")
    def kread(n):
        f = KF + 8 * n
        return ["ds_read_b64_tr_b16 %s, v%d offset:%d" % (ar(f, 2), AK1, KB + 256 * n),
                "ds_read_b64_tr_b16 %s, v%d offset:%d" % (ar(f + 2, 2), AK1, KB + 256 * n + 4160),
                "ds_read_b64_tr_b16 %s, v%d offset:%d" % (ar(f + 4, 2), AK3, 256 * n)]
    def vread(n, s): return "ds_read_b128 %s, v%d offset:%d" % (ar(VF + 8 * n + 4 * s, 4), AV, 256 * n + 128 * s)
    order = [0, 8, 1, 2, 3, 4, 5, 6, 7]
    slot = [{j: j for j in range(9)}, dict(zip(order, [9, 10, 11, 0, 8, 1, 2, 3, 4]))]
    def sreg(u, j): return SCO + 16 * slot[u][j]
    def qk(u, j):
        s = vr(sreg(u, j), 16); f = KF + 8 * (j + u)
        return ["v_mfma_f32_32x32x16_bf16 %s, %s, %s, 0" % (s, ar(f, 4), ar(QF + 8 * u, 4)),
                "v_mfma_f32_32x32x16_bf16 %s, %s, %s, %s" % (s, ar(f + 4, 4), ar(QF + 8 * u + 4, 4), s)]
    MX = [216, 220]
    def maxops(u, j, first):
        b = sreg(u, j); m = MX[u]; o = []
        if j == 8: return []
        if j == 0:
            b8 = sreg(u, 8)
            o += ["v_cndmask_b32 v%d, v%d, v%d, s[%d:%d]" % (b + rho, b + rho, b8 + rho, 36 + 2 * rho, 37 + 2 * rho) for rho in range(16)]
            o += ["v_max3_f32 v%d, v%d, v%d, v%d" % (m, b, b + 1, b + 2), "v_max3_f32 v%d, v%d, v%d, v%d" % (m + 1, b + 3, b + 4, b + 5)]
            o += ["v_max3_f32 v%d, v%d, v%d, v%d" % (m + (i & 1), m + (i & 1), b + 6 + 2 * i, b + 7 + 2 * i) for i in range(5)]
        else:
            o += ["v_max3_f32 v%d, v%d, v%d, v%d" % (m + (i & 1), m + (i & 1), b + 2 * i, b + 2 * i + 1) for i in range(8)]
        return o
    ONE, MB = 208, [212, 216]
    def msub(u, j):
        s_ = vr(sreg(u, j), 16)
        return "v_mfma_f32_32x32x16_bf16 %s, %s, %s, %s" % (s_, ar(ONE, 4), ar(MB[u], 4), s_)
    def maxfin(u):
        m = MX[u]
        if "msub" in OPT:
            return ["v_max_f32 v%d, v%d, v%d" % (m, m, m + 1), "v_mov_b32 v%d, v%d" % (m + 1, m), "v_permlane32_swap_b32 v%d, v%d" % (m, m + 1),
                    "v_max_f32 v%d, v%d, v%d" % (m, m, m + 1),
                    "v_xor_b32 v%d, 0x80000000, v%d" % (m, m), "v_and_b32 v%d, 0xffff0000, v%d" % (m + 1, m), "v_sub_f32 v%d, v%d, v%d" % (m, m, m + 1),
                    "v_and_b32 v%d, 0xffff0000, v%d" % (m + 2, m), "v_sub_f32 v%d, v%d, v%d" % (m, m, m + 2),
                    "v_alignbit_b32 v%d, v%d, v%d, 16" % (m + 1, m + 3, m + 1), "v_and_b32 v%d, 0xffff, v%d" % (m + 1, m + 1), "v_or_b32 v%d, v%d, v%d" % (m + 1, m + 1, m + 2),
                    "v_lshrrev_b32 v%d, 16, v%d" % (m, m),
                    "v_accvgpr_write_b32 a%d, v%d" % (MB[u], m + 1), "v_accvgpr_write_b32 a%d, v%d" % (MB[u] + 1, m)]
        return ["v_max_f32 v%d, v%d, v%d" % (m, m, m + 1), "v_mov_b32 v%d, v%d" % (m + 1, m), "v_permlane32_swap_b32 v%d, v%d" % (m, m + 1),
                "v_max_f32 v%d, v%d, v%d" % (m, m, m + 1)] + (["v_mul_f32 v%d, s75, v%d" % (m, m), "v_mov_b32 v%d, v%d" % (m + 1, m)] if "qs" not in OPT else [])
    for n in (0, 8, 1, 2): k.extend(kread(n))
    rest = [3, 4, 5, 6, 7, 9]
    for i, j in enumerate(order):
        q = qk(0, j)
        k(q[0])
        if i < len(rest): k.extend(kread(rest[i]))
        k(q[1])
        if i >= 2: k.extend(maxops(0, order[i - 2], False))
    k.extend(qk(1, 0)); k.extend(maxops(0, order[7], False)); k.extend(qk(1, 8)); k.extend(maxops(0, order[8], False))
    k("@waitvm v\ns_barrier")
    k.srd(28, 4, WB)
    k.srd(32, 6, WB)
    pfl = [["buffer_load_dword a240, v229, s[28:31], s27 offen"]] + [["buffer_load_dword a%d, v229, s[32:35], s26 offen offset:%d" % (241 + j, 1792 * j)] for j in range(3)]
    if "nopf2" in OPT: pfl = []
    vr_list = [vread(n, s) for n in [0, 8, 1, 2, 3, 4, 5, 6, 7, 9] for s in range(2)]
    k.extend(vr_list[:6])
    k.extend(maxfin(0))
    if "msub" in OPT: k(msub(0, 0)); k(msub(0, 1))
    stamp(k, "p2 s")
    vr_list = vr_list[6:]
    first = [True, True]
    def pv(u, j):
        o = []
        for s in range(2):
            a = ar(OA + 16 * u, 16)
            o.append("v_mfma_f32_32x32x16_bf16 %s, %s, %s, %s" % (a, ar(VF + 8 * (j + u) + 4 * s, 4), vr(sreg(u, j) + 4 * s, 4), "0" if first[u] else a))
            first[u] = False
        return o
    def expops(u, j):
        b = sreg(u, j); m = MX[u]; o = []
        for hf in range(2):
            if "msub" in OPT: pass
            elif "qs" in OPT:
                for i in range(8): o.append("v_sub_f32 v%d, v%d, v%d" % (b + 8 * hf + i, b + 8 * hf + i, m))
            elif "pk" not in OPT:
                for i in range(8): o.append("v_fma_f32 v%d, v%d, s88, v%d" % (b + 8 * hf + i, b + 8 * hf + i, m))
            else:
                for i in range(0, 8, 2): o.append("v_pk_fma_f32 %s, %s, s[88:89], %s" % (vr(b + 8 * hf + i, 2), vr(b + 8 * hf + i, 2), vr(m, 2)))
            for i in range(8): o.append("v_exp_f32 v%d, v%d" % (b + 8 * hf + i, b + 8 * hf + i))
            for i in range(4): o.append("v_cvt_pk_bf16_f32 v%d, v%d, v%d" % (b + 4 * hf + i, b + 8 * hf + 2 * i, b + 8 * hf + 2 * i + 1))
        if j == 0:
            b8 = sreg(u, 8)
            for i in range(8): o += ["v_and_b32 v%d, v%d, v%d" % (b8 + i, b + i, MK + i), "v_xor_b32 v%d, v%d, v%d" % (b + i, b + i, b8 + i)]
        return o
    def outops(u):
        a = OA + 16 * u; t = 224 if u else 240
        o = ["v_accvgpr_read_b32 v2, a%d" % (a + 12), "v_rcp_f32 v2, v2"]
        o += ["v_accvgpr_read_b32 v%d, a%d" % (4 + i, a + i) for i in range(10)]
        o += ["v_mul_f32 v%d, v%d, v2" % (4 + i, 4 + i) for i in range(10)]
        o += ["v_cvt_pk_bf16_f32 v%d, v%d, v%d" % (t + i, 4 + 2 * i, 5 + 2 * i) for i in range(5)]
        o += ["buffer_store_dwordx4 %s, v%d, s[12:15], s69 offen offset:%d sc1 ;#o" % (vr(t, 4), VO1, 512 * u),
              "buffer_store_dword v%d, v%d, s[16:19], s70 offen offset:%d sc1 ;#o" % (t + 4, VO2, 128 * u)]
        return o
    steps = [0, 1, 2, 3, 4, 5, 6, 7]
    bq = {0: [1], 2: [2, 3], 3: [4], 4: [5], 5: [6], 6: [7]}
    bm = {0: [], 1: [0, 1], 3: [2, 3], 4: [4], 5: [5], 6: [6], 7: [7]}
    prev = []
    for e in steps:
        ops = expops(0, e)
        mf = list(prev)
        if "msub" in OPT and e + 2 < 8: mf = [msub(0, e + 2)] + mf
        for j in bq.get(e, []): mf += qk(1, j)
        fill = {}
        if mf: spread(fill, mf, 2, len(ops) - 4)
        if vr_list: spread(fill, vr_list[:4], 0, 20); vr_list = vr_list[4:]
        NWO = XP.get("nwo", 8)
        if wo: spread(fill, wo[:NWO], 3, len(ops) - 1); wo = wo[NWO:]
        elif pfl: spread(fill, pfl[:2], 1, len(ops) - 1); pfl = pfl[2:]
        k.extend(weave(ops, fill))
        for j in bm.get(e, []): k.extend(maxops(1, j, False))
        prev = pv(0, 0) + pv(0, 8) if e == 0 else pv(0, e)
    k.extend(maxfin(1))
    if "msub" in OPT: k(msub(1, 0)); k.extend(prev); prev = []; k(msub(1, 1))
    for e in steps:
        ops = expops(1, e)
        fill = {}
        if "msub" in OPT and e + 2 < 8: prev = [msub(1, e + 2)] + prev
        if prev: spread(fill, prev, 2, len(ops) - 4)
        k.extend(weave(ops, fill))
        if e == 1: o0 = outops(0); k.extend(o0[:-2])
        prev = pv(1, 0) + pv(1, 8) if e == 0 else pv(1, e)
    k.extend(o0[-2:])
    k.extend(prev)
    k.extend(outops(1))
    assert not wo
    stamp(k, "p2 st")

def p3(k):
    k("s_load_dwordx2 s[56:57], s[0:1], 0\ns_load_dwordx4 s[36:39], s[0:1], 48")
    k("s_lshl_b32 s30, s80, 2\ns_add_u32 s30, s30, s22\ns_lshl_b32 s30, s30, 12\ns_lshl_b32 s31, s81, 7\ns_add_u32 s30, s30, s31\ns_add_u32 s30, s30, %d" % F2)
    k("s_lshl_b32 s82, s81, 2\ns_add_u32 s82, s82, s22")
    k("v_and_b32 v6, 15, v1\nv_lshrrev_b32 v7, 4, v1")
    XR, BF, ACC, WV = 208, 16, 88, 112
    TA, TM = 220, 246
    k("s_mov_b32 s26, %d" % WOB)
    tr_addrs(k, TA, 1, "s26", 2)
    k("v_lshrrev_b32 v2, 2, v1\nv_lshlrev_b32 v2, 6, v2\nv_and_b32 v3, 3, v1\nv_lshl_add_u32 v2, v3, 3, v2\nv_bfe_u32 v3, v1, 4, 1")
    k("v_lshl_add_u32 v%d, v3, 5, v2\nv_add_u32 v%d, %d, v%d\nv_xor_b32 v%d, 32, v%d" % (TM, TM, WOB + 4096, TM, TM + 1, TM))
    k("v_mul_u32_u24 v10, 1152, v6\nv_lshl_add_u32 v10, v7, 3, v10\ns_mul_i32 s28, s82, %d\ns_add_u32 s29, s28, s73\ns_add_u32 s28, s28, s72" % (16 * 1152))
    k.extend(flag("o", 2, 250, "s30"))
    stamp(k, "p2 fl")
    if "c4early" in OPT: touch_chain(k, "L_c4", 22)
    k("s_waitcnt lgkmcnt(0)\ns_barrier")
    k("s_cmp_ge_u32 s2, 192\ns_cbranch_scc1 L_pf3")
    kp = K("tmp")
    kp("L_pf3:")
    rest = WB - XP.get("nd1", 0) * (1 << 20); lines = -(-rest // (256 * 128))
    kp("s_sub_u32 s23, s2, 192\ns_lshl_b32 s23, s23, 2\ns_add_u32 s23, s23, s22\ns_mul_i32 s23, s23, %d\ns_add_u32 s23, s23, %d\nv_lshlrev_b32 v2, 7, v1" % (lines * 128, WB - rest))
    kp.srd(8, 36, WB)
    if "nopf3" in OPT or "pfA" in OPT: kp("s_mov_b32 s10, 0")
    q = 0
    while lines > 0:
        if lines < 64:
            m = (1 << lines) - 1
            kp("s_mov_b32 exec_lo, 0x%x\ns_mov_b32 exec_hi, 0x%x" % (m & 0xffffffff, m >> 32))
        kp("buffer_load_dword a%d, v2, s[8:11], s23 offen\ns_add_u32 s23, s23, 8192" % (240 + q)); q += 1; lines -= 64
    kp("s_mov_b64 exec, -1")
    p4_early(kp)
    kp("s_branch L_p4")
    SLOW.extend(i.text for i in kp.ins)
    k("v_and_b32 v11, 31, v1\nv_lshlrev_b32 v11, 7, v11\ns_lshl_b32 s83, s81, 12\ns_add_u32 s83, s83, %d" % F2)
    if "earlypoll" in OPT: k.extend(poll(15, 11, "s83"))
    k.srd(52, 56, X_BYTES)
    for T in range(6): k("buffer_load_dwordx2 %s, v10, s[52:55], s%d offen offset:%d" % (vr(XR + 2 * T, 2), 28 if T < 4 else 29, 32 * (T & 3)))
    def wreg(t, T, o=0, n=4):
        if t < 10: return ar(24 * t + 4 * T + o, n)
        if t < 14: return vr(WV + 24 * (t - 10) + 4 * T + o, n)
        return ar(24 * (t - 14) + 4 * T + o, n)
    def wread(t):
        o = []
        if t == 10: o += ["v_add_u32 v%d, 61440, v%d" % (q, q) for q in (TA, TA + 1, TA + 2, TA + 3, TM, TM + 1)]
        off = (t % 10) * 6144
        for T in range(6):
            for j in range(2):
                a, oo = (TA + T, off + 2048 * j) if T < 4 else (TM + T - 4, off + 1024 * j)
                o.append("ds_read_b64_tr_b16 %s, v%d offset:%d" % (wreg(t, T, 2 * j, 2), a, oo))
        return o
    NW0 = XP.get("nw0", 8)
    for t in range(NW0): k.extend(wread(t))
    k("v_mul_u32_u24 v8, %d, v7\nv_lshl_add_u32 v8, v6, 4, v8" % OPS)
    k("v_mul_u32_u24 v9, %d, v7\nv_lshl_add_u32 v9, v6, 2, v9" % (4 * O2S))
    k("s_lshl_b32 s84, s82, 8\ns_lshl_b32 s85, s82, 6")
    k.srd(8, 20, H_BYTES, WS_H)
    k.srd(76, 20, ST_BYTES, WS_ST)
    k("s_mov_b32 s86, 0x3f803f80")
    k("s_mul_i32 s91, s82, 18432\ns_lshl_b32 s71, s73, 4\ns_add_u32 s71, s71, s91\ns_lshl_b32 s74, s72, 4\ns_add_u32 s91, s91, s74")
    k("s_lshl_b32 s74, s80, 14\ns_lshl_b32 s87, s82, 7\ns_add_u32 s74, s74, s87")
    k("s_lshl_b32 s101, s82, 10\ns_lshl_b32 s87, s80, 7\ns_add_u32 s101, s101, s87\ns_add_u32 s101, s101, %d" % F3)
    k("v_lshlrev_b32 v13, 4, v1\nv_lshlrev_b32 v14, 3, v1\nv_mov_b32 v2, 0x%x\nv_cmp_gt_u32 vcc, 16, v1\nv_cndmask_b32 v14, v2, v14, vcc" % BIG)
    if "early4" in OPT: p4_early(k)
    if "earlypoll" not in OPT: k.extend(poll(15, 11, "s83"))
    stamp(k, "p3 setup")
    k.extend(check("p3", 15, 11, "s83", ptmp=12))
    stamp(k, "p3 go")
    lds_ = []
    for t in range(18):
        if t < 16:
            lds_.append("s_nop 0\nbuffer_load_dwordx4 %s, v8, s[12:15], s84 offen sc1" % vr(BF + 4 * t, 4))
        else:
            for e in range(4):
                lds_.append("s_nop 0\nbuffer_load_dword v%d, v9, s[16:19], s85 offen sc1" % (BF + 4 * t + e))
    ke = K("tmp")
    if "early4" not in OPT: p4_early(ke)
    ext = []
    grp = []
    for i in ke.ins:
        grp.append(i.text)
        if not (i.op.startswith("s_cmp") or i.op in ("s_add_u32", "s_cselect_b32")): ext.append("\n".join(grp)); grp = []
    if grp: ext.append("\n".join(grp))
    ext4 = []
    if "p3old" not in OPT: ext4, ext = ext, []
    for t in range(NW0, 14): ext += wread(t)
    steps = []
    for n, x in enumerate(lds_):
        inc = ("s84", 4 * OPS) if n < 16 else ("s85", O2S if (n - 16) % 4 < 3 else 13 * O2S)
        steps.append(x.split("\n")[1] + "\ns_add_u32 %s, %s, %d" % (inc[0], inc[0], inc[1]))
    fill = {}
    if ext: spread(fill, ext, XP.get("ex0", 3), len(steps) - 1)
    k.extend(weave(steps, fill))
    main = []; fill = {}
    for t in range(18):
        for T in range(6):
            a = vr(ACC + 4 * T, 4)
            main.append("v_mfma_f32_16x16x32_bf16 %s, %s, %s, %s" % (a, wreg(t, T), vr(BF + 4 * t, 4), a if t else "0"))
    for t in range(14, 18): spread(fill, wread(t), 6 + 14 * (t - 14), 6 + 14 * (t - 14) + 11)
    if ext4: spread(fill, ext4, 0, 100)
    fill.setdefault(6 * 14 - 1, []).extend(["@waitlds all", "s_barrier"])
    k.extend(weave(main, fill))
    stamp(k, "p3 mm")
    HO, TT = 16, 32
    k("v_mov_b32 v4, 0\nv_mov_b32 v5, 0")
    for T in range(6):
        for j in range(2): k("v_cvt_pk_bf16_f32 v%d, v%d, v%d" % (TT + 2 * T + j, ACC + 4 * T + 2 * j, ACC + 4 * T + 2 * j + 1))
    for T in range(6):
        for j in range(2):
            p = TT + 2 * T + j; a = ACC + 4 * T + 2 * j
            k("v_lshlrev_b32 v%d, 16, v%d\nv_and_b32 v%d, 0xffff0000, v%d" % (a, p, a + 1, p))
    for T in range(6):
        for j in range(2):
            a = ACC + 4 * T + 2 * j
            k("v_dot2c_f32_bf16 v%d, s88, v%d\nv_dot2c_f32_bf16 v%d, s89, v%d" % (a, XR + 2 * T + j, a + 1, XR + 2 * T + j))
    for T in range(6):
        for j in range(2): k("v_cvt_pk_bf16_f32 v%d, v%d, v%d" % (HO + 2 * T + j, ACC + 4 * T + 2 * j, ACC + 4 * T + 2 * j + 1))
        if T & 1:
            k("buffer_store_dwordx4 %s, v13, s[8:11], s%d offen offset:%d sc1 ;#h" % (vr(HO + 2 * T - 2, 4), 91 if T < 4 else 71, 1024 if T == 3 else 0))
    for i in range(12):
        k("v_dot2c_f32_bf16 v4, s86, v%d\nv_dot2c_f32_bf16 v5, v%d, v%d" % (HO + i, HO + i, HO + i))
    for sw in ("v_permlane16_swap_b32", "v_permlane32_swap_b32"):
        k("v_mov_b32 v2, v4\nv_mov_b32 v3, v5")
        k("%s v4, v2\n%s v5, v3" % (sw, sw))
        k("v_add_f32 v4, v4, v2\nv_add_f32 v5, v5, v3")
    k("buffer_store_dwordx2 v[4:5], v14, s[76:79], s74 offen sc1 ;#h")
    stamp(k, "p3 st")

XF4, GA4, UA4 = 16, 160, 192
VG, VM, VW, TA4, TM4, C1, C2, TMP, VS, TS = 224, 228, 232, 236, 240, 242, 244, 246, 254, 255
def p4_early(k):
    TA, TM = TA4, TM4
    if "map16" in OPT:
        k("s_lshr_b32 s23, s2, 4\ns_and_b32 s24, s2, 15")
    else:
        k("s_and_b32 s23, s2, 1\ns_lshl_b32 s23, s23, 3\ns_bfe_u32 s25, s2, 0x30003\ns_add_u32 s23, s23, s25")
        k("s_bfe_u32 s24, s2, 0x20001\ns_lshl_b32 s24, s24, 2\ns_lshr_b32 s25, s2, 6\ns_add_u32 s24, s24, s25")
    k("s_and_b32 s25, s24, 1\ns_mul_i32 s26, s24, 576\ns_lshl_b32 s27, s25, 6\ns_add_u32 s27, s27, s26")
    k("s_xor_b32 s25, s25, 1\ns_lshl_b32 s25, s25, 9\ns_add_u32 s28, s25, s26")
    k("s_lshl_b32 s29, s23, 3\ns_lshl_b32 s30, s22, 1\ns_add_u32 s29, s29, s30")
    dma_piece(k, 4, 1, 2)
    k("v_mul_u32_u24 v5, 9216, v2\nv_add_u32 v5, v5, v4")
    for a in range(4): k("v_add_u32 v%d, %d, v5" % (VG + a, a * (8 * 9216 - 1024)))
    k("s_mul_i32 s56, s22, %d\ns_add_u32 s56, s56, s27" % (64 * 9216))
    k("s_mul_i32 s57, s22, %d\ns_add_u32 s57, s57, s27\ns_add_u32 s57, s57, %d" % (8 * 9216, 256 * 9216))
    k("s_lshl_b32 s58, s22, 13\ns_lshl_b32 s59, s22, 10\ns_add_u32 s59, s59, 32768")
    k.srd(40, 4, WB)
    k.srd(44, 6, WB)
    k("s_lshl_b32 s30, s29, 7\ns_mul_i32 s31, s29, 18432")
    k.srd(48, 36, WB)
    k("s_cmp_lt_u32 s22, 2\ns_cselect_b32 s52, s40, s44\ns_cselect_b32 s53, s41, s45\ns_mov_b32 s54, 0x%x\ns_mov_b32 s55, 0x20000" % WB)
    k("v_mul_u32_u24 v5, 1152, v2\nv_add_u32 v5, v5, v4")
    for a in range(4): k("v_add_u32 v%d, %d, v5" % (VW + a, a * (8 * 1152 - 1024)))
    k("v_lshrrev_b32 v2, 2, v1\nv_mul_u32_u24 v5, 9216, v2\nv_bfe_u32 v3, v1, 4, 1\nv_lshlrev_b32 v3, 1, v3\nv_and_b32 v4, 3, v1\nv_xor_b32 v3, v3, v4\nv_lshl_add_u32 v5, v3, 4, v5")
    for a in range(4): k("v_add_u32 v%d, %d, v5" % (VM + a, a * (16 * 9216 - 1024)))
    k("s_mul_i32 s61, s22, 9216\ns_and_b32 s62, s22, 1\ns_mul_i32 s62, s62, %d\ns_add_u32 s62, s62, s28" % (144 * 9216))
    k("s_lshr_b32 s25, s24, 2\ns_and_b32 s26, s24, 3\ns_and_b32 s35, s26, 1\ns_mul_i32 s34, s26, 288")
    k("s_lshl_b32 s67, s35, 5\ns_add_u32 s33, s34, s67\ns_xor_b32 s67, s35, 1\ns_lshl_b32 s67, s67, 8\ns_add_u32 s34, s34, s67")
    if "ownh" in OPT:
        k("s_add_u32 s63, s26, s22\ns_and_b32 s63, s63, 3\ns_and_b32 s67, s24, 12\ns_add_u32 s67, s67, s63\ns_mul_i32 s63, s67, 288\ns_and_b32 s67, s67, 1")
    else:
        k("s_and_b32 s67, s24, 12\ns_add_u32 s67, s67, s22\ns_mul_i32 s63, s67, 288\ns_and_b32 s67, s22, 1")
    k("s_xor_b32 s64, s67, 1\ns_lshl_b32 s64, s64, 8\ns_add_u32 s64, s64, s63\ns_lshl_b32 s67, s67, 5\ns_add_u32 s63, s63, s67")
    if "al" in OPT:
        k("s_lshl_b32 s67, s26, 8\ns_mul_i32 s63, s63, 1152\ns_add_u32 s63, s63, s67\ns_mul_i32 s64, s64, 1152\ns_add_u32 s64, s64, s67")
        k("s_lshl_b32 s67, s22, 3\ns_lshr_b32 s33, s27, 1\ns_add_u32 s33, s33, s67\ns_mul_i32 s33, s33, 1152\ns_add_u32 s33, s33, 1024")
        k("s_lshr_b32 s34, s28, 1\ns_add_u32 s34, s34, s67\ns_mul_i32 s34, s34, 1152\ns_add_u32 s34, s34, 1024")
    else:
        k("s_mul_i32 s67, s26, 288\ns_mul_i32 s63, s63, 1152\ns_add_u32 s63, s63, s67\ns_mul_i32 s64, s64, 1152\ns_add_u32 s64, s64, s67")
        k("v_lshrrev_b32 v2, 1, v1\nv_mul_u32_u24 v2, 1152, v2\nv_and_b32 v3, 1, v1\nv_lshl_add_u32 v2, v3, 4, v2")
        k("s_sub_u32 s60, s34, s67\nv_add_u32 v%d, s60, v2\ns_sub_u32 s60, s33, s67" % VS)
        for a in range(4): k("v_add_u32 v%d, s60, v%d" % (VW + a, VW + a))
    tr_addrs(k, TA, 1, None, 2)
    k("v_lshrrev_b32 v2, 2, v1\nv_lshlrev_b32 v2, 6, v2\nv_and_b32 v3, 3, v1\nv_lshl_add_u32 v2, v3, 3, v2\nv_bfe_u32 v3, v1, 4, 1")
    k("v_lshl_add_u32 v%d, v3, 5, v2\nv_xor_b32 v%d, 32, v%d" % (TM, TM + 1, TM))
    k("v_lshlrev_b32 v%d, 3, v1\nv_add_u32 v%d, 8192, v%d" % (TS, TS, TS))
    k("s_mov_b32 s88, 0x00003f80\ns_mov_b32 s89, 0x3f800000\ns_mov_b32 s65, 0x%x" % f2u(1.0 / D))
    k("s_lshl_b32 s67, s23, 4\ns_add_u32 s66, s67, s24\ns_lshl_b32 s66, s66, 2\ns_add_u32 s66, s66, s22\ns_mul_i32 s66, s66, 18432")
    k("s_and_b32 s68, s24, 12\ns_add_u32 s68, s68, s67\ns_lshl_b32 s68, s68, 2\ns_add_u32 s68, s68, s22\ns_mul_i32 s68, s68, 18432")
    k("s_lshl_b32 s69, s23, 2\ns_add_u32 s69, s69, s22\ns_lshl_b32 s69, s69, 11\ns_add_u32 s69, s69, %d\ns_and_b32 s70, s24, 12\ns_lshl_b32 s70, s70, 7\ns_add_u32 s70, s70, s69" % FH)
    k("s_lshl_b32 s67, s24, 7\ns_add_u32 s69, s69, s67")
    k("s_lshl_b32 s75, s29, 10\ns_add_u32 s75, s75, %d" % F3)

def p4(k):
    SLOT = 36864
    k("L_p4:")
    XF, GA, UA, TA, TM = XF4, GA4, UA4, TA4, TM4
    AF, HF = 0, 72
    stages = []
    for B in range(4): stages += [("G", B, 0), ("G", B, 1), ("U", B, 0), ("U", B, 1)]
    stages += [("M", 4, 0), ("M", 4, 1)]
    stages += [("D", c, 0) for c in range(9)]
    NS = len(stages)
    def dma(n):
        kind, B, kh = stages[n]
        sl = (n % 4) * SLOT
        o = []
        if kind in "GU":
            srd = "s[40:43]" if kind == "G" else "s[44:47]"
            off = 128 * B + kh * 288 * 9216
            for g in range(2):
                pre = ["s_add_u32 m0, s58, %d" % (sl + 4096 * g), "s_add_u32 s60, s56, %d" % (off + g * 32 * 9216)]
                for a in range(4):
                    o.append(pre + ["buffer_load_dwordx4 v%d, %s, s60 offen offset:%d lds ;#s%d" % (VG + a, srd, 1024 * a, n)]); pre = []
            o.append(["s_add_u32 m0, s59, %d" % sl, "s_add_u32 s60, s57, %d" % off, "buffer_load_dwordx4 v%d, %s, s60 offen lds ;#s%d" % (VG, srd, n)])
        elif kind == "M":
            for g in range(3):
                pre = ["s_add_u32 m0, s61, %d" % (sl + 4096 * g), "s_add_u32 s60, s62, %d" % (kh * 288 * 9216 + g * 64 * 9216)]
                for a in range(4 if g < 2 else 1):
                    o.append(pre + ["buffer_load_dwordx4 v%d, s[52:55], s60 offen offset:%d lds ;#s%d" % (VM + a, 1024 * a, n)]); pre = []
        elif "al" in OPT:
            base, base2, off = ("s63", "s33", B * 32 * 1152) if B < 8 else ("s64", "s34", 0)
            for g in range(2):
                pre = ["s_add_u32 m0, s58, %d" % (sl + 4096 * g), "s_add_u32 s60, %s, %d" % (base, off + 128 * g)]
                for a in range(4):
                    o.append(pre + ["buffer_load_dwordx4 v%d, s[48:51], s60 offen offset:%d lds ;#s%d" % (VW + a, 1024 * a, n)]); pre = []
            o.append(["s_add_u32 m0, s59, %d" % sl, "s_add_u32 s60, %s, %d" % (base2, off), "buffer_load_dwordx4 v%d, s[48:51], s60 offen lds ;#s%d" % (VW, n)])
        elif "split" in OPT and B >= 7:
            for g in range(2):
                base, off = (("s63", 7 * 32 * 1152), ("s64", 0))[g]
                pre = ["s_lshl_b32 s60, s22, 12", "s_add_u32 m0, s60, %d" % (sl + 16384 * g), "s_add_u32 s60, %s, %d" % (base, off + 128 * (B - 7))]
                for a in range(4):
                    o.append(pre + ["buffer_load_dwordx4 v%d, s[48:51], s60 offen offset:%d lds ;#s%d" % (VW + a, 1024 * a, n)]); pre = []
            base, off = (("s63", 7 * 32 * 1152), ("s64", 0))[B - 7]
            o.append(["s_add_u32 m0, s59, %d" % sl, "s_add_u32 s60, %s, %d" % (base, off), "buffer_load_dwordx4 v%d, s[48:51], s60 offen lds ;#s%d" % (VS, n)])
        else:
            base, off = ("s63", B * 32 * 1152) if B < 8 else ("s64", 0)
            for g in range(2):
                pre = ["s_add_u32 m0, s61, %d" % (sl + 4096 * g), "s_add_u32 s60, %s, %d" % (base, off + 128 * g)]
                for a in range(4):
                    o.append(pre + ["buffer_load_dwordx4 v%d, s[48:51], s60 offen offset:%d lds ;#s%d" % (VW + a, 1024 * a, n)]); pre = []
            o.append(["s_add_u32 m0, s61, %d" % (sl + 8192), "s_add_u32 s60, %s, %d" % (base, off),
                      "buffer_load_dwordx4 v%d, s[48:51], s60 offen lds ;#s%d" % (VS, n)])
        return o
    NPF = XP.get("npf", 2)
    dm = [x for n in range(NPF) for x in dma(n)]
    NB4 = XP.get("nb4", 4)
    for x in dm[:NB4]: k.extend(x)
    k("s_cmp_ge_u32 s2, 192\ns_cbranch_scc1 L_p4nf")
    k.extend(flag("h", 5, 250, "s101"))
    k("L_p4nf:")
    stamp(k, "p3 fl")
    for x in dm[NB4:]: k.extend(x)
    k("v_lshl_add_u32 v8, v7, 11, v6\nv_lshlrev_b32 v8, 3, v8\nv_lshlrev_b32 v9, 4, v1")
    k("v_add_u32 v12, 0x10000, v8\nv_mov_b32 v3, v250")
    k.srd(8, 20, ST_BYTES, WS_ST)
    k.srd(12, 20, H_BYTES, WS_H)
    k.srd(16, 38, X_BYTES)
    k("v_and_b32 v14, 7, v1\nv_min_u32 v14, 5, v14\nv_lshlrev_b32 v14, 7, v14\nv_bfe_u32 v15, v1, 3, 1\nv_lshl_add_u32 v14, v15, 10, v14")
    if "earlypoll" in OPT: k.extend(poll(13, 14, "s75"))
    if "c4early" not in OPT: touch_chain(k, "L_c4", 22)
    if "earlypoll" not in OPT: k.extend(poll(13, 14, "s75"))
    stamp(k, "p4 setup")
    k("s_waitcnt vmcnt(0)")
    k.extend(check("p4", 13, 14, "s75", ptmp=15))
    stamp(k, "p4 go")
    ST = UA
    for r in range(2):
        for j in range(2):
            k("buffer_load_dwordx2 %s, v%d, s[8:11], s30 offen offset:%d sc1" % (vr(ST + 6 * r + 2 * j, 2), (8, 12)[j], 128 * r))
    def xload(r, t):
        return ["s_add_u32 s32, s31, %d" % ((r * 18 + t) // 4 * 4096),
                "buffer_load_dwordx4 %s, v9, s[12:15], s32 offen offset:%d sc1" % (vr(XF + 72 * r + 4 * t, 4), ((r * 18 + t) % 4) * 1024)]
    NX0 = XP.get("nx0", 9)
    for t in range(NX0):
        for r in range(2): k.extend(xload(r, t))
    if XP.get("pf4", 0):
        k("s_lshl_b32 s67, s2, 2\ns_add_u32 s67, s67, s22\ns_mul_i32 s32, s67, 5184\nv_lshlrev_b32 v15, 7, v1\nv_mov_b32 v14, 0x%x" % BIG)
        k("v_cmp_gt_u32 vcc, 41, v1\nv_cndmask_b32 v15, v14, v15, vcc\ns_and_b32 s32, s32, 0xffffff80")
        k("v_mul_u32_u24 v2, 13, v1\nv_lshrrev_b32 v2, 6, v2\nv_mul_u32_u24 v4, 5, v2\nv_sub_u32 v4, v1, v4")
        k("v_cmp_lt_u32 vcc, 2, v4\nv_addc_co_u32 v5, vcc, v4, 2, vcc\nv_cmp_lt_u32 vcc, 2, v4\nv_addc_co_u32 v5, vcc, v5, 0, vcc")
        k("v_mul_u32_u24 v2, 9, v2\nv_add_u32 v2, v2, v5\nv_lshlrev_b32 v2, 7, v2\nv_cmp_gt_u32 vcc, 45, v1\nv_cndmask_b32 v2, v14, v2, vcc")
        k("s_lshr_b32 s60, s2, 0\ns_lshl_b32 s60, s60, 1\ns_and_b32 s67, s22, 1\ns_add_u32 s60, s60, s67\ns_mul_i32 s60, s60, %d" % (9 * 9 * 128))
        k("buffer_load_dword a200, v2, s[52:55], s60 offen\nbuffer_load_dword a201, v15, s[48:51], s32 offen")
    k("v_and_b32 v12, 3, v1\nv_lshlrev_b32 v12, 7, v12")
    k.srd(8, 20, HB_BYTES, WS_HB)
    for r in range(2):
        b = ST + 6 * r
        k("v_add_f32 v%d, v%d, v%d\nv_add_f32 v%d, v%d, v%d" % (b, b, b + 2, b + 1, b + 1, b + 3))
        for sw in ("v_permlane16_swap_b32", "v_permlane32_swap_b32"):
            k("v_mov_b32 v%d, v%d\nv_mov_b32 v%d, v%d" % (b + 2, b, b + 3, b + 1))
            k("%s v%d, v%d\n%s v%d, v%d" % (sw, b, b + 2, sw, b + 1, b + 3))
            k("v_add_f32 v%d, v%d, v%d\nv_add_f32 v%d, v%d, v%d" % (b, b, b + 2, b + 1, b + 1, b + 3))
        k("v_mul_f32 v%d, s65, v%d" % (b, b))
        k("v_mul_f32 v%d, v%d, v%d" % (b + 2, b, b))
        k("v_fma_f32 v%d, v%d, s65, -v%d" % (b + 1, b + 1, b + 2))
        k("v_max_f32 v%d, 0, v%d" % (b + 1, b + 1))
        bf16_round(k, b, b)
        k("v_sub_f32 v%d, 0, v%d" % (10 + r, b))
        bf16_round(k, b + 1, b + 1)
        k("v_add_f32 v%d, 0x%x, v%d" % (b + 1, f2u(1e-5), b + 1))
        bf16_round(k, b + 1, b + 1)
        k("v_sqrt_f32 v%d, v%d" % (b + 1, b + 1))
        bf16_round(k, b + 1, b + 1)
        k("v_mul_f32 v%d, v%d, v%d" % (C2 + r, b + 1, b + 1))
        k("v_rcp_f32 v%d, v%d" % (b + 1, b + 1))
        k("v_mul_f32 v%d, 0x%x, v%d" % (C1 + r, f2u(-LOG2E), b + 1))
    def center(r, t):
        x = XF + 72 * r + 4 * t
        o = []
        for c in range(4):
            o.append("v_dot2_f32_bf16 v%d, v%d, s88, v%d" % (TMP + 2 * c, x + c, 10 + r))
            o.append("v_dot2_f32_bf16 v%d, v%d, s89, v%d" % (TMP + 2 * c + 1, x + c, 10 + r))
        for c in range(4):
            o.append("v_cvt_pk_bf16_f32 v%d, v%d, v%d" % (x + c, TMP + 2 * c, TMP + 2 * c + 1))
        return o
    NPRE = XP["npre"]
    assert NX0 + NPRE >= 18
    for t in range(NPRE):
        for r in range(2):
            if NX0 + t < 18: k.extend(xload(r, NX0 + t))
            k.extend(center(r, t))
    stamp(k, "p4 x")

    cur = {"TA": 0, "TM": 0, "TS": 0}
    def shift(name, regs, sl):
        pre = []
        if cur[name] != sl:
            d = (sl - cur[name]) * SLOT
            for q in regs:
                pre.append("v_add_u32 v%d, %d, v%d" % (q, d, q) if d > 0 else "v_subrev_u32 v%d, %d, v%d" % (q, -d, q))
            cur[name] = sl
        return pre
    tiles = []
    main = []
    DA = XF
    OWN = "ownh" in OPT; AL = "al" in OPT; SPL = "split" in OPT; fin = {}
    HOWN = 144
    def hbuf(c): return HF + 24 * (c % 3) - 8 if OWN else HF + 32 * (c % 3)
    nt = 0
    for n in range(NS):
        kind, B, kh = stages[n]
        torder = ([8, 0, 1, 2, 3, 4, 5, 6, 7] if (AL and B > 0) else list(range(9))) if kind == "D" else list(range(4))
        uu = [B] * len(torder)
        if SPL and kind == "D" and B == 7: torder = [0, 0, 1, 1, 2, 2, 3, 3, 8]; uu = [7, 8] * 4 + [7]
        if SPL and kind == "D" and B == 8: torder = [8, 4, 4, 5, 5, 6, 6, 7, 7]; uu = [8] + [7, 8] * 4
        for pos, T in enumerate(torder):
            Bq = B
            if kind == "D": B = uu[pos]
            if kind == "D": fin[T] = len(main)
            if kind == "D": nf = 4; f0 = AF + 16 * ((Bq * 9 + pos) % 4)
            else: nf = 9; f0 = AF + 36 * (nt & 1)
            tiles.append(dict(n=n, T=T, g0=len(main), nf=nf, f0=f0, id=nt, pos=pos, u=B)); nt += 1
            if AL and kind == "D" and T == 8:
                for E in range(4):
                    for r in range(2):
                        a = vr(DA + 64 + 8 * E + 4 * r, 4)
                        main.append("v_mfma_f32_16x16x32_bf16 %s, %s, %s, %s" % (a, ar(f0 + 4 * E, 4), ar(HOWN + 8 * B + 4 * r, 4), "0" if B == 0 else a))
                continue
            for r in range(2):
                if kind == "G": a = GA + 8 * T + 4 * r
                elif kind == "U": a = UA + 8 * T + 4 * r
                elif kind == "M": a = (GA if T < 2 else UA) + 8 * (T & 1) + 4 * r
                else: a = DA + 8 * T + 4 * r
                a = vr(a, 4)
                for j in range(nf):
                    if kind == "D":
                        b = ar(HOWN + 8 * B + 4 * r, 4) if (OWN and j == 0) else ar(hbuf(B) + 8 * j + 4 * r, 4)
                        first = (j == 0 and B == 0)
                    else: b = vr(XF + 72 * r + 4 * (9 * kh + j), 4); first = (j == 0 and kh == 0)
                    main.append("v_mfma_f32_16x16x32_bf16 %s, %s, %s, %s" % (a, ar(f0 + 4 * j, 4), b, "0" if first else a))
            B = Bq
    NM = len(main)
    fill = {}
    load = [0.0] * (NM + 1)
    def put(g, items, cost=None):
        if isinstance(items, str): items = [items]
        fill.setdefault(g, []).extend(items)
        load[max(g, 0)] += len([x for x in items if not x.startswith("@") and not x.endswith(":")]) if cost is None else cost
    def frag_reads(t):
        n, T = t["n"], t["T"]; kind = stages[n][0]; sl = n % 4
        if kind == "M": pre = shift("TM", [TM, TM + 1], sl)
        elif kind == "D" and T == 8 and not AL: pre = shift("TS", [TS], sl)
        else: pre = shift("TA", [TA + q for q in range(4)], sl)
        o = []
        for j in range(t["nf"]):
            for h in range(2):
                if kind == "M": a, off = TM + (T & 1), (T >> 1) * 18432 + j * 2048 + h * 1024
                elif kind == "D" and AL: a, off = (TA + (T & 3), j * 8192 + (T >> 2) * 4096 + h * 2048) if T < 8 else (TA + j, 32768 + h * 2048)
                elif kind == "D" and SPL and n >= 25:
                    a, off = (TA + (T & 3), (4 * (t["u"] - 7) + j) * 4096 + h * 2048) if T < 8 else (TS, 24576 + j * 1024 + h * 512)
                elif kind == "D": a, off = (TA + (T & 3), j * 9216 + (T >> 2) * 4096 + h * 2048) if T < 8 else (TS, j * 9216 + h * 512)
                else: a, off = TA + T, j * 4096 + h * 2048
                o.append("ds_read_b64_tr_b16 %s, v%d offset:%d ;#f%d%s" % (ar(t["f0"] + 4 * j + 2 * h, 2), a, off, t["id"], "a" if (j < 4) else "b"))
        return pre, o
    pre, o = frag_reads(tiles[0])
    fill[-1] = ["s_barrier"] + pre + o
    first_d = [i for i, t in enumerate(tiles) if stages[t["n"]][0] == "D"][0]
    bar_gap = {}
    for i, t in enumerate(tiles):
        g0 = t["g0"]; kind = stages[t["n"]][0]
        put(g0 - 1, "@waitlds f%da" % t["id"], 1)
        if kind != "D":
            if t["T"] < 3: put(g0 + 3, "@waitlds f%db" % t["id"], 1)
            nxt = [i + 1] if i + 1 < first_d else [i + 1, i + 2]
            span = 16
        else:
            nxt = [i + 2] if i + 2 < len(tiles) else []
            span = 6
        if nxt and tiles[nxt[0]]["n"] != t["n"] and tiles[nxt[0]]["pos"] == 0:
            ex = ["s_memtime s[94:95]", "s_waitcnt lgkmcnt(0)", "v_writelane_b32 v0, s94, %d" % (32 + t["n"])] if "st3" in OPT else []
            put(g0 - 1, ["@waitlds all", "@waitvm s%d" % (t["n"] + 1), "s_barrier"] + ex, 2)
            bar_gap[t["n"]] = g0
        rd = []
        for q in nxt:
            pre, o = frag_reads(tiles[q]); rd += [pre + o[:1]] + [[x] for x in o[1:]]
        for q, x in enumerate(rd): put(g0 + (q * span) // len(rd), x)
    def place(gs, lo, hi):
        for i, x in enumerate(gs): put(lo + (i * (hi - lo + 1)) // len(gs), x)
    early = []
    for n in range(NPF, 4): early += dma(n)
    if early: place(early, 1, 52)
    for n in range(NS - 4): place(dma(n + 4), bar_gap[n] + 2, bar_gap[n] + 52)
    work = []
    for t in range(NPRE, 18):
        for r in range(2):
            work.append(dict(e=0, dl=72 + 9 * r + (t - 9) - 3 if t >= 9 else 0, ops=[(x, 1.3) for x in center(r, t)], key=("x", t, r), hard=True))
    def done_gap(n, T, r): return n * 72 + T * 18 + 9 * r + 8
    for B in range(5):
        if B < 4: nG, nU, nt_, u0 = 4 * B + 1, 4 * B + 3, 4, 2 * B
        else: nG, nU, nt_, u0 = 17, 17, 2, 8
        nxt = nU + 1
        for T in range(nt_):
            for r in range(2):
                g = GA + 8 * T + 4 * r; u = UA + 8 * T + 4 * r
                e = done_gap(nG, T, r) + 3
                eu = done_gap(nU, T if B < 4 else T + 2, r) + 3
                if B < 3: dl = (nxt * 4 + T) * 18 + 9 * r - 2
                elif B == 3: dl = (nxt * 4 + T) * 18 + 9 * r - 2 if T < 2 else (nxt * 4 + 2) * 18 - 2
                else: dl = eu + 6
                t0 = TMP
                ops = []
                for b in range(4): ops.append(("v_mul_f32 v%d, v%d, v%d" % (t0 + b, C1 + r, g + b), 1))
                for b in range(4): ops.append(("v_exp_f32 v%d, v%d" % (t0 + b, t0 + b), 2))
                for b in range(4): ops.append(("v_fma_f32 v%d, v%d, v%d, v%d" % (t0 + b, t0 + b, C2 + r, C2 + r), 1))
                for b in range(4): ops.append(("v_rcp_f32 v%d, v%d" % (t0 + b, t0 + b), 2))
                for b in range(4): ops.append(("v_mul_f32 v%d, v%d, v%d" % (g + b, g + b, t0 + b), 1))
                work.append(dict(e=e, dl=max(eu - 1, e + 8) if B < 4 else eu, ops=ops, key=("s", B, T, r)))
                ops = [("v_mul_f32 v%d, v%d, v%d" % (u + b, u + b, g + b), 1) for b in range(4)]
                work.append(dict(e=eu, dl=dl, ops=ops, key=("m", B, T, r), after=[("s", B, T, r)], hard=True))
                ue = UA + 8 * (T & ~1) + 4 * r
                ops = [("v_cvt_pk_bf16_f32 v%d, v%d, v%d" % (ue + 2 * (T & 1) + j, u + 2 * j, u + 2 * j + 1), 1) for j in range(2)]
                if OWN: ops += [("v_accvgpr_write_b32 a%d, v%d" % (HOWN + 8 * (u0 + (T >> 1)) + 4 * r + 2 * (T & 1) + j, ue + 2 * (T & 1) + j), 1) for j in range(2)]
                aft = [("m", B, T, r)]
                if T & 1:
                    aft.append(("c", B, T - 1, r))
                    ops.append(("s_add_u32 s67, s66, %d\nbuffer_store_dwordx4 %s, v9, s[8:11], s67 offen sc1 ;#h%d" % (((u0 + (T >> 1)) * 2 + r) * 1024, vr(ue, 4), B), 2))
                if B < 3: dl2 = (nxt + 1) * 72 + 10 + 8 * T + 4 * r
                elif B == 3: dl2 = (nxt * 4 + 2) * 18 - 4
                else: dl2 = eu + 10
                work.append(dict(e=eu, dl=dl2, ops=ops, key=("c", B, T, r), after=aft, hard=True))
    if "pfA" in OPT:
        NP = XP.get("pfn4", 3); per = -(-41 // NP)
        put(72 + 5, ["s_lshl_b32 s32, s2, 2", "s_add_u32 s32, s32, s22", "s_mul_i32 s32, s32, 5184", "s_and_b32 s32, s32, 0xffffff80",
                     "v_lshlrev_b32 v15, 7, v1", "v_mov_b32 v14, 0x%x" % BIG, "v_cmp_gt_u32 vcc, %d, v1" % per, "s_nop 1", "v_cndmask_b32 v15, v14, v15, vcc"])
        for q in range(NP):
            put(bar_gap[XP.get("pf0", 2) + q * XP.get("pfd4", 2)] + XP.get("pfg", 54), ["buffer_load_dword a%d, v15, s[48:51], s32 offen" % (200 + q), "s_add_u32 s32, s32, %d" % (per * 128)])
    FLG = 13
    def hloads(c):
        o = []
        for a in range(1 if OWN else 0, 4):
            o.append(["s_add_u32 s27, %s, %d" % (("s%d" % (76 + a), c * 2048) if OWN else ("s68", a * 73728 + c * 2048)), "buffer_load_dwordx4 %s, v9, s[8:11], s27 offen sc1" % ar(hbuf(c) + 8 * a, 4)])
            o.append(["buffer_load_dwordx4 %s, v9, s[8:11], s27 offen offset:1024 sc1" % ar(hbuf(c) + 8 * a + 4, 4)])
        return o
    if OWN:
        for a in range(1, 4):
            put(15 * 72 + 10 + 4 * a, ["s_add_u32 s%d, s26, %d" % (76 + a, a), "s_and_b32 s%d, s%d, 3" % (76 + a, 76 + a), "s_mul_i32 s%d, s%d, 73728" % (76 + a, 76 + a), "s_add_u32 s%d, s%d, s68" % (76 + a, 76 + a)])
    adv = lambda r: ["s_add_u32 %s, %s, 0x20000" % (r, r)]
    put(14 * 72 + 30, flag("h2", 4, 3, "s69") + adv("s69"))
    put(17 * 72 + 40, flag("h3", 4, 3, "s69") + adv("s69"))
    put(19 * 72 + 20, flag("h4", 4, 3, "s69"))
    put(15 * 72 + 40, poll(FLG, 12, "s70")); put(16 * 72 + 4, check("a", FLG, 12, "s70", False) + adv("s70"), 4)
    put(20 * 72 + 10, poll(FLG, 12, "s70")); put(21 * 72 + 2, check("b", FLG, 12, "s70", False) + adv("s70"), 4)
    put(22 * 72 + 60, poll(FLG, 12, "s70")); put(23 * 72 + 60, check("c", FLG, 12, "s70", False), 4)
    for c in range(9):
        if SPL and c == 8: place(hloads(c), 24 * 72 + 1, 24 * 72 + 24)
        else: place(hloads(c), (16 + c) * 72 + 8, (16 + c) * 72 + 66)
    if AL:
        SEL, HR, PL, OO = 112, GA, 200, 116
        g26 = 26 * 72
        sel = ["v_lshrrev_b32 v2, 1, v6", "v_and_b32 v5, 1, v6", "v_lshlrev_b32 v5, 4, v5", "v_mov_b32 v8, 0x3f80", "v_lshlrev_b32 v5, v5, v8"]
        for q in range(4): sel += ["v_cmp_eq_u32 vcc, %d, v2" % q, "v_cndmask_b32 v%d, 0, v5, vcc" % (SEL + q)]
        setup = sel + [
            "s_lshl_b32 s29, s23, 2", "s_add_u32 s29, s29, s26", "s_lshl_b32 s29, s29, 2", "s_add_u32 s71, s29, s22", "s_add_u32 s72, s29, s25",
            "s_mul_i32 s71, s71, 33", "s_add_u32 s71, s71, s25", "s_lshl_b32 s71, s71, 10",
            "s_mul_i32 s72, s72, 33792", "s_lshl_b32 s29, s22, 8", "s_add_u32 s72, s72, s29",
            "s_lshl_b32 s35, s23, 2", "s_add_u32 s35, s35, s22", "s_mul_i32 s35, s35, 68", "s_add_u32 s35, s35, s24", "s_lshl_b32 s35, s35, 10", "s_add_u32 s35, s35, 0x880000",
            "s_lshl_b32 s74, s23, 4", "s_add_u32 s74, s74, s24", "s_mul_i32 s74, s74, 17408", "s_add_u32 s74, s74, s29", "s_add_u32 s74, s74, 0x880000",
            "s_lshl_b32 s73, s23, 2", "s_add_u32 s75, s73, s25", "s_add_u32 s73, s73, s22", "s_lshl_b32 s73, s73, 4", "s_add_u32 s73, s73, s24", "s_lshl_b32 s73, s73, 7",
            "s_add_u32 s73, s73, %d" % FP, "s_lshl_b32 s75, s75, 11", "s_add_u32 s75, s75, %d" % FP,
            "s_lshl_b32 s29, s23, 2", "s_add_u32 s29, s29, s25", "s_mul_i32 s90, s29, 36864", "s_mul_i32 s31, s29, %d" % (32 * 1152),
            "s_lshl_b32 s29, s26, 12", "s_add_u32 s90, s90, s29", "s_lshl_b32 s29, s22, 8", "s_add_u32 s90, s90, s29",
            "s_lshl_b32 s91, s23, 3", "s_lshr_b32 s30, s24, 1", "s_add_u32 s30, s30, s91", "s_mul_i32 s30, s30, 18432", "s_add_u32 s91, s30, s29",
            "s_and_b32 s29, s24, 1", "s_lshl_b32 s32, s29, 10", "s_add_u32 s91, s91, s32", "s_add_u32 s91, s91, 16384",
            "s_lshl_b32 s29, s29, 6", "s_add_u32 s30, s30, s29", "s_add_u32 s30, s30, 1024", "s_lshl_b32 s29, s22, 3", "s_add_u32 s30, s30, s29", "s_add_u32 s31, s31, s29",
            "s_lshl_b32 s29, s26, 8", "s_add_u32 s31, s31, s29",
            "v_lshlrev_b32 v14, 4, v6", "v_mov_b32 v2, 0x%x" % BIG, "v_cmp_gt_u32 vcc, 32, v1",
            "v_lshl_add_u32 v10, v7, 3, v14", "v_lshl_add_u32 v14, v7, 10, v14", "v_cndmask_b32 v10, v2, v10, vcc",
            "v_mul_u32_u24 v15, 1152, v6", "v_lshl_add_u32 v15, v7, 5, v15", "v_cndmask_b32 v15, v2, v15, vcc", "v_lshlrev_b32 v11, 7, v6"]
        place([[x] for x in setup], 19 * 72 + 30, 20 * 72 + 60)
        put(21 * 72 + 30, ["s_add_u32 s40, s20, 0x%x" % WS_P2, "s_addc_u32 s41, s21, 0", "s_and_b32 s41, s41, 0xffff", "s_mov_b32 s42, 0x%x" % P2_BYTES, "s_mov_b32 s43, 0x20000"])
        hl = []
        for q in range(9):
            if q < 8: hl.append(["s_add_u32 s67, s90, %d" % ((q & 1) * 18432 + (q >> 1) * 1024), "buffer_load_dwordx2 %s, v10, s[12:15], s67 offen sc1" % vr(HR + 4 * q + 2, 2)])
            else: hl.append(["buffer_load_dwordx2 %s, v10, s[12:15], s91 offen sc1" % vr(HR + 4 * q + 2, 2)])
        place(hl, 24 * 72 + 4, 24 * 72 + 68)
        for q in range(9):
            h = HR + 4 * q
            ops = ["v_lshlrev_b32 v%d, 16, v%d" % (h, h + 2), "v_and_b32 v%d, 0xffff0000, v%d" % (h + 1, h + 2),
                   "v_lshlrev_b32 v%d, 16, v%d" % (h + 2, h + 3), "v_and_b32 v%d, 0xffff0000, v%d" % (h + 3, h + 3)]
            work.append(dict(e=25 * 72 + 40 + q, dl=g26 + 40, ops=[(x, 1) for x in ops], key=("h", q)))
        for T in range(12):
            for r in range(2):
                a = DA + 8 * T + 4 * r; ae = DA + 8 * (T & ~1) + 4 * r
                e = (g26 + 8 + 8 * T + 4 * r + 3 + 3) if T < 8 else (g26 + 2 * (T - 8) + r + 4)
                ops = [("v_cvt_pk_bf16_f32 v%d, v%d, v%d" % (ae + 2 * (T & 1) + j, a + 2 * j, a + 2 * j + 1), 1) for j in range(2)]
                aft = []
                if T & 1:
                    aft = [("d", T - 1, r)]
                    if T < 8: so = "s_add_u32 s67, s71, %d" % ((2 * (T >> 1) + r) * 4096)
                    else: so = "s_add_u32 s67, s35, %d" % ((2 * r + ((T - 8) >> 1)) * 17408)
                    ops.append((so + "\nbuffer_store_dwordx4 %s, v9, s[40:43], s67 offen sc1 ;#p" % vr(ae, 4), 2))
                work.append(dict(e=e, dl=e + 4, ops=ops, key=("d", T, r), after=aft))
    else:
        QS, SEL, HR, PL, OO = 96, 136, GA, 200, 140
        g26 = 26 * 72
        sel = ["v_lshrrev_b32 v2, 1, v6", "v_and_b32 v5, 1, v6", "v_lshlrev_b32 v5, 4, v5", "v_mov_b32 v8, 0x3f80", "v_lshlrev_b32 v5, v5, v8"]
        for q in range(4): sel += ["v_cmp_eq_u32 vcc, %d, v2" % q, "v_cndmask_b32 v%d, 0, v5, vcc" % (SEL + q)]
        setup = sel + [
            "s_lshl_b32 s29, s23, 2", "s_add_u32 s29, s29, s26", "s_lshl_b32 s29, s29, 2", "s_add_u32 s71, s29, s22", "s_add_u32 s72, s29, s25",
            "s_lshl_b32 s73, s71, 9", "s_lshl_b32 s75, s72, 9",
            "s_mul_i32 s71, s71, 36", "s_add_u32 s71, s71, s25", "s_lshl_b32 s71, s71, 10",
            "s_mul_i32 s72, s72, 36864", "s_lshl_b32 s29, s22, 8", "s_add_u32 s72, s72, s29",
            "s_lshl_b32 s29, s25, 7", "s_add_u32 s73, s73, s29", "s_add_u32 s73, s73, %d" % FP, "s_add_u32 s75, s75, %d" % FP,
            "s_lshl_b32 s29, s23, 2", "s_add_u32 s29, s29, s25", "s_mul_i32 s90, s29, 36864", "s_mul_i32 s32, s29, %d" % (32 * 1152),
            "s_lshl_b32 s29, s22, 8", "s_add_u32 s90, s90, s29",
            "s_lshr_b32 s29, s34, 6", "s_lshl_b32 s29, s29, 10", "s_add_u32 s91, s90, s29", "s_lshl_b32 s29, s35, 3", "s_add_u32 s91, s91, s29",
            "s_lshl_b32 s29, s33, 4", "s_add_u32 s90, s90, s29",
            "s_lshl_b32 s29, s22, 3", "s_add_u32 s32, s32, s29", "s_add_u32 s31, s32, s33", "s_add_u32 s30, s32, s34",
            "v_lshlrev_b32 v14, 4, v6", "v_mov_b32 v2, 0x%x" % BIG, "v_cmp_gt_u32 vcc, 32, v1",
            "v_lshl_add_u32 v10, v7, 3, v14", "v_mul_u32_u24 v11, 18432, v7", "v_add_u32 v11, v11, v14", "v_lshl_add_u32 v14, v7, 10, v14",
            "v_cndmask_b32 v10, v2, v10, vcc", "v_cndmask_b32 v11, v2, v11, vcc",
            "v_mul_u32_u24 v15, 1152, v6", "v_mul_u32_u24 v8, 1152, v1", "v_lshl_add_u32 v15, v7, 5, v15",
            "v_cndmask_b32 v15, v2, v15, vcc", "v_cndmask_b32 v8, v2, v8, vcc"]
        place([[x] for x in setup], 19 * 72 + 30, 20 * 72 + 60)
        put(21 * 72 + 30, ["s_add_u32 s40, s20, 0x%x" % WS_P2, "s_addc_u32 s41, s21, 0", "s_and_b32 s41, s41, 0xffff", "s_mov_b32 s42, 0x%x" % P2_BYTES, "s_mov_b32 s43, 0x20000"])
        hl = []
        for q in range(9):
            if q < 8: hl.append(["s_add_u32 s67, s90, %d" % ((q & 1) * 18432 + (q >> 1) * 1024), "buffer_load_dwordx2 %s, v10, s[12:15], s67 offen sc1" % vr(HR + 4 * q + 2, 2)])
            else: hl.append(["buffer_load_dwordx2 %s, v11, s[12:15], s91 offen sc1" % vr(HR + 4 * q + 2, 2)])
        place(hl, 24 * 72 + 4, 24 * 72 + 68)
        for q in range(9):
            h = HR + 4 * q
            ops = ["v_lshlrev_b32 v%d, 16, v%d" % (h, h + 2), "v_and_b32 v%d, 0xffff0000, v%d" % (h + 1, h + 2),
                   "v_lshlrev_b32 v%d, 16, v%d" % (h + 2, h + 3), "v_and_b32 v%d, 0xffff0000, v%d" % (h + 3, h + 3)]
            work.append(dict(e=25 * 72 + 40 + q, dl=g26 + 40, ops=[(x, 1) for x in ops], key=("h", q)))
        for T in range(9):
            for r in range(2):
                a = DA + 8 * T + 4 * r
                q = 2 * (T >> 1) + r if T < 8 else 8
                o = QS + 4 * q + (2 * (T & 1) if T < 8 else 2 * r)
                e = fin[T] + 4 * r + 3 + 3
                ops = [("v_cvt_pk_bf16_f32 v%d, v%d, v%d" % (o + j, a + 2 * j, a + 2 * j + 1), 1) for j in range(2)]
                aft = []
                if (T < 8 and T & 1) or (T == 8 and r == 1):
                    aft = [("d", T - 1, r)] if T < 8 else [("d", 8, 0)]
                    ops.append(("s_add_u32 s67, s71, %d\nbuffer_store_dwordx4 %s, v9, s[40:43], s67 offen sc1 ;#p" % (q * 4096, vr(QS + 4 * q, 4)), 2))
                work.append(dict(e=e, dl=e + 4, ops=ops, key=("d", T, r), after=aft))
    put(18 * 72 - 1, stamp_ops("p4 A"), 0)
    put(XP.get("csplit", 11) * 72, ["L_s4:"], 0)
    tail, done = edf_place(work, fill, load, NM, XP["cap"] / 100.0)
    body = []
    for x in weave(main, fill): body += x.split("\n")
    if "xvalu" in OPT: body = [x for x in body if not re.match(r"v_(mul_f32|exp|fma_f32|rcp)", x)]
    for fl in ("nt", "sc1", "sc0"):
        if "d" + fl in OPT: body = [x.replace(" lds", " %s lds" % fl) for x in body]
    if "xdma" in OPT: body = [x for x in body if " lds" not in x]
    if "xds" in OPT: body = [x for x in body if not x.startswith("ds_read")]
    if "xb128" in OPT:
        nb = []
        for x in body:
            m = re.match(r"ds_read_b64_tr_b16 a\[(\d+):\d+\], (v\d+) (offset:\d+)(.*)", x)
            if m:
                a = int(m.group(1))
                if a % 4 == 0: nb.append("ds_read_b128 a[%d:%d], v9 %s%s" % (a, a + 3, m.group(3), m.group(4)))
            else: nb.append(x)
        body = nb
    if "xswap" in OPT:
        nb = []
        for x in body:
            m = re.match(r"(v_mfma\S+ \S+), (\S+), (\S+), (.*)", x)
            nb.append("%s, %s, %s, %s" % (m.group(1), m.group(3), m.group(2), m.group(4)) if m else x)
        body = nb
    if "xmfma" in OPT: body = [x for x in body if not x.startswith("v_mfma")]
    k.extend(body); k.extend(tail)
    stamp(k, "p4 D")
    k.extend(flag("p", 4, 3, "s73"))
    stamp(k, "p4 fl")
    if "poll1" in OPT:
        k("s_cmp_lg_u32 s22, 0\ns_cbranch_scc1 L_p5w")
        spin(k, "p5", FLG, 11 if AL else 12, "s75", False, 5)
        k("L_p5w:\ns_barrier")
    else: spin(k, "p5", FLG, 11 if AL else 12, "s75", False, 5)
    stamp(k, "p4 go2")
    if AL:
        for q in range(12):
            k("s_add_u32 s67, %s, %d" % (("s72", q * 4096) if q < 8 else ("s74", (q - 8) * 4096)))
            k("buffer_load_dwordx4 %s, v14, s[40:43], s67 offen sc1" % vr(PL + 4 * q, 4))
        def outq(q):
            a = HR + 4 * q; o = OO + 2 * q
            ops = ["v_cvt_pk_bf16_f32 v%d, v%d, v%d" % (o, a, a + 1), "v_cvt_pk_bf16_f32 v%d, v%d, v%d" % (o + 1, a + 2, a + 3)]
            if q < 8: ops += ["s_add_u32 s67, s31, %d" % ((q & 1) * 16 * 1152), "buffer_store_dwordx2 %s, v15, s[16:19], s67 offen offset:%d" % (vr(o, 2), (q >> 1) * 64)]
            else: ops += ["buffer_store_dwordx2 %s, v15, s[16:19], s30 offen" % vr(o, 2)]
            return ops
        for q in range(12):
            a = vr(HR + 4 * min(q, 8), 4)
            k("v_mfma_f32_16x16x32_bf16 %s, %s, %s, %s" % (a, vr(SEL, 4), vr(PL + 4 * q, 4), a))
            if 2 <= q < 10: k.extend(outq(q - 2))
        k.extend(outq(8))
        return
    for q in range(9):
        k("s_add_u32 s67, s72, %d" % (q * 4096))
        k("buffer_load_dwordx4 %s, v14, s[40:43], s67 offen sc1" % vr(PL + 4 * q, 4))
    fix = lambda ops: [o.replace("s[96:99]", "s[16:19]") for o in ops]
    for q in range(9):
        k("v_mfma_f32_16x16x32_bf16 %s, %s, %s, %s" % (vr(HR + 4 * q, 4), vr(SEL, 4), vr(PL + 4 * q, 4), vr(HR + 4 * q, 4)))
        if q >= 2: k.extend(fix(_outq(q - 2, HR, OO)))
    k.extend(fix(_outq(7, HR, OO))); k.extend(fix(_outq(8, HR, OO)))

def build(path):
    k = K(NAME); k.vgpr = 256; k.agpr = 256; k.sgpr = 102
    k.page_align = True
    k("L_main:\nL_s1:\ns_cmp_ge_u32 s2, 256\ns_cbranch_scc1 L_exit")
    k("s_load_dwordx4 s[4:7], s[0:1], 0\ns_load_dwordx2 s[92:93], s[0:1], 64\ns_load_dwordx2 s[20:21], s[0:1], 72")
    k("v_and_b32 v1, 63, v0\nv_lshrrev_b32 v2, 6, v0")
    if "c1first" in OPT:
        k("s_getpc_b64 s[32:33]\nv_lshlrev_b32 v7, 5, v0\nv_add_u32 v7, 3072, v7\nglobal_load_dword v249, v7, s[32:33]")
    k("v_readfirstlane_b32 s22, v2\ns_mov_b32 s100, 400000")
    if "stamp" in OPT: k("v_mov_b32 v0, 0")
    stamp(k, "start")
    p1(k)
    k("L_s2:")
    p2(k)
    k("L_s3:")
    p3(k)
    p4(k)
    if "stamp" in OPT:
        k("s_waitcnt vmcnt(0)")
        stamp(k, "end")
        k.srd(76, 20, 1 << 22, WS_TS)
        k("s_lshl_b32 s75, s2, 2\ns_add_u32 s75, s75, s22\ns_lshl_b32 s75, s75, 8\nv_lshlrev_b32 v2, 2, v1")
        k("buffer_store_dword v0, v2, s[76:79], s75 offen")
        if "dbgst" in OPT:
            sel = XP.get("sel") or ["start", "p1 x", "p1 ln", "p1 mm", "p1 fl", "p2 go", "p2 st", "p3 go", "p3 fl", "p4 go", "p4 x", "p4 A", "p4 D", "p4 go2", "end"]
            k("v_mov_b32 v4, 0")
            for j, n in enumerate(sel):
                k("v_readlane_b32 s75, v0, %d" % STAMPS.index(n))
                if j == 0: k("s_not_b32 s75, s75")
                k("v_writelane_b32 v4, s75, %d" % (j + 1))
            k.srd(76, 92, 256)
            k("s_mov_b32 exec_hi, 0\ns_mov_b32 exec_lo, 0xfffe")
            k("buffer_atomic_umax v4, v2, s[76:79], 0 offen sc1")
    k("L_exit:\ns_endpgm\n@reset")
    kp = K("tmp")
    kp.srd(96, 20, FL_BYTES, WS_FL)
    prefetch_wg(kp)
    k.extend(SLOW)
    k("L_s5:\nL_pf0:\n@reset")
    k.ins += kp.ins
    k("L_code_end:")
    add_page_stubs(k, "L_main", [("L_c1", "L_s1", "L_s2"), ("L_c2", "L_s2", "L_s3"), ("L_c3", "L_s3", "L_s4"), ("L_c4", "L_s4", "L_s5")], base=XP.get("base", 768))
    hdr = """Pre-LN transformer block (sliding-window attention + SwiGLU FFN), S=2048 D=576 H=32 F=4608, bf16.
One persistent launch, one workgroup per CU; phases hand data over through d_ws with per-launch tagged flags.
Generated by work/gen2.py.  Kernarg: x, wqkv, wo, (unused), w_gate, w_up, w_down, out, dbg, ws."""
    txt = program([(k, 256, 256, 163840)], [k], hdr)
    if "single" in OPT:
        txt = txt.replace("; @launch kernel=%s grid" % NAME, "; @launch grid")
    open(path, "w").write(txt)
    print(k.stats, len(txt), "bytes")
    import json
    json.dump(STAMPS, open(path[:-2] + ".stamps.json", "w"))

if __name__ == "__main__":
    OPT.update(sys.argv[2:])
    for a in sys.argv[2:]:
        if a.startswith('-'): OPT.discard(a[1:])
    for a in sys.argv[2:]:
        if "=" in a: XP[a.split("=")[0]] = int(a.split("=")[1])
    build(sys.argv[1])
```

```python
import re

def vr(a, n=1, p="v"):
    return "%s%d" % (p, a) if n == 1 else "%s[%d:%d]" % (p, a, a + n - 1)
def ar(a, n=1): return vr(a, n, "a")
def sr(a, n=1): return vr(a, n, "s")

_REG = re.compile(r"^(-|abs\(|-abs\(|\|)?([vas])(\d+|\[(\d+):(\d+)\])\)?\|?$")
def regs_of(op):
    op = op.strip()
    if op in ("vcc",): return [("s", "vcc")]
    if op in ("exec",): return [("s", "exec")]
    if op == "m0": return [("s", "m0")]
    m = _REG.match(op)
    if not m: return []
    p = m.group(2)
    if m.group(4) is not None:
        return [(p, i) for i in range(int(m.group(4)), int(m.group(5)) + 1)]
    return [(p, int(m.group(3)))]

TRANS = ("v_exp_f32", "v_log_f32", "v_rcp_f32", "v_rsq_f32", "v_sqrt_f32", "v_sin_f32", "v_cos_f32")

class I:
    __slots__ = ("text", "op", "rd", "wr", "kind", "tag", "passes", "srcc", "srcab", "data")
    def __init__(self, text):
        self.tag = None
        if ";#" in text:
            text, t = text.split(";#"); self.tag = t.strip()
        self.text = text.strip()
        self.passes = 0; self.srcc = []; self.srcab = []; self.data = []
        t = self.text.split(";")[0].strip()
        self.rd = []; self.wr = []
        if t.endswith(":"):
            self.op = "label"; self.kind = "label"; return
        if t.startswith("@"):
            self.op = t.split()[0]; self.kind = "pseudo"; return
        if t.startswith("."):
            self.op = t.split()[0]; self.kind = "directive"; return
        sp = t.split(None, 1)
        self.op = op = sp[0]
        rest = sp[1] if len(sp) > 1 else ""
        ops = [o.strip() for o in re.split(r",(?![^\[]*\])", rest)] if rest else []
        mods = ""
        if ops:
            parts = ops[-1].split(None, 1)
            ops[-1] = parts[0]
            mods = parts[1] if len(parts) > 1 else ""
        R = lambda l: [r for o in l for r in regs_of(o)]
        if op.startswith("v_mfma"):
            self.kind = "mfma"
            self.wr = R(ops[:1]); self.srcab = R(ops[1:3]); self.srcc = R(ops[3:4]); self.rd = self.srcab + self.srcc
            self.passes = 8 if "32x32" in op else 4
        elif op.startswith("buffer_load") or op.startswith("global_load"):
            if re.search(r"\blds\b", mods) or "_lds_" in op:
                self.kind = "dma"; self.rd = R(ops) + [("s", "m0")]
            else:
                self.kind = "vload"; self.wr = R(ops[:1]); self.rd = R(ops[1:])
        elif op.startswith("buffer_store"):
            self.kind = "vstore"; self.rd = R(ops); self.data = R(ops[:1])
        elif op.startswith("global_store"):
            self.kind = "vstore"; self.rd = R(ops); self.data = R(ops[1:2])
        elif op.startswith("buffer_atomic") or op.startswith("global_atomic"):
            if "sc0" in mods and op.startswith("buffer"):
                self.kind = "vload"; self.wr = R(ops[:1]); self.rd = R(ops)
            else:
                self.kind = "vstore"; self.rd = R(ops)
        elif op.startswith("buffer_"):
            self.kind = "vstore"
        elif op.startswith("ds_read") or op.startswith("ds_bpermute") or op.startswith("ds_permute") or op.startswith("ds_swizzle"):
            self.kind = "dsread"; self.wr = R(ops[:1]); self.rd = R(ops[1:])
        elif op.startswith("ds_"):
            self.kind = "dswrite"; self.rd = R(ops)
        elif op.startswith("s_load") or op in ("s_memtime", "s_memrealtime"):
            self.kind = "smem"; self.wr = R(ops[:1]); self.rd = R(ops[1:])
        elif op == "s_waitcnt": self.kind = "wait"
        elif op == "s_nop": self.kind = "nop"
        elif op == "s_barrier": self.kind = "barrier"
        elif op.startswith("s_cbranch") or op in ("s_branch", "s_endpgm", "s_setpc_b64"): self.kind = "branch"
        elif op.startswith("s_cmp") or op.startswith("s_bitcmp"):
            self.kind = "salu"; self.rd = R(ops)
        elif op in ("s_setprio", "s_sleep", "s_sethalt"): self.kind = "salu"
        elif op.startswith("s_"):
            self.kind = "salu"; self.wr = R(ops[:1]); self.rd = R(ops[1:])
            if "saveexec" in op: self.wr += [("s", "exec")]; self.rd += [("s", "exec")]
            if op in ("s_addk_i32", "s_mulk_i32"): self.rd += self.wr
        elif op.startswith("v_"):
            self.kind = "valu"
            base = op.replace("_e32", "").replace("_e64", "").replace("_dpp", "").replace("_sdwa", "")
            if base.startswith("v_permlane") and "swap" in base:
                self.wr = R(ops[:2]); self.rd = R(ops[:2])
            elif base.startswith("v_cmp"):
                self.wr = R(ops[:1]); self.rd = R(ops[1:])
                if base.startswith("v_cmpx"): self.wr += [("s", "exec")]
            elif re.match(r"v_(add|sub|subrev)_co_u32", base):
                self.wr = R(ops[:2]); self.rd = R(ops[2:])
            elif re.match(r"v_(addc|subb|subbrev)_co_u32", base):
                self.wr = R(ops[:2]); self.rd = R(ops[2:])
            else:
                self.wr = R(ops[:1]); self.rd = R(ops[1:])
                if base in ("v_fmac_f32", "v_dot2c_f32_bf16", "v_writelane_b32") or "_dpp" in op or "_sdwa" in op:
                    self.rd += self.wr
            if base in TRANS: self.kind = "trans"
        else:
            raise ValueError("unknown instruction: " + text)

class K:
    def __init__(self, name):
        self.name = name
        self.ins = []
        self.nlab = 0
        self.vgpr = 256; self.agpr = 0; self.sgpr = 102
        self.auto = True
        self.stats = {}
    def __call__(self, s, *a):
        if a: s = s % a
        for l in s.split("\n"):
            l = l.strip()
            if l: self.ins.append(I(l))
    def extend(self, lst):
        for s in lst: self(s)
    def label(self, base="L"):
        self.nlab += 1
        return "%s_%s_%d" % (self.name.replace("_kernel", ""), base, self.nlab)
    def srd(self, d, base, nbytes, off=0):
        if off:
            self("s_add_u32 s%d, s%d, 0x%x" % (d, base, off))
            self("s_addc_u32 s%d, s%d, 0" % (d + 1, base + 1))
            self("s_and_b32 s%d, s%d, 0xffff" % (d + 1, d + 1))
        else:
            self("s_mov_b32 s%d, s%d" % (d, base))
            self("s_and_b32 s%d, s%d, 0xffff" % (d + 1, base + 1))
        self("s_mov_b32 s%d, 0x%x" % (d + 2, nbytes))
        self("s_mov_b32 s%d, 0x20000" % (d + 3))

    def _waits(self):
        out = []
        vm = []
        lg = []
        smem = set()
        def emit_wait(nvm, nlg):
            parts = []
            if nvm is not None: parts.append("vmcnt(%d)" % min(nvm, 63))
            if nlg is not None: parts.append("lgkmcnt(%d)" % min(nlg, 15))
            if not parts: return
            if out and out[-1].kind == "wait" and out[-1].tag == "auto":
                prev = out.pop().text
                m = re.search(r"vmcnt\((\d+)\)", prev)
                if m and nvm is None: parts.insert(0, m.group(0))
                m = re.search(r"lgkmcnt\((\d+)\)", prev)
                if m and nlg is None: parts.append(m.group(0))
            w = I("s_waitcnt " + " ".join(parts)); w.tag = "auto"
            out.append(w)
        for ins in self.ins:
            if ins.kind == "pseudo":
                a = ins.text.split()
                if a[0] == "@waitvm":
                    tags = a[1:]
                    idx = [i for i, e in enumerate(vm) if (tags == ["all"] or e[1] in tags)]
                    if idx:
                        n = len(vm) - 1 - max(idx)
                        emit_wait(n, None); n = min(n, 63); vm[:] = vm[len(vm) - n:] if n else []
                elif a[0] == "@waitlds":
                    tags = a[1:]
                    idx = [i for i, e in enumerate(lg) if (tags == ["all"] or e[1] in tags)]
                    if idx:
                        n = len(lg) - 1 - max(idx)
                        if smem: n = 0
                        emit_wait(None, n); n = min(n, 15); lg[:] = lg[len(lg) - n:] if n else []
                        if n == 0: smem.clear()
                elif a[0] == "@reset":
                    vm[:] = []; lg[:] = []; smem.clear()
                else:
                    raise ValueError(ins.text)
                continue
            if ins.kind == "wait":
                m = re.search(r"vmcnt\((\d+)\)", ins.text)
                if m:
                    n = int(m.group(1)); vm[:] = vm[max(0, len(vm) - n):] if n else []
                m = re.search(r"lgkmcnt\((\d+)\)", ins.text)
                if m:
                    n = int(m.group(1))
                    if n == 0: smem.clear()
                    lg[:] = lg[max(0, len(lg) - n):] if n else []
                out.append(ins); continue
            touched = set(ins.rd) | set(ins.wr)
            nvm = nlg = None
            idx = [i for i, e in enumerate(vm) if e[0] & touched]
            if idx:
                nvm = len(vm) - 1 - max(idx)
            idx = [i for i, e in enumerate(lg) if e[0] & touched]
            if idx:
                nlg = len(lg) - 1 - max(idx)
                if smem: nlg = 0
            if smem & touched: nlg = 0
            if nvm is not None or nlg is not None:
                emit_wait(nvm, nlg)
                if nvm is not None:
                    n = min(nvm, 63); vm[:] = vm[len(vm) - n:] if n else []
                if nlg is not None:
                    n = min(nlg, 15); lg[:] = lg[len(lg) - n:] if n else []
                    if n == 0: smem.clear()
            if ins.kind in ("vload", "vstore", "dma"):
                vm.append((set(ins.wr), ins.tag))
                assert len(vm) <= 64 or True
            elif ins.kind in ("dsread", "dswrite"):
                lg.append((set(ins.wr), ins.tag))
            elif ins.kind == "smem":
                smem |= set(ins.wr)
            out.append(ins)
        self.ins = out

    def _hazards(self):
        out = []
        pos = 0
        lastw = {}
        lastc = {}
        lastst = {}
        nn = 0
        for ins in self.ins:
            if ins.kind in ("label", "directive"):
                out.append(ins); continue
            need = 0
            def req(p, n):
                nonlocal need
                need = max(need, n - (pos - p - 1))
            isv = ins.kind in ("valu", "trans")
            for r in set(ins.rd):
                if r not in lastw: continue
                p, w = lastw[r]
                wv = w.kind in ("valu", "trans")
                if r[0] in "va":
                    if wv:
                        if ins.kind == "mfma": req(p, 2)
                        if isv and ("_dpp" in ins.op or ins.op.startswith("v_permlane")): req(p, 2)
                        if ins.op.startswith("v_readlane") or ins.op.startswith("v_readfirstlane"): req(p, 1)
                        if w.kind == "trans" and ins.kind == "valu": req(p, 2)
                        if w.kind == "trans" and ins.kind in ("dswrite", "vstore"): req(p, 2)
                        if w.kind == "trans" and ins.kind == "mfma": req(p, 2)
                        if w.op.startswith("v_dot"):
                            base = lambda o: o.replace("_e32", "").replace("_e64", "")
                            if base(ins.op) == base(w.op) and r in ins.rd[-1:] and r not in ins.rd[:-1]: pass
                            else: req(p, 3)
                        if "_sdwa" in w.op and isv: req(p, 1)
                    if w.kind == "mfma":
                        if ins.kind == "mfma":
                            if r in ins.srcab: req(p, 8 if w.passes == 4 else 12)
                            if r in ins.srcc:
                                if ins.srcc == w.wr and ins.passes == w.passes: pass
                                else: req(p, 6 if w.passes == 4 else 10)
                        else: req(p, 8 if w.passes == 4 else 12)
                else:
                    if wv:
                        if ins.kind in ("vload", "vstore", "dma"): req(p, 5)
                        elif isv:
                            if ins.op.startswith("v_readlane") or ins.op.startswith("v_writelane"): req(p, 4)
                            else: req(p, 2)
                        elif ins.kind == "salu": req(p, 1)
                    if r == ("s", "m0") and w.kind == "salu" and ins.kind == "dma": req(p, 1)
            for r in set(ins.wr):
                if r in lastw:
                    p, w = lastw[r]
                    if w.kind == "mfma" and ins.kind != "mfma": req(p, 8 if w.passes == 4 else 12)
                    if w.kind == "mfma" and ins.kind == "mfma" and r not in ins.srcc: req(p, 8 if w.passes == 4 else 12)
                    if w.op.startswith("v_dot") and isv and w.op != ins.op: req(p, 3)
                if r in lastc and isv:
                    p, w = lastc[r]; req(p, 3 if w.passes == 4 else 7)
                if r in lastst and ins.kind != "branch":
                    req(lastst[r], 2 if isv else 1)
            if ins.kind == "mfma" and ("s", "exec") in lastw and lastw[("s", "exec")][1].kind in ("valu", "trans"):
                req(lastw[("s", "exec")][0], 4)
            while need > 0:
                n = min(need, 16)
                x = I("s_nop %d" % (n - 1)); out.append(x); pos += n; need -= n; nn += 1
            if ins.kind == "nop":
                pos += int(ins.text.split()[1]) + 1
                out.append(ins); continue
            for r in ins.wr: lastw[r] = (pos, ins)
            if ins.kind == "mfma":
                for r in ins.srcc: lastc[r] = (pos, ins)
            if ins.kind == "vstore" and len(ins.data) >= 3:
                for r in ins.data: lastst[r] = pos
            out.append(ins); pos += 1
        self.ins = out
        self.stats["nops"] = nn

    def finalize(self):
        if self.auto:
            self._waits(); self._hazards(); self.auto = False
        mv = ma = ms = -1
        cnt = {}
        for i in self.ins:
            cnt[i.kind] = cnt.get(i.kind, 0) + 1
            for p, n in i.rd + i.wr:
                if isinstance(n, int):
                    if p == "v": mv = max(mv, n)
                    elif p == "a": ma = max(ma, n)
                    else: ms = max(ms, n)
        self.stats.update(cnt); self.stats.update(maxv=mv, maxa=ma, maxs=ms)
        assert mv < self.vgpr and ma < max(self.agpr, 0) + (0 if self.agpr else 0) or (ma < 0 and mv < self.vgpr), (self.name, mv, ma)
        assert ms < self.sgpr
    def text(self):
        self.finalize()
        o = [".globl %s" % self.name] + ([".p2align 12"] if getattr(self, "page_align", False) else []) + [".p2align 8", ".type %s,@function" % self.name, "%s:" % self.name]
        o += [(i.text if i.kind == "label" else " " + i.text) for i in self.ins]
        return "\n".join(o) + "\n"
    def desc(self):
        acc = (self.vgpr + 3) // 4 * 4
        nfv = acc + self.agpr if self.agpr else self.vgpr
        return "\n".join([
            ".p2align 6",
            ".amdhsa_kernel %s" % self.name,
            "  .amdhsa_next_free_vgpr %d" % nfv,
            "  .amdhsa_next_free_sgpr %d" % self.sgpr,
            "  .amdhsa_accum_offset %d" % acc,
            "  .amdhsa_group_segment_fixed_size 0",
            "  .amdhsa_kernarg_size 80",
            "  .amdhsa_user_sgpr_count 2",
            "  .amdhsa_user_sgpr_kernarg_segment_ptr 1",
            "  .amdhsa_system_sgpr_workgroup_id_x 1",
            "  .amdhsa_float_denorm_mode_32 3",
            "  .amdhsa_float_denorm_mode_16_64 3",
            "  .amdhsa_ieee_mode 0",
            "  .amdhsa_dx10_clamp 0",
            ".end_amdhsa_kernel"]) + "\n"

def program(launches, kernels, header=""):
    o = []
    for l in header.strip().split("\n"):
        if l.strip(): o.append("; " + l.strip())
    for k, g, b, lds in launches:
        o.append("; @launch kernel=%s grid=(%d,1,1) block=(%d,1,1) lds=%d" % (k.name, g, b, lds))
    o.append('.amdgcn_target "amdgcn-amd-amdhsa--gfx950"')
    o.append(".text")
    s = "\n".join(o) + "\n"
    for k in kernels: s += k.text()
    s += '.section .rodata,"a"\n'
    for k in kernels: s += k.desc()
    return s

def weave(main, fill):
    out = list(fill.get(-1, []))
    for i, m in enumerate(main):
        out.append(m)
        out += fill.get(i, [])
    return out

def spread(fill, items, lo, hi):
    n = len(items)
    span = hi - lo + 1
    for j, it in enumerate(items):
        idx = lo + (j * span) // n
        fill.setdefault(idx, [])
        if isinstance(it, (list, tuple)): fill[idx] += list(it)
        else: fill[idx].append(it)


import subprocess, os, tempfile
def ins_sizes(k):
    txt = '.amdgcn_target "amdgcn-amd-amdhsa--gfx950"\n.text\n' + "\n".join(i.text for i in k.ins if i.kind != "directive") + "\n"
    with tempfile.TemporaryDirectory() as d:
        open(d + "/a.s", "w").write(txt)
        r = subprocess.run(["llvm-mc", "-triple", "amdgcn-amd-amdhsa", "-mcpu=gfx950", "-show-encoding", d + "/a.s"], capture_output=True, text=True)
        assert r.returncode == 0, r.stderr[:2000]
    sizes = []
    for l in r.stdout.split("\n"):
        m = re.search(r"encoding: \[(.*?)\]", l)
        if m: sizes.append(len(m.group(1).split(",")))
    real = [i for i in k.ins if i.kind not in ("label", "directive")]
    assert len(real) == len(sizes), (len(real), len(sizes))
    return sizes

def add_page_stubs(k, main_label, groups, nw=4, base=0):
    k.finalize()
    sizes = iter(ins_sizes(k))
    out = []; off = None; nextpage = 4096; execz = False
    cur = None; pages = {g[0]: [] for g in groups}
    starts = {g[1] + ":": g[0] for g in groups}; ends = {g[2] + ":" for g in groups}
    for ins in k.ins:
        if ins.kind == "label":
            if ins.text == main_label + ":": off = base
            if ins.text in ends: cur = None
            if ins.text in starts: cur = starts[ins.text]
            out.append(ins); continue
        if ins.kind == "directive":
            out.append(ins); continue
        sz = next(sizes)
        if off is not None:
            if off >= nextpage and not execz:
                if cur is not None:
                    n_ = "%s_p%d" % (cur, len(pages[cur]))
                    br = I("s_branch PLACEHOLDER")
                    pages[cur].append(br); out += [I("s_branch %s_s" % n_), I(n_ + ":"), br, I(n_ + "_s:")]; off += 8
                nextpage += 4096
            off += sz
        if ins.text == "s_mov_b64 exec, 0": execz = True
        elif ins.text == "s_mov_b64 exec, -1": execz = False
        out.append(ins)
    for name, lst in pages.items():
        for j, br in enumerate(lst):
            br.text = "s_branch %s" % ("%s_p%d" % (name, j + nw) if j + nw < len(lst) else name + "_ret")
    for ins in out:
        m = re.match(r"(s_cbranch_scc1|s_branch) (\w+)_h(\d+)$", ins.text)
        if m and m.group(2) in pages:
            j = int(m.group(3))
            ins.text = "%s %s" % (m.group(1), "%s_p%d" % (m.group(2), j) if j < len(pages[m.group(2)]) else m.group(2) + "_ret")
    k.ins = out
    k.stats["code_bytes"] = off
    k.stats["pages"] = {n: len(l) for n, l in pages.items()}

def touch_chain(k, name, wavereg, nw=4):
    for w in range(nw - 1): k("s_cmp_eq_u32 s%d, %d\ns_cbranch_scc1 %s_h%d" % (wavereg, w, name, w))
    k("s_branch %s_h%d" % (name, nw - 1))
    k("%s_ret:" % name)
```

```python
import sys, struct, re
from asmgen import *
from gen import edf_place, tr_addrs, dma_piece, bf16_round, f2u, LOG2E, _outq

S, D, F, NQKV, NH, DH = 2048, 576, 4608, 1728, 32, 18
NAME = "sequential_preLN__sliding_block__swiglu_ffn__prompt_kernel"
CGS = 16384 + 128
WS_Z, Z_BYTES = 0, 432 * CGS
import os
OPS = int(os.environ.get("OPS", 32768 + 1024 + 256))
O2S = int(os.environ.get("O2S", 8192 + 256))
WS_OP, OP_BYTES = 0x700000, 64 * OPS
WS_O2, O2_BYTES = 0x940000, 32 * O2S
WS_H, H_BYTES = 0xA00000, 128 * 18 * 1024
WS_ST, ST_BYTES = 0xD00000, 6 * 2048 * 8
WS_FL, FL_BYTES = 0xE00000, 0xF0000
WS_HB, HB_BYTES = 0x1000000, 256 * 73728
WS_P2, P2_BYTES = 0x2400000, 256 * 53248
WS_TS = 0x4000000
F1, F2, F3, FH, FP, FEPOCH, FW = 0, 0x20000, 0x40000, 0x60000, 0xC0000, 0xE0000, 0xE8000
WS_WT = 0x3400000
X_BYTES = S * D * 2
WB = D * F * 2
BIG = 0x7fff0000
OPT = set()
OPT.update(['msub', 'wo1', 'ownh', 'split', 'poll1', 'poll2', 'poll3', 'wdt', 'xinit', 'qkdefer'])
XP = dict(npre=18, dr0=17, drs=3, cap=300, slp=0, wearly=0, wj=5, nwe=0, nw0=14, nx0=6, won=12)
SLOW = []
NSTAMP = [0]
STAMPS = []

def stamp(k, name):
    if "stamp" not in OPT: return
    k("s_memrealtime s[94:95]\ns_waitcnt lgkmcnt(0)\nv_writelane_b32 v0, s94, %d" % NSTAMP[0])
    STAMPS.append(name); NSTAMP[0] += 1
def stamp_ops(name):
    if "stamp" not in OPT: return []
    o = ["s_memrealtime s[94:95]", "s_waitcnt lgkmcnt(0)", "v_writelane_b32 v0, s94, %d" % NSTAMP[0]]
    STAMPS.append(name); NSTAMP[0] += 1
    return o

def poll(vflag, vaddr, soff):
    return ["buffer_load_dword v%d, v%d, s[96:99], %s offen sc1" % (vflag, vaddr, soff)]
def check(name, vflag, vaddr, soff, gate=True, ptmp=None):
    slp = ["s_sleep %d" % XP["slp"]] if XP.get("slp") else []
    if "pipe" in OPT and ptmp is not None:
        t = ptmp
        SLOW.extend(["L_slow_%s:" % name, "s_mov_b64 exec, vcc"] + poll(vflag, vaddr, soff) + ["s_nop 15", "s_nop 15", "s_nop 15", "s_nop 15", "L_loop_%s:" % name] +
                    poll(t, vaddr, soff) + ["s_waitcnt vmcnt(1)", "v_cmp_ne_u32 vcc, s3, v%d" % vflag, "s_nop 4", "s_cbranch_vccz L_out_%s" % name] +
                    poll(vflag, vaddr, soff) + ["s_waitcnt vmcnt(1)", "v_cmp_ne_u32 vcc, s3, v%d" % t, "s_sub_u32 s100, s100, 1", "s_cbranch_scc1 L_out_%s" % name, "s_nop 2",
                     "s_cbranch_vccnz L_loop_%s" % name, "L_out_%s:" % name, "s_mov_b64 exec, -1", "s_branch L_back_%s" % name])
    elif "gate" not in OPT:
        one = ["s_ff1_i32_b64 s94, vcc", "s_lshl_b64 exec, 1, s94"] if False else ["s_mov_b64 exec, vcc"]
        SLOW.extend(["L_slow_%s:" % name] + one + slp + poll(vflag, vaddr, soff) + ["s_waitcnt vmcnt(0)", "v_cmp_ne_u32 vcc, s3, v%d" % vflag,
                     "s_sub_u32 s100, s100, 1", "s_cbranch_scc1 L_out_%s" % name, "s_nop 2", "s_cbranch_vccnz L_slow_%s" % name,
                     "L_out_%s:" % name, "s_mov_b64 exec, -1", "s_branch L_back_%s" % name])
    elif gate:
        SLOW.extend(["L_slow_%s:" % name, "s_ff1_i32_b64 s94, vcc", "s_lshl_b64 exec, 1, s94", "L_gate_%s:" % name] + poll(vflag, vaddr, soff) +
                    ["s_waitcnt vmcnt(0)", "v_cmp_ne_u32 vcc, s3, v%d" % vflag, "s_sub_u32 s100, s100, 1", "s_cbranch_scc1 L_full_%s" % name, "s_nop 2",
                     "s_cbranch_vccz L_full_%s" % name] + slp + ["s_branch L_gate_%s" % name, "L_full_%s:" % name, "s_mov_b64 exec, -1"] + poll(vflag, vaddr, soff) +
                    ["s_waitcnt vmcnt(0)", "v_cmp_ne_u32 vcc, s3, v%d" % vflag, "s_sub_u32 s100, s100, 1", "s_cbranch_scc1 L_back_%s" % name, "s_nop 2",
                     "s_cbranch_vccnz L_slow_%s" % name, "s_branch L_back_%s" % name])
    else:
        SLOW.extend(["L_slow_%s:" % name] + poll(vflag, vaddr, soff) + ["s_waitcnt vmcnt(0)", "v_cmp_ne_u32 vcc, s3, v%d" % vflag,
                     "s_sub_u32 s100, s100, 1", "s_cbranch_scc1 L_back_%s" % name, "s_nop 2", "s_cbranch_vccz L_back_%s" % name] + slp + ["s_branch L_slow_%s" % name])
    return ["v_cmp_ne_u32 vcc, s3, v%d" % vflag, "s_nop 4", "s_cbranch_vccnz L_slow_%s" % name, "L_back_%s:" % name]
def spin(k, name, vflag, vaddr, soff, gate=True, ptmp=None):
    k.extend(poll(vflag, vaddr, soff))
    k("s_waitcnt vmcnt(0)")
    k.extend(check(name, vflag, vaddr, soff, gate, ptmp))
def flag(tag, vtmp, vlane0, soff):
    return ["@waitvm " + tag, "v_mov_b32 v%d, s3" % vtmp, "buffer_store_dword v%d, v%d, s[96:99], %s offen sc1" % (vtmp, vlane0, soff)]
def lane0(k, dst, tmp):
    k("v_mov_b32 v%d, 0x%x\nv_cmp_eq_u32 vcc, 0, v1\nv_cndmask_b32 v%d, v%d, v1, vcc" % (tmp, BIG, dst, tmp))

def get_tag(k, vt, issued):
    k("v_readfirstlane_b32 s3, v%d" % vt)
    k("s_cmp_eq_u32 s3, 0\ns_cbranch_scc1 L_tagslow_%s\nL_tagback_%s:" % (issued, issued))
    SLOW.extend(["L_tagslow_%s:" % issued, "v_mov_b32 v%d, 0" % vt, "global_load_dword v%d, v%d, s[92:93] sc1" % (vt, vt), "s_waitcnt vmcnt(0)",
                 "v_readfirstlane_b32 s3, v%d" % vt, "s_sub_u32 s100, s100, 1", "s_cbranch_scc1 L_tagback_%s" % issued,
                 "s_cmp_eq_u32 s3, 0", "s_cbranch_scc1 L_tagslow_%s" % issued, "s_branch L_tagback_%s" % issued])

def prefetch_wg(k):
    k("L_pf:")
    k("s_load_dwordx2 s[8:9], s[0:1], 16\ns_load_dwordx4 s[12:15], s[0:1], 32\ns_load_dwordx2 s[16:17], s[0:1], 48")
    k("s_sub_u32 s23, s2, 224\ns_lshl_b32 s24, s23, 2\ns_add_u32 s24, s24, s22")
    k("v_lshlrev_b32 v2, 7, v1")
    if "tlb" in OPT:
        SH = XP.get("tlbs", 20)
        k("s_load_dwordx2 s[18:19], s[0:1], 56\nv_lshlrev_b32 v3, %d, v1" % SH)
        k.srd(28, 20, 0x4000000)
        for q in range(max(1, (1 << 20) >> SH)):
            k("s_mov_b32 s25, %d\nbuffer_load_dword v%d, v3, s[28:31], s25 offen" % (q * (64 << SH), 40 + (q & 7)))
        k("s_waitcnt lgkmcnt(0)")
        for q, (b, n) in enumerate(((18, X_BYTES), (8, D * D * 2), (12, WB), (14, WB), (16, WB))):
            k.srd(28, b, n)
            k("buffer_load_dword v%d, v3, s[28:31], 0 offen" % (50 + q))
    if "nopfq" not in OPT:
        k.srd(28, 6, D * NQKV * 2)
        k("s_mul_i32 s25, s24, 15616")
        k("buffer_load_dword v10, v2, s[28:31], s25 offen\ns_add_u32 s25, s25, 8192\nbuffer_load_dword v11, v2, s[28:31], s25 offen")
    if "tag0" in OPT: k("s_branch L_pf_notag")
    k("s_cmp_lg_u32 s24, 0\ns_cbranch_scc1 L_pf_notag")
    k("v_mov_b32 v4, %d\nbuffer_load_dword v5, v4, s[96:99], 0 offen sc1\ns_waitcnt vmcnt(0)" % FEPOCH)
    k("v_add_u32 v5, 1, v5\nv_max_u32 v5, 1, v5\nv_mov_b32 v6, 0")
    k("global_store_dword v6, v5, s[92:93] sc1\nbuffer_store_dword v5, v4, s[96:99], 0 offen sc1")
    k("L_pf_notag:")
    k("s_getpc_b64 s[32:33]\nL_pc:\ns_sub_u32 s32, s32, L_pc-L_main\ns_subb_u32 s33, s33, 0")
    k("s_lshr_b32 s25, s23, 3\ns_lshl_b32 s25, s25, 2\ns_add_u32 s25, s25, s22\ns_lshl_b32 s25, s25, 13")
    k("v_add_u32 v3, s25, v2\ns_mov_b32 s25, L_code_end-L_main-4\nv_min_u32 v3, s25, v3")
    if "nocode" not in OPT: k("global_load_dword v12, v3, s[32:33]")
    k("s_waitcnt vmcnt(0) lgkmcnt(0)")
    k.srd(28, 8, D * D * 2)
    k("s_mul_i32 s25, s24, 5248\nv_cmp_gt_u32 vcc, 41, v1\nv_mov_b32 v4, 0x%x\nv_cndmask_b32 v4, v4, v2, vcc\nbuffer_load_dword v10, v4, s[28:31], s25 offen" % BIG)
    k("s_waitcnt vmcnt(0)")
    k.srd(28, 12, WB)
    k("s_lshl_b32 s25, s24, 15")
    for j in range(0 if "nopf1" in OPT else 4):
        k("buffer_load_dword v%d, v2, s[28:31], s25 offen\ns_add_u32 s25, s25, 8192" % (11 + j))
    ND1 = XP.get("nd1", 0)
    if ND1:
        k.srd(28, 16, WB)
        k("s_mul_i32 s25, s24, %d" % (8192 * ND1))
        for j in range(ND1):
            k("buffer_load_dword v%d, v2, s[28:31], s25 offen\ns_add_u32 s25, s25, 8192" % (16 + j))
    lane0(k, 250, 2)
    p2_scalar(k)
    k("v_mov_b32 v248, 0\nglobal_load_dword v248, v248, s[92:93] sc1\ns_waitcnt vmcnt(0)")
    get_tag(k, 248, "pf")
    k("s_branch L_p2v")

_tc = touch_chain
def touch_chain(k, name, w):
    if 'notouch' in OPT: k('%s_ret:' % name)
    else: _tc(k, name, w)

def p1(k):
    XL, RING, STL = 0, 73728, 73728 + 4 * 20480
    if "map47" in OPT:
        k("s_lshr_b32 s23, s2, 5")
        k("s_and_b32 s24, s2, 7\ns_lshl_b32 s24, s24, 2\ns_bfe_u32 s25, s2, 0x20003\ns_add_u32 s24, s24, s25")
    else:
        k("s_and_b32 s26, s2, 1\ns_lshl_b32 s26, s26, 2\ns_lshr_b32 s23, s2, 6\ns_add_u32 s23, s23, s26")
        k("s_bfe_u32 s24, s2, 0x30003\ns_bfe_u32 s25, s2, 0x20003\ns_add_u32 s25, s25, s26")
        k("s_cmp_ge_u32 s2, 192\ns_cselect_b32 s23, 3, s23\ns_cselect_b32 s24, s25, s24")
        k("s_bfe_u32 s25, s2, 0x20001\ns_lshl_b32 s25, s25, 3\ns_add_u32 s24, s24, s25")
    k("s_lshl_b32 s25, s23, 2\ns_add_u32 s25, s25, s22")
    k("v_lshrrev_b32 v3, 3, v1\nv_and_b32 v4, 7, v1")
    k("v_mul_u32_u24 v5, 1152, v3\nv_lshl_add_u32 v5, v4, 4, v5")
    k("s_lshl_b32 s26, s24, 6\ns_lshl_b32 s27, s22, 4\ns_add_u32 s26, s26, s27\ns_mul_i32 s26, s26, 1152")
    k("v_add_u32 v15, %d, v5" % (8 * 1152))
    k("s_and_b32 s27, s24, 3\ns_mul_i32 s27, s27, 5\ns_lshr_b32 s27, s27, 1")
    if "norot" in OPT: k("s_mov_b32 s27, 0")
    VD = 251
    k("v_lshrrev_b32 v6, 2, v3\nv_lshlrev_b32 v6, 3, v6\nv_and_b32 v7, 3, v3\nv_add_u32 v6, v6, v7")
    k("v_mul_u32_u24 v6, 3456, v6")
    k("v_lshrrev_b32 v7, 1, v3\nv_lshlrev_b32 v7, 1, v7\nv_xor_b32 v7, v7, v4\nv_lshl_add_u32 v6, v7, 4, v6")
    base = [0, 16, 4, 20]
    for a in range(4):
        k("v_add_u32 v%d, %d, v6" % (VD + a, base[a] * 3456 - a * 1024))
    k("s_lshl_b32 s30, s25, 7\ns_mul_i32 s28, s27, %d\ns_add_u32 s28, s28, s30\ns_add_u32 s31, s30, %d" % (64 * 3456, 576 * 3456))
    k("s_lshl_b32 s27, s27, 7\ns_add_u32 s27, s27, s26\ns_add_u32 s101, s26, 1152")
    k("s_mul_i32 s29, s22, 20480\ns_add_u32 s29, s29, %d" % RING)
    k("s_waitcnt lgkmcnt(0)")
    stamp(k, "karg")
    if "tag0" in OPT:
        k("s_lshl_b32 s36, s2, 2\ns_add_u32 s36, s36, s22\ns_cmp_lg_u32 s36, 1023\ns_cbranch_scc1 L_notag")
        k.srd(96, 20, FL_BYTES, WS_FL)
        k("v_mov_b32 v8, %d\nbuffer_load_dword v9, v8, s[96:99], 0 offen sc1\nv_mov_b32 v10, 0\nglobal_load_dword v11, v10, s[92:93] sc1\ns_waitcnt vmcnt(0)" % FEPOCH)
        k("v_add_u32 v9, 1, v9\nv_max_u32 v9, 1, v9")
        k("global_store_dword v10, v9, s[92:93] sc1\nbuffer_store_dword v9, v8, s[96:99], 0 offen sc1\nL_notag:\n@reset")
    k("s_cmp_ge_u32 s2, 224\ns_cbranch_scc1 L_pf0")
    k.srd(8, 4, X_BYTES)
    XR = 16
    for j in range(9):
        for h in range(2):
            k("buffer_load_dwordx4 %s, v%d, s[8:11], s27 offen" % (vr(XR + (h * 9 + j) * 4, 4), (5, 15)[h]))
        if j < 8: k("s_add_u32 s27, s27, 128\ns_cmp_eq_u32 s27, s101\ns_cselect_b32 s27, s26, s27")
    k("s_mov_b32 s26, s30\ns_mov_b32 s27, s31")
    k.srd(12, 6, D * NQKV * 2)
    def dma(t):
        o = ["s_add_u32 m0, s29, %d" % ((t % 5) * 4096)]
        for a in range(4):
            o.append("buffer_load_dwordx4 v%d, s[12:15], s28 offen offset:%d lds ;#w%d" % (VD + a, 1024 * a, t))
        o.append("s_add_u32 s28, s28, %d\ns_cmp_eq_u32 s28, s27\ns_cselect_b32 s28, s26, s28" % (32 * 3456))
        return o
    WEARLY = XP.get("wearly", 0)
    for t in range(WEARLY): k.extend(dma(t))
    k.srd(96, 20, FL_BYTES, WS_FL)
    if "c1late" in OPT:
        k("s_getpc_b64 s[32:33]\nv_lshlrev_b32 v7, 5, v1\ns_lshl_b32 s34, s22, 11\ns_add_u32 s34, s34, 2048\nv_add_u32 v7, s34, v7\nglobal_load_dword v249, v7, s[32:33]")
    elif "c1first" not in OPT: touch_chain(k, "L_c1", 22)
    p2_scalar(k)
    k.srd(16, 20, Z_BYTES, WS_Z)
    k("s_lshr_b32 s30, s22, 1\ns_lshl_b32 s30, s30, 1")
    k("v_lshrrev_b32 v7, 5, v1\nv_add_u32 v7, s30, v7\nv_mul_u32_u24 v7, 18, v7")
    k("v_lshrrev_b32 v10, 2, v4\nv_add_u32 v7, v7, v10\nv_lshlrev_b32 v7, 10, v7")
    k("v_and_b32 v10, 3, v4\nv_lshl_add_u32 v7, v10, 8, v7")
    k("s_and_b32 s30, s22, 1\ns_lshl_b32 s30, s30, 3")
    k("v_and_b32 v10, 3, v3\nv_add_u32 v10, s30, v10")
    k("v_xor_b32 v11, v10, v4\nv_lshl_add_u32 v8, v11, 4, v7")
    k("v_add_u32 v10, 4, v10\nv_xor_b32 v11, v10, v4\nv_lshl_add_u32 v9, v11, 4, v7")
    k("v_and_b32 v10, 15, v1\nv_lshrrev_b32 v11, 4, v1")
    k("v_xor_b32 v12, v10, v11\nv_lshlrev_b32 v12, 4, v12\nv_lshl_add_u32 v247, v11, 8, v12")
    tr_addrs(k, 240, 1, "s29", 12)
    k("s_mov_b32 s31, %d" % CGS)
    k("v_lshrrev_b32 v12, 2, v10\nv_mul_lo_u32 v12, v12, s31\nv_lshl_add_u32 v12, v11, 6, v12\nv_and_b32 v13, 3, v10\nv_lshl_add_u32 v244, v13, 4, v12")
    k("s_cmp_ge_u32 s25, 27\ns_cselect_b32 s30, 0x%x, 0\nv_add_u32 v244, s30, v244" % BIG)
    k("v_lshlrev_b32 v245, 5, v11\nv_add_u32 v245, %d, v245" % STL)
    k("s_lshl_b32 s30, s22, 6\ns_add_u32 s30, s30, %d\nv_lshl_add_u32 v246, v3, 2, s30" % STL)
    lane0(k, 250, 12)
    k("s_mov_b32 s32, 0x3f803f80\ns_mov_b32 s33, 0x00003f80\ns_mov_b32 s34, 0x3f800000\ns_mov_b32 s35, 0x%x" % f2u(1.0 / D))
    T0 = 88
    winit = []
    for t in range(WEARLY, 5):
        d = dma(t); winit += [d[:2], d[2:3], d[3:4], d[4:]]
    for i in range(8): k("v_mov_b32 v%d, 0" % (T0 + i))
    if "c1first" in OPT:
        k("v_mov_b32 v249, v249")
        touch_chain(k, "L_c1", 22)
    for j in range(9):
        for c in range(4):
            for h in range(2):
                k("v_dot2c_f32_bf16 v%d, s32, v%d" % (T0 + 2 * h + (c & 1), XR + (h * 9 + j) * 4 + c))
                if "varold" not in OPT:
                    x = XR + (h * 9 + j) * 4 + c
                    k("v_dot2c_f32_bf16 v%d, v%d, v%d" % (T0 + 4 + 2 * h + (c & 1), x, x))
        if "mockL" in OPT:
            for h in range(2): k("ds_write_b128 v%d, %s offset:%d" % (8 + h, vr(XR + (h * 9 + j) * 4, 4), XL + 2048 * j))
        if j == 0 and "c1late" in OPT: touch_chain(k, "L_c1", 22)
        jw = j - XP.get("wj", 1)
        if jw >= 0:
            for _ in range(XP.get("wa", 1)):
                if winit: k.extend(winit.pop(0))
        if j == 0: stamp(k, "p1 x0")
    stamp(k, "p1 x")
    k("v_add_f32 v%d, v%d, v%d\nv_add_f32 v%d, v%d, v%d" % (T0, T0, T0 + 1, T0 + 2, T0 + 2, T0 + 3))
    for ctl in ("quad_perm:[1,0,3,2]", "quad_perm:[2,3,0,1]", "row_half_mirror"):
        for r in (T0, T0 + 2):
            k("v_add_f32_dpp v%d, v%d, v%d %s row_mask:0xf bank_mask:0xf" % (r, r, r, ctl))
    for h in range(2):
        r = T0 + 2 * h
        k("v_mul_f32 v%d, s35, v%d" % (r, r))
        bf16_round(k, r + 1, r)
        if "varold" in OPT: k("v_sub_f32 v%d, v%d, v%d" % (r, r, r + 1))
        k("v_sub_f32 v%d, 0, v%d" % (r + 1, r + 1))
    WF = 208
    def wreg(t, T): return ar(16 * t + 4 * T, 4) if t < 16 else vr(WF + 16 * (t - 16) + 4 * T, 4)
    def wreg2(t, T, j): return ar(16 * t + 4 * T + 2 * j, 2) if t < 16 else vr(WF + 16 * (t - 16) + 4 * T + 2 * j, 2)
    def drain(t):
        return ["@waitvm w%d" % t] + ["ds_read_b64_tr_b16 %s, v%d offset:%d ;#d%d" % (wreg2(t, T, j), 240 + T, (t % 5) * 4096 + j * 2048, t) for T in range(4) for j in range(2)]
    def refill(t):
        return (["@waitlds d%d" % t] + dma(t + 5)) if t + 5 < 18 else []
    T1 = T0 + 8
    nd = 0
    g = 0
    VARPOS = len(k.ins)
    if "mockL" in OPT:
        while winit: k.extend(winit.pop(0))
        for q in range(XP.get("ndm", 1)):
            k.extend(drain(nd)); k.extend(refill(nd)); nd += 1
    for j in range(9 if "mockL" not in OPT else 0):
        for h in range(2):
            x = XR + (h * 9 + j) * 4
            for c in range(4):
                k("v_dot2_f32_bf16 v%d, v%d, s33, v%d" % (T1 + 2 * c, x + c, T0 + 2 * h + 1))
                k("v_dot2_f32_bf16 v%d, v%d, s34, v%d" % (T1 + 2 * c + 1, x + c, T0 + 2 * h + 1))
            for c in range(4):
                k("v_cvt_pk_bf16_f32 v%d, v%d, v%d" % (x + c, T1 + 2 * c, T1 + 2 * c + 1))
            k("ds_write_b128 v%d, %s offset:%d" % (8 + h, vr(x, 4), XL + 2048 * j))
            g += 1
            for _ in range(XP.get("wb", 1)):
                if winit: k.extend(winit.pop(0))
            if g >= XP["dr0"]: assert not winit
            if g > XP["dr0"] and (g - 1 - XP["dr0"]) % XP["drs"] == 0: k.extend(refill(nd - 1))
            if g >= XP["dr0"] and (g - XP["dr0"]) % XP["drs"] == 0 and g < 18: k.extend(drain(nd)); nd += 1
    var = []
    for j in range(9):
        for c in range(4):
            for h in range(2):
                x = XR + (h * 9 + j) * 4 + c
                if "varold" in OPT: var.append("v_dot2c_f32_bf16 v%d, v%d, v%d" % (T0 + 4 + 2 * h + (c & 1), x, x))
    var += ["v_add_f32 v%d, v%d, v%d" % (T0 + 4, T0 + 4, T0 + 5), "v_add_f32 v%d, v%d, v%d" % (T0 + 6, T0 + 6, T0 + 7)]
    for ctl in ("quad_perm:[1,0,3,2]", "quad_perm:[2,3,0,1]", "row_half_mirror"):
        for r in (T0 + 4, T0 + 6):
            var.append("v_add_f32_dpp v%d, v%d, v%d %s row_mask:0xf bank_mask:0xf" % (r, r, r, ctl))
    rnd = lambda r: ["v_cvt_pk_bf16_f32 v%d, v%d, v%d" % (r, r, r), "v_and_b32 v%d, 0xffff0000, v%d" % (r, r)]
    for h in range(2):
        r = T0 + 4 + 2 * h; dl = T0 + 2 * h
        var += ["v_mul_f32 v%d, v%d, v%d" % (dl, dl, dl), "v_fma_f32 v%d, v%d, s35, -v%d" % (r, r, dl), "v_max_f32 v%d, 0, v%d" % (r, r)] + rnd(r)
        var += ["v_add_f32 v%d, 0x%x, v%d" % (r, f2u(1e-5), r)] + rnd(r) + ["v_sqrt_f32 v%d, v%d" % (r, r)] + rnd(r)
        var += ["v_rcp_f32 v%d, v%d" % (r, r), "ds_write_b32 v246, v%d offset:%d" % (r, 32 * h)]
    if "varold" in OPT: k.extend(var)
    else:
        body = k.ins[VARPOS:]; k.ins = k.ins[:VARPOS]
        if "mockL" in OPT: k.extend(var); var = ["s_nop 0"]
        step = max(1, (len(body) - 20) // len(var)); vi = 0
        for n, ins in enumerate(body):
            k.ins.append(ins)
            if n % step == step - 1 and vi < len(var) and not ins.op.startswith("s_"): k(var[vi]); vi += 1
        k.extend(var[vi:])
    k("v_mov_b32 v10, v247\nv_xor_b32 v11, 64, v247\nv_add_u32 v12, 36864, v10\nv_add_u32 v13, 36864, v11")
    k("@waitlds all\ns_barrier")
    stamp(k, "p1 ln")
    X2, ACC1, XF1, RR = 16, 160, 192, 2
    def xa(r, t): return "v%d offset:%d" % (10 + (t & 1) + 2 * (r >> 1), XL + ((r & 1) * 18 + t) * 1024)
    def x1reads(t): return ["ds_read_b128 %s, %s" % (vr(XF1 + 8 * (t & 1) + 4 * r, 4), xa(r, t)) for r in range(2)]
    def x2reads(t): return ["ds_read_b128 %s, %s" % (vr(X2 + 72 * r + 4 * t, 4), xa(r + 2, t)) for r in range(2)]
    k.extend(x1reads(0))
    main = []; fill = {}
    for t in range(18):
        g0 = 8 * t
        for u in range(8):
            T, r = u >> 1, u & 1
            a = vr(ACC1 + 8 * T + 4 * r, 4)
            main.append("v_mfma_f32_16x16x32_bf16 %s, %s, %s, %s" % (a, vr(XF1 + 8 * (t & 1) + 4 * r, 4), wreg(t, T), a if t else "0"))
        if "mockL" in OPT:
            for T in range(4): fill.setdefault(g0 + 2 * T + 1, []).append("v_mfma_f32_16x16x32_bf16 v[144:147], v[148:151], %s, v[144:147]" % wreg(t, T))
        if t + 1 < 18: spread(fill, x1reads(t + 1), g0, g0 + 1)
        spread(fill, x2reads(t), g0 + 6, g0 + 7)
        if nd < 18:
            d = drain(nd)
            spread(fill, [d[:2]] + d[2:], g0 + 2, g0 + 5)
            rf = refill(nd)
            if rf:
                for q, x in enumerate([rf[:3], rf[3:4], rf[4:5], rf[5:]]): fill.setdefault(g0 + 8 + 2 * q, []).extend(x)
            nd += 1
    assert nd == 18
    fill.setdefault(8 * 12, []).extend(["v_mov_b32 v248, 0", "global_load_dword v248, v248, s[92:93] sc1"])
    def rread(h): return ["ds_read_b128 %s, v245 offset:%d" % (vr(RR + 4 * r, 4), 128 * h + 16 * r) for r in range(2)]
    QS_ = "msub" in OPT or "qs" in OPT
    def rscale(): return ["v_mul_f32 v%d, s31, v%d" % (RR + i, RR + i) for i in range(8)] if QS_ else []
    if QS_: fill.setdefault(8 * 16, []).append("s_cmp_lt_u32 s25, 9\ns_cselect_b32 s31, s88, 1.0")
    spread(fill, rread(0), 8 * 17, 8 * 17 + 1)
    fill.setdefault(8 * 17 + 2, []).append("s_mul_i32 s28, s25, %d\ns_lshl_b32 s30, s24, 9\ns_add_u32 s28, s28, s30" % (16 * CGS))
    def epi(a, T, h):
        o = []
        for r in range(2):
            o += ["v_mul_f32 v%d, v%d, v%d" % (a + 4 * r + b, a + 4 * r + b, RR + 4 * r + b) for b in range(4)]
        o += ["v_cvt_pk_bf16_f32 v%d, v%d, v%d" % (a + j, a + 2 * j, a + 2 * j + 1) for j in range(4)]
        o.append("s_add_u32 s30, s28, %d\nbuffer_store_dwordx4 %s, v244, s[16:19], s30 offen offset:%d sc1 ;#z" % (4 * T * CGS, vr(a, 4), 256 * h))
        return o
    G2 = len(main)
    if "stamp" in OPT: fill.setdefault(G2 - 1, []).extend(stamp_ops("p1 m1"))
    for T in range(4):
        for r in range(2):
            a = vr(XF1 + 8 * (T & 1) + 4 * r, 4)
            for t in range(18):
                main.append("v_mfma_f32_16x16x32_bf16 %s, %s, %s, %s" % (a, vr(X2 + 72 * r + 4 * t, 4), wreg(t, T), a if t else "0"))
    e1 = rscale()
    for T in range(4): e1 += epi(ACC1 + 8 * T, T, 0)
    spread(fill, e1 + rread(1), G2 + 2, G2 + 33)
    if QS_: spread(fill, rscale(), G2 + 35, G2 + 38)
    for T in range(3): spread(fill, epi(XF1 + 8 * (T & 1), T, 1), G2 + 36 * (T + 1) + 3, G2 + 36 * (T + 1) + 20)
    if "wo1" in OPT:
        kw = K("tmp"); wo_offsets(kw, "main", 10)
        fill.setdefault(G2 + 1, []).extend(["@waitlds all", "s_barrier"])
        spread(fill, [i.text for i in kw.ins], G2 + 2, G2 + 20)
        spread(fill, wo_dmas()[:XP.get("won", 24)], G2 + XP.get("wo0", 24), G2 + XP.get("wo9", 120))
    k.extend(weave(main, fill))
    stamp(k, "p1 mm")
    k.extend(epi(XF1 + 8, 3, 1))
    get_tag(k, 248, "p1")
    k("s_lshl_b32 s30, s24, 12\ns_lshl_b32 s31, s25, 7\ns_add_u32 s30, s30, s31")
    stamp(k, "p1 st")
    k("L_p2v:")
    p2_vector(k)
    k("s_cmp_ge_u32 s2, 224\ns_cbranch_scc1 L_p2")
    k.extend(flag("z", 2, 250, "s30"))
    stamp(k, "p1 fl")

WOB = 53248
KB, VB, AUX, QB = 0, 20800, 41600, WOB + 16 * 6144
AK1, AK3, AQ1, AQ3, AV, VO1, VO2 = 232, 233, 234, 235, 236, 237, 238
VD2, VE2, VH2, VHE2 = 240, 244, 251, 253
MK = 208
KF, VF, QF, OA = 0, 80, 160, 176
def p2_scalar(k):
    k("s_load_dwordx2 s[90:91], s[0:1], 16")
    k("s_lshr_b32 s80, s2, 5")
    k("s_and_b32 s81, s2, 7\ns_lshl_b32 s81, s81, 2\ns_bfe_u32 s68, s2, 0x20003\ns_add_u32 s81, s81, s68")
    k("s_mul_i32 s68, s81, 18\ns_and_b32 s82, s68, 3\ns_lshr_b32 s68, s68, 2")
    k("s_add_u32 s83, s68, 144\ns_mul_i32 s83, s83, %d" % CGS)
    k("s_lshl_b32 s84, s80, 1\ns_add_u32 s84, s84, s22\ns_cmp_lt_u32 s84, 2\ns_cselect_b32 s69, 0, 2\ns_sub_u32 s84, s84, s69")
    k("s_lshl_b32 s84, s84, 10\ns_add_u32 s83, s83, s84\ns_lshl_b32 s84, s22, 10")
    k("s_mul_i32 s85, s68, %d\ns_lshl_b32 s69, s80, 11\ns_add_u32 s85, s85, s69\ns_lshl_b32 s87, s22, 9\ns_add_u32 s85, s85, s87" % CGS)
    k("s_mul_i32 s86, s22, 3072\ns_add_u32 s86, s86, %d" % QB)
    k("v_lshrrev_b32 v12, 5, v1\nv_lshlrev_b32 v12, 3, v12\nv_and_b32 v13, 31, v1\nv_sub_u32 v12, v13, v12")
    for rho in range(16):
        a, b = rho >> 2, rho & 3
        k("v_cmp_le_i32 s[%d:%d], %d, v12" % (36 + 2 * rho, 37 + 2 * rho, 16 * (a >> 1) + 4 * (a & 1) + b))
    k("s_lshl_b32 s68, s80, 8\ns_lshl_b32 s69, s22, 6\ns_add_u32 s68, s68, s69")
    k("s_mul_i32 s69, s81, %d\ns_lshl_b32 s70, s68, 4\ns_add_u32 s69, s69, s70" % (2 * OPS))
    k("s_mul_i32 s70, s81, %d\ns_lshl_b32 s68, s68, 2\ns_add_u32 s70, s70, s68" % O2S)
    k("s_mul_i32 s72, s80, 192\ns_and_b32 s73, s80, 1\ns_lshl_b32 s74, s73, 6\ns_xor_b32 s73, s73, 1\ns_lshl_b32 s73, s73, 7")
    k("s_add_u32 s73, s73, s72\ns_add_u32 s72, s72, s74")
    k("s_lshl_b32 s71, s80, 1\ns_lshr_b32 s74, s22, 1\ns_add_u32 s71, s71, s74\ns_cmp_eq_u32 s71, 0\ns_cselect_b32 s71, 0xff7fff7f, 0")
    c = LOG2E * DH ** -0.5
    k("s_mov_b32 s75, 0x%x\ns_mov_b32 s88, 0x%x\ns_mov_b32 s89, s88" % (f2u(-c), f2u(c)))
    k("s_waitcnt lgkmcnt(0)")
    k.srd(76, 90, D * D * 2)
    k("s_cmp_ge_u32 s2, 192\ns_cselect_b32 s78, 0, s78")
    k("s_mul_i32 s90, s22, %d\ns_mul_i32 s91, s22, 6144\ns_add_u32 s91, s91, %d" % (36 * 1152, WOB))

def p2_vector(k):
    touch_chain(k, "L_c2", 22)
    k("v_lshrrev_b32 v2, 3, v1\ns_lshl_b32 s28, s80, 2\ns_cmp_eq_u32 s80, 0\ns_cselect_b32 s29, 3, 7\ns_cselect_b32 s27, 0, 4\ns_sub_u32 s28, s28, s27")
    k("v_and_b32 v2, s29, v2\nv_add_u32 v2, s28, v2\nv_lshlrev_b32 v2, 12, v2\ns_mul_i32 s27, s81, 18")
    k("v_and_b32 v3, 7, v1\nv_min_u32 v3, 5, v3\nv_and_b32 v4, 1, v3\nv_mul_u32_u24 v4, 17, v4\nv_add_u32 v4, s27, v4\nv_lshrrev_b32 v4, 6, v4")
    k("v_lshrrev_b32 v3, 1, v3\nv_mul_u32_u24 v3, 9, v3\nv_add_u32 v3, v3, v4\nv_lshl_add_u32 v14, v3, 7, v2")
    k("v_lshlrev_b32 v3, 4, v1")
    k("v_lshrrev_b32 v5, 5, v1\nv_mul_u32_u24 v4, %d, v5\nv_and_b32 v10, 31, v1\nv_lshl_add_u32 v4, v10, 4, v4\nv_lshlrev_b32 v15, 4, v10" % CGS)
    k("v_bfe_u32 v6, v1, 4, 1\nv_bfe_u32 v7, v1, 2, 2\nv_and_b32 v8, 3, v1")
    k("v_and_b32 v9, 1, v8\nv_lshl_add_u32 v9, v6, 1, v9\nv_lshlrev_b32 v9, 6, v9\nv_lshrrev_b32 v11, 1, v8\nv_lshl_add_u32 v9, v11, 3, v9")
    k("v_lshrrev_b32 v13, 1, v8\nv_lshl_add_u32 v13, v6, 1, v13\nv_lshlrev_b32 v13, 6, v13\nv_and_b32 v11, 1, v8\nv_lshl_add_u32 v13, v11, 3, v13")
    k("v_lshl_add_u32 v11, v5, 3, v7\nv_add_u32 v11, s82, v11")
    k("v_lshrrev_b32 v12, 2, v11\nv_and_b32 v11, 3, v11\nv_lshlrev_b32 v11, 4, v11")
    k("v_mul_u32_u24 v2, 4160, v12\nv_add3_u32 v2, v2, v11, v9\nv_add_u32 v%d, s87, v2" % AK1)
    k("v_lshl_add_u32 v2, v12, 9, v11\nv_add3_u32 v%d, v2, v13, s86" % AQ1)
    k("v_min_u32 v11, 1, v7\nv_add_u32 v11, s82, v11\nv_lshlrev_b32 v11, 4, v11")
    k("v_add3_u32 v2, v11, v9, s87\nv_add_u32 v2, %d, v2\nv_add_u32 v12, s87, v9\nv_add_u32 v12, %d, v12" % (4 * 4160, AUX))
    k("v_cmp_gt_u32 vcc, 2, v7\nv_cndmask_b32 v%d, v12, v2, vcc" % AK3)
    k("v_add3_u32 v2, v11, v13, s86\nv_add_u32 v%d, 2048, v2" % AQ3)
    k("v_add_u32 v11, s82, v10\nv_lshrrev_b32 v12, 2, v11\nv_and_b32 v11, 3, v11")
    k("v_mul_u32_u24 v12, 4160, v12\nv_lshl_add_u32 v12, v11, 4, v12\nv_add_u32 v12, %d, v12" % VB)
    k("v_mov_b32 v11, %d\nv_cmp_gt_u32 vcc, 18, v10\nv_cndmask_b32 v12, v11, v12, vcc" % (AUX + 16))
    k("v_lshl_add_u32 v12, v5, 6, v12\nv_add_u32 v%d, s87, v12" % AV)
    k("v_mul_u32_u24 v%d, %d, v5\nv_lshl_add_u32 v%d, v10, 4, v%d" % (VO1, OPS, VO1, VO1))
    k("v_lshlrev_b32 v2, 2, v10\nv_mov_b32 v6, 0x%x\nv_cmp_gt_u32 vcc, 32, v1\nv_cndmask_b32 v%d, v6, v2, vcc" % (BIG, VO2))

def wo_offsets(k, which, t=6):
    VD, VE, VH, VHE = VD2, VE2, VH2, VHE2
    a, b, c, d = t, t + 1, t + 2, t + 3
    dma_piece(k, b, 1, c)
    if which != "ext":
        k("v_mul_u32_u24 v%d, 1152, v%d\nv_add_u32 v%d, v%d, v%d" % (a, c, a, a, b))
        un = [0, 18, 8, 26]
        for q in range(4): k("v_add_u32 v%d, %d, v%d" % (VD + q, un[q] * 1152 - q * 1024, a))
    if which != "main":
        k("v_lshrrev_b32 v{a}, 2, v{c}\nv_lshlrev_b32 v{a}, 2, v{a}\nv_bfe_u32 v{d}, v{c}, 1, 1\nv_add_u32 v{a}, v{a}, v{d}\nv_mul_u32_u24 v{a}, 18, v{a}\nv_and_b32 v{d}, 1, v{c}\nv_add_u32 v{a}, v{a}, v{d}".format(a=a, c=c, d=d))
        k("v_mul_u32_u24 v%d, 1152, v%d\nv_add_u32 v%d, v%d, v%d" % (a, a, a, a, b))
        ue = [16, 18 * 8 + 16, 18 * 2 + 16, 18 * 10 + 16]
        for q in range(4): k("v_add_u32 v%d, %d, v%d" % (VE + q, ue[q] * 1152 - q * 1024, a))
    k("v_lshrrev_b32 v{c}, 2, v1\nv_bfe_u32 v{b}, v1, 4, 1\nv_lshlrev_b32 v{b}, 1, v{b}\nv_and_b32 v{d}, 3, v1\nv_xor_b32 v{b}, v{b}, v{d}\nv_lshlrev_b32 v{b}, 4, v{b}".format(b=b, c=c, d=d))
    if which != "ext":
        k("v_lshrrev_b32 v{a}, 3, v{c}\nv_mul_u32_u24 v{a}, 18, v{a}\nv_and_b32 v{d}, 7, v{c}\nv_add_u32 v{a}, v{a}, v{d}\nv_mul_u32_u24 v{a}, 1152, v{a}\nv_add_u32 v{h}, v{a}, v{b}".format(a=a, b=b, c=c, d=d, h=VH))
        k("v_add_u32 v%d, %d, v%d" % (VH + 1, 8 * 1152 - 1024, VH))
    if which != "main":
        k("v_lshrrev_b32 v{a}, 2, v{c}\nv_lshlrev_b32 v{a}, 2, v{a}\nv_bfe_u32 v{d}, v{c}, 1, 1\nv_add_u32 v{a}, v{a}, v{d}\nv_mul_u32_u24 v{a}, 18, v{a}\nv_and_b32 v{d}, 1, v{c}\nv_add3_u32 v{a}, v{a}, v{d}, 16".format(a=a, c=c, d=d))
        k("v_mul_u32_u24 v%d, 1152, v%d\nv_add_u32 v%d, v%d, v%d\nv_add_u32 v%d, %d, v%d" % (a, a, VHE, a, b, VHE + 1, 36 * 1152 - 1024, VHE))

def wo_dmas():
    VD, VE, VH, VHE = VD2, VE2, VH2, VHE2
    wo = []
    for rnd in range(5):
        vb, vh = (VD, VH) if rnd < 4 else (VE, VHE)
        pre = []
        if rnd == 4:
            pre = ["s_and_b32 s90, s22, 1", "s_mul_i32 s91, s90, 6144", "s_add_u32 s91, s91, %d" % WOB, "s_mul_i32 s90, s90, %d" % (18 * 16 * 1152)]
        pre += ["s_add_u32 m0, s91, %d" % (rnd * 4 * 6144), "s_add_u32 s101, s90, s72"]
        for a in range(4):
            wo.append(pre + ["buffer_load_dwordx4 v%d, s[76:79], s101 offen offset:%d lds ;#wo" % (vb + a, 1024 * a)]); pre = []
        pre = ["s_add_u32 m0, s91, %d" % (rnd * 4 * 6144 + 4096), "s_add_u32 s101, s90, s73"]
        for a in range(2):
            wo.append(pre + ["buffer_load_dwordx4 v%d, s[76:79], s101 offen offset:%d lds ;#wo" % (vh + a, 1024 * a)]); pre = []
        if rnd < 3: wo[-1].append("s_add_u32 s90, s90, %d" % (4 * 36 * 1152))
    return wo

def p2(k):
    SCO = 16
    k("L_p2:\n@reset")
    k.srd(8, 20, Z_BYTES, WS_Z)
    k.srd(12, 20, OP_BYTES, WS_OP)
    k.srd(16, 20, O2_BYTES, WS_O2)
    k("s_barrier")
    k("v_and_b32 v2, 3, v1\nv_lshl_add_u32 v6, v1, 4, s84")
    k("v_mov_b32 v7, s71\nv_mov_b32 v8, 0x3f803f80\nv_cmp_eq_u32 vcc, 0, v2\nv_cndmask_b32 v8, v8, v7, vcc")
    k("v_mov_b32 v9, v8\nv_mov_b32 v10, v8\nv_mov_b32 v11, v8")
    k("ds_write_b128 v6, v[8:11] offset:%d" % AUX)
    kw = K("tmp"); wo_offsets(kw, "ext" if ("wo1" in OPT and XP.get("won", 24) == 24) else "both"); k.ins += kw.ins
    wo = wo_dmas()
    if "wo1" in OPT: wo = wo[XP.get("won", 24):]
    if "earlypoll" in OPT: k.extend(poll(16, 14, "0"))
    NWE = XP.get("nwe", 24)
    for x in wo[:NWE]: k.extend(x)
    wo = wo[NWE:]
    k("v_mov_b32 v12, 0xffff\nv_mov_b32 v13, 0xffff0000")
    for i in range(8):
        k("v_cndmask_b32 v2, 0, v12, s[%d:%d]\nv_cndmask_b32 v6, 0, v13, s[%d:%d]\nv_or_b32 v%d, v2, v6" % (36 + 4 * i, 37 + 4 * i, 38 + 4 * i, 39 + 4 * i, MK + i))
    for n in range(10): k("v_accvgpr_write_b32 a%d, 0\nv_accvgpr_write_b32 a%d, 0" % (KF + 8 * n + 6, KF + 8 * n + 7))
    for u in range(2): k("v_accvgpr_write_b32 a%d, 0\nv_accvgpr_write_b32 a%d, 0" % (QF + 8 * u + 6, QF + 8 * u + 7))
    k("v_mov_b32 v2, 0x3f80\nv_cmp_gt_u32 vcc, 32, v1\nv_cndmask_b32 v2, 0, v2, vcc\nv_accvgpr_write_b32 a%d, v2\nv_accvgpr_write_b32 a%d, v2" % (QF + 5, QF + 13))
    if "msub" in OPT:
        k("v_accvgpr_write_b32 a209, v2\nv_mov_b32 v6, 0x3f803f80\nv_cndmask_b32 v6, 0, v6, vcc\nv_accvgpr_write_b32 a208, v6")
        for a in (210, 211, 214, 215, 218, 219): k("v_accvgpr_write_b32 a%d, 0" % a)
    touch_chain(k, "L_c3", 22)
    if "poll2" in OPT:
        stamp(k, "p2 setup")
        k("s_cmp_lg_u32 s22, 0\ns_cbranch_scc1 L_p2w")
        spin(k, "p2", 16, 14, "0")
        k("L_p2w:\ns_barrier")
    else:
        if "earlypoll" not in OPT: k.extend(poll(16, 14, "0"))
        stamp(k, "p2 setup")
        k.extend(check("p2", 16, 14, "0", ptmp=17))
    stamp(k, "p2 go")
    k("s_mov_b32 m0, s86")
    k("buffer_load_dwordx4 v4, s[8:11], s85 offen sc1 lds ;#q")
    k("s_add_u32 m0, s86, 1024\ns_add_u32 s85, s85, %d" % (2 * CGS))
    k("buffer_load_dwordx4 v4, s[8:11], s85 offen sc1 lds ;#q")
    k("s_add_u32 m0, s86, 2048\ns_add_u32 s85, s85, %d" % (2 * CGS))
    k("buffer_load_dwordx4 v15, s[8:11], s85 offen sc1 lds ;#q")
    for m in range(2):
        for c in range(5):
            k("s_add_u32 m0, s84, %d" % (m * VB + c * 4160))
            k("buffer_load_dwordx4 v3, s[8:11], s83 offen sc1 lds ;#%s" % "kv"[m])
            k("s_add_u32 s83, s83, %d" % (CGS if c < 4 else 140 * CGS))
    k("s_load_dwordx4 s[4:7], s[0:1], 32\ns_lshl_b32 s26, s2, 2\ns_add_u32 s26, s26, s22\ns_mul_i32 s27, s26, 1088\ns_and_b32 s27, s27, 0xffffff80\ns_add_u32 s27, s27, 0x400000")
    k("s_mul_i32 s26, s26, 5184\ns_and_b32 s26, s26, 0xffffff80")
    k("v_lshlrev_b32 v229, 7, v1\nv_mov_b32 v6, 0x%x\nv_cmp_gt_u32 vcc, 14, v1\nv_cndmask_b32 v229, v6, v229, vcc" % BIG)
    k("@waitvm q")
    for u in range(2):
        k("ds_read_b64_tr_b16 %s, v%d offset:%d\nds_read_b64_tr_b16 %s, v%d offset:%d\nds_read_b64_tr_b16 %s, v%d offset:%d" % (
            ar(QF + 8 * u, 2), AQ1, 256 * u, ar(QF + 8 * u + 2, 2), AQ1, 512 + 256 * u, vr(6 + 2 * u, 2), AQ3, 256 * u))
    k("v_cmp_gt_u32 vcc, 32, v1")
    for u in range(2): k("v_cndmask_b32 v%d, 0, v%d, vcc\nv_accvgpr_write_b32 a%d, v%d" % (6 + 2 * u, 6 + 2 * u, QF + 8 * u + 4, 6 + 2 * u))
    k("@waitvm k\n@waitlds all\ns_barrier")
    stamp(k, "p2 k")
    def kread(n):
        f = KF + 8 * n
        return ["ds_read_b64_tr_b16 %s, v%d offset:%d" % (ar(f, 2), AK1, KB + 256 * n),
                "ds_read_b64_tr_b16 %s, v%d offset:%d" % (ar(f + 2, 2), AK1, KB + 256 * n + 4160),
                "ds_read_b64_tr_b16 %s, v%d offset:%d" % (ar(f + 4, 2), AK3, 256 * n)]
    def vread(n, s): return "ds_read_b128 %s, v%d offset:%d" % (ar(VF + 8 * n + 4 * s, 4), AV, 256 * n + 128 * s)
    order = [0, 8, 1, 2, 3, 4, 5, 6, 7]
    slot = [{j: j for j in range(9)}, dict(zip(order, [9, 10, 11, 0, 8, 1, 2, 3, 4]))]
    def sreg(u, j): return SCO + 16 * slot[u][j]
    def qk(u, j):
        s = vr(sreg(u, j), 16); f = KF + 8 * (j + u)
        return ["v_mfma_f32_32x32x16_bf16 %s, %s, %s, 0" % (s, ar(f, 4), ar(QF + 8 * u, 4)),
                "v_mfma_f32_32x32x16_bf16 %s, %s, %s, %s" % (s, ar(f + 4, 4), ar(QF + 8 * u + 4, 4), s)]
    MX = [216, 220]
    def maxops(u, j, first):
        b = sreg(u, j); m = MX[u]; o = []
        if j == 8: return []
        if j == 0:
            b8 = sreg(u, 8)
            o += ["v_cndmask_b32 v%d, v%d, v%d, s[%d:%d]" % (b + rho, b + rho, b8 + rho, 36 + 2 * rho, 37 + 2 * rho) for rho in range(16)]
            o += ["v_max3_f32 v%d, v%d, v%d, v%d" % (m, b, b + 1, b + 2), "v_max3_f32 v%d, v%d, v%d, v%d" % (m + 1, b + 3, b + 4, b + 5)]
            o += ["v_max3_f32 v%d, v%d, v%d, v%d" % (m + (i & 1), m + (i & 1), b + 6 + 2 * i, b + 7 + 2 * i) for i in range(5)]
        else:
            o += ["v_max3_f32 v%d, v%d, v%d, v%d" % (m + (i & 1), m + (i & 1), b + 2 * i, b + 2 * i + 1) for i in range(8)]
        return o
    ONE, MB = 208, [212, 216]
    def msub(u, j):
        s_ = vr(sreg(u, j), 16)
        return "v_mfma_f32_32x32x16_bf16 %s, %s, %s, %s" % (s_, ar(ONE, 4), ar(MB[u], 4), s_)
    def maxfin(u):
        m = MX[u]
        if "msub" in OPT:
            return ["v_max_f32 v%d, v%d, v%d" % (m, m, m + 1), "v_mov_b32 v%d, v%d" % (m + 1, m), "v_permlane32_swap_b32 v%d, v%d" % (m, m + 1),
                    "v_max_f32 v%d, v%d, v%d" % (m, m, m + 1),
                    "v_xor_b32 v%d, 0x80000000, v%d" % (m, m), "v_and_b32 v%d, 0xffff0000, v%d" % (m + 1, m), "v_sub_f32 v%d, v%d, v%d" % (m, m, m + 1),
                    "v_and_b32 v%d, 0xffff0000, v%d" % (m + 2, m), "v_sub_f32 v%d, v%d, v%d" % (m, m, m + 2),
                    "v_alignbit_b32 v%d, v%d, v%d, 16" % (m + 1, m + 3, m + 1), "v_and_b32 v%d, 0xffff, v%d" % (m + 1, m + 1), "v_or_b32 v%d, v%d, v%d" % (m + 1, m + 1, m + 2),
                    "v_lshrrev_b32 v%d, 16, v%d" % (m, m),
                    "v_accvgpr_write_b32 a%d, v%d" % (MB[u], m + 1), "v_accvgpr_write_b32 a%d, v%d" % (MB[u] + 1, m)]
        return ["v_max_f32 v%d, v%d, v%d" % (m, m, m + 1), "v_mov_b32 v%d, v%d" % (m + 1, m), "v_permlane32_swap_b32 v%d, v%d" % (m, m + 1),
                "v_max_f32 v%d, v%d, v%d" % (m, m, m + 1)] + (["v_mul_f32 v%d, s75, v%d" % (m, m), "v_mov_b32 v%d, v%d" % (m + 1, m)] if "qs" not in OPT else [])
    for n in (0, 8, 1, 2): k.extend(kread(n))
    rest = [3, 4, 5, 6, 7, 9]
    for i, j in enumerate(order):
        q = qk(0, j)
        k(q[0])
        if i < len(rest): k.extend(kread(rest[i]))
        k(q[1])
        if i >= 2: k.extend(maxops(0, order[i - 2], False))
    if "qkdefer" in OPT: k.extend(maxops(0, order[7], False)); k.extend(maxops(0, order[8], False))
    else: k.extend(qk(1, 0)); k.extend(maxops(0, order[7], False)); k.extend(qk(1, 8)); k.extend(maxops(0, order[8], False))
    k("@waitvm v\ns_barrier")
    k.srd(28, 4, WB)
    k.srd(32, 6, WB)
    pfl = [["buffer_load_dword a240, v229, s[28:31], s27 offen"]] + [["buffer_load_dword a%d, v229, s[32:35], s26 offen offset:%d" % (241 + j, 1792 * j)] for j in range(3)]
    if "nopf2" in OPT: pfl = []
    vr_list = [vread(n, s) for n in [0, 8, 1, 2, 3, 4, 5, 6, 7, 9] for s in range(2)]
    k.extend(vr_list[:6])
    k.extend(maxfin(0))
    if "msub" in OPT: k(msub(0, 0)); k(msub(0, 1))
    stamp(k, "p2 s")
    vr_list = vr_list[6:]
    first = [True, True]
    def pv(u, j):
        o = []
        for s in range(2):
            a = ar(OA + 16 * u, 16)
            o.append("v_mfma_f32_32x32x16_bf16 %s, %s, %s, %s" % (a, ar(VF + 8 * (j + u) + 4 * s, 4), vr(sreg(u, j) + 4 * s, 4), "0" if first[u] else a))
            first[u] = False
        return o
    def expops(u, j):
        b = sreg(u, j); m = MX[u]; o = []
        for hf in range(2):
            if "msub" in OPT: pass
            elif "qs" in OPT:
                for i in range(8): o.append("v_sub_f32 v%d, v%d, v%d" % (b + 8 * hf + i, b + 8 * hf + i, m))
            elif "pk" not in OPT:
                for i in range(8): o.append("v_fma_f32 v%d, v%d, s88, v%d" % (b + 8 * hf + i, b + 8 * hf + i, m))
            else:
                for i in range(0, 8, 2): o.append("v_pk_fma_f32 %s, %s, s[88:89], %s" % (vr(b + 8 * hf + i, 2), vr(b + 8 * hf + i, 2), vr(m, 2)))
            for i in range(8): o.append("v_exp_f32 v%d, v%d" % (b + 8 * hf + i, b + 8 * hf + i))
            for i in range(4): o.append("v_cvt_pk_bf16_f32 v%d, v%d, v%d" % (b + 4 * hf + i, b + 8 * hf + 2 * i, b + 8 * hf + 2 * i + 1))
        if j == 0:
            b8 = sreg(u, 8)
            for i in range(8): o += ["v_and_b32 v%d, v%d, v%d" % (b8 + i, b + i, MK + i), "v_xor_b32 v%d, v%d, v%d" % (b + i, b + i, b8 + i)]
        return o
    def outops(u):
        a = OA + 16 * u; t = 224 if u else SCO + 80
        o = ["v_accvgpr_read_b32 v2, a%d" % (a + 12), "v_rcp_f32 v2, v2"]
        o += ["v_accvgpr_read_b32 v%d, a%d" % (4 + i, a + i) for i in range(10)]
        o += ["v_mul_f32 v%d, v%d, v2" % (4 + i, 4 + i) for i in range(10)]
        o += ["v_cvt_pk_bf16_f32 v%d, v%d, v%d" % (t + i, 4 + 2 * i, 5 + 2 * i) for i in range(5)]
        o += ["buffer_store_dwordx4 %s, v%d, s[12:15], s69 offen offset:%d sc1 ;#o" % (vr(t, 4), VO1, 512 * u),
              "buffer_store_dword v%d, v%d, s[16:19], s70 offen offset:%d sc1 ;#o" % (t + 4, VO2, 128 * u)]
        return o
    steps = [0, 1, 2, 3, 4, 5, 6, 7]
    bq = {0: [1], 2: [2, 3], 3: [4], 4: [5], 5: [6], 6: [7]}
    bm = {0: [], 1: [0, 1], 3: [2, 3], 4: [4], 5: [5], 6: [6], 7: [7]}
    if "qkdefer" in OPT: bq[0] = [0, 8, 1]
    prev = []
    PFAT = XP.get("pfat", len(wo)); bg = wo[:PFAT] + pfl + wo[PFAT:]; wo = []; pfl = []
    NWO = XP.get("nwo", 3)
    for e in steps:
        ops = expops(0, e)
        mf = list(prev)
        if "msub" in OPT and e + 2 < 8: mf = [msub(0, e + 2)] + mf
        for j in bq.get(e, []): mf += qk(1, j)
        fill = {}
        if mf: spread(fill, mf, 2, len(ops) - 4)
        if vr_list: spread(fill, vr_list[:4], 0, 20); vr_list = vr_list[4:]
        if bg: spread(fill, bg[:NWO], 3, len(ops) - 1); bg = bg[NWO:]
        k.extend(weave(ops, fill))
        for j in bm.get(e, []): k.extend(maxops(1, j, False))
        prev = pv(0, 0) + pv(0, 8) if e == 0 else pv(0, e)
    k.extend(maxfin(1))
    if "msub" in OPT: k(msub(1, 0)); k.extend(prev); prev = []; k(msub(1, 1))
    for e in steps:
        ops = expops(1, e)
        fill = {}
        if "msub" in OPT and e + 2 < 8: prev = [msub(1, e + 2)] + prev
        if prev: spread(fill, prev, 2, len(ops) - 4)
        if bg: spread(fill, bg[:NWO], 3, len(ops) - 1); bg = bg[NWO:]
        k.extend(weave(ops, fill))
        if e == 1: o0 = outops(0); k.extend(o0[:-2])
        prev = pv(1, 0) + pv(1, 8) if e == 0 else pv(1, e)
    k.extend(o0[-2:])
    k.extend(prev)
    k.extend(outops(1))
    assert not bg
    stamp(k, "p2 st")

def p3(k):
    k("s_load_dwordx2 s[56:57], s[0:1], 0\ns_load_dwordx4 s[36:39], s[0:1], 48")
    k("s_lshl_b32 s30, s80, 2\ns_add_u32 s30, s30, s22\ns_lshl_b32 s30, s30, 12\ns_lshl_b32 s31, s81, 7\ns_add_u32 s30, s30, s31\ns_add_u32 s30, s30, %d" % F2)
    k("s_lshl_b32 s82, s81, 2\ns_add_u32 s82, s82, s22")
    k("v_and_b32 v6, 15, v1\nv_lshrrev_b32 v7, 4, v1")
    XR, BF, ACC, WV = 208, 16, 88, 112
    TA, TM = 220, 246
    k("s_mov_b32 s26, %d" % WOB)
    tr_addrs(k, TA, 1, "s26", 2)
    k("v_lshrrev_b32 v2, 2, v1\nv_lshlrev_b32 v2, 6, v2\nv_and_b32 v3, 3, v1\nv_lshl_add_u32 v2, v3, 3, v2\nv_bfe_u32 v3, v1, 4, 1")
    k("v_lshl_add_u32 v%d, v3, 5, v2\nv_add_u32 v%d, %d, v%d\nv_xor_b32 v%d, 32, v%d" % (TM, TM, WOB + 4096, TM, TM + 1, TM))
    k("v_mul_u32_u24 v10, 1152, v6\nv_lshl_add_u32 v10, v7, 3, v10\ns_mul_i32 s28, s82, %d\ns_add_u32 s29, s28, s73\ns_add_u32 s28, s28, s72" % (16 * 1152))
    k.extend(flag("o", 2, 250, "s30"))
    stamp(k, "p2 fl")
    if "c4early" in OPT: touch_chain(k, "L_c4", 22)
    k("s_waitcnt lgkmcnt(0)\ns_barrier")
    k("s_cmp_ge_u32 s2, 192\ns_cbranch_scc1 L_pf3")
    kp = K("tmp")
    kp("L_pf3:")
    if "wdt" in OPT:
        STG = 73728
        kp("s_sub_u32 s23, s2, 192\ns_lshl_b32 s23, s23, 2\ns_add_u32 s23, s23, s22")
        kp.srd(8, 36, WB)
        kp.srd(12, 20, WB, WS_WT)
        dma_piece(kp, 4, 1, 2)
        kp("v_mul_u32_u24 v5, 1152, v2\nv_add_u32 v5, v5, v4")
        for a in range(4): kp("v_add_u32 v%d, %d, v5" % (16 + a, a * (8 * 1152 - 1024)))
        kp("s_mul_i32 s24, s22, 20480\ns_add_u32 s24, s24, %d" % STG)
        tr_addrs(kp, 20, 1, "s24", 2)
        kp("v_lshlrev_b32 v24, 4, v1")
        def wdma(r):
            o = ["s_add_u32 s25, s23, %d" % (256 * r), "s_mul_i32 s26, s25, 7282", "s_lshr_b32 s26, s26, 16", "s_mul_i32 s27, s26, 9", "s_sub_u32 s27, s25, s27",
                 "s_mul_i32 s26, s26, 36864", "s_lshl_b32 s27, s27, 7", "s_add_u32 s26, s26, s27", "s_add_u32 m0, s24, %d" % ((r % 5) * 4096)]
            return o + ["buffer_load_dwordx4 v%d, s[8:11], s26 offen offset:%d lds ;#t%d" % (16 + a, 1024 * a, r) for a in range(4)]
        kp("@reset")
        NR = XP.get("nr", 6)
        for r in range(min(5, NR)): kp.extend(wdma(r))
        kp("s_lshl_b32 s28, s23, 12")
        for r in range(NR):
            b = 32 + 16 * (r % 3)
            kp("@waitvm t%d" % r)
            for T in range(4):
                for j in range(2): kp("ds_read_b64_tr_b16 %s, v%d offset:%d" % (vr(b + 4 * T + 2 * j, 2), 20 + T, (r % 5) * 4096 + 2048 * j))
            if r == 0 and NR == 6:
                kp("@waitlds all"); kp.extend(wdma(5))
            for T in range(4): kp("buffer_store_dwordx4 %s, v24, s[12:15], s28 offen offset:%d sc1" % (vr(b + 4 * T, 4), 1024 * T))
            if r < 5: kp("s_add_u32 s28, s28, 0x100000")
        kp("s_lshl_b32 s101, s23, 7\ns_add_u32 s101, s101, %d" % FW)
    rest = 0 if "wdt" in OPT else WB - XP.get("nd1", 0) * (1 << 20); lines = -(-rest // (256 * 128))
    if lines:
        kp("s_sub_u32 s23, s2, 192\ns_lshl_b32 s23, s23, 2\ns_add_u32 s23, s23, s22\ns_mul_i32 s23, s23, %d\ns_add_u32 s23, s23, %d\nv_lshlrev_b32 v2, 7, v1" % (lines * 128, WB - rest))
        kp.srd(8, 36, WB)
    if "nopf3" in OPT or "pfA" in OPT: kp("s_mov_b32 s10, 0")
    q = 0
    while lines > 0:
        if lines < 64:
            m = (1 << lines) - 1
            kp("s_mov_b32 exec_lo, 0x%x\ns_mov_b32 exec_hi, 0x%x" % (m & 0xffffffff, m >> 32))
        kp("buffer_load_dword a%d, v2, s[8:11], s23 offen\ns_add_u32 s23, s23, 8192" % (240 + q)); q += 1; lines -= 64
    kp("s_mov_b64 exec, -1")
    p4_early(kp)
    kp("s_branch L_p4")
    SLOW.extend(i.text + (" ;#" + i.tag if i.tag else "") for i in kp.ins)
    k("v_and_b32 v11, 31, v1\nv_lshlrev_b32 v11, 7, v11\ns_lshl_b32 s83, s81, 12\ns_add_u32 s83, s83, %d" % F2)
    if "earlypoll" in OPT: k.extend(poll(15, 11, "s83"))
    k.srd(52, 56, X_BYTES)
    for T in range(6): k("buffer_load_dwordx2 %s, v10, s[52:55], s%d offen offset:%d" % (vr(XR + 2 * T, 2), 28 if T < 4 else 29, 32 * (T & 3)))
    def wreg(t, T, o=0, n=4):
        if t < 10: return ar(24 * t + 4 * T + o, n)
        if t < 14: return vr(WV + 24 * (t - 10) + 4 * T + o, n)
        return ar(24 * (t - 14) + 4 * T + o, n)
    def wread(t):
        o = []
        if t == 10: o += ["v_add_u32 v%d, 61440, v%d" % (q, q) for q in (TA, TA + 1, TA + 2, TA + 3, TM, TM + 1)]
        off = (t % 10) * 6144
        for T in range(6):
            for j in range(2):
                a, oo = (TA + T, off + 2048 * j) if T < 4 else (TM + T - 4, off + 1024 * j)
                o.append("ds_read_b64_tr_b16 %s, v%d offset:%d" % (wreg(t, T, 2 * j, 2), a, oo))
        return o
    NW0 = XP.get("nw0", 8)
    for t in range(NW0): k.extend(wread(t))
    k("v_mul_u32_u24 v8, %d, v7\nv_lshl_add_u32 v8, v6, 4, v8" % OPS)
    k("v_mul_u32_u24 v9, %d, v7\nv_lshl_add_u32 v9, v6, 2, v9" % (4 * O2S))
    k("s_lshl_b32 s84, s82, 8\ns_lshl_b32 s85, s82, 6")
    k.srd(8, 20, H_BYTES, WS_H)
    k.srd(76, 20, ST_BYTES, WS_ST)
    k("s_mov_b32 s86, 0x3f803f80")
    k("s_mul_i32 s91, s82, 18432\ns_lshl_b32 s71, s73, 4\ns_add_u32 s71, s71, s91\ns_lshl_b32 s74, s72, 4\ns_add_u32 s91, s91, s74")
    k("s_lshl_b32 s74, s80, 14\ns_lshl_b32 s87, s82, 7\ns_add_u32 s74, s74, s87")
    k("s_lshl_b32 s101, s82, 10\ns_lshl_b32 s87, s80, 7\ns_add_u32 s101, s101, s87\ns_add_u32 s101, s101, %d" % F3)
    k("v_lshlrev_b32 v13, 4, v1\nv_lshlrev_b32 v14, 3, v1\nv_mov_b32 v2, 0x%x\nv_cmp_gt_u32 vcc, 16, v1\nv_cndmask_b32 v14, v2, v14, vcc" % BIG)
    if "early4" in OPT: p4_early(k)
    if "xinit" in OPT:
        for T in range(6):
            for j in range(2):
                a = ACC + 4 * T + 2 * j; p = XR + 2 * T + j
                k("v_lshlrev_b32 v%d, 16, v%d\nv_and_b32 v%d, 0xffff0000, v%d" % (a, p, a + 1, p))
    if "poll3" in OPT:
        stamp(k, "p3 setup")
        k("s_cmp_lg_u32 s22, 0\ns_cbranch_scc1 L_p3w")
        k.extend(poll(15, 11, "s83")); k.extend(check("p3", 15, 11, "s83"))
        k("L_p3w:\ns_barrier")
    else:
        if "earlypoll" not in OPT: k.extend(poll(15, 11, "s83"))
        stamp(k, "p3 setup")
        k.extend(check("p3", 15, 11, "s83", ptmp=12))
    stamp(k, "p3 go")
    lds_ = []
    for t in range(18):
        if t < 16:
            lds_.append("s_nop 0\nbuffer_load_dwordx4 %s, v8, s[12:15], s84 offen sc1" % vr(BF + 4 * t, 4))
        else:
            for e in range(4):
                lds_.append("s_nop 0\nbuffer_load_dword v%d, v9, s[16:19], s85 offen sc1" % (BF + 4 * t + e))
    ke = K("tmp")
    if "early4" not in OPT: p4_early(ke)
    ext = []
    grp = []
    for i in ke.ins:
        grp.append(i.text)
        if not (i.op.startswith("s_cmp") or i.op in ("s_add_u32", "s_cselect_b32")): ext.append("\n".join(grp)); grp = []
    if grp: ext.append("\n".join(grp))
    ext4 = []
    if "p3old" not in OPT: ext4, ext = ext, []
    for t in range(NW0, 14): ext += wread(t)
    steps = []
    for n, x in enumerate(lds_):
        inc = ("s84", 4 * OPS) if n < 16 else ("s85", O2S if (n - 16) % 4 < 3 else 13 * O2S)
        steps.append(x.split("\n")[1] + "\ns_add_u32 %s, %s, %d" % (inc[0], inc[0], inc[1]))
    fill = {}
    if ext: spread(fill, ext, XP.get("ex0", 3), len(steps) - 1)
    k.extend(weave(steps, fill))
    main = []; fill = {}
    for t in range(18):
        for T in range(6):
            a = vr(ACC + 4 * T, 4)
            main.append("v_mfma_f32_16x16x32_bf16 %s, %s, %s, %s" % (a, wreg(t, T), vr(BF + 4 * t, 4), a if (t or "xinit" in OPT) else "0"))
    for t in range(14, 18): spread(fill, wread(t), 6 + 14 * (t - 14), 6 + 14 * (t - 14) + 11)
    if ext4: spread(fill, ext4, 0, 100)
    fill.setdefault(6 * 14 - 1, []).extend(["@waitlds all", "s_barrier"])
    k.extend(weave(main, fill))
    stamp(k, "p3 mm")
    HO, TT = 16, 32
    k("v_mov_b32 v4, 0\nv_mov_b32 v5, 0")
    for T in range(6 if "xinit" not in OPT else 0):
        for j in range(2): k("v_cvt_pk_bf16_f32 v%d, v%d, v%d" % (TT + 2 * T + j, ACC + 4 * T + 2 * j, ACC + 4 * T + 2 * j + 1))
    for T in range(6 if "xinit" not in OPT else 0):
        for j in range(2):
            p = TT + 2 * T + j; a = ACC + 4 * T + 2 * j
            k("v_lshlrev_b32 v%d, 16, v%d\nv_and_b32 v%d, 0xffff0000, v%d" % (a, p, a + 1, p))
    for T in range(6 if "xinit" not in OPT else 0):
        for j in range(2):
            a = ACC + 4 * T + 2 * j
            k("v_dot2c_f32_bf16 v%d, s88, v%d\nv_dot2c_f32_bf16 v%d, s89, v%d" % (a, XR + 2 * T + j, a + 1, XR + 2 * T + j))
    for T in range(6):
        for j in range(2): k("v_cvt_pk_bf16_f32 v%d, v%d, v%d" % (HO + 2 * T + j, ACC + 4 * T + 2 * j, ACC + 4 * T + 2 * j + 1))
        if T & 1:
            k("buffer_store_dwordx4 %s, v13, s[8:11], s%d offen offset:%d sc1 ;#h" % (vr(HO + 2 * T - 2, 4), 91 if T < 4 else 71, 1024 if T == 3 else 0))
    for i in range(12):
        k("v_dot2c_f32_bf16 v4, s86, v%d\nv_dot2c_f32_bf16 v5, v%d, v%d" % (HO + i, HO + i, HO + i))
    for sw in ("v_permlane16_swap_b32", "v_permlane32_swap_b32"):
        k("v_mov_b32 v2, v4\nv_mov_b32 v3, v5")
        k("%s v4, v2\n%s v5, v3" % (sw, sw))
        k("v_add_f32 v4, v4, v2\nv_add_f32 v5, v5, v3")
    k("buffer_store_dwordx2 v[4:5], v14, s[76:79], s74 offen sc1 ;#h")
    stamp(k, "p3 st")

XF4, GA4, UA4 = 16, 160, 192
VG, VM, VW, TA4, TM4, C1, C2, TMP, VS, TS = 224, 228, 232, 236, 240, 242, 244, 246, 254, 255
def p4_early(k):
    TA, TM = TA4, TM4
    if "map16" in OPT:
        k("s_lshr_b32 s23, s2, 4\ns_and_b32 s24, s2, 15")
    else:
        k("s_and_b32 s23, s2, 1\ns_lshl_b32 s23, s23, 3\ns_bfe_u32 s25, s2, 0x30003\ns_add_u32 s23, s23, s25")
        k("s_bfe_u32 s24, s2, 0x20001\ns_lshl_b32 s24, s24, 2\ns_lshr_b32 s25, s2, 6\ns_add_u32 s24, s24, s25")
    k("s_and_b32 s25, s24, 1\ns_mul_i32 s26, s24, 576\ns_lshl_b32 s27, s25, 6\ns_add_u32 s27, s27, s26")
    k("s_xor_b32 s25, s25, 1\ns_lshl_b32 s25, s25, 9\ns_add_u32 s28, s25, s26")
    k("s_lshl_b32 s29, s23, 3\ns_lshl_b32 s30, s22, 1\ns_add_u32 s29, s29, s30")
    dma_piece(k, 4, 1, 2)
    k("v_mul_u32_u24 v5, 9216, v2\nv_add_u32 v5, v5, v4")
    for a in range(4): k("v_add_u32 v%d, %d, v5" % (VG + a, a * (8 * 9216 - 1024)))
    k("s_mul_i32 s56, s22, %d\ns_add_u32 s56, s56, s27" % (64 * 9216))
    k("s_mul_i32 s57, s22, %d\ns_add_u32 s57, s57, s27\ns_add_u32 s57, s57, %d" % (8 * 9216, 256 * 9216))
    k("s_lshl_b32 s58, s22, 13\ns_lshl_b32 s59, s22, 10\ns_add_u32 s59, s59, 32768")
    k.srd(40, 4, WB)
    k.srd(44, 6, WB)
    k("s_lshl_b32 s30, s29, 7\ns_mul_i32 s31, s29, 18432")
    if "wdt" in OPT: k.srd(48, 20, WB, WS_WT)
    else: k.srd(48, 36, WB)
    k("s_cmp_lt_u32 s22, 2\ns_cselect_b32 s52, s40, s44\ns_cselect_b32 s53, s41, s45\ns_mov_b32 s54, 0x%x\ns_mov_b32 s55, 0x20000" % WB)
    k("v_mul_u32_u24 v5, 1152, v2\nv_add_u32 v5, v5, v4")
    for a in range(4): k("v_add_u32 v%d, %d, v5" % (VW + a, a * (8 * 1152 - 1024)))
    k("v_lshrrev_b32 v2, 2, v1\nv_mul_u32_u24 v5, 9216, v2\nv_bfe_u32 v3, v1, 4, 1\nv_lshlrev_b32 v3, 1, v3\nv_and_b32 v4, 3, v1\nv_xor_b32 v3, v3, v4\nv_lshl_add_u32 v5, v3, 4, v5")
    for a in range(4): k("v_add_u32 v%d, %d, v5" % (VM + a, a * (16 * 9216 - 1024)))
    k("s_mul_i32 s61, s22, 9216\ns_and_b32 s62, s22, 1\ns_mul_i32 s62, s62, %d\ns_add_u32 s62, s62, s28" % (144 * 9216))
    k("s_lshr_b32 s25, s24, 2\ns_and_b32 s26, s24, 3\ns_and_b32 s35, s26, 1\ns_mul_i32 s34, s26, 288")
    k("s_lshl_b32 s67, s35, 5\ns_add_u32 s33, s34, s67\ns_xor_b32 s67, s35, 1\ns_lshl_b32 s67, s67, 8\ns_add_u32 s34, s34, s67")
    if "ownh" in OPT:
        k("s_add_u32 s63, s26, s22\ns_and_b32 s63, s63, 3\ns_and_b32 s67, s24, 12\ns_add_u32 s67, s67, s63\ns_mul_i32 s63, s67, 288\ns_and_b32 s67, s67, 1")
    else:
        k("s_and_b32 s67, s24, 12\ns_add_u32 s67, s67, s22\ns_mul_i32 s63, s67, 288\ns_and_b32 s67, s22, 1")
    k("s_xor_b32 s64, s67, 1\ns_lshl_b32 s64, s64, 8\ns_add_u32 s64, s64, s63\ns_lshl_b32 s67, s67, 5\ns_add_u32 s63, s63, s67")
    if "wdt" in OPT:
        k("s_mul_i32 s67, s26, 9216\ns_mul_i32 s63, s63, 1152\ns_add_u32 s63, s63, s67\ns_mul_i32 s64, s64, 1152\ns_add_u32 s64, s64, s67")
    elif "al" in OPT:
        k("s_lshl_b32 s67, s26, 8\ns_mul_i32 s63, s63, 1152\ns_add_u32 s63, s63, s67\ns_mul_i32 s64, s64, 1152\ns_add_u32 s64, s64, s67")
        k("s_lshl_b32 s67, s22, 3\ns_lshr_b32 s33, s27, 1\ns_add_u32 s33, s33, s67\ns_mul_i32 s33, s33, 1152\ns_add_u32 s33, s33, 1024")
        k("s_lshr_b32 s34, s28, 1\ns_add_u32 s34, s34, s67\ns_mul_i32 s34, s34, 1152\ns_add_u32 s34, s34, 1024")
    else:
        k("s_mul_i32 s67, s26, 288\ns_mul_i32 s63, s63, 1152\ns_add_u32 s63, s63, s67\ns_mul_i32 s64, s64, 1152\ns_add_u32 s64, s64, s67")
        k("v_lshrrev_b32 v2, 1, v1\nv_mul_u32_u24 v2, 1152, v2\nv_and_b32 v3, 1, v1\nv_lshl_add_u32 v2, v3, 4, v2")
        k("s_sub_u32 s60, s34, s67\nv_add_u32 v%d, s60, v2\ns_sub_u32 s60, s33, s67" % VS)
        for a in range(4): k("v_add_u32 v%d, s60, v%d" % (VW + a, VW + a))
    tr_addrs(k, TA, 1, None, 2)
    k("v_lshrrev_b32 v2, 2, v1\nv_lshlrev_b32 v2, 6, v2\nv_and_b32 v3, 3, v1\nv_lshl_add_u32 v2, v3, 3, v2\nv_bfe_u32 v3, v1, 4, 1")
    k("v_lshl_add_u32 v%d, v3, 5, v2\nv_xor_b32 v%d, 32, v%d" % (TM, TM + 1, TM))
    k("v_lshlrev_b32 v%d, 3, v1\nv_add_u32 v%d, 8192, v%d" % (TS, TS, TS))
    k("s_mov_b32 s88, 0x00003f80\ns_mov_b32 s89, 0x3f800000\ns_mov_b32 s65, 0x%x" % f2u(1.0 / D))
    k("s_lshl_b32 s67, s23, 4\ns_add_u32 s66, s67, s24\ns_lshl_b32 s66, s66, 2\ns_add_u32 s66, s66, s22\ns_mul_i32 s66, s66, 18432")
    k("s_and_b32 s68, s24, 12\ns_add_u32 s68, s68, s67\ns_lshl_b32 s68, s68, 2\ns_add_u32 s68, s68, s22\ns_mul_i32 s68, s68, 18432")
    k("s_lshl_b32 s69, s23, 2\ns_add_u32 s69, s69, s22\ns_lshl_b32 s69, s69, 11\ns_add_u32 s69, s69, %d\ns_and_b32 s70, s24, 12\ns_lshl_b32 s70, s70, 7\ns_add_u32 s70, s70, s69" % FH)
    k("s_lshl_b32 s67, s24, 7\ns_add_u32 s69, s69, s67")
    k("s_lshl_b32 s75, s29, 10\ns_add_u32 s75, s75, %d" % F3)

def p4(k):
    SLOT = 36864
    k("L_p4:")
    XF, GA, UA, TA, TM = XF4, GA4, UA4, TA4, TM4
    AF, HF = 0, 72
    stages = []
    for B in range(4): stages += [("G", B, 0), ("G", B, 1), ("U", B, 0), ("U", B, 1)]
    stages += [("M", 4, 0), ("M", 4, 1)]
    stages += [("D", c, 0) for c in range(9)]
    NS = len(stages)
    def dma(n):
        kind, B, kh = stages[n]
        sl = (n % 4) * SLOT
        o = []
        if kind in "GU":
            srd = "s[40:43]" if kind == "G" else "s[44:47]"
            off = 128 * B + kh * 288 * 9216
            for g in range(2):
                pre = ["s_add_u32 m0, s58, %d" % (sl + 4096 * g), "s_add_u32 s60, s56, %d" % (off + g * 32 * 9216)]
                for a in range(4):
                    o.append(pre + ["buffer_load_dwordx4 v%d, %s, s60 offen offset:%d lds ;#s%d" % (VG + a, srd, 1024 * a, n)]); pre = []
            o.append(["s_add_u32 m0, s59, %d" % sl, "s_add_u32 s60, s57, %d" % off, "buffer_load_dwordx4 v%d, %s, s60 offen lds ;#s%d" % (VG, srd, n)])
        elif kind == "M":
            for g in range(3):
                pre = ["s_add_u32 m0, s61, %d" % (sl + 4096 * g), "s_add_u32 s60, s62, %d" % (kh * 288 * 9216 + g * 64 * 9216)]
                for a in range(4 if g < 2 else 1):
                    o.append(pre + ["buffer_load_dwordx4 v%d, s[52:55], s60 offen offset:%d lds ;#s%d" % (VM + a, 1024 * a, n)]); pre = []
        elif "wdt" in OPT and "split" in OPT and B >= 7:
            for g in range(2):
                base, off = (("s63", 7 * 36864), ("s64", 0))[g]
                pre = ["s_lshl_b32 s60, s22, 12", "s_add_u32 m0, s60, %d" % (sl + 16384 * g), "s_lshl_b32 s60, s35, 10", "s_add_u32 s60, s60, %s" % base, "s_add_u32 s60, s60, %d" % (off + 4096 * (B - 7))]
                for a in range(4):
                    o.append(pre + ["buffer_load_dwordx4 v9, s[48:51], s60 offen offset:%d sc1 lds ;#s%d" % (1024 * a, n)]); pre = []
            base, off = (("s63", 7 * 36864), ("s64", 0))[B - 7]
            o.append(["s_add_u32 m0, s59, %d" % sl, "s_xor_b32 s60, s35, 1", "s_lshl_b32 s60, s60, 13", "s_add_u32 s60, s60, %s" % base, "s_add_u32 s60, s60, %d" % off,
                      "buffer_load_dwordx4 v9, s[48:51], s60 offen sc1 lds ;#s%d" % n])
        elif "wdt" in OPT:
            base, off = ("s63", B * 36864) if B < 8 else ("s64", 0)
            for g in range(3):
                pre = ["s_add_u32 m0, s61, %d" % (sl + 4096 * g), "s_add_u32 s60, %s, %d" % (base, off + 4096 * g)]
                for a in range(4 if g < 2 else 1):
                    o.append(pre + ["buffer_load_dwordx4 v9, s[48:51], s60 offen offset:%d sc1 lds ;#s%d" % (1024 * a, n)]); pre = []
        elif "al" in OPT:
            base, base2, off = ("s63", "s33", B * 32 * 1152) if B < 8 else ("s64", "s34", 0)
            for g in range(2):
                pre = ["s_add_u32 m0, s58, %d" % (sl + 4096 * g), "s_add_u32 s60, %s, %d" % (base, off + 128 * g)]
                for a in range(4):
                    o.append(pre + ["buffer_load_dwordx4 v%d, s[48:51], s60 offen offset:%d lds ;#s%d" % (VW + a, 1024 * a, n)]); pre = []
            o.append(["s_add_u32 m0, s59, %d" % sl, "s_add_u32 s60, %s, %d" % (base2, off), "buffer_load_dwordx4 v%d, s[48:51], s60 offen lds ;#s%d" % (VW, n)])
        elif "split" in OPT and B >= 7:
            for g in range(2):
                base, off = (("s63", 7 * 32 * 1152), ("s64", 0))[g]
                pre = ["s_lshl_b32 s60, s22, 12", "s_add_u32 m0, s60, %d" % (sl + 16384 * g), "s_add_u32 s60, %s, %d" % (base, off + 128 * (B - 7))]
                for a in range(4):
                    o.append(pre + ["buffer_load_dwordx4 v%d, s[48:51], s60 offen offset:%d lds ;#s%d" % (VW + a, 1024 * a, n)]); pre = []
            base, off = (("s63", 7 * 32 * 1152), ("s64", 0))[B - 7]
            o.append(["s_add_u32 m0, s59, %d" % sl, "s_add_u32 s60, %s, %d" % (base, off), "buffer_load_dwordx4 v%d, s[48:51], s60 offen lds ;#s%d" % (VS, n)])
        else:
            base, off = ("s63", B * 32 * 1152) if B < 8 else ("s64", 0)
            for g in range(2):
                pre = ["s_add_u32 m0, s61, %d" % (sl + 4096 * g), "s_add_u32 s60, %s, %d" % (base, off + 128 * g)]
                for a in range(4):
                    o.append(pre + ["buffer_load_dwordx4 v%d, s[48:51], s60 offen offset:%d lds ;#s%d" % (VW + a, 1024 * a, n)]); pre = []
            o.append(["s_add_u32 m0, s61, %d" % (sl + 8192), "s_add_u32 s60, %s, %d" % (base, off),
                      "buffer_load_dwordx4 v%d, s[48:51], s60 offen lds ;#s%d" % (VS, n)])
        return o
    NPF = XP.get("npf", 2)
    dm = [x for n in range(NPF) for x in dma(n)]
    NB4 = XP.get("nb4", 4)
    for x in dm[:NB4]: k.extend(x)
    k("s_cmp_ge_u32 s2, 192\ns_cbranch_scc1 L_p4nf")
    k.extend(flag("h", 5, 250, "s101"))
    k("L_p4nf:")
    stamp(k, "p3 fl")
    for x in dm[NB4:]: k.extend(x)
    k("v_lshl_add_u32 v8, v7, 11, v6\nv_lshlrev_b32 v8, 3, v8\nv_lshlrev_b32 v9, 4, v1")
    k("v_add_u32 v12, 0x10000, v8\nv_mov_b32 v3, v250")
    k.srd(8, 20, ST_BYTES, WS_ST)
    k.srd(12, 20, H_BYTES, WS_H)
    k.srd(16, 38, X_BYTES)
    k("v_and_b32 v14, 7, v1\nv_min_u32 v14, 5, v14\nv_lshlrev_b32 v14, 7, v14\nv_bfe_u32 v15, v1, 3, %d\nv_lshl_add_u32 v14, v15, 10, v14" % (3 if "poll4" in OPT else 1))
    if "earlypoll" in OPT: k.extend(poll(13, 14, "s75"))
    if "c4early" not in OPT: touch_chain(k, "L_c4", 22)
    if "poll4" in OPT:
        stamp(k, "p4 setup")
        k("s_cmp_lg_u32 s22, 0\ns_cbranch_scc1 L_p4w")
        k.extend(poll(13, 14, "s75")); k.extend(check("p4", 13, 14, "s75"))
        k("L_p4w:\ns_barrier")
    else:
        if "earlypoll" not in OPT: k.extend(poll(13, 14, "s75"))
        stamp(k, "p4 setup")
        k("s_waitcnt vmcnt(0)")
        k.extend(check("p4", 13, 14, "s75", ptmp=15))
    if "wdt" in OPT:
        k("s_cmp_lt_u32 s2, 192\ns_cbranch_scc1 L_nowf\ns_waitcnt vmcnt(0)\nv_mov_b32 v5, s3\nbuffer_store_dword v5, v250, s[96:99], s101 offen sc1\nL_nowf:\n@reset")
    stamp(k, "p4 go")
    ST = UA
    for r in range(2):
        for j in range(2):
            k("buffer_load_dwordx2 %s, v%d, s[8:11], s30 offen offset:%d sc1" % (vr(ST + 6 * r + 2 * j, 2), (8, 12)[j], 128 * r))
    def xload(r, t):
        return ["s_add_u32 s32, s31, %d" % ((r * 18 + t) // 4 * 4096),
                "buffer_load_dwordx4 %s, v9, s[12:15], s32 offen offset:%d sc1" % (vr(XF + 72 * r + 4 * t, 4), ((r * 18 + t) % 4) * 1024)]
    NX0 = XP.get("nx0", 9)
    for t in range(NX0):
        for r in range(2): k.extend(xload(r, t))
    if XP.get("pf4", 0):
        k("s_lshl_b32 s67, s2, 2\ns_add_u32 s67, s67, s22\ns_mul_i32 s32, s67, 5184\nv_lshlrev_b32 v15, 7, v1\nv_mov_b32 v14, 0x%x" % BIG)
        k("v_cmp_gt_u32 vcc, 41, v1\nv_cndmask_b32 v15, v14, v15, vcc\ns_and_b32 s32, s32, 0xffffff80")
        k("v_mul_u32_u24 v2, 13, v1\nv_lshrrev_b32 v2, 6, v2\nv_mul_u32_u24 v4, 5, v2\nv_sub_u32 v4, v1, v4")
        k("v_cmp_lt_u32 vcc, 2, v4\nv_addc_co_u32 v5, vcc, v4, 2, vcc\nv_cmp_lt_u32 vcc, 2, v4\nv_addc_co_u32 v5, vcc, v5, 0, vcc")
        k("v_mul_u32_u24 v2, 9, v2\nv_add_u32 v2, v2, v5\nv_lshlrev_b32 v2, 7, v2\nv_cmp_gt_u32 vcc, 45, v1\nv_cndmask_b32 v2, v14, v2, vcc")
        k("s_lshr_b32 s60, s2, 0\ns_lshl_b32 s60, s60, 1\ns_and_b32 s67, s22, 1\ns_add_u32 s60, s60, s67\ns_mul_i32 s60, s60, %d" % (9 * 9 * 128))
        k("buffer_load_dword a200, v2, s[52:55], s60 offen\nbuffer_load_dword a201, v15, s[48:51], s32 offen")
    k("v_and_b32 v12, 3, v1\nv_lshlrev_b32 v12, 7, v12")
    k.srd(8, 20, HB_BYTES, WS_HB)
    for r in range(2):
        b = ST + 6 * r
        k("v_add_f32 v%d, v%d, v%d\nv_add_f32 v%d, v%d, v%d" % (b, b, b + 2, b + 1, b + 1, b + 3))
        for sw in ("v_permlane16_swap_b32", "v_permlane32_swap_b32"):
            k("v_mov_b32 v%d, v%d\nv_mov_b32 v%d, v%d" % (b + 2, b, b + 3, b + 1))
            k("%s v%d, v%d\n%s v%d, v%d" % (sw, b, b + 2, sw, b + 1, b + 3))
            k("v_add_f32 v%d, v%d, v%d\nv_add_f32 v%d, v%d, v%d" % (b, b, b + 2, b + 1, b + 1, b + 3))
        k("v_mul_f32 v%d, s65, v%d" % (b, b))
        k("v_mul_f32 v%d, v%d, v%d" % (b + 2, b, b))
        k("v_fma_f32 v%d, v%d, s65, -v%d" % (b + 1, b + 1, b + 2))
        k("v_max_f32 v%d, 0, v%d" % (b + 1, b + 1))
        bf16_round(k, b, b)
        k("v_sub_f32 v%d, 0, v%d" % (10 + r, b))
        bf16_round(k, b + 1, b + 1)
        k("v_add_f32 v%d, 0x%x, v%d" % (b + 1, f2u(1e-5), b + 1))
        bf16_round(k, b + 1, b + 1)
        k("v_sqrt_f32 v%d, v%d" % (b + 1, b + 1))
        bf16_round(k, b + 1, b + 1)
        k("v_mul_f32 v%d, v%d, v%d" % (C2 + r, b + 1, b + 1))
        k("v_rcp_f32 v%d, v%d" % (b + 1, b + 1))
        k("v_mul_f32 v%d, 0x%x, v%d" % (C1 + r, f2u(-LOG2E), b + 1))
    def center(r, t):
        x = XF + 72 * r + 4 * t
        o = []
        for c in range(4):
            o.append("v_dot2_f32_bf16 v%d, v%d, s88, v%d" % (TMP + 2 * c, x + c, 10 + r))
            o.append("v_dot2_f32_bf16 v%d, v%d, s89, v%d" % (TMP + 2 * c + 1, x + c, 10 + r))
        for c in range(4):
            o.append("v_cvt_pk_bf16_f32 v%d, v%d, v%d" % (x + c, TMP + 2 * c, TMP + 2 * c + 1))
        return o
    NPRE = XP["npre"]
    assert NX0 + NPRE >= 18
    for t in range(NPRE):
        for r in range(2):
            if NX0 + t < 18: k.extend(xload(r, NX0 + t))
            k.extend(center(r, t))
    stamp(k, "p4 x")

    cur = {"TA": 0, "TM": 0, "TS": 0}
    def shift(name, regs, sl):
        pre = []
        if cur[name] != sl:
            d = (sl - cur[name]) * SLOT
            for q in regs:
                pre.append("v_add_u32 v%d, %d, v%d" % (q, d, q) if d > 0 else "v_subrev_u32 v%d, %d, v%d" % (q, -d, q))
            cur[name] = sl
        return pre
    tiles = []
    main = []
    DA = XF
    OWN = "ownh" in OPT; AL = "al" in OPT; SPL = "split" in OPT; WDT = "wdt" in OPT; fin = {}
    HOWN = 144
    def hbuf(c): return HF + 24 * (c % 3) - 8 if OWN else HF + 32 * (c % 3)
    nt = 0
    for n in range(NS):
        kind, B, kh = stages[n]
        torder = ([8, 0, 1, 2, 3, 4, 5, 6, 7] if (AL and B > 0) else list(range(9))) if kind == "D" else list(range(4))
        uu = [B] * len(torder)
        if SPL and kind == "D" and B == 7: torder = [0, 0, 1, 1, 2, 2, 3, 3, 8]; uu = [7, 8] * 4 + [7]
        if SPL and kind == "D" and B == 8: torder = [8, 4, 4, 5, 5, 6, 6, 7, 7]; uu = [8] + [7, 8] * 4
        for pos, T in enumerate(torder):
            Bq = B
            if kind == "D": B = uu[pos]
            if kind == "D": fin[T] = len(main)
            if kind == "D": nf = 4; f0 = AF + 16 * ((Bq * 9 + pos) % 4)
            else: nf = 9; f0 = AF + 36 * (nt & 1)
            tiles.append(dict(n=n, T=T, g0=len(main), nf=nf, f0=f0, id=nt, pos=pos, u=B)); nt += 1
            if AL and kind == "D" and T == 8:
                for E in range(4):
                    for r in range(2):
                        a = vr(DA + 64 + 8 * E + 4 * r, 4)
                        main.append("v_mfma_f32_16x16x32_bf16 %s, %s, %s, %s" % (a, ar(f0 + 4 * E, 4), ar(HOWN + 8 * B + 4 * r, 4), "0" if B == 0 else a))
                continue
            for r in range(2):
                if kind == "G": a = GA + 8 * T + 4 * r
                elif kind == "U": a = UA + 8 * T + 4 * r
                elif kind == "M": a = (GA if T < 2 else UA) + 8 * (T & 1) + 4 * r
                else: a = DA + 8 * T + 4 * r
                a = vr(a, 4)
                for jj in range(nf):
                    j = nf - 1 - jj if (r == 1 and "snake" in OPT) else jj
                    if kind == "D":
                        b = ar(HOWN + 8 * B + 4 * r, 4) if (OWN and j == 0) else ar(hbuf(B) + 8 * j + 4 * r, 4)
                        first = (jj == 0 and B == 0)
                    else: b = vr(XF + 72 * r + 4 * (9 * kh + j), 4); first = (jj == 0 and kh == 0)
                    main.append("v_mfma_f32_16x16x32_bf16 %s, %s, %s, %s" % (a, ar(f0 + 4 * j, 4), b, "0" if first else a))
            B = Bq
    NM = len(main)
    fill = {}
    load = [0.0] * (NM + 1)
    def put(g, items, cost=None):
        if isinstance(items, str): items = [items]
        fill.setdefault(g, []).extend(items)
        load[max(g, 0)] += len([x for x in items if not x.startswith("@") and not x.endswith(":")]) if cost is None else cost
    def frag_reads(t):
        n, T = t["n"], t["T"]; kind = stages[n][0]; sl = n % 4
        if kind == "D" and WDT:
            pre = shift("TS", [VW, VW + 1, VW + 2], sl)
            o = []
            for j in range(4):
                if SPL and n >= 25: a, off = (VW, (4 * (t["u"] - 7) + j) * 4096 + (T & 3) * 1024) if T < 8 else (VW, 32768 + j * 1024)
                else: a, off = (VW + 1, j * 9216 + T * 1024) if T < 8 else (VW + 2, j * 9216)
                o.append("ds_read_b128 %s, v%d offset:%d ;#f%da" % (ar(t["f0"] + 4 * j, 4), a, off, t["id"]))
            return pre, o
        if kind == "M": pre = shift("TM", [TM, TM + 1], sl)
        elif kind == "D" and T == 8 and not AL: pre = shift("TS", [TS], sl)
        else: pre = shift("TA", [TA + q for q in range(4)], sl)
        o = []
        for j in range(t["nf"]):
            for h in range(2):
                if kind == "M": a, off = TM + (T & 1), (T >> 1) * 18432 + j * 2048 + h * 1024
                elif kind == "D" and AL: a, off = (TA + (T & 3), j * 8192 + (T >> 2) * 4096 + h * 2048) if T < 8 else (TA + j, 32768 + h * 2048)
                elif kind == "D" and SPL and n >= 25:
                    a, off = (TA + (T & 3), (4 * (t["u"] - 7) + j) * 4096 + h * 2048) if T < 8 else (TS, 24576 + j * 1024 + h * 512)
                elif kind == "D": a, off = (TA + (T & 3), j * 9216 + (T >> 2) * 4096 + h * 2048) if T < 8 else (TS, j * 9216 + h * 512)
                else: a, off = TA + T, j * 4096 + h * 2048
                o.append("ds_read_b64_tr_b16 %s, v%d offset:%d ;#f%d%s" % (ar(t["f0"] + 4 * j + 2 * h, 2), a, off, t["id"], "a" if (j < 4) else "b"))
        return pre, o
    pre, o = frag_reads(tiles[0])
    fill[-1] = ["s_barrier"] + pre + o
    first_d = [i for i, t in enumerate(tiles) if stages[t["n"]][0] == "D"][0]
    bar_gap = {}
    for i, t in enumerate(tiles):
        g0 = t["g0"]; kind = stages[t["n"]][0]
        put(g0 - 1, "@waitlds f%da" % t["id"], 1)
        if kind != "D":
            if t["T"] < 3: put(g0 + 3, "@waitlds f%db" % t["id"], 1)
            nxt = [i + 1] if i + 1 < first_d else [i + 1, i + 2]
            span = 16
        else:
            nxt = [i + 2] if i + 2 < len(tiles) else []
            span = 6
        if nxt and tiles[nxt[0]]["n"] != t["n"] and tiles[nxt[0]]["pos"] == 0:
            ex = ["s_memtime s[94:95]", "s_waitcnt lgkmcnt(0)", "v_writelane_b32 v0, s94, %d" % (32 + t["n"])] if "st3" in OPT else []
            put(g0 - 1, ["@waitlds all", "@waitvm s%d" % (t["n"] + 1), "s_barrier"] + ex, 2)
            bar_gap[t["n"]] = g0
        rd = []
        for q in nxt:
            pre, o = frag_reads(tiles[q]); rd += [pre + o[:1]] + [[x] for x in o[1:]]
        for q, x in enumerate(rd): put(g0 + (q * span) // len(rd), x)
    def place(gs, lo, hi):
        for i, x in enumerate(gs): put(lo + (i * (hi - lo + 1)) // len(gs), x)
    early = []
    for n in range(NPF, 4): early += dma(n)
    if early: place(early, 1, 52)
    for n in range(NS - 4): place(dma(n + 4), bar_gap[n] + 2, bar_gap[n] + 52)
    work = []
    for t in range(NPRE, 18):
        for r in range(2):
            work.append(dict(e=0, dl=72 + 9 * r + (t - 9) - 3 if t >= 9 else 0, ops=[(x, 1.3) for x in center(r, t)], key=("x", t, r), hard=True))
    def done_gap(n, T, r): return n * 72 + T * 18 + 9 * r + 8
    for B in range(5):
        if B < 4: nG, nU, nt_, u0 = 4 * B + 1, 4 * B + 3, 4, 2 * B
        else: nG, nU, nt_, u0 = 17, 17, 2, 8
        nxt = nU + 1
        for T in range(nt_):
            for r in range(2):
                g = GA + 8 * T + 4 * r; u = UA + 8 * T + 4 * r
                e = done_gap(nG, T, r) + 3
                eu = done_gap(nU, T if B < 4 else T + 2, r) + 3
                if B < 3: dl = (nxt * 4 + T) * 18 + 9 * r - 2
                elif B == 3: dl = (nxt * 4 + T) * 18 + 9 * r - 2 if T < 2 else (nxt * 4 + 2) * 18 - 2
                else: dl = eu + 6
                t0 = TMP
                ops = []
                for b in range(4): ops.append(("v_mul_f32 v%d, v%d, v%d" % (t0 + b, C1 + r, g + b), 1))
                for b in range(4): ops.append(("v_exp_f32 v%d, v%d" % (t0 + b, t0 + b), 2))
                for b in range(4): ops.append(("v_fma_f32 v%d, v%d, v%d, v%d" % (t0 + b, t0 + b, C2 + r, C2 + r), 1))
                for b in range(4): ops.append(("v_rcp_f32 v%d, v%d" % (t0 + b, t0 + b), 2))
                for b in range(4): ops.append(("v_mul_f32 v%d, v%d, v%d" % (g + b, g + b, t0 + b), 1))
                work.append(dict(e=e, dl=max(eu - 1, e + 8) if B < 4 else eu, ops=ops, key=("s", B, T, r)))
                ops = [("v_mul_f32 v%d, v%d, v%d" % (u + b, u + b, g + b), 1) for b in range(4)]
                work.append(dict(e=eu, dl=dl, ops=ops, key=("m", B, T, r), after=[("s", B, T, r)], hard=True))
                ue = UA + 8 * (T & ~1) + 4 * r
                ops = [("v_cvt_pk_bf16_f32 v%d, v%d, v%d" % (ue + 2 * (T & 1) + j, u + 2 * j, u + 2 * j + 1), 1) for j in range(2)]
                if OWN: ops += [("v_accvgpr_write_b32 a%d, v%d" % (HOWN + 8 * (u0 + (T >> 1)) + 4 * r + 2 * (T & 1) + j, ue + 2 * (T & 1) + j), 1) for j in range(2)]
                aft = [("m", B, T, r)]
                if T & 1:
                    aft.append(("c", B, T - 1, r))
                    ops.append(("s_add_u32 s67, s66, %d\nbuffer_store_dwordx4 %s, v9, s[8:11], s67 offen sc1 ;#h%d" % (((u0 + (T >> 1)) * 2 + r) * 1024, vr(ue, 4), B), 2))
                if B < 3: dl2 = (nxt + 1) * 72 + 10 + 8 * T + 4 * r
                elif B == 3: dl2 = (nxt * 4 + 2) * 18 - 4
                else: dl2 = eu + 10
                work.append(dict(e=eu, dl=dl2, ops=ops, key=("c", B, T, r), after=aft, hard=True))
    if "pfA" in OPT:
        NP = XP.get("pfn4", 3); per = -(-41 // NP)
        put(72 + 5, ["s_lshl_b32 s32, s2, 2", "s_add_u32 s32, s32, s22", "s_mul_i32 s32, s32, 5184", "s_and_b32 s32, s32, 0xffffff80",
                     "v_lshlrev_b32 v15, 7, v1", "v_mov_b32 v14, 0x%x" % BIG, "v_cmp_gt_u32 vcc, %d, v1" % per, "s_nop 1", "v_cndmask_b32 v15, v14, v15, vcc"])
        for q in range(NP):
            put(bar_gap[XP.get("pf0", 2) + q * XP.get("pfd4", 2)] + XP.get("pfg", 54), ["buffer_load_dword a%d, v15, s[48:51], s32 offen" % (200 + q), "s_add_u32 s32, s32, %d" % (per * 128)])
    FLG = 13
    def hloads(c):
        o = []
        for a in range(1 if OWN else 0, 4):
            o.append(["s_add_u32 s27, %s, %d" % (("s%d" % (76 + a), c * 2048) if OWN else ("s68", a * 73728 + c * 2048)), "buffer_load_dwordx4 %s, v9, s[8:11], s27 offen sc1" % ar(hbuf(c) + 8 * a, 4)])
            o.append(["buffer_load_dwordx4 %s, v9, s[8:11], s27 offen offset:1024 sc1" % ar(hbuf(c) + 8 * a + 4, 4)])
        return o
    if WDT:
        put(3 * 72 + 20, ["v_mov_b32 v%d, v9" % VW, "s_lshl_b32 s67, s35, 10", "v_add_u32 v%d, s67, v9" % (VW + 1), "s_xor_b32 s67, s35, 1", "s_lshl_b32 s67, s67, 13", "v_add_u32 v%d, s67, v9" % (VW + 2)])
        put(5 * 72 + 20, ["v_min_u32 v14, 26, v1", "v_mul_u32_u24 v15, 22, v14", "v_lshrrev_b32 v15, 6, v15", "v_mul_u32_u24 v5, 6, v15", "v_add_u32 v14, v14, v5"])
        put(5 * 72 + 30, ["s_add_u32 s67, s26, s22", "s_and_b32 s67, s67, 3", "s_and_b32 s32, s24, 12", "s_add_u32 s67, s67, s32", "s_mul_i32 s67, s67, 81",
                          "s_mul_i32 s32, s26, 9", "s_lshr_b32 s32, s32, 2", "s_add_u32 s67, s67, s32", "v_add_u32 v14, s67, v14", "v_and_b32 v14, 255, v14", "v_lshlrev_b32 v14, 7, v14", "s_mov_b32 s32, %d" % FW])
        put(11 * 72 + 30, poll(FLG, 14, "s32")); put(12 * 72 + 40, check("w", FLG, 14, "s32", False), 4)
    if OWN:
        for a in range(1, 4):
            put(15 * 72 + 10 + 4 * a, ["s_add_u32 s%d, s26, %d" % (76 + a, a), "s_and_b32 s%d, s%d, 3" % (76 + a, 76 + a), "s_mul_i32 s%d, s%d, 73728" % (76 + a, 76 + a), "s_add_u32 s%d, s%d, s68" % (76 + a, 76 + a)])
    adv = lambda r: ["s_add_u32 %s, %s, 0x20000" % (r, r)]
    put(14 * 72 + 30, flag("h2", 4, 3, "s69") + adv("s69"))
    put(17 * 72 + 40, flag("h3", 4, 3, "s69") + adv("s69"))
    put(19 * 72 + 20, flag("h4", 4, 3, "s69"))
    put(15 * 72 + 40, poll(FLG, 12, "s70")); put(16 * 72 + 4, check("a", FLG, 12, "s70", False) + adv("s70"), 4)
    put(20 * 72 + 10, poll(FLG, 12, "s70")); put(21 * 72 + 2, check("b", FLG, 12, "s70", False) + adv("s70"), 4)
    put(22 * 72 + 60, poll(FLG, 12, "s70")); put(23 * 72 + 60, check("c", FLG, 12, "s70", False), 4)
    for c in range(9):
        if SPL and c == 8: place(hloads(c), 24 * 72 + 1, 24 * 72 + 24)
        else: place(hloads(c), (16 + c) * 72 + 8, (16 + c) * 72 + 66)
    if AL:
        SEL, HR, PL, OO = 112, GA, 200, 116
        g26 = 26 * 72
        sel = ["v_lshrrev_b32 v2, 1, v6", "v_and_b32 v5, 1, v6", "v_lshlrev_b32 v5, 4, v5", "v_mov_b32 v8, 0x3f80", "v_lshlrev_b32 v5, v5, v8"]
        for q in range(4): sel += ["v_cmp_eq_u32 vcc, %d, v2" % q, "v_cndmask_b32 v%d, 0, v5, vcc" % (SEL + q)]
        setup = sel + [
            "s_lshl_b32 s29, s23, 2", "s_add_u32 s29, s29, s26", "s_lshl_b32 s29, s29, 2", "s_add_u32 s71, s29, s22", "s_add_u32 s72, s29, s25",
            "s_mul_i32 s71, s71, 33", "s_add_u32 s71, s71, s25", "s_lshl_b32 s71, s71, 10",
            "s_mul_i32 s72, s72, 33792", "s_lshl_b32 s29, s22, 8", "s_add_u32 s72, s72, s29",
            "s_lshl_b32 s35, s23, 2", "s_add_u32 s35, s35, s22", "s_mul_i32 s35, s35, 68", "s_add_u32 s35, s35, s24", "s_lshl_b32 s35, s35, 10", "s_add_u32 s35, s35, 0x880000",
            "s_lshl_b32 s74, s23, 4", "s_add_u32 s74, s74, s24", "s_mul_i32 s74, s74, 17408", "s_add_u32 s74, s74, s29", "s_add_u32 s74, s74, 0x880000",
            "s_lshl_b32 s73, s23, 2", "s_add_u32 s75, s73, s25", "s_add_u32 s73, s73, s22", "s_lshl_b32 s73, s73, 4", "s_add_u32 s73, s73, s24", "s_lshl_b32 s73, s73, 7",
            "s_add_u32 s73, s73, %d" % FP, "s_lshl_b32 s75, s75, 11", "s_add_u32 s75, s75, %d" % FP,
            "s_lshl_b32 s29, s23, 2", "s_add_u32 s29, s29, s25", "s_mul_i32 s90, s29, 36864", "s_mul_i32 s31, s29, %d" % (32 * 1152),
            "s_lshl_b32 s29, s26, 12", "s_add_u32 s90, s90, s29", "s_lshl_b32 s29, s22, 8", "s_add_u32 s90, s90, s29",
            "s_lshl_b32 s91, s23, 3", "s_lshr_b32 s30, s24, 1", "s_add_u32 s30, s30, s91", "s_mul_i32 s30, s30, 18432", "s_add_u32 s91, s30, s29",
            "s_and_b32 s29, s24, 1", "s_lshl_b32 s32, s29, 10", "s_add_u32 s91, s91, s32", "s_add_u32 s91, s91, 16384",
            "s_lshl_b32 s29, s29, 6", "s_add_u32 s30, s30, s29", "s_add_u32 s30, s30, 1024", "s_lshl_b32 s29, s22, 3", "s_add_u32 s30, s30, s29", "s_add_u32 s31, s31, s29",
            "s_lshl_b32 s29, s26, 8", "s_add_u32 s31, s31, s29",
            "v_lshlrev_b32 v14, 4, v6", "v_mov_b32 v2, 0x%x" % BIG, "v_cmp_gt_u32 vcc, 32, v1",
            "v_lshl_add_u32 v10, v7, 3, v14", "v_lshl_add_u32 v14, v7, 10, v14", "v_cndmask_b32 v10, v2, v10, vcc",
            "v_mul_u32_u24 v15, 1152, v6", "v_lshl_add_u32 v15, v7, 5, v15", "v_cndmask_b32 v15, v2, v15, vcc", "v_lshlrev_b32 v11, 7, v6"]
        place([[x] for x in setup], 19 * 72 + 30, 20 * 72 + 60)
        put(21 * 72 + 30, ["s_add_u32 s40, s20, 0x%x" % WS_P2, "s_addc_u32 s41, s21, 0", "s_and_b32 s41, s41, 0xffff", "s_mov_b32 s42, 0x%x" % P2_BYTES, "s_mov_b32 s43, 0x20000"])
        hl = []
        for q in range(9):
            if q < 8: hl.append(["s_add_u32 s67, s90, %d" % ((q & 1) * 18432 + (q >> 1) * 1024), "buffer_load_dwordx2 %s, v10, s[12:15], s67 offen sc1" % vr(HR + 4 * q + 2, 2)])
            else: hl.append(["buffer_load_dwordx2 %s, v10, s[12:15], s91 offen sc1" % vr(HR + 4 * q + 2, 2)])
        place(hl, 24 * 72 + 4, 24 * 72 + 68)
        for q in range(9):
            h = HR + 4 * q
            ops = ["v_lshlrev_b32 v%d, 16, v%d" % (h, h + 2), "v_and_b32 v%d, 0xffff0000, v%d" % (h + 1, h + 2),
                   "v_lshlrev_b32 v%d, 16, v%d" % (h + 2, h + 3), "v_and_b32 v%d, 0xffff0000, v%d" % (h + 3, h + 3)]
            work.append(dict(e=25 * 72 + 40 + q, dl=g26 + 40, ops=[(x, 1) for x in ops], key=("h", q)))
        for T in range(12):
            for r in range(2):
                a = DA + 8 * T + 4 * r; ae = DA + 8 * (T & ~1) + 4 * r
                e = (g26 + 8 + 8 * T + 4 * r + 3 + 3) if T < 8 else (g26 + 2 * (T - 8) + r + 4)
                ops = [("v_cvt_pk_bf16_f32 v%d, v%d, v%d" % (ae + 2 * (T & 1) + j, a + 2 * j, a + 2 * j + 1), 1) for j in range(2)]
                aft = []
                if T & 1:
                    aft = [("d", T - 1, r)]
                    if T < 8: so = "s_add_u32 s67, s71, %d" % ((2 * (T >> 1) + r) * 4096)
                    else: so = "s_add_u32 s67, s35, %d" % ((2 * r + ((T - 8) >> 1)) * 17408)
                    ops.append((so + "\nbuffer_store_dwordx4 %s, v9, s[40:43], s67 offen sc1 ;#p" % vr(ae, 4), 2))
                work.append(dict(e=e, dl=e + 4, ops=ops, key=("d", T, r), after=aft))
    else:
        QS, SEL, HR, PL, OO = 96, 136, GA, 200, 140
        g26 = 26 * 72
        sel = ["v_lshrrev_b32 v2, 1, v6", "v_and_b32 v5, 1, v6", "v_lshlrev_b32 v5, 4, v5", "v_mov_b32 v8, 0x3f80", "v_lshlrev_b32 v5, v5, v8"]
        for q in range(4): sel += ["v_cmp_eq_u32 vcc, %d, v2" % q, "v_cndmask_b32 v%d, 0, v5, vcc" % (SEL + q)]
        setup = sel + [
            "s_lshl_b32 s29, s23, 2", "s_add_u32 s29, s29, s26", "s_lshl_b32 s29, s29, 2", "s_add_u32 s71, s29, s22", "s_add_u32 s72, s29, s25",
            "s_lshl_b32 s73, s71, 9", "s_lshl_b32 s75, s72, 9",
            "s_mul_i32 s71, s71, 36", "s_add_u32 s71, s71, s25", "s_lshl_b32 s71, s71, 10",
            "s_mul_i32 s72, s72, 36864", "s_lshl_b32 s29, s22, 8", "s_add_u32 s72, s72, s29",
            "s_lshl_b32 s29, s25, 7", "s_add_u32 s73, s73, s29", "s_add_u32 s73, s73, %d" % FP, "s_add_u32 s75, s75, %d" % FP,
            "s_lshl_b32 s29, s23, 2", "s_add_u32 s29, s29, s25", "s_mul_i32 s90, s29, 36864", "s_mul_i32 s32, s29, %d" % (32 * 1152),
            "s_lshl_b32 s29, s22, 8", "s_add_u32 s90, s90, s29",
            "s_lshr_b32 s29, s34, 6", "s_lshl_b32 s29, s29, 10", "s_add_u32 s91, s90, s29", "s_lshl_b32 s29, s35, 3", "s_add_u32 s91, s91, s29",
            "s_lshl_b32 s29, s33, 4", "s_add_u32 s90, s90, s29",
            "s_lshl_b32 s29, s22, 3", "s_add_u32 s32, s32, s29", "s_add_u32 s31, s32, s33", "s_add_u32 s30, s32, s34",
            "v_lshlrev_b32 v14, 4, v6", "v_mov_b32 v2, 0x%x" % BIG, "v_cmp_gt_u32 vcc, 32, v1",
            "v_lshl_add_u32 v10, v7, 3, v14", "v_mul_u32_u24 v11, 18432, v7", "v_add_u32 v11, v11, v14", "v_lshl_add_u32 v14, v7, 10, v14",
            "v_cndmask_b32 v10, v2, v10, vcc", "v_cndmask_b32 v11, v2, v11, vcc",
            "v_mul_u32_u24 v15, 1152, v6", "v_mul_u32_u24 v8, 1152, v1", "v_lshl_add_u32 v15, v7, 5, v15",
            "v_cndmask_b32 v15, v2, v15, vcc", "v_cndmask_b32 v8, v2, v8, vcc"]
        place([[x] for x in setup], 19 * 72 + 30, 20 * 72 + 60)
        put(21 * 72 + 30, ["s_add_u32 s40, s20, 0x%x" % WS_P2, "s_addc_u32 s41, s21, 0", "s_and_b32 s41, s41, 0xffff", "s_mov_b32 s42, 0x%x" % P2_BYTES, "s_mov_b32 s43, 0x20000"])
        hl = []
        for q in range(9):
            if q < 8: hl.append(["s_add_u32 s67, s90, %d" % ((q & 1) * 18432 + (q >> 1) * 1024), "buffer_load_dwordx2 %s, v10, s[12:15], s67 offen sc1" % vr(HR + 4 * q + 2, 2)])
            else: hl.append(["buffer_load_dwordx2 %s, v11, s[12:15], s91 offen sc1" % vr(HR + 4 * q + 2, 2)])
        place(hl, 24 * 72 + 4, 24 * 72 + 68)
        for q in range(9):
            h = HR + 4 * q
            ops = ["v_lshlrev_b32 v%d, 16, v%d" % (h, h + 2), "v_and_b32 v%d, 0xffff0000, v%d" % (h + 1, h + 2),
                   "v_lshlrev_b32 v%d, 16, v%d" % (h + 2, h + 3), "v_and_b32 v%d, 0xffff0000, v%d" % (h + 3, h + 3)]
            work.append(dict(e=25 * 72 + 40 + q, dl=g26 + 40, ops=[(x, 1) for x in ops], key=("h", q)))
        for T in range(9):
            for r in range(2):
                a = DA + 8 * T + 4 * r
                q = 2 * (T >> 1) + r if T < 8 else 8
                o = QS + 4 * q + (2 * (T & 1) if T < 8 else 2 * r)
                e = fin[T] + 4 * r + 3 + 3
                ops = [("v_cvt_pk_bf16_f32 v%d, v%d, v%d" % (o + j, a + 2 * j, a + 2 * j + 1), 1) for j in range(2)]
                aft = []
                if (T < 8 and T & 1) or (T == 8 and r == 1):
                    aft = [("d", T - 1, r)] if T < 8 else [("d", 8, 0)]
                    ops.append(("s_add_u32 s67, s71, %d\nbuffer_store_dwordx4 %s, v9, s[40:43], s67 offen sc1 ;#p" % (q * 4096, vr(QS + 4 * q, 4)), 2))
                work.append(dict(e=e, dl=e + 4, ops=ops, key=("d", T, r), after=aft))
    put(18 * 72 - 1, stamp_ops("p4 A"), 0)
    put(XP.get("csplit", 11) * 72, ["L_s4:"], 0)
    tail, done = edf_place(work, fill, load, NM, XP["cap"] / 100.0)
    body = []
    for x in weave(main, fill): body += x.split("\n")
    if "xvalu" in OPT: body = [x for x in body if not re.match(r"v_(mul_f32|exp|fma_f32|rcp)", x)]
    for fl in ("nt", "sc1", "sc0"):
        if "d" + fl in OPT: body = [x.replace(" lds", " %s lds" % fl) for x in body]
    if "mockT" in OPT or "mockA" in OPT:
        nb = []; nm = 0
        for x in body:
            if x.startswith("v_mfma"): nm += 1
            m = re.match(r"ds_read_b64_tr_b16 a\[(\d+):\d+\], (v\d+) (offset:\d+)(.*)", x)
            if m and ((nm >= 18 * 72 - 18 and "mockT" in OPT) or (nm < 18 * 72 - 18 and "mockA" in OPT)):
                a = int(m.group(1))
                if a % 4 == 0: nb.append("ds_read_b128 a[%d:%d], v9 %s%s" % (a, a + 3, m.group(3), m.group(4)))
                continue
            if "mockT" in OPT:
                x = re.sub(r"buffer_load_dwordx4 v(232|233|234|235|254), s\[48:51\]", "buffer_load_dwordx4 v9, s[48:51]", x)
                m = re.match(r"s_add_u32 s60, (s63|s64), (\d+)", x)
                if m:
                    o = int(m.group(2)); x = "s_add_u32 s60, %s, %d" % (m.group(1), (o // 36864) * 36864 + (o % 36864) // 128 * 4096)
            nb.append(x)
        body = nb
    if "xdma" in OPT: body = [x for x in body if " lds" not in x]
    if "xds" in OPT: body = [x for x in body if not x.startswith("ds_read")]
    if "xb128" in OPT:
        nb = []
        for x in body:
            m = re.match(r"ds_read_b64_tr_b16 a\[(\d+):\d+\], (v\d+) (offset:\d+)(.*)", x)
            if m:
                a = int(m.group(1))
                if a % 4 == 0: nb.append("ds_read_b128 a[%d:%d], v9 %s%s" % (a, a + 3, m.group(3), m.group(4)))
            else: nb.append(x)
        body = nb
    if "xswap" in OPT:
        nb = []
        for x in body:
            m = re.match(r"(v_mfma\S+ \S+), (\S+), (\S+), (.*)", x)
            nb.append("%s, %s, %s, %s" % (m.group(1), m.group(3), m.group(2), m.group(4)) if m else x)
        body = nb
    if "xmfma" in OPT: body = [x for x in body if not x.startswith("v_mfma")]
    k.extend(body); k.extend(tail)
    stamp(k, "p4 D")
    k.extend(flag("p", 4, 3, "s73"))
    stamp(k, "p4 fl")
    if "poll1" in OPT:
        k("s_cmp_lg_u32 s22, 0\ns_cbranch_scc1 L_p5w")
        spin(k, "p5", FLG, 11 if AL else 12, "s75", False, 5)
        k("L_p5w:\ns_barrier")
    else: spin(k, "p5", FLG, 11 if AL else 12, "s75", False, 5)
    stamp(k, "p4 go2")
    if AL:
        for q in range(12):
            k("s_add_u32 s67, %s, %d" % (("s72", q * 4096) if q < 8 else ("s74", (q - 8) * 4096)))
            k("buffer_load_dwordx4 %s, v14, s[40:43], s67 offen sc1" % vr(PL + 4 * q, 4))
        def outq(q):
            a = HR + 4 * q; o = OO + 2 * q
            ops = ["v_cvt_pk_bf16_f32 v%d, v%d, v%d" % (o, a, a + 1), "v_cvt_pk_bf16_f32 v%d, v%d, v%d" % (o + 1, a + 2, a + 3)]
            if q < 8: ops += ["s_add_u32 s67, s31, %d" % ((q & 1) * 16 * 1152), "buffer_store_dwordx2 %s, v15, s[16:19], s67 offen offset:%d" % (vr(o, 2), (q >> 1) * 64)]
            else: ops += ["buffer_store_dwordx2 %s, v15, s[16:19], s30 offen" % vr(o, 2)]
            return ops
        for q in range(12):
            a = vr(HR + 4 * min(q, 8), 4)
            k("v_mfma_f32_16x16x32_bf16 %s, %s, %s, %s" % (a, vr(SEL, 4), vr(PL + 4 * q, 4), a))
            if 2 <= q < 10: k.extend(outq(q - 2))
        k.extend(outq(8))
        return
    for q in range(9):
        k("s_add_u32 s67, s72, %d" % (q * 4096))
        k("buffer_load_dwordx4 %s, v14, s[40:43], s67 offen sc1" % vr(PL + 4 * q, 4))
    osc = " sc1" if "osc1" in OPT else (" nt" if "ont" in OPT else "")
    fix = lambda ops: [o.replace("s[96:99]", "s[16:19]") + (osc if o.startswith("buffer_store") else "") for o in ops]
    for q in range(9):
        k("v_mfma_f32_16x16x32_bf16 %s, %s, %s, %s" % (vr(HR + 4 * q, 4), vr(SEL, 4), vr(PL + 4 * q, 4), vr(HR + 4 * q, 4)))
        if q >= 2: k.extend(fix(_outq(q - 2, HR, OO)))
    k.extend(fix(_outq(7, HR, OO))); k.extend(fix(_outq(8, HR, OO)))

def build(path):
    k = K(NAME); k.vgpr = 256; k.agpr = 256; k.sgpr = 102
    k.page_align = True
    k("L_main:\nL_s1:\ns_cmp_ge_u32 s2, 256\ns_cbranch_scc1 L_exit")
    k("s_load_dwordx4 s[4:7], s[0:1], 0\ns_load_dwordx2 s[92:93], s[0:1], 64\ns_load_dwordx2 s[20:21], s[0:1], 72")
    k("v_and_b32 v1, 63, v0\nv_lshrrev_b32 v2, 6, v0")
    if "c1first" in OPT:
        k("s_getpc_b64 s[32:33]\nv_lshlrev_b32 v7, 5, v0\nv_add_u32 v7, 3072, v7\nglobal_load_dword v249, v7, s[32:33]")
    k("v_readfirstlane_b32 s22, v2\ns_mov_b32 s100, 400000")
    if "stamp" in OPT: k("v_mov_b32 v0, 0")
    stamp(k, "start")
    p1(k)
    k("L_s2:")
    p2(k)
    k("L_s3:")
    p3(k)
    p4(k)
    if "stamp" in OPT:
        k("s_waitcnt vmcnt(0)")
        stamp(k, "end")
        k.srd(76, 20, 1 << 22, WS_TS)
        k("s_lshl_b32 s75, s2, 2\ns_add_u32 s75, s75, s22\ns_lshl_b32 s75, s75, 8\nv_lshlrev_b32 v2, 2, v1")
        k("buffer_store_dword v0, v2, s[76:79], s75 offen")
        if "dbgst" in OPT:
            sel = XP.get("sel") or ["start", "p1 x", "p1 ln", "p1 mm", "p1 fl", "p2 go", "p2 st", "p3 go", "p3 fl", "p4 go", "p4 x", "p4 A", "p4 D", "p4 go2", "end"]
            k("v_mov_b32 v4, 0")
            for j, n in enumerate(sel):
                k("v_readlane_b32 s75, v0, %d" % STAMPS.index(n))
                if j == 0: k("s_not_b32 s75, s75")
                k("v_writelane_b32 v4, s75, %d" % (j + 1))
            k.srd(76, 92, 256)
            k("s_mov_b32 exec_hi, 0\ns_mov_b32 exec_lo, 0xfffe")
            k("buffer_atomic_umax v4, v2, s[76:79], 0 offen sc1")
    k("L_exit:\ns_endpgm\n@reset")
    kp = K("tmp")
    kp.srd(96, 20, FL_BYTES, WS_FL)
    prefetch_wg(kp)
    k.extend(SLOW)
    k("L_s5:\nL_pf0:\n@reset")
    k.ins += kp.ins
    k("L_code_end:")
    add_page_stubs(k, "L_main", [("L_c1", "L_s1", "L_s2"), ("L_c2", "L_s2", "L_s3"), ("L_c3", "L_s3", "L_s4"), ("L_c4", "L_s4", "L_s5")], base=XP.get("base", 768))
    hdr = """Pre-LN transformer block (sliding-window attention + SwiGLU FFN), S=2048 D=576 H=32 F=4608, bf16.
One persistent launch, one workgroup per CU; phases hand data over through d_ws with per-launch tagged flags.
Generated by work/gen2.py.  Kernarg: x, wqkv, wo, (unused), w_gate, w_up, w_down, out, dbg, ws."""
    txt = program([(k, 256, 256, 163840)], [k], hdr)
    if "single" in OPT:
        txt = txt.replace("; @launch kernel=%s grid" % NAME, "; @launch grid")
    open(path, "w").write(txt)
    print(k.stats, len(txt), "bytes")
    import json
    json.dump(STAMPS, open(path[:-2] + ".stamps.json", "w"))

if __name__ == "__main__":
    OPT.update(sys.argv[2:])
    for a in sys.argv[2:]:
        if a.startswith('-'): OPT.discard(a[1:])
    for a in sys.argv[2:]:
        if "=" in a: XP[a.split("=")[0]] = int(a.split("=")[1])
    build(sys.argv[1])
```

```python
import sys, struct, re
from asmgen import *
from gen import edf_place, tr_addrs, dma_piece, bf16_round, f2u, LOG2E, _outq

S, D, F, NQKV, NH, DH = 2048, 576, 4608, 1728, 32, 18
NAME = "sequential_preLN__sliding_block__swiglu_ffn__prompt_kernel"
CGS = 16384 + 128
WS_Z, Z_BYTES = 0, 432 * CGS
import os
OPS = int(os.environ.get("OPS", 32768 + 1024 + 256))
O2S = int(os.environ.get("O2S", 8192 + 256))
WS_OP, OP_BYTES = 0x700000, 64 * OPS
WS_O2, O2_BYTES = 0x940000, 32 * O2S
WS_H, H_BYTES = 0xA00000, 128 * 18 * 1024
WS_ST, ST_BYTES = 0xD00000, 6 * 2048 * 8
WS_FL, FL_BYTES = 0xE00000, 0x110000
WS_HB, HB_BYTES = 0x1000000, 256 * 73728
WS_P2, P2_BYTES = 0x2400000, 256 * 53248
WS_TS = 0x4000000
F1, F2, F3, FH, FP, FEPOCH, FW = 0, 0x20000, 0x40000, 0x60000, 0xC0000, 0xE0000, 0xE8000
F2A = 0xF0000
FG = 0xE1000
WS_GT = 0x3A00000
WS_WT = 0x3400000
X_BYTES = S * D * 2
WB = D * F * 2
BIG = 0x7fff0000
OPT = set()
OPT.update(['msub', 'wo1', 'ownh', 'split', 'poll1', 'poll2', 'poll3', 'wdt', 'xinit', 'qkdefer', 'snake', 'lag'])
XP = dict(npre=18, dr0=17, drs=3, cap=300, slp=0, wearly=0, wj=5, nwe=0, nw0=14, nx0=6, won=12, u0=2, lp=36)
SLOW = []
NSTAMP = [0]
STAMPS = []

def stamp(k, name):
    if "stamp" not in OPT: return
    k("s_memrealtime s[94:95]\ns_waitcnt lgkmcnt(0)\nv_writelane_b32 v0, s94, %d" % NSTAMP[0])
    STAMPS.append(name); NSTAMP[0] += 1
def stamp_ops(name):
    if "stamp" not in OPT: return []
    o = ["s_memrealtime s[94:95]", "s_waitcnt lgkmcnt(0)", "v_writelane_b32 v0, s94, %d" % NSTAMP[0]]
    STAMPS.append(name); NSTAMP[0] += 1
    return o

def poll(vflag, vaddr, soff):
    return ["buffer_load_dword v%d, v%d, s[96:99], %s offen sc1" % (vflag, vaddr, soff)]
def check(name, vflag, vaddr, soff, gate=True, ptmp=None):
    slp = ["s_sleep %d" % XP["slp"]] if XP.get("slp") else []
    if "pipe" in OPT and ptmp is not None:
        t = ptmp
        SLOW.extend(["L_slow_%s:" % name, "s_mov_b64 exec, vcc"] + poll(vflag, vaddr, soff) + ["s_nop 15", "s_nop 15", "s_nop 15", "s_nop 15", "L_loop_%s:" % name] +
                    poll(t, vaddr, soff) + ["s_waitcnt vmcnt(1)", "v_cmp_ne_u32 vcc, s3, v%d" % vflag, "s_nop 4", "s_cbranch_vccz L_out_%s" % name] +
                    poll(vflag, vaddr, soff) + ["s_waitcnt vmcnt(1)", "v_cmp_ne_u32 vcc, s3, v%d" % t, "s_sub_u32 s100, s100, 1", "s_cbranch_scc1 L_out_%s" % name, "s_nop 2",
                     "s_cbranch_vccnz L_loop_%s" % name, "L_out_%s:" % name, "s_mov_b64 exec, -1", "s_branch L_back_%s" % name])
    elif "gate" not in OPT:
        one = ["s_ff1_i32_b64 s94, vcc", "s_lshl_b64 exec, 1, s94"] if False else ["s_mov_b64 exec, vcc"]
        SLOW.extend(["L_slow_%s:" % name] + one + slp + poll(vflag, vaddr, soff) + ["s_waitcnt vmcnt(0)", "v_cmp_ne_u32 vcc, s3, v%d" % vflag,
                     "s_sub_u32 s100, s100, 1", "s_cbranch_scc1 L_out_%s" % name, "s_nop 2", "s_cbranch_vccnz L_slow_%s" % name,
                     "L_out_%s:" % name, "s_mov_b64 exec, -1", "s_branch L_back_%s" % name])
    elif gate:
        SLOW.extend(["L_slow_%s:" % name, "s_ff1_i32_b64 s94, vcc", "s_lshl_b64 exec, 1, s94", "L_gate_%s:" % name] + poll(vflag, vaddr, soff) +
                    ["s_waitcnt vmcnt(0)", "v_cmp_ne_u32 vcc, s3, v%d" % vflag, "s_sub_u32 s100, s100, 1", "s_cbranch_scc1 L_full_%s" % name, "s_nop 2",
                     "s_cbranch_vccz L_full_%s" % name] + slp + ["s_branch L_gate_%s" % name, "L_full_%s:" % name, "s_mov_b64 exec, -1"] + poll(vflag, vaddr, soff) +
                    ["s_waitcnt vmcnt(0)", "v_cmp_ne_u32 vcc, s3, v%d" % vflag, "s_sub_u32 s100, s100, 1", "s_cbranch_scc1 L_back_%s" % name, "s_nop 2",
                     "s_cbranch_vccnz L_slow_%s" % name, "s_branch L_back_%s" % name])
    else:
        SLOW.extend(["L_slow_%s:" % name] + poll(vflag, vaddr, soff) + ["s_waitcnt vmcnt(0)", "v_cmp_ne_u32 vcc, s3, v%d" % vflag,
                     "s_sub_u32 s100, s100, 1", "s_cbranch_scc1 L_back_%s" % name, "s_nop 2", "s_cbranch_vccz L_back_%s" % name] + slp + ["s_branch L_slow_%s" % name])
    return ["v_cmp_ne_u32 vcc, s3, v%d" % vflag, "s_nop 4", "s_cbranch_vccnz L_slow_%s" % name, "L_back_%s:" % name]
def spin(k, name, vflag, vaddr, soff, gate=True, ptmp=None):
    k.extend(poll(vflag, vaddr, soff))
    k("s_waitcnt vmcnt(0)")
    k.extend(check(name, vflag, vaddr, soff, gate, ptmp))
def flag(tag, vtmp, vlane0, soff):
    return ["@waitvm " + tag, "v_mov_b32 v%d, s3" % vtmp, "buffer_store_dword v%d, v%d, s[96:99], %s offen sc1" % (vtmp, vlane0, soff)]
def lane0(k, dst, tmp):
    k("v_mov_b32 v%d, 0x%x\nv_cmp_eq_u32 vcc, 0, v1\nv_cndmask_b32 v%d, v%d, v1, vcc" % (tmp, BIG, dst, tmp))

def get_tag(k, vt, issued):
    k("v_readfirstlane_b32 s3, v%d" % vt)
    k("s_cmp_eq_u32 s3, 0\ns_cbranch_scc1 L_tagslow_%s\nL_tagback_%s:" % (issued, issued))
    SLOW.extend(["L_tagslow_%s:" % issued, "v_mov_b32 v%d, 0" % vt, "global_load_dword v%d, v%d, s[92:93] sc1" % (vt, vt), "s_waitcnt vmcnt(0)",
                 "v_readfirstlane_b32 s3, v%d" % vt, "s_sub_u32 s100, s100, 1", "s_cbranch_scc1 L_tagback_%s" % issued,
                 "s_cmp_eq_u32 s3, 0", "s_cbranch_scc1 L_tagslow_%s" % issued, "s_branch L_tagback_%s" % issued])

def prefetch_wg(k):
    k("L_pf:")
    k("s_load_dwordx2 s[8:9], s[0:1], 16\ns_load_dwordx4 s[12:15], s[0:1], 32\ns_load_dwordx2 s[16:17], s[0:1], 48")
    k("s_sub_u32 s23, s2, 224\ns_lshl_b32 s24, s23, 2\ns_add_u32 s24, s24, s22")
    k("v_lshlrev_b32 v2, 7, v1")
    if "tlb" in OPT:
        SH = XP.get("tlbs", 20)
        k("s_load_dwordx2 s[18:19], s[0:1], 56\nv_lshlrev_b32 v3, %d, v1" % SH)
        k.srd(28, 20, 0x4000000)
        for q in range(max(1, (1 << 20) >> SH)):
            k("s_mov_b32 s25, %d\nbuffer_load_dword v%d, v3, s[28:31], s25 offen" % (q * (64 << SH), 40 + (q & 7)))
        k("s_waitcnt lgkmcnt(0)")
        for q, (b, n) in enumerate(((18, X_BYTES), (8, D * D * 2), (12, WB), (14, WB), (16, WB))):
            k.srd(28, b, n)
            k("buffer_load_dword v%d, v3, s[28:31], 0 offen" % (50 + q))
    if "nopfq" not in OPT:
        k.srd(28, 6, D * NQKV * 2)
        k("s_mul_i32 s25, s24, 15616")
        k("buffer_load_dword v10, v2, s[28:31], s25 offen\ns_add_u32 s25, s25, 8192\nbuffer_load_dword v11, v2, s[28:31], s25 offen")
    if "tag0" in OPT: k("s_branch L_pf_notag")
    k("s_cmp_lg_u32 s24, 0\ns_cbranch_scc1 L_pf_notag")
    k("v_mov_b32 v4, %d\nbuffer_load_dword v5, v4, s[96:99], 0 offen sc1\ns_waitcnt vmcnt(0)" % FEPOCH)
    k("v_add_u32 v5, 1, v5\nv_max_u32 v5, 1, v5\nv_mov_b32 v6, 0")
    k("global_store_dword v6, v5, s[92:93] sc1\nbuffer_store_dword v5, v4, s[96:99], 0 offen sc1")
    k("L_pf_notag:")
    k("s_getpc_b64 s[32:33]\nL_pc:\ns_sub_u32 s32, s32, L_pc-L_main\ns_subb_u32 s33, s33, 0")
    k("s_lshr_b32 s25, s23, 3\ns_lshl_b32 s25, s25, 2\ns_add_u32 s25, s25, s22\ns_lshl_b32 s25, s25, 13")
    k("v_add_u32 v3, s25, v2\ns_mov_b32 s25, L_code_end-L_main-4\nv_min_u32 v3, s25, v3")
    if "nocode" not in OPT: k("global_load_dword v12, v3, s[32:33]")
    k("s_waitcnt vmcnt(0) lgkmcnt(0)")
    k.srd(28, 8, D * D * 2)
    k("s_mul_i32 s25, s24, 5248\nv_cmp_gt_u32 vcc, 41, v1\nv_mov_b32 v4, 0x%x\nv_cndmask_b32 v4, v4, v2, vcc\nbuffer_load_dword v10, v4, s[28:31], s25 offen" % BIG)
    k("s_waitcnt vmcnt(0)")
    k.srd(28, 12, WB)
    if "wgt" in OPT:
        k.srd(32, 20, WB, WS_GT)
        dma_piece(k, 4, 1, 2)
        k("v_mul_u32_u24 v5, 9216, v2\nv_add_u32 v5, v5, v4")
        for a in range(4): k("v_add_u32 v%d, %d, v5" % (16 + a, a * (8 * 9216 - 1024)))
        k("s_mul_i32 s26, s22, 40960")
        tr_addrs(k, 20, 1, "s26", 2)
        k("v_lshlrev_b32 v24, 4, v1\ns_mul_i32 s23, s24, 11\ns_lshl_b32 s27, s23, 12")
        def gdma(r):
            o = ["s_add_u32 s25, s23, %d" % r, "s_mul_i32 s8, s25, 3641", "s_lshr_b32 s8, s8, 16", "s_mul_i32 s9, s8, 18", "s_sub_u32 s9, s25, s9",
                 "s_mul_i32 s9, s9, %d" % (32 * 9216), "s_lshl_b32 s8, s8, 7", "s_add_u32 s8, s8, s9", "s_cmp_ge_u32 s25, 1296", "s_cselect_b32 s8, 0x%x, s8" % WB,
                 "s_add_u32 m0, s26, %d" % ((r % 10) * 4096)]
            return o + ["buffer_load_dwordx4 v%d, s[28:31], s8 offen offset:%d lds ;#g%d" % (16 + a, 1024 * a, r) for a in range(4)]
        GL = XP.get("gl", 4)
        k("@reset")
        for r in range(GL): k.extend(gdma(r))
        for r in range(11):
            b = 32 + 16 * (r % 3)
            k("@waitvm g%d" % r)
            for T in range(4):
                for j in range(2): k("ds_read_b64_tr_b16 %s, v%d offset:%d" % (vr(b + 4 * T + 2 * j, 2), 20 + T, (r % 10) * 4096 + 2048 * j))
            if r + GL < 11: k.extend(gdma(r + GL))
            for T in range(4): k("buffer_store_dwordx4 %s, v24, s[32:35], s27 offen offset:%d sc1" % (vr(b + 4 * T, 4), 1024 * T))
            k("s_add_u32 s27, s27, 4096")
        k("s_lshl_b32 s30, s24, 7\ns_add_u32 s30, s30, %d" % FG)
    k("s_lshl_b32 s25, s24, 15")
    for j in range(0 if ("nopf1" in OPT or "wgt" in OPT) else 4):
        k("buffer_load_dword v%d, v2, s[28:31], s25 offen\ns_add_u32 s25, s25, 8192" % (11 + j))
    ND1 = XP.get("nd1", 0)
    if ND1:
        k.srd(28, 16, WB)
        k("s_mul_i32 s25, s24, %d" % (8192 * ND1))
        for j in range(ND1):
            k("buffer_load_dword v%d, v2, s[28:31], s25 offen\ns_add_u32 s25, s25, 8192" % (16 + j))
    lane0(k, 250, 2)
    p2_scalar(k)
    k("v_mov_b32 v248, 0\nglobal_load_dword v248, v248, s[92:93] sc1\ns_waitcnt vmcnt(0)")
    get_tag(k, 248, "pf")
    k("s_branch L_p2v")

_tc = touch_chain
def touch_chain(k, name, w):
    if 'notouch' in OPT: k('%s_ret:' % name)
    else: _tc(k, name, w)

def p1(k):
    XL, RING, STL = 0, 73728, 73728 + 4 * 20480
    if "map47" in OPT:
        k("s_lshr_b32 s23, s2, 5")
        k("s_and_b32 s24, s2, 7\ns_lshl_b32 s24, s24, 2\ns_bfe_u32 s25, s2, 0x20003\ns_add_u32 s24, s24, s25")
    else:
        k("s_and_b32 s26, s2, 1\ns_lshl_b32 s26, s26, 2\ns_lshr_b32 s23, s2, 6\ns_add_u32 s23, s23, s26")
        k("s_bfe_u32 s24, s2, 0x30003\ns_bfe_u32 s25, s2, 0x20003\ns_add_u32 s25, s25, s26")
        k("s_cmp_ge_u32 s2, 192\ns_cselect_b32 s23, 3, s23\ns_cselect_b32 s24, s25, s24")
        k("s_bfe_u32 s25, s2, 0x20001\ns_lshl_b32 s25, s25, 3\ns_add_u32 s24, s24, s25")
    k("s_lshl_b32 s25, s23, 2\ns_add_u32 s25, s25, s22")
    k("v_lshrrev_b32 v3, 3, v1\nv_and_b32 v4, 7, v1")
    k("v_mul_u32_u24 v5, 1152, v3\nv_lshl_add_u32 v5, v4, 4, v5")
    k("s_lshl_b32 s26, s24, 6\ns_lshl_b32 s27, s22, 4\ns_add_u32 s26, s26, s27\ns_mul_i32 s26, s26, 1152")
    k("v_add_u32 v15, %d, v5" % (8 * 1152))
    k("s_and_b32 s27, s24, 3\ns_mul_i32 s27, s27, 5\ns_lshr_b32 s27, s27, 1")
    if "norot" in OPT: k("s_mov_b32 s27, 0")
    VD = 251
    k("v_lshrrev_b32 v6, 2, v3\nv_lshlrev_b32 v6, 3, v6\nv_and_b32 v7, 3, v3\nv_add_u32 v6, v6, v7")
    k("v_mul_u32_u24 v6, 3456, v6")
    k("v_lshrrev_b32 v7, 1, v3\nv_lshlrev_b32 v7, 1, v7\nv_xor_b32 v7, v7, v4\nv_lshl_add_u32 v6, v7, 4, v6")
    base = [0, 16, 4, 20]
    for a in range(4):
        k("v_add_u32 v%d, %d, v6" % (VD + a, base[a] * 3456 - a * 1024))
    k("s_lshl_b32 s30, s25, 7\ns_mul_i32 s28, s27, %d\ns_add_u32 s28, s28, s30\ns_add_u32 s31, s30, %d" % (64 * 3456, 576 * 3456))
    k("s_lshl_b32 s27, s27, 7\ns_add_u32 s27, s27, s26\ns_add_u32 s101, s26, 1152")
    k("s_mul_i32 s29, s22, 20480\ns_add_u32 s29, s29, %d" % RING)
    k("s_waitcnt lgkmcnt(0)")
    stamp(k, "karg")
    if "tag0" in OPT:
        k("s_lshl_b32 s36, s2, 2\ns_add_u32 s36, s36, s22\ns_cmp_lg_u32 s36, 1023\ns_cbranch_scc1 L_notag")
        k.srd(96, 20, FL_BYTES, WS_FL)
        k("v_mov_b32 v8, %d\nbuffer_load_dword v9, v8, s[96:99], 0 offen sc1\nv_mov_b32 v10, 0\nglobal_load_dword v11, v10, s[92:93] sc1\ns_waitcnt vmcnt(0)" % FEPOCH)
        k("v_add_u32 v9, 1, v9\nv_max_u32 v9, 1, v9")
        k("global_store_dword v10, v9, s[92:93] sc1\nbuffer_store_dword v9, v8, s[96:99], 0 offen sc1\nL_notag:\n@reset")
    k("s_cmp_ge_u32 s2, 224\ns_cbranch_scc1 L_pf0")
    k.srd(8, 4, X_BYTES)
    XR = 16
    for j in range(9):
        for h in range(2):
            k("buffer_load_dwordx4 %s, v%d, s[8:11], s27 offen" % (vr(XR + (h * 9 + j) * 4, 4), (5, 15)[h]))
        if j < 8: k("s_add_u32 s27, s27, 128\ns_cmp_eq_u32 s27, s101\ns_cselect_b32 s27, s26, s27")
    k("s_mov_b32 s26, s30\ns_mov_b32 s27, s31")
    k.srd(12, 6, D * NQKV * 2)
    def dma(t):
        o = ["s_add_u32 m0, s29, %d" % ((t % 5) * 4096)]
        for a in range(4):
            o.append("buffer_load_dwordx4 v%d, s[12:15], s28 offen offset:%d lds ;#w%d" % (VD + a, 1024 * a, t))
        o.append("s_add_u32 s28, s28, %d\ns_cmp_eq_u32 s28, s27\ns_cselect_b32 s28, s26, s28" % (32 * 3456))
        return o
    WEARLY = XP.get("wearly", 0)
    for t in range(WEARLY): k.extend(dma(t))
    k.srd(96, 20, FL_BYTES, WS_FL)
    if "c1late" in OPT:
        k("s_getpc_b64 s[32:33]\nv_lshlrev_b32 v7, 5, v1\ns_lshl_b32 s34, s22, 11\ns_add_u32 s34, s34, 2048\nv_add_u32 v7, s34, v7\nglobal_load_dword v249, v7, s[32:33]")
    elif "c1first" not in OPT: touch_chain(k, "L_c1", 22)
    p2_scalar(k)
    k.srd(16, 20, Z_BYTES, WS_Z)
    k("s_lshr_b32 s30, s22, 1\ns_lshl_b32 s30, s30, 1")
    k("v_lshrrev_b32 v7, 5, v1\nv_add_u32 v7, s30, v7\nv_mul_u32_u24 v7, 18, v7")
    k("v_lshrrev_b32 v10, 2, v4\nv_add_u32 v7, v7, v10\nv_lshlrev_b32 v7, 10, v7")
    k("v_and_b32 v10, 3, v4\nv_lshl_add_u32 v7, v10, 8, v7")
    k("s_and_b32 s30, s22, 1\ns_lshl_b32 s30, s30, 3")
    k("v_and_b32 v10, 3, v3\nv_add_u32 v10, s30, v10")
    k("v_xor_b32 v11, v10, v4\nv_lshl_add_u32 v8, v11, 4, v7")
    k("v_add_u32 v10, 4, v10\nv_xor_b32 v11, v10, v4\nv_lshl_add_u32 v9, v11, 4, v7")
    k("v_and_b32 v10, 15, v1\nv_lshrrev_b32 v11, 4, v1")
    k("v_xor_b32 v12, v10, v11\nv_lshlrev_b32 v12, 4, v12\nv_lshl_add_u32 v247, v11, 8, v12")
    tr_addrs(k, 240, 1, "s29", 12)
    k("s_mov_b32 s31, %d" % CGS)
    k("v_lshrrev_b32 v12, 2, v10\nv_mul_lo_u32 v12, v12, s31\nv_lshl_add_u32 v12, v11, 6, v12\nv_and_b32 v13, 3, v10\nv_lshl_add_u32 v244, v13, 4, v12")
    k("s_cmp_ge_u32 s25, 27\ns_cselect_b32 s30, 0x%x, 0\nv_add_u32 v244, s30, v244" % BIG)
    k("v_lshlrev_b32 v245, 5, v11\nv_add_u32 v245, %d, v245" % STL)
    k("s_lshl_b32 s30, s22, 6\ns_add_u32 s30, s30, %d\nv_lshl_add_u32 v246, v3, 2, s30" % STL)
    lane0(k, 250, 12)
    k("s_mov_b32 s32, 0x3f803f80\ns_mov_b32 s33, 0x00003f80\ns_mov_b32 s34, 0x3f800000\ns_mov_b32 s35, 0x%x" % f2u(1.0 / D))
    T0 = 88
    winit = []
    for t in range(WEARLY, 5):
        d = dma(t); winit += [d[:2], d[2:3], d[3:4], d[4:]]
    for i in range(8): k("v_mov_b32 v%d, 0" % (T0 + i))
    if "c1first" in OPT:
        k("v_mov_b32 v249, v249")
        touch_chain(k, "L_c1", 22)
    for j in range(9):
        for c in range(4):
            for h in range(2):
                k("v_dot2c_f32_bf16 v%d, s32, v%d" % (T0 + 2 * h + (c & 1), XR + (h * 9 + j) * 4 + c))
                if "varold" not in OPT:
                    x = XR + (h * 9 + j) * 4 + c
                    k("v_dot2c_f32_bf16 v%d, v%d, v%d" % (T0 + 4 + 2 * h + (c & 1), x, x))
        if "mockL" in OPT:
            for h in range(2): k("ds_write_b128 v%d, %s offset:%d" % (8 + h, vr(XR + (h * 9 + j) * 4, 4), XL + 2048 * j))
        if j == 0 and "c1late" in OPT: touch_chain(k, "L_c1", 22)
        jw = j - XP.get("wj", 1)
        if jw >= 0:
            for _ in range(XP.get("wa", 1)):
                if winit: k.extend(winit.pop(0))
        if j == 0: stamp(k, "p1 x0")
    stamp(k, "p1 x")
    k("v_add_f32 v%d, v%d, v%d\nv_add_f32 v%d, v%d, v%d" % (T0, T0, T0 + 1, T0 + 2, T0 + 2, T0 + 3))
    for ctl in ("quad_perm:[1,0,3,2]", "quad_perm:[2,3,0,1]", "row_half_mirror"):
        for r in (T0, T0 + 2):
            k("v_add_f32_dpp v%d, v%d, v%d %s row_mask:0xf bank_mask:0xf" % (r, r, r, ctl))
    for h in range(2):
        r = T0 + 2 * h
        k("v_mul_f32 v%d, s35, v%d" % (r, r))
        bf16_round(k, r + 1, r)
        if "varold" in OPT: k("v_sub_f32 v%d, v%d, v%d" % (r, r, r + 1))
        k("v_sub_f32 v%d, 0, v%d" % (r + 1, r + 1))
    WF = 208
    def wreg(t, T): return ar(16 * t + 4 * T, 4) if t < 16 else vr(WF + 16 * (t - 16) + 4 * T, 4)
    def wreg2(t, T, j): return ar(16 * t + 4 * T + 2 * j, 2) if t < 16 else vr(WF + 16 * (t - 16) + 4 * T + 2 * j, 2)
    def drain(t):
        return ["@waitvm w%d" % t] + ["ds_read_b64_tr_b16 %s, v%d offset:%d ;#d%d" % (wreg2(t, T, j), 240 + T, (t % 5) * 4096 + j * 2048, t) for T in range(4) for j in range(2)]
    def refill(t):
        return (["@waitlds d%d" % t] + dma(t + 5)) if t + 5 < 18 else []
    T1 = T0 + 8
    nd = 0
    g = 0
    VARPOS = len(k.ins)
    if "mockL" in OPT:
        while winit: k.extend(winit.pop(0))
        for q in range(XP.get("ndm", 1)):
            k.extend(drain(nd)); k.extend(refill(nd)); nd += 1
    for j in range(9 if "mockL" not in OPT else 0):
        for h in range(2):
            x = XR + (h * 9 + j) * 4
            for c in range(4):
                k("v_dot2_f32_bf16 v%d, v%d, s33, v%d" % (T1 + 2 * c, x + c, T0 + 2 * h + 1))
                k("v_dot2_f32_bf16 v%d, v%d, s34, v%d" % (T1 + 2 * c + 1, x + c, T0 + 2 * h + 1))
            for c in range(4):
                k("v_cvt_pk_bf16_f32 v%d, v%d, v%d" % (x + c, T1 + 2 * c, T1 + 2 * c + 1))
            k("ds_write_b128 v%d, %s offset:%d" % (8 + h, vr(x, 4), XL + 2048 * j))
            g += 1
            for _ in range(XP.get("wb", 1)):
                if winit: k.extend(winit.pop(0))
            if g >= XP["dr0"]: assert not winit
            if g > XP["dr0"] and (g - 1 - XP["dr0"]) % XP["drs"] == 0: k.extend(refill(nd - 1))
            if g >= XP["dr0"] and (g - XP["dr0"]) % XP["drs"] == 0 and g < 18: k.extend(drain(nd)); nd += 1
    var = []
    for j in range(9):
        for c in range(4):
            for h in range(2):
                x = XR + (h * 9 + j) * 4 + c
                if "varold" in OPT: var.append("v_dot2c_f32_bf16 v%d, v%d, v%d" % (T0 + 4 + 2 * h + (c & 1), x, x))
    var += ["v_add_f32 v%d, v%d, v%d" % (T0 + 4, T0 + 4, T0 + 5), "v_add_f32 v%d, v%d, v%d" % (T0 + 6, T0 + 6, T0 + 7)]
    for ctl in ("quad_perm:[1,0,3,2]", "quad_perm:[2,3,0,1]", "row_half_mirror"):
        for r in (T0 + 4, T0 + 6):
            var.append("v_add_f32_dpp v%d, v%d, v%d %s row_mask:0xf bank_mask:0xf" % (r, r, r, ctl))
    rnd = lambda r: ["v_cvt_pk_bf16_f32 v%d, v%d, v%d" % (r, r, r), "v_and_b32 v%d, 0xffff0000, v%d" % (r, r)]
    for h in range(2):
        r = T0 + 4 + 2 * h; dl = T0 + 2 * h
        var += ["v_mul_f32 v%d, v%d, v%d" % (dl, dl, dl), "v_fma_f32 v%d, v%d, s35, -v%d" % (r, r, dl), "v_max_f32 v%d, 0, v%d" % (r, r)] + rnd(r)
        var += ["v_add_f32 v%d, 0x%x, v%d" % (r, f2u(1e-5), r)] + rnd(r) + ["v_sqrt_f32 v%d, v%d" % (r, r)] + rnd(r)
        var += ["v_rcp_f32 v%d, v%d" % (r, r), "ds_write_b32 v246, v%d offset:%d" % (r, 32 * h)]
    if "varold" in OPT: k.extend(var)
    else:
        body = k.ins[VARPOS:]; k.ins = k.ins[:VARPOS]
        if "mockL" in OPT: k.extend(var); var = ["s_nop 0"]
        step = max(1, (len(body) - 20) // len(var)); vi = 0
        for n, ins in enumerate(body):
            k.ins.append(ins)
            if n % step == step - 1 and vi < len(var) and not ins.op.startswith("s_"): k(var[vi]); vi += 1
        k.extend(var[vi:])
    k("v_mov_b32 v10, v247\nv_xor_b32 v11, 64, v247\nv_add_u32 v12, 36864, v10\nv_add_u32 v13, 36864, v11")
    k("@waitlds all\ns_barrier")
    stamp(k, "p1 ln")
    X2, ACC1, XF1, RR = 16, 160, 192, 2
    def xa(r, t): return "v%d offset:%d" % (10 + (t & 1) + 2 * (r >> 1), XL + ((r & 1) * 18 + t) * 1024)
    def x1reads(t): return ["ds_read_b128 %s, %s" % (vr(XF1 + 8 * (t & 1) + 4 * r, 4), xa(r, t)) for r in range(2)]
    def x2reads(t): return ["ds_read_b128 %s, %s" % (vr(X2 + 72 * r + 4 * t, 4), xa(r + 2, t)) for r in range(2)]
    k.extend(x1reads(0))
    main = []; fill = {}
    for t in range(18):
        g0 = 8 * t
        for u in range(8):
            T, r = u >> 1, u & 1
            a = vr(ACC1 + 8 * T + 4 * r, 4)
            main.append("v_mfma_f32_16x16x32_bf16 %s, %s, %s, %s" % (a, vr(XF1 + 8 * (t & 1) + 4 * r, 4), wreg(t, T), a if t else "0"))
        if "mockL" in OPT:
            for T in range(4): fill.setdefault(g0 + 2 * T + 1, []).append("v_mfma_f32_16x16x32_bf16 v[144:147], v[148:151], %s, v[144:147]" % wreg(t, T))
        if t + 1 < 18: spread(fill, x1reads(t + 1), g0, g0 + 1)
        spread(fill, x2reads(t), g0 + 6, g0 + 7)
        if nd < 18:
            d = drain(nd)
            spread(fill, [d[:2]] + d[2:], g0 + 2, g0 + 5)
            rf = refill(nd)
            if rf:
                for q, x in enumerate([rf[:3], rf[3:4], rf[4:5], rf[5:]]): fill.setdefault(g0 + 8 + 2 * q, []).extend(x)
            nd += 1
    assert nd == 18
    fill.setdefault(8 * 12, []).extend(["v_mov_b32 v248, 0", "global_load_dword v248, v248, s[92:93] sc1"])
    def rread(h): return ["ds_read_b128 %s, v245 offset:%d" % (vr(RR + 4 * r, 4), 128 * h + 16 * r) for r in range(2)]
    QS_ = "msub" in OPT or "qs" in OPT
    def rscale(): return ["v_mul_f32 v%d, s31, v%d" % (RR + i, RR + i) for i in range(8)] if QS_ else []
    if QS_: fill.setdefault(8 * 16, []).append("s_cmp_lt_u32 s25, 9\ns_cselect_b32 s31, s88, 1.0")
    spread(fill, rread(0), 8 * 17, 8 * 17 + 1)
    fill.setdefault(8 * 17 + 2, []).append("s_mul_i32 s28, s25, %d\ns_lshl_b32 s30, s24, 9\ns_add_u32 s28, s28, s30" % (16 * CGS))
    def epi(a, T, h):
        o = []
        for r in range(2):
            o += ["v_mul_f32 v%d, v%d, v%d" % (a + 4 * r + b, a + 4 * r + b, RR + 4 * r + b) for b in range(4)]
        o += ["v_cvt_pk_bf16_f32 v%d, v%d, v%d" % (a + j, a + 2 * j, a + 2 * j + 1) for j in range(4)]
        o.append("s_add_u32 s30, s28, %d\nbuffer_store_dwordx4 %s, v244, s[16:19], s30 offen offset:%d sc1 ;#z" % (4 * T * CGS, vr(a, 4), 256 * h))
        return o
    G2 = len(main)
    if "stamp" in OPT: fill.setdefault(G2 - 1, []).extend(stamp_ops("p1 m1"))
    for T in range(4):
        for r in range(2):
            a = vr(XF1 + 8 * (T & 1) + 4 * r, 4)
            for t in range(18):
                main.append("v_mfma_f32_16x16x32_bf16 %s, %s, %s, %s" % (a, vr(X2 + 72 * r + 4 * t, 4), wreg(t, T), a if t else "0"))
    e1 = rscale()
    for T in range(4): e1 += epi(ACC1 + 8 * T, T, 0)
    spread(fill, e1 + rread(1), G2 + 2, G2 + 33)
    if QS_: spread(fill, rscale(), G2 + 35, G2 + 38)
    for T in range(3): spread(fill, epi(XF1 + 8 * (T & 1), T, 1), G2 + 36 * (T + 1) + 3, G2 + 36 * (T + 1) + 20)
    if "wo1" in OPT:
        kw = K("tmp"); wo_offsets(kw, "main", 10)
        fill.setdefault(G2 + 1, []).extend(["@waitlds all", "s_barrier"])
        spread(fill, [i.text for i in kw.ins], G2 + 2, G2 + 20)
        spread(fill, wo_dmas()[:XP.get("won", 24)], G2 + XP.get("wo0", 24), G2 + XP.get("wo9", 120))
    k.extend(weave(main, fill))
    stamp(k, "p1 mm")
    k.extend(epi(XF1 + 8, 3, 1))
    get_tag(k, 248, "p1")
    k("s_lshl_b32 s30, s24, 12\ns_lshl_b32 s31, s25, 7\ns_add_u32 s30, s30, s31")
    stamp(k, "p1 st")
    k("L_p2v:")
    p2_vector(k)
    if "wgt" not in OPT: k("s_cmp_ge_u32 s2, 224\ns_cbranch_scc1 L_p2")
    k.extend(flag("z", 2, 250, "s30"))
    stamp(k, "p1 fl")

WOB = 53248
KB, VB, AUX, QB = 0, 20800, 41600, WOB + 16 * 6144
AK1, AK3, AQ1, AQ3, AV, VO1, VO2 = 232, 233, 234, 235, 236, 237, 238
VD2, VE2, VH2, VHE2 = 240, 244, 251, 253
MK = 208
KF, VF, QF, OA = 0, 80, 160, 176
def p2_scalar(k):
    k("s_load_dwordx2 s[90:91], s[0:1], 16")
    if "qmap" in OPT:
        k("s_and_b32 s80, s2, 7\ns_lshr_b32 s81, s2, 3")
    else:
        k("s_lshr_b32 s80, s2, 5")
        k("s_and_b32 s81, s2, 7\ns_lshl_b32 s81, s81, 2\ns_bfe_u32 s68, s2, 0x20003\ns_add_u32 s81, s81, s68")
    k("s_mul_i32 s68, s81, 18\ns_and_b32 s82, s68, 3\ns_lshr_b32 s68, s68, 2")
    k("s_add_u32 s83, s68, 144\ns_mul_i32 s83, s83, %d" % CGS)
    k("s_lshl_b32 s84, s80, 1\ns_add_u32 s84, s84, s22\ns_cmp_lt_u32 s84, 2\ns_cselect_b32 s69, 0, 2\ns_sub_u32 s84, s84, s69")
    k("s_lshl_b32 s84, s84, 10\ns_add_u32 s83, s83, s84\ns_lshl_b32 s84, s22, 10")
    k("s_mul_i32 s85, s68, %d\ns_lshl_b32 s69, s80, 11\ns_add_u32 s85, s85, s69\ns_lshl_b32 s87, s22, 9\ns_add_u32 s85, s85, s87" % CGS)
    k("s_mul_i32 s86, s22, 3072\ns_add_u32 s86, s86, %d" % QB)
    k("v_lshrrev_b32 v12, 5, v1\nv_lshlrev_b32 v12, 3, v12\nv_and_b32 v13, 31, v1\nv_sub_u32 v12, v13, v12")
    for rho in range(16):
        a, b = rho >> 2, rho & 3
        k("v_cmp_le_i32 s[%d:%d], %d, v12" % (36 + 2 * rho, 37 + 2 * rho, 16 * (a >> 1) + 4 * (a & 1) + b))
    k("s_lshl_b32 s68, s80, 8\ns_lshl_b32 s69, s22, 6\ns_add_u32 s68, s68, s69")
    k("s_mul_i32 s69, s81, %d\ns_lshl_b32 s70, s68, 4\ns_add_u32 s69, s69, s70" % (2 * OPS))
    k("s_mul_i32 s70, s81, %d\ns_lshl_b32 s68, s68, 2\ns_add_u32 s70, s70, s68" % O2S)
    k("s_lshr_b32 s73, s2, 5\ns_mul_i32 s72, s73, 192\ns_and_b32 s73, s73, 1\ns_lshl_b32 s74, s73, 6\ns_xor_b32 s73, s73, 1\ns_lshl_b32 s73, s73, 7")
    k("s_add_u32 s73, s73, s72\ns_add_u32 s72, s72, s74")
    k("s_lshl_b32 s71, s80, 1\ns_lshr_b32 s74, s22, 1\ns_add_u32 s71, s71, s74\ns_cmp_eq_u32 s71, 0\ns_cselect_b32 s71, 0xff7fff7f, 0")
    c = LOG2E * DH ** -0.5
    k("s_mov_b32 s75, 0x%x\ns_mov_b32 s88, 0x%x\ns_mov_b32 s89, s88" % (f2u(-c), f2u(c)))
    k("s_waitcnt lgkmcnt(0)")
    k.srd(76, 90, D * D * 2)
    k("s_cmp_ge_u32 s2, 192\ns_cselect_b32 s78, 0, s78")
    k("s_mul_i32 s90, s22, %d\ns_mul_i32 s91, s22, 6144\ns_add_u32 s91, s91, %d" % (36 * 1152, WOB))

def p2_vector(k):
    touch_chain(k, "L_c2", 22)
    k("v_lshrrev_b32 v2, 3, v1\ns_lshl_b32 s28, s80, 2\ns_cmp_eq_u32 s80, 0\ns_cselect_b32 s29, 3, 7\ns_cselect_b32 s27, 0, 4\ns_sub_u32 s28, s28, s27")
    k("v_and_b32 v2, s29, v2\nv_add_u32 v2, s28, v2\nv_lshlrev_b32 v2, 12, v2\ns_mul_i32 s27, s81, 18")
    k("v_and_b32 v3, 7, v1\nv_min_u32 v3, 5, v3\nv_and_b32 v4, 1, v3\nv_mul_u32_u24 v4, 17, v4\nv_add_u32 v4, s27, v4\nv_lshrrev_b32 v4, 6, v4")
    k("v_lshrrev_b32 v3, 1, v3\nv_mul_u32_u24 v3, 9, v3\nv_add_u32 v3, v3, v4\nv_lshl_add_u32 v14, v3, 7, v2")
    k("v_lshlrev_b32 v3, 4, v1")
    k("v_lshrrev_b32 v5, 5, v1\nv_mul_u32_u24 v4, %d, v5\nv_and_b32 v10, 31, v1\nv_lshl_add_u32 v4, v10, 4, v4\nv_lshlrev_b32 v15, 4, v10" % CGS)
    k("v_bfe_u32 v6, v1, 4, 1\nv_bfe_u32 v7, v1, 2, 2\nv_and_b32 v8, 3, v1")
    k("v_and_b32 v9, 1, v8\nv_lshl_add_u32 v9, v6, 1, v9\nv_lshlrev_b32 v9, 6, v9\nv_lshrrev_b32 v11, 1, v8\nv_lshl_add_u32 v9, v11, 3, v9")
    k("v_lshrrev_b32 v13, 1, v8\nv_lshl_add_u32 v13, v6, 1, v13\nv_lshlrev_b32 v13, 6, v13\nv_and_b32 v11, 1, v8\nv_lshl_add_u32 v13, v11, 3, v13")
    k("v_lshl_add_u32 v11, v5, 3, v7\nv_add_u32 v11, s82, v11")
    k("v_lshrrev_b32 v12, 2, v11\nv_and_b32 v11, 3, v11\nv_lshlrev_b32 v11, 4, v11")
    k("v_mul_u32_u24 v2, 4160, v12\nv_add3_u32 v2, v2, v11, v9\nv_add_u32 v%d, s87, v2" % AK1)
    k("v_lshl_add_u32 v2, v12, 9, v11\nv_add3_u32 v%d, v2, v13, s86" % AQ1)
    k("v_min_u32 v11, 1, v7\nv_add_u32 v11, s82, v11\nv_lshlrev_b32 v11, 4, v11")
    k("v_add3_u32 v2, v11, v9, s87\nv_add_u32 v2, %d, v2\nv_add_u32 v12, s87, v9\nv_add_u32 v12, %d, v12" % (4 * 4160, AUX))
    k("v_cmp_gt_u32 vcc, 2, v7\nv_cndmask_b32 v%d, v12, v2, vcc" % AK3)
    k("v_add3_u32 v2, v11, v13, s86\nv_add_u32 v%d, 2048, v2" % AQ3)
    k("v_add_u32 v11, s82, v10\nv_lshrrev_b32 v12, 2, v11\nv_and_b32 v11, 3, v11")
    k("v_mul_u32_u24 v12, 4160, v12\nv_lshl_add_u32 v12, v11, 4, v12\nv_add_u32 v12, %d, v12" % VB)
    k("v_mov_b32 v11, %d\nv_cmp_gt_u32 vcc, 18, v10\nv_cndmask_b32 v12, v11, v12, vcc" % (AUX + 16))
    k("v_lshl_add_u32 v12, v5, 6, v12\nv_add_u32 v%d, s87, v12" % AV)
    k("v_mul_u32_u24 v%d, %d, v5\nv_lshl_add_u32 v%d, v10, 4, v%d" % (VO1, OPS, VO1, VO1))
    k("v_lshlrev_b32 v2, 2, v10\nv_mov_b32 v6, 0x%x\nv_cmp_gt_u32 vcc, 32, v1\nv_cndmask_b32 v%d, v6, v2, vcc" % (BIG, VO2))

def wo_offsets(k, which, t=6):
    VD, VE, VH, VHE = VD2, VE2, VH2, VHE2
    a, b, c, d = t, t + 1, t + 2, t + 3
    dma_piece(k, b, 1, c)
    if which != "ext":
        k("v_mul_u32_u24 v%d, 1152, v%d\nv_add_u32 v%d, v%d, v%d" % (a, c, a, a, b))
        un = [0, 18, 8, 26]
        for q in range(4): k("v_add_u32 v%d, %d, v%d" % (VD + q, un[q] * 1152 - q * 1024, a))
    if which != "main":
        k("v_lshrrev_b32 v{a}, 2, v{c}\nv_lshlrev_b32 v{a}, 2, v{a}\nv_bfe_u32 v{d}, v{c}, 1, 1\nv_add_u32 v{a}, v{a}, v{d}\nv_mul_u32_u24 v{a}, 18, v{a}\nv_and_b32 v{d}, 1, v{c}\nv_add_u32 v{a}, v{a}, v{d}".format(a=a, c=c, d=d))
        k("v_mul_u32_u24 v%d, 1152, v%d\nv_add_u32 v%d, v%d, v%d" % (a, a, a, a, b))
        ue = [16, 18 * 8 + 16, 18 * 2 + 16, 18 * 10 + 16]
        for q in range(4): k("v_add_u32 v%d, %d, v%d" % (VE + q, ue[q] * 1152 - q * 1024, a))
    k("v_lshrrev_b32 v{c}, 2, v1\nv_bfe_u32 v{b}, v1, 4, 1\nv_lshlrev_b32 v{b}, 1, v{b}\nv_and_b32 v{d}, 3, v1\nv_xor_b32 v{b}, v{b}, v{d}\nv_lshlrev_b32 v{b}, 4, v{b}".format(b=b, c=c, d=d))
    if which != "ext":
        k("v_lshrrev_b32 v{a}, 3, v{c}\nv_mul_u32_u24 v{a}, 18, v{a}\nv_and_b32 v{d}, 7, v{c}\nv_add_u32 v{a}, v{a}, v{d}\nv_mul_u32_u24 v{a}, 1152, v{a}\nv_add_u32 v{h}, v{a}, v{b}".format(a=a, b=b, c=c, d=d, h=VH))
        k("v_add_u32 v%d, %d, v%d" % (VH + 1, 8 * 1152 - 1024, VH))
    if which != "main":
        k("v_lshrrev_b32 v{a}, 2, v{c}\nv_lshlrev_b32 v{a}, 2, v{a}\nv_bfe_u32 v{d}, v{c}, 1, 1\nv_add_u32 v{a}, v{a}, v{d}\nv_mul_u32_u24 v{a}, 18, v{a}\nv_and_b32 v{d}, 1, v{c}\nv_add3_u32 v{a}, v{a}, v{d}, 16".format(a=a, c=c, d=d))
        k("v_mul_u32_u24 v%d, 1152, v%d\nv_add_u32 v%d, v%d, v%d\nv_add_u32 v%d, %d, v%d" % (a, a, VHE, a, b, VHE + 1, 36 * 1152 - 1024, VHE))

def wo_dmas():
    VD, VE, VH, VHE = VD2, VE2, VH2, VHE2
    wo = []
    for rnd in range(5):
        vb, vh = (VD, VH) if rnd < 4 else (VE, VHE)
        pre = []
        if rnd == 4:
            pre = ["s_and_b32 s90, s22, 1", "s_mul_i32 s91, s90, 6144", "s_add_u32 s91, s91, %d" % WOB, "s_mul_i32 s90, s90, %d" % (18 * 16 * 1152)]
        pre += ["s_add_u32 m0, s91, %d" % (rnd * 4 * 6144), "s_add_u32 s101, s90, s72"]
        for a in range(4):
            wo.append(pre + ["buffer_load_dwordx4 v%d, s[76:79], s101 offen offset:%d lds ;#wo" % (vb + a, 1024 * a)]); pre = []
        pre = ["s_add_u32 m0, s91, %d" % (rnd * 4 * 6144 + 4096), "s_add_u32 s101, s90, s73"]
        for a in range(2):
            wo.append(pre + ["buffer_load_dwordx4 v%d, s[76:79], s101 offen offset:%d lds ;#wo" % (vh + a, 1024 * a)]); pre = []
        if rnd < 3: wo[-1].append("s_add_u32 s90, s90, %d" % (4 * 36 * 1152))
    return wo

def p2(k):
    SCO = 16
    k("L_p2:\n@reset")
    k.srd(8, 20, Z_BYTES, WS_Z)
    k.srd(12, 20, OP_BYTES, WS_OP)
    k.srd(16, 20, O2_BYTES, WS_O2)
    k("s_barrier")
    k("v_and_b32 v2, 3, v1\nv_lshl_add_u32 v6, v1, 4, s84")
    k("v_mov_b32 v7, s71\nv_mov_b32 v8, 0x3f803f80\nv_cmp_eq_u32 vcc, 0, v2\nv_cndmask_b32 v8, v8, v7, vcc")
    k("v_mov_b32 v9, v8\nv_mov_b32 v10, v8\nv_mov_b32 v11, v8")
    k("ds_write_b128 v6, v[8:11] offset:%d" % AUX)
    kw = K("tmp"); wo_offsets(kw, "ext" if ("wo1" in OPT and XP.get("won", 24) == 24) else "both"); k.ins += kw.ins
    wo = wo_dmas()
    if "wo1" in OPT: wo = wo[XP.get("won", 24):]
    if "earlypoll" in OPT: k.extend(poll(16, 14, "0"))
    NWE = XP.get("nwe", 24)
    for x in wo[:NWE]: k.extend(x)
    wo = wo[NWE:]
    k("v_mov_b32 v12, 0xffff\nv_mov_b32 v13, 0xffff0000")
    for i in range(8):
        k("v_cndmask_b32 v2, 0, v12, s[%d:%d]\nv_cndmask_b32 v6, 0, v13, s[%d:%d]\nv_or_b32 v%d, v2, v6" % (36 + 4 * i, 37 + 4 * i, 38 + 4 * i, 39 + 4 * i, MK + i))
    for n in range(10): k("v_accvgpr_write_b32 a%d, 0\nv_accvgpr_write_b32 a%d, 0" % (KF + 8 * n + 6, KF + 8 * n + 7))
    for u in range(2): k("v_accvgpr_write_b32 a%d, 0\nv_accvgpr_write_b32 a%d, 0" % (QF + 8 * u + 6, QF + 8 * u + 7))
    k("v_mov_b32 v2, 0x3f80\nv_cmp_gt_u32 vcc, 32, v1\nv_cndmask_b32 v2, 0, v2, vcc\nv_accvgpr_write_b32 a%d, v2\nv_accvgpr_write_b32 a%d, v2" % (QF + 5, QF + 13))
    if "msub" in OPT:
        k("v_accvgpr_write_b32 a209, v2\nv_mov_b32 v6, 0x3f803f80\nv_cndmask_b32 v6, 0, v6, vcc\nv_accvgpr_write_b32 a208, v6")
        for a in (210, 211, 214, 215, 218, 219): k("v_accvgpr_write_b32 a%d, 0" % a)
    touch_chain(k, "L_c3", 22)
    if "poll2" in OPT:
        stamp(k, "p2 setup")
        k("s_cmp_lg_u32 s22, 0\ns_cbranch_scc1 L_p2w")
        spin(k, "p2", 16, 14, "0")
        k("L_p2w:\ns_barrier")
    else:
        if "earlypoll" not in OPT: k.extend(poll(16, 14, "0"))
        stamp(k, "p2 setup")
        k.extend(check("p2", 16, 14, "0", ptmp=17))
    stamp(k, "p2 go")
    k("s_mov_b32 m0, s86")
    k("buffer_load_dwordx4 v4, s[8:11], s85 offen sc1 lds ;#q")
    k("s_add_u32 m0, s86, 1024\ns_add_u32 s85, s85, %d" % (2 * CGS))
    k("buffer_load_dwordx4 v4, s[8:11], s85 offen sc1 lds ;#q")
    k("s_add_u32 m0, s86, 2048\ns_add_u32 s85, s85, %d" % (2 * CGS))
    k("buffer_load_dwordx4 v15, s[8:11], s85 offen sc1 lds ;#q")
    for m in range(2):
        for c in range(5):
            k("s_add_u32 m0, s84, %d" % (m * VB + c * 4160))
            k("buffer_load_dwordx4 v3, s[8:11], s83 offen sc1 lds ;#%s" % "kv"[m])
            k("s_add_u32 s83, s83, %d" % (CGS if c < 4 else 140 * CGS))
    k("s_load_dwordx4 s[4:7], s[0:1], 32\ns_lshl_b32 s26, s2, 2\ns_add_u32 s26, s26, s22\ns_mul_i32 s27, s26, 1088\ns_and_b32 s27, s27, 0xffffff80\ns_add_u32 s27, s27, 0x400000")
    k("s_mul_i32 s26, s26, 5184\ns_and_b32 s26, s26, 0xffffff80")
    k("v_lshlrev_b32 v229, 7, v1\nv_mov_b32 v6, 0x%x\nv_cmp_gt_u32 vcc, 14, v1\nv_cndmask_b32 v229, v6, v229, vcc" % BIG)
    k("@waitvm q")
    for u in range(2):
        k("ds_read_b64_tr_b16 %s, v%d offset:%d\nds_read_b64_tr_b16 %s, v%d offset:%d\nds_read_b64_tr_b16 %s, v%d offset:%d" % (
            ar(QF + 8 * u, 2), AQ1, 256 * u, ar(QF + 8 * u + 2, 2), AQ1, 512 + 256 * u, vr(6 + 2 * u, 2), AQ3, 256 * u))
    k("v_cmp_gt_u32 vcc, 32, v1")
    for u in range(2): k("v_cndmask_b32 v%d, 0, v%d, vcc\nv_accvgpr_write_b32 a%d, v%d" % (6 + 2 * u, 6 + 2 * u, QF + 8 * u + 4, 6 + 2 * u))
    k("@waitvm k\n@waitlds all\ns_barrier")
    stamp(k, "p2 k")
    def kread(n):
        f = KF + 8 * n
        return ["ds_read_b64_tr_b16 %s, v%d offset:%d" % (ar(f, 2), AK1, KB + 256 * n),
                "ds_read_b64_tr_b16 %s, v%d offset:%d" % (ar(f + 2, 2), AK1, KB + 256 * n + 4160),
                "ds_read_b64_tr_b16 %s, v%d offset:%d" % (ar(f + 4, 2), AK3, 256 * n)]
    def vread(n, s): return "ds_read_b128 %s, v%d offset:%d" % (ar(VF + 8 * n + 4 * s, 4), AV, 256 * n + 128 * s)
    order = [0, 8, 1, 2, 3, 4, 5, 6, 7]
    slot = [{j: j for j in range(9)}, dict(zip(order, [9, 10, 11, 0, 8, 1, 2, 3, 4]))]
    def sreg(u, j): return SCO + 16 * slot[u][j]
    def qk(u, j):
        s = vr(sreg(u, j), 16); f = KF + 8 * (j + u)
        return ["v_mfma_f32_32x32x16_bf16 %s, %s, %s, 0" % (s, ar(f, 4), ar(QF + 8 * u, 4)),
                "v_mfma_f32_32x32x16_bf16 %s, %s, %s, %s" % (s, ar(f + 4, 4), ar(QF + 8 * u + 4, 4), s)]
    MX = [216, 220]
    def maxops(u, j, first):
        b = sreg(u, j); m = MX[u]; o = []
        if j == 8: return []
        if j == 0:
            b8 = sreg(u, 8)
            o += ["v_cndmask_b32 v%d, v%d, v%d, s[%d:%d]" % (b + rho, b + rho, b8 + rho, 36 + 2 * rho, 37 + 2 * rho) for rho in range(16)]
            o += ["v_max3_f32 v%d, v%d, v%d, v%d" % (m, b, b + 1, b + 2), "v_max3_f32 v%d, v%d, v%d, v%d" % (m + 1, b + 3, b + 4, b + 5)]
            o += ["v_max3_f32 v%d, v%d, v%d, v%d" % (m + (i & 1), m + (i & 1), b + 6 + 2 * i, b + 7 + 2 * i) for i in range(5)]
        else:
            o += ["v_max3_f32 v%d, v%d, v%d, v%d" % (m + (i & 1), m + (i & 1), b + 2 * i, b + 2 * i + 1) for i in range(8)]
        return o
    ONE, MB = 208, [212, 216]
    def msub(u, j):
        s_ = vr(sreg(u, j), 16)
        return "v_mfma_f32_32x32x16_bf16 %s, %s, %s, %s" % (s_, ar(ONE, 4), ar(MB[u], 4), s_)
    def maxfin(u):
        m = MX[u]
        if "msub" in OPT:
            return ["v_max_f32 v%d, v%d, v%d" % (m, m, m + 1), "v_mov_b32 v%d, v%d" % (m + 1, m), "v_permlane32_swap_b32 v%d, v%d" % (m, m + 1),
                    "v_max_f32 v%d, v%d, v%d" % (m, m, m + 1),
                    "v_xor_b32 v%d, 0x80000000, v%d" % (m, m), "v_and_b32 v%d, 0xffff0000, v%d" % (m + 1, m), "v_sub_f32 v%d, v%d, v%d" % (m, m, m + 1),
                    "v_and_b32 v%d, 0xffff0000, v%d" % (m + 2, m), "v_sub_f32 v%d, v%d, v%d" % (m, m, m + 2),
                    "v_alignbit_b32 v%d, v%d, v%d, 16" % (m + 1, m + 3, m + 1), "v_and_b32 v%d, 0xffff, v%d" % (m + 1, m + 1), "v_or_b32 v%d, v%d, v%d" % (m + 1, m + 1, m + 2),
                    "v_lshrrev_b32 v%d, 16, v%d" % (m, m),
                    "v_accvgpr_write_b32 a%d, v%d" % (MB[u], m + 1), "v_accvgpr_write_b32 a%d, v%d" % (MB[u] + 1, m)]
        return ["v_max_f32 v%d, v%d, v%d" % (m, m, m + 1), "v_mov_b32 v%d, v%d" % (m + 1, m), "v_permlane32_swap_b32 v%d, v%d" % (m, m + 1),
                "v_max_f32 v%d, v%d, v%d" % (m, m, m + 1)] + (["v_mul_f32 v%d, s75, v%d" % (m, m), "v_mov_b32 v%d, v%d" % (m + 1, m)] if "qs" not in OPT else [])
    for n in (0, 8, 1, 2): k.extend(kread(n))
    rest = [3, 4, 5, 6, 7, 9]
    for i, j in enumerate(order):
        q = qk(0, j)
        k(q[0])
        if i < len(rest): k.extend(kread(rest[i]))
        k(q[1])
        if i >= 2: k.extend(maxops(0, order[i - 2], False))
    if "qkdefer" in OPT: k.extend(maxops(0, order[7], False)); k.extend(maxops(0, order[8], False))
    else: k.extend(qk(1, 0)); k.extend(maxops(0, order[7], False)); k.extend(qk(1, 8)); k.extend(maxops(0, order[8], False))
    k("@waitvm v\ns_barrier")
    k.srd(28, 4, WB)
    k.srd(32, 6, WB)
    pfl = ([] if "wgt" in OPT else [["buffer_load_dword a240, v229, s[28:31], s27 offen"]]) + [["buffer_load_dword a%d, v229, s[32:35], s26 offen offset:%d" % (241 + j, 1792 * j)] for j in range(3)]
    if "nopf2" in OPT: pfl = []
    vr_list = [vread(n, s) for n in [0, 8, 1, 2, 3, 4, 5, 6, 7, 9] for s in range(2)]
    k.extend(vr_list[:6])
    k.extend(maxfin(0))
    if "msub" in OPT: k(msub(0, 0)); k(msub(0, 1))
    stamp(k, "p2 s")
    vr_list = vr_list[6:]
    first = [True, True]
    def pv(u, j):
        o = []
        for s in range(2):
            a = ar(OA + 16 * u, 16)
            o.append("v_mfma_f32_32x32x16_bf16 %s, %s, %s, %s" % (a, ar(VF + 8 * (j + u) + 4 * s, 4), vr(sreg(u, j) + 4 * s, 4), "0" if first[u] else a))
            first[u] = False
        return o
    def expops(u, j):
        b = sreg(u, j); m = MX[u]; o = []
        for hf in range(2):
            if "msub" in OPT: pass
            elif "qs" in OPT:
                for i in range(8): o.append("v_sub_f32 v%d, v%d, v%d" % (b + 8 * hf + i, b + 8 * hf + i, m))
            elif "pk" not in OPT:
                for i in range(8): o.append("v_fma_f32 v%d, v%d, s88, v%d" % (b + 8 * hf + i, b + 8 * hf + i, m))
            else:
                for i in range(0, 8, 2): o.append("v_pk_fma_f32 %s, %s, s[88:89], %s" % (vr(b + 8 * hf + i, 2), vr(b + 8 * hf + i, 2), vr(m, 2)))
            for i in range(8): o.append("v_exp_f32 v%d, v%d" % (b + 8 * hf + i, b + 8 * hf + i))
            for i in range(4): o.append("v_cvt_pk_bf16_f32 v%d, v%d, v%d" % (b + 4 * hf + i, b + 8 * hf + 2 * i, b + 8 * hf + 2 * i + 1))
        if j == 0:
            b8 = sreg(u, 8)
            for i in range(8): o += ["v_and_b32 v%d, v%d, v%d" % (b8 + i, b + i, MK + i), "v_xor_b32 v%d, v%d, v%d" % (b + i, b + i, b8 + i)]
        return o
    def outops(u):
        a = OA + 16 * u; t = 224 if u else SCO + 80
        o = ["v_accvgpr_read_b32 v2, a%d" % (a + 12), "v_rcp_f32 v2, v2"]
        o += ["v_accvgpr_read_b32 v%d, a%d" % (4 + i, a + i) for i in range(10)]
        o += ["v_mul_f32 v%d, v%d, v2" % (4 + i, 4 + i) for i in range(10)]
        o += ["v_cvt_pk_bf16_f32 v%d, v%d, v%d" % (t + i, 4 + 2 * i, 5 + 2 * i) for i in range(5)]
        sc = "" if "mockP" in OPT else "sc1"
        o += ["buffer_store_dwordx4 %s, v%d, s[12:15], s69 offen offset:%d %s ;#o" % (vr(t, 4), VO1, 512 * u, sc),
              "buffer_store_dword v%d, v%d, s[16:19], s70 offen offset:%d %s ;#o" % (t + 4, VO2, 128 * u, sc)]
        return o
    steps = [0, 1, 2, 3, 4, 5, 6, 7]
    bq = {0: [1], 2: [2, 3], 3: [4], 4: [5], 5: [6], 6: [7]}
    bm = {0: [], 1: [0, 1], 3: [2, 3], 4: [4], 5: [5], 6: [6], 7: [7]}
    if "qkdefer" in OPT: bq[0] = [0, 8, 1]
    prev = []
    PFAT = XP.get("pfat", len(wo)); bg = wo[:PFAT] + pfl + wo[PFAT:]; wo = []; pfl = []
    NWO = XP.get("nwo", 3)
    for e in steps:
        ops = expops(0, e)
        mf = list(prev)
        if "msub" in OPT and e + 2 < 8: mf = [msub(0, e + 2)] + mf
        for j in bq.get(e, []): mf += qk(1, j)
        fill = {}
        if mf: spread(fill, mf, 2, len(ops) - 4)
        if vr_list: spread(fill, vr_list[:4], 0, 20); vr_list = vr_list[4:]
        if bg: spread(fill, bg[:NWO], 3, len(ops) - 1); bg = bg[NWO:]
        k.extend(weave(ops, fill))
        for j in bm.get(e, []): k.extend(maxops(1, j, False))
        prev = pv(0, 0) + pv(0, 8) if e == 0 else pv(0, e)
    k.extend(maxfin(1))
    if "msub" in OPT: k(msub(1, 0)); k.extend(prev); prev = []; k(msub(1, 1))
    for e in steps:
        ops = expops(1, e)
        fill = {}
        if "msub" in OPT and e + 2 < 8: prev = [msub(1, e + 2)] + prev
        if prev: spread(fill, prev, 2, len(ops) - 4)
        if bg: spread(fill, bg[:NWO], 3, len(ops) - 1); bg = bg[NWO:]
        k.extend(weave(ops, fill))
        if e == 1:
            o0 = outops(0)
            if "ab" in OPT: k.extend([x.replace(";#o", ";#oa") for x in o0]); o0 = []
            else: k.extend(o0[:-2])
        if "ab" in OPT and e == XP.get("fa", 5):
            k("s_lshl_b32 s30, s80, 2\ns_add_u32 s30, s30, s22\ns_lshl_b32 s30, s30, 12\ns_lshl_b32 s31, s81, 7\ns_add_u32 s30, s30, s31\ns_add_u32 s30, s30, %d" % F2A)
            k.extend(flag("oa", 2, 250, "s30"))
        prev = pv(1, 0) + pv(1, 8) if e == 0 else pv(1, e)
    k.extend(o0[-2:])
    k.extend(prev)
    k.extend(outops(1))
    assert not bg
    stamp(k, "p2 st")

def p3(k):
    k("s_load_dwordx2 s[56:57], s[0:1], 0\ns_load_dwordx4 s[36:39], s[0:1], 48")
    k("s_lshl_b32 s30, s80, 2\ns_add_u32 s30, s30, s22\ns_lshl_b32 s30, s30, 12\ns_lshl_b32 s31, s81, 7\ns_add_u32 s30, s30, s31\ns_add_u32 s30, s30, %d" % F2)
    k("s_lshr_b32 s80, s2, 5\ns_and_b32 s81, s2, 7\ns_lshl_b32 s81, s81, 2\ns_bfe_u32 s82, s2, 0x20003\ns_add_u32 s81, s81, s82")
    k("s_lshl_b32 s82, s81, 2\ns_add_u32 s82, s82, s22")
    k("v_and_b32 v6, 15, v1\nv_lshrrev_b32 v7, 4, v1")
    XR, BF, ACC, WV = 208, 16, 88, 112
    TA, TM = 220, 246
    k("s_mov_b32 s26, %d" % WOB)
    tr_addrs(k, TA, 1, "s26", 2)
    k("v_lshrrev_b32 v2, 2, v1\nv_lshlrev_b32 v2, 6, v2\nv_and_b32 v3, 3, v1\nv_lshl_add_u32 v2, v3, 3, v2\nv_bfe_u32 v3, v1, 4, 1")
    k("v_lshl_add_u32 v%d, v3, 5, v2\nv_add_u32 v%d, %d, v%d\nv_xor_b32 v%d, 32, v%d" % (TM, TM, WOB + 4096, TM, TM + 1, TM))
    k("v_mul_u32_u24 v10, 1152, v6\nv_lshl_add_u32 v10, v7, 3, v10\ns_mul_i32 s28, s82, %d\ns_add_u32 s29, s28, s73\ns_add_u32 s28, s28, s72" % (16 * 1152))
    k.extend([x.replace(" sc1", "") if "mockF" in OPT else x for x in flag("o", 2, 250, "s30")])
    stamp(k, "p2 fl")
    if "c4early" in OPT: touch_chain(k, "L_c4", 22)
    if "wgt" in OPT:
        k("s_bfe_u32 s84, s2, 0x20001\ns_lshl_b32 s84, s84, 2\ns_lshr_b32 s85, s2, 6\ns_add_u32 s84, s84, s85\ns_lshr_b32 s85, s84, 1\ns_mul_i32 s85, s85, 9")
        k("s_and_b32 s84, s84, 1\ns_mul_i32 s84, s84, 5\ns_add_u32 s84, s84, s85\ns_mul_i32 s84, s84, 18")
        k("v_and_b32 v12, 7, v1\nv_mul_u32_u24 v12, 11, v12\nv_min_u32 v12, 71, v12\nv_add_u32 v12, s84, v12\nv_mul_u32_u24 v12, 5958, v12\nv_lshrrev_b32 v12, 16, v12")
        k("v_lshlrev_b32 v12, 7, v12\nv_add_u32 v12, %d, v12" % FG)
    k("s_waitcnt lgkmcnt(0)\ns_barrier")
    k("s_cmp_ge_u32 s2, 192\ns_cbranch_scc1 L_pf3")
    kp = K("tmp")
    kp("L_pf3:")
    if "wgt" in OPT:
        kp.extend(poll(15, 12, "0")); kp("s_waitcnt vmcnt(0)"); kp.extend(check("pg", 15, 12, "0"))
    if "wdt" in OPT:
        STG = 73728
        kp("s_sub_u32 s23, s2, 192\ns_lshl_b32 s23, s23, 2\ns_add_u32 s23, s23, s22")
        kp.srd(8, 36, WB)
        kp.srd(12, 20, WB, WS_WT)
        dma_piece(kp, 4, 1, 2)
        kp("v_mul_u32_u24 v5, 1152, v2\nv_add_u32 v5, v5, v4")
        for a in range(4): kp("v_add_u32 v%d, %d, v5" % (16 + a, a * (8 * 1152 - 1024)))
        kp("s_mul_i32 s24, s22, 20480\ns_add_u32 s24, s24, %d" % STG)
        tr_addrs(kp, 20, 1, "s24", 2)
        kp("v_lshlrev_b32 v24, 4, v1")
        def wdma(r):
            o = ["s_add_u32 s25, s23, %d" % (256 * r), "s_mul_i32 s26, s25, 7282", "s_lshr_b32 s26, s26, 16", "s_mul_i32 s27, s26, 9", "s_sub_u32 s27, s25, s27",
                 "s_mul_i32 s26, s26, 36864", "s_lshl_b32 s27, s27, 7", "s_add_u32 s26, s26, s27", "s_add_u32 m0, s24, %d" % ((r % 5) * 4096)]
            return o + ["buffer_load_dwordx4 v%d, s[8:11], s26 offen offset:%d lds ;#t%d" % (16 + a, 1024 * a, r) for a in range(4)]
        kp("@reset")
        NR = XP.get("nr", 6)
        for r in range(min(5, NR)): kp.extend(wdma(r))
        kp("s_lshl_b32 s28, s23, 12")
        for r in range(NR):
            b = 32 + 16 * (r % 3)
            kp("@waitvm t%d" % r)
            for T in range(4):
                for j in range(2): kp("ds_read_b64_tr_b16 %s, v%d offset:%d" % (vr(b + 4 * T + 2 * j, 2), 20 + T, (r % 5) * 4096 + 2048 * j))
            if r == 0 and NR == 6:
                kp("@waitlds all"); kp.extend(wdma(5))
            for T in range(4): kp("buffer_store_dwordx4 %s, v24, s[12:15], s28 offen offset:%d sc1" % (vr(b + 4 * T, 4), 1024 * T))
            if r < 5: kp("s_add_u32 s28, s28, 0x100000")
        kp("s_lshl_b32 s101, s23, 7\ns_add_u32 s101, s101, %d" % FW)
    rest = 0 if "wdt" in OPT else WB - XP.get("nd1", 0) * (1 << 20); lines = -(-rest // (256 * 128))
    if lines:
        kp("s_sub_u32 s23, s2, 192\ns_lshl_b32 s23, s23, 2\ns_add_u32 s23, s23, s22\ns_mul_i32 s23, s23, %d\ns_add_u32 s23, s23, %d\nv_lshlrev_b32 v2, 7, v1" % (lines * 128, WB - rest))
        kp.srd(8, 36, WB)
    if "nopf3" in OPT or "pfA" in OPT: kp("s_mov_b32 s10, 0")
    q = 0
    while lines > 0:
        if lines < 64:
            m = (1 << lines) - 1
            kp("s_mov_b32 exec_lo, 0x%x\ns_mov_b32 exec_hi, 0x%x" % (m & 0xffffffff, m >> 32))
        kp("buffer_load_dword a%d, v2, s[8:11], s23 offen\ns_add_u32 s23, s23, 8192" % (240 + q)); q += 1; lines -= 64
    kp("s_mov_b64 exec, -1")
    p4_early(kp)
    kp("s_branch L_p4")
    SLOW.extend(i.text + (" ;#" + i.tag if i.tag else "") for i in kp.ins)
    k("v_and_b32 v11, 31, v1\nv_lshlrev_b32 v11, 7, v11\ns_lshl_b32 s83, s81, 12\ns_add_u32 s83, s83, %d" % F2)
    if "wgt" in OPT: k("v_add_u32 v11, s83, v11\nv_cmp_gt_u32 vcc, 32, v1\nv_cndmask_b32 v11, v12, v11, vcc\ns_mov_b32 s83, 0")
    if "ab" in OPT: k("s_cmp_lt_u32 s22, 2\ns_cselect_b32 s87, %d, 0\ns_add_u32 s83, s83, s87" % (F2A - F2))
    if "earlypoll" in OPT: k.extend(poll(15, 11, "s83"))
    k.srd(52, 56, X_BYTES)
    for T in range(6): k("buffer_load_dwordx2 %s, v10, s[52:55], s%d offen offset:%d" % (vr(XR + 2 * T, 2), 28 if T < 4 else 29, 32 * (T & 3)))
    def wreg(t, T, o=0, n=4):
        if t < 10: return ar(24 * t + 4 * T + o, n)
        if t < 14: return vr(WV + 24 * (t - 10) + 4 * T + o, n)
        return ar(24 * (t - 14) + 4 * T + o, n)
    def wread(t):
        o = []
        if t == 10: o += ["v_add_u32 v%d, 61440, v%d" % (q, q) for q in (TA, TA + 1, TA + 2, TA + 3, TM, TM + 1)]
        off = (t % 10) * 6144
        for T in range(6):
            for j in range(2):
                a, oo = (TA + T, off + 2048 * j) if T < 4 else (TM + T - 4, off + 1024 * j)
                o.append("ds_read_b64_tr_b16 %s, v%d offset:%d" % (wreg(t, T, 2 * j, 2), a, oo))
        return o
    NW0 = XP.get("nw0", 8)
    for t in range(NW0): k.extend(wread(t))
    k("v_mul_u32_u24 v8, %d, v7\nv_lshl_add_u32 v8, v6, 4, v8" % OPS)
    k("v_mul_u32_u24 v9, %d, v7\nv_lshl_add_u32 v9, v6, 2, v9" % (4 * O2S))
    k("s_lshl_b32 s84, s82, 8\ns_lshl_b32 s85, s82, 6")
    k.srd(8, 20, H_BYTES, WS_H)
    k.srd(76, 20, ST_BYTES, WS_ST)
    k("s_mov_b32 s86, 0x3f803f80")
    k("s_mul_i32 s91, s82, 18432\ns_lshl_b32 s71, s73, 4\ns_add_u32 s71, s71, s91\ns_lshl_b32 s74, s72, 4\ns_add_u32 s91, s91, s74")
    k("s_lshl_b32 s74, s80, 14\ns_lshl_b32 s87, s82, 7\ns_add_u32 s74, s74, s87")
    k("s_lshl_b32 s101, s82, 10\ns_lshl_b32 s87, s80, 7\ns_add_u32 s101, s101, s87\ns_add_u32 s101, s101, %d" % F3)
    k("v_lshlrev_b32 v13, 4, v1\nv_lshlrev_b32 v14, 3, v1\nv_mov_b32 v2, 0x%x\nv_cmp_gt_u32 vcc, 16, v1\nv_cndmask_b32 v14, v2, v14, vcc" % BIG)
    if "early4" in OPT: p4_early(k)
    if "xinit" in OPT:
        for T in range(6):
            for j in range(2):
                a = ACC + 4 * T + 2 * j; p = XR + 2 * T + j
                k("v_lshlrev_b32 v%d, 16, v%d\nv_and_b32 v%d, 0xffff0000, v%d" % (a, p, a + 1, p))
    if "poll3" in OPT and "ab" not in OPT:
        stamp(k, "p3 setup")
        k("s_cmp_lg_u32 s22, 0\ns_cbranch_scc1 L_p3w")
        k.extend(poll(15, 11, "s83")); k.extend(check("p3", 15, 11, "s83"))
        k("L_p3w:\ns_barrier")
    else:
        if "earlypoll" not in OPT: k.extend(poll(15, 11, "s83"))
        stamp(k, "p3 setup")
        k.extend(check("p3", 15, 11, "s83", ptmp=12))
    stamp(k, "p3 go")
    lds_ = []
    for t in range(18):
        if t < 16:
            lds_.append("s_nop 0\nbuffer_load_dwordx4 %s, v8, s[12:15], s84 offen sc1" % vr(BF + 4 * t, 4))
        else:
            for e in range(4):
                lds_.append("s_nop 0\nbuffer_load_dword v%d, v9, s[16:19], s85 offen sc1" % (BF + 4 * t + e))
    ke = K("tmp")
    if "early4" not in OPT: p4_early(ke)
    ext = []
    grp = []
    for i in ke.ins:
        grp.append(i.text)
        if not (i.op.startswith("s_cmp") or i.op in ("s_add_u32", "s_cselect_b32")): ext.append("\n".join(grp)); grp = []
    if grp: ext.append("\n".join(grp))
    ext4 = []
    if "p3old" not in OPT: ext4, ext = ext, []
    for t in range(NW0, 14): ext += wread(t)
    steps = []
    for n, x in enumerate(lds_):
        inc = ("s84", 4 * OPS) if n < 16 else ("s85", O2S if (n - 16) % 4 < 3 else 13 * O2S)
        steps.append(x.split("\n")[1] + "\ns_add_u32 %s, %s, %d" % (inc[0], inc[0], inc[1]))
    fill = {}
    if ext: spread(fill, ext, XP.get("ex0", 3), len(steps) - 1)
    k.extend(weave(steps, fill))
    main = []; fill = {}
    for t in range(18):
        for T in range(6):
            a = vr(ACC + 4 * T, 4)
            main.append("v_mfma_f32_16x16x32_bf16 %s, %s, %s, %s" % (a, wreg(t, T), vr(BF + 4 * t, 4), a if (t or "xinit" in OPT) else "0"))
    for t in range(14, 18): spread(fill, wread(t), 6 + 14 * (t - 14), 6 + 14 * (t - 14) + 11)
    if ext4: spread(fill, ext4, 0, 100)
    if "ab" not in OPT: fill.setdefault(6 * 14 - 1, []).extend(["@waitlds all", "s_barrier"])
    k.extend(weave(main, fill))
    stamp(k, "p3 mm")
    HO, TT = 16, 32
    k("v_mov_b32 v4, 0\nv_mov_b32 v5, 0")
    for T in range(6 if "xinit" not in OPT else 0):
        for j in range(2): k("v_cvt_pk_bf16_f32 v%d, v%d, v%d" % (TT + 2 * T + j, ACC + 4 * T + 2 * j, ACC + 4 * T + 2 * j + 1))
    for T in range(6 if "xinit" not in OPT else 0):
        for j in range(2):
            p = TT + 2 * T + j; a = ACC + 4 * T + 2 * j
            k("v_lshlrev_b32 v%d, 16, v%d\nv_and_b32 v%d, 0xffff0000, v%d" % (a, p, a + 1, p))
    for T in range(6 if "xinit" not in OPT else 0):
        for j in range(2):
            a = ACC + 4 * T + 2 * j
            k("v_dot2c_f32_bf16 v%d, s88, v%d\nv_dot2c_f32_bf16 v%d, s89, v%d" % (a, XR + 2 * T + j, a + 1, XR + 2 * T + j))
    for T in range(6):
        for j in range(2): k("v_cvt_pk_bf16_f32 v%d, v%d, v%d" % (HO + 2 * T + j, ACC + 4 * T + 2 * j, ACC + 4 * T + 2 * j + 1))
        if T & 1:
            k("buffer_store_dwordx4 %s, v13, s[8:11], s%d offen offset:%d sc1 ;#h" % (vr(HO + 2 * T - 2, 4), 91 if T < 4 else 71, 1024 if T == 3 else 0))
    for i in range(12):
        k("v_dot2c_f32_bf16 v4, s86, v%d\nv_dot2c_f32_bf16 v5, v%d, v%d" % (HO + i, HO + i, HO + i))
    for sw in ("v_permlane16_swap_b32", "v_permlane32_swap_b32"):
        k("v_mov_b32 v2, v4\nv_mov_b32 v3, v5")
        k("%s v4, v2\n%s v5, v3" % (sw, sw))
        k("v_add_f32 v4, v4, v2\nv_add_f32 v5, v5, v3")
    k("buffer_store_dwordx2 v[4:5], v14, s[76:79], s74 offen sc1 ;#h")
    stamp(k, "p3 st")

XF4, GA4, UA4 = 16, 160, 192
VG, VM, VW, TA4, TM4, C1, C2, TMP, VS, TS = 224, 228, 232, 236, 240, 242, 244, 246, 254, 255
def p4_early(k):
    TA, TM = TA4, TM4
    if "map16" in OPT:
        k("s_lshr_b32 s23, s2, 4\ns_and_b32 s24, s2, 15")
    else:
        k("s_and_b32 s23, s2, 1\ns_lshl_b32 s23, s23, 3\ns_bfe_u32 s25, s2, 0x30003\ns_add_u32 s23, s23, s25")
        k("s_bfe_u32 s24, s2, 0x20001\ns_lshl_b32 s24, s24, 2\ns_lshr_b32 s25, s2, 6\ns_add_u32 s24, s24, s25")
    k("s_and_b32 s25, s24, 1\ns_mul_i32 s26, s24, 576\ns_lshl_b32 s27, s25, 6\ns_add_u32 s27, s27, s26")
    k("s_xor_b32 s25, s25, 1\ns_lshl_b32 s25, s25, 9\ns_add_u32 s28, s25, s26")
    if "ab" in OPT:
        k("s_lshl_b32 s29, s23, 3\ns_and_b32 s30, s22, 2\ns_lshl_b32 s30, s30, 1\ns_add_u32 s29, s29, s30\ns_and_b32 s30, s22, 1\ns_add_u32 s29, s29, s30")
    else:
        k("s_lshl_b32 s29, s23, 3\ns_lshl_b32 s30, s22, 1\ns_add_u32 s29, s29, s30")
    dma_piece(k, 4, 1, 2)
    k("v_mul_u32_u24 v5, 9216, v2\nv_add_u32 v5, v5, v4")
    for a in range(4): k("v_add_u32 v%d, %d, v5" % (VG + a, a * (8 * 9216 - 1024)))
    k("s_mul_i32 s56, s22, %d\ns_add_u32 s56, s56, s27" % (64 * 9216))
    k("s_mul_i32 s57, s22, %d\ns_add_u32 s57, s57, s27\ns_add_u32 s57, s57, %d" % (8 * 9216, 256 * 9216))
    k("s_lshl_b32 s58, s22, 13\ns_lshl_b32 s59, s22, 10\ns_add_u32 s59, s59, 32768")
    k.srd(40, 4, WB)
    k.srd(44, 6, WB)
    k("s_lshl_b32 s30, s29, 7\ns_mul_i32 s31, s29, 18432")
    if "wdt" in OPT: k.srd(48, 20, WB, WS_WT)
    else: k.srd(48, 36, WB)
    k("s_cmp_lt_u32 s22, 2\ns_cselect_b32 s52, s40, s44\ns_cselect_b32 s53, s41, s45\ns_mov_b32 s54, 0x%x\ns_mov_b32 s55, 0x20000" % WB)
    if "wdt" not in OPT:
        k("v_mul_u32_u24 v5, 1152, v2\nv_add_u32 v5, v5, v4")
        for a in range(4): k("v_add_u32 v%d, %d, v5" % (VW + a, a * (8 * 1152 - 1024)))
    k("v_lshrrev_b32 v2, 2, v1\nv_mul_u32_u24 v5, 9216, v2\nv_bfe_u32 v3, v1, 4, 1\nv_lshlrev_b32 v3, 1, v3\nv_and_b32 v4, 3, v1\nv_xor_b32 v3, v3, v4\nv_lshl_add_u32 v5, v3, 4, v5")
    for a in range(4): k("v_add_u32 v%d, %d, v5" % (VM + a, a * (16 * 9216 - 1024)))
    k("s_mul_i32 s61, s22, 9216\ns_and_b32 s62, s22, 1\ns_mul_i32 s62, s62, %d\ns_add_u32 s62, s62, s28" % (144 * 9216))
    k("s_lshr_b32 s25, s24, 2\ns_and_b32 s26, s24, 3\ns_and_b32 s35, s26, 1\ns_mul_i32 s34, s26, 288")
    k("s_lshl_b32 s67, s35, 5\ns_add_u32 s33, s34, s67\ns_xor_b32 s67, s35, 1\ns_lshl_b32 s67, s67, 8\ns_add_u32 s34, s34, s67")
    if "ownh" in OPT:
        k("s_add_u32 s63, s26, s22\ns_and_b32 s63, s63, 3\ns_and_b32 s67, s24, 12\ns_add_u32 s67, s67, s63\ns_mul_i32 s63, s67, 288\ns_and_b32 s67, s67, 1")
    else:
        k("s_and_b32 s67, s24, 12\ns_add_u32 s67, s67, s22\ns_mul_i32 s63, s67, 288\ns_and_b32 s67, s22, 1")
    k("s_xor_b32 s64, s67, 1\ns_lshl_b32 s64, s64, 8\ns_add_u32 s64, s64, s63\ns_lshl_b32 s67, s67, 5\ns_add_u32 s63, s63, s67")
    if "wdt" in OPT:
        k("s_mul_i32 s67, s26, 9216\ns_mul_i32 s63, s63, 1152\ns_add_u32 s63, s63, s67\ns_mul_i32 s64, s64, 1152\ns_add_u32 s64, s64, s67")
    elif "al" in OPT:
        k("s_lshl_b32 s67, s26, 8\ns_mul_i32 s63, s63, 1152\ns_add_u32 s63, s63, s67\ns_mul_i32 s64, s64, 1152\ns_add_u32 s64, s64, s67")
        k("s_lshl_b32 s67, s22, 3\ns_lshr_b32 s33, s27, 1\ns_add_u32 s33, s33, s67\ns_mul_i32 s33, s33, 1152\ns_add_u32 s33, s33, 1024")
        k("s_lshr_b32 s34, s28, 1\ns_add_u32 s34, s34, s67\ns_mul_i32 s34, s34, 1152\ns_add_u32 s34, s34, 1024")
    else:
        k("s_mul_i32 s67, s26, 288\ns_mul_i32 s63, s63, 1152\ns_add_u32 s63, s63, s67\ns_mul_i32 s64, s64, 1152\ns_add_u32 s64, s64, s67")
        k("v_lshrrev_b32 v2, 1, v1\nv_mul_u32_u24 v2, 1152, v2\nv_and_b32 v3, 1, v1\nv_lshl_add_u32 v2, v3, 4, v2")
        k("s_sub_u32 s60, s34, s67\nv_add_u32 v%d, s60, v2\ns_sub_u32 s60, s33, s67" % VS)
        for a in range(4): k("v_add_u32 v%d, s60, v%d" % (VW + a, VW + a))
    tr_addrs(k, TA, 1, None, 2)
    k("v_lshrrev_b32 v2, 2, v1\nv_lshlrev_b32 v2, 6, v2\nv_and_b32 v3, 3, v1\nv_lshl_add_u32 v2, v3, 3, v2\nv_bfe_u32 v3, v1, 4, 1")
    k("v_lshl_add_u32 v%d, v3, 5, v2\nv_xor_b32 v%d, 32, v%d" % (TM, TM + 1, TM))
    if "wdt" not in OPT: k("v_lshlrev_b32 v%d, 3, v1\nv_add_u32 v%d, 8192, v%d" % (TS, TS, TS))
    k("s_mov_b32 s88, 0x00003f80\ns_mov_b32 s89, 0x3f800000\ns_mov_b32 s65, 0x%x" % f2u(1.0 / D))
    k("s_lshl_b32 s67, s23, 4\ns_add_u32 s66, s67, s24\ns_lshl_b32 s66, s66, 2\ns_add_u32 s66, s66, s22\ns_mul_i32 s66, s66, 18432")
    k("s_and_b32 s68, s24, 12\ns_add_u32 s68, s68, s67\ns_lshl_b32 s68, s68, 2\ns_add_u32 s68, s68, s22\ns_mul_i32 s68, s68, 18432")
    k("s_lshl_b32 s69, s23, 2\ns_add_u32 s69, s69, s22\ns_lshl_b32 s69, s69, 11\ns_add_u32 s69, s69, %d\ns_and_b32 s70, s24, 12\ns_lshl_b32 s70, s70, 7\ns_add_u32 s70, s70, s69" % FH)
    k("s_lshl_b32 s67, s24, 7\ns_add_u32 s69, s69, s67")
    k("s_lshl_b32 s75, s29, 10\ns_add_u32 s75, s75, %d" % F3)
    if "wgt" in OPT:
        k.srd(40, 20, WB, WS_GT)
        k("s_lshr_b32 s37, s24, 1\ns_mul_i32 s37, s37, 9\ns_and_b32 s67, s24, 1\ns_mul_i32 s67, s67, 5\ns_add_u32 s37, s37, s67\ns_mul_i32 s37, s37, 73728\ns_add_u32 s37, s37, s61")
        k("v_lshlrev_b32 v%d, 4, v1\nv_mov_b32 v%d, v%d" % (TS, VS, TS))

def lag_plan():
    U0 = XP.get("u0", 5)
    seq = [(T, u) for u in range(U0, 9) for T in (0, 1, 2, 3, 4, 5, 8)] + [(T, u) for T in (6, 7) for u in range(U0, 9)]
    return {U0 + c: seq[9 * c:9 * c + 9] for c in range(9 - U0)}

def p4(k):
    SLOT = 36864
    LAG = "lag" in OPT; U0 = XP.get("u0", 5); NBH = max(4, 9 - U0)
    TB = [80, 81, 82, 83, 84]; TB8 = [4, 5, 6, 7, 36]; RP = [VW, VW + 1, VW + 2, VW + 3, VS]; RL = TS
    k("L_p4:")
    XF, GA, UA, TA, TM = XF4, GA4, UA4, TA4, TM4
    AF, HF = 0, 72
    stages = []
    for B in range(4): stages += [("G", B, 0), ("G", B, 1), ("U", B, 0), ("U", B, 1)]
    stages += [("M", 4, 0), ("M", 4, 1)]
    stages += [("D", c, 0) for c in range(9)]
    NS = len(stages)
    def dma(n):
        kind, B, kh = stages[n]
        sl = (n % 4) * SLOT
        o = []
        if kind == "G" and "wgt" in OPT:
            for g in range(3):
                pre = ["s_add_u32 m0, s61, %d" % (sl + 4096 * g), "s_add_u32 s60, s37, %d" % (B * 73728 + kh * 36864 + 4096 * g)]
                for a in range(4 if g < 2 else 1):
                    o.append(pre + ["buffer_load_dwordx4 v%d, s[40:43], s60 offen offset:%d sc1 lds ;#s%d" % (VS if n < 2 else 9, 1024 * a, n)]); pre = []
        elif kind in "GU":
            srd = "s[40:43]" if kind == "G" else "s[44:47]"
            off = 128 * B + kh * 288 * 9216
            for g in range(2):
                pre = ["s_add_u32 m0, s58, %d" % (sl + 4096 * g), "s_add_u32 s60, s56, %d" % (off + g * 32 * 9216)]
                for a in range(4):
                    o.append(pre + ["buffer_load_dwordx4 v%d, %s, s60 offen offset:%d lds ;#s%d" % (VG + a, srd, 1024 * a, n)]); pre = []
            o.append(["s_add_u32 m0, s59, %d" % sl, "s_add_u32 s60, s57, %d" % off, "buffer_load_dwordx4 v%d, %s, s60 offen lds ;#s%d" % (VG, srd, n)])
        elif kind == "M":
            for g in range(3):
                pre = ["s_add_u32 m0, s61, %d" % (sl + 4096 * g), "s_add_u32 s60, s62, %d" % (kh * 288 * 9216 + g * 64 * 9216)]
                for a in range(4 if g < 2 else 1):
                    o.append(pre + ["buffer_load_dwordx4 v%d, s[52:55], s60 offen offset:%d lds ;#s%d" % (VM + a, 1024 * a, n)]); pre = []
        elif LAG and B >= U0:
            for p_, (T, u) in enumerate(lag_plan()[B]):
                q, e = (T >> 1, T & 1) if T < 8 else (4, 0)
                pre = ["s_add_u32 m0, s61, %d" % (sl + 4096 * (p_ >> 2))] if p_ % 4 == 0 else []
                base, off = (TB[q], u * 36864) if u < 8 else (TB8[q], 4096)
                o.append(pre + ["s_add_u32 s60, s%d, %d" % (base, off + 1024 * e - 1024 * (p_ & 3)),
                                "buffer_load_dwordx4 v9, s[48:51], s60 offen offset:%d sc1 lds ;#s%d" % (1024 * (p_ & 3), n)])
        elif "wdt" in OPT and "split" in OPT and B >= 7:
            for g in range(2):
                base, off = (("s63", 7 * 36864), ("s64", 0))[g]
                pre = ["s_lshl_b32 s60, s22, 12", "s_add_u32 m0, s60, %d" % (sl + 16384 * g), "s_lshl_b32 s60, s35, 10", "s_add_u32 s60, s60, %s" % base, "s_add_u32 s60, s60, %d" % (off + 4096 * (B - 7))]
                for a in range(4):
                    o.append(pre + ["buffer_load_dwordx4 v9, s[48:51], s60 offen offset:%d sc1 lds ;#s%d" % (1024 * a, n)]); pre = []
            base, off = (("s63", 7 * 36864), ("s64", 0))[B - 7]
            o.append(["s_add_u32 m0, s59, %d" % sl, "s_xor_b32 s60, s35, 1", "s_lshl_b32 s60, s60, 13", "s_add_u32 s60, s60, %s" % base, "s_add_u32 s60, s60, %d" % off,
                      "buffer_load_dwordx4 v9, s[48:51], s60 offen sc1 lds ;#s%d" % n])
        elif "wdt" in OPT:
            base, off = ("s63", B * 36864) if B < 8 else ("s64", 0)
            for g in range(3):
                pre = ["s_add_u32 m0, s61, %d" % (sl + 4096 * g), "s_add_u32 s60, %s, %d" % (base, off + 4096 * g)]
                for a in range(4 if g < 2 else 1):
                    o.append(pre + ["buffer_load_dwordx4 v9, s[48:51], s60 offen offset:%d sc1 lds ;#s%d" % (1024 * a, n)]); pre = []
        elif "al" in OPT:
            base, base2, off = ("s63", "s33", B * 32 * 1152) if B < 8 else ("s64", "s34", 0)
            for g in range(2):
                pre = ["s_add_u32 m0, s58, %d" % (sl + 4096 * g), "s_add_u32 s60, %s, %d" % (base, off + 128 * g)]
                for a in range(4):
                    o.append(pre + ["buffer_load_dwordx4 v%d, s[48:51], s60 offen offset:%d lds ;#s%d" % (VW + a, 1024 * a, n)]); pre = []
            o.append(["s_add_u32 m0, s59, %d" % sl, "s_add_u32 s60, %s, %d" % (base2, off), "buffer_load_dwordx4 v%d, s[48:51], s60 offen lds ;#s%d" % (VW, n)])
        elif "split" in OPT and B >= 7:
            for g in range(2):
                base, off = (("s63", 7 * 32 * 1152), ("s64", 0))[g]
                pre = ["s_lshl_b32 s60, s22, 12", "s_add_u32 m0, s60, %d" % (sl + 16384 * g), "s_add_u32 s60, %s, %d" % (base, off + 128 * (B - 7))]
                for a in range(4):
                    o.append(pre + ["buffer_load_dwordx4 v%d, s[48:51], s60 offen offset:%d lds ;#s%d" % (VW + a, 1024 * a, n)]); pre = []
            base, off = (("s63", 7 * 32 * 1152), ("s64", 0))[B - 7]
            o.append(["s_add_u32 m0, s59, %d" % sl, "s_add_u32 s60, %s, %d" % (base, off), "buffer_load_dwordx4 v%d, s[48:51], s60 offen lds ;#s%d" % (VS, n)])
        else:
            base, off = ("s63", B * 32 * 1152) if B < 8 else ("s64", 0)
            for g in range(2):
                pre = ["s_add_u32 m0, s61, %d" % (sl + 4096 * g), "s_add_u32 s60, %s, %d" % (base, off + 128 * g)]
                for a in range(4):
                    o.append(pre + ["buffer_load_dwordx4 v%d, s[48:51], s60 offen offset:%d lds ;#s%d" % (VW + a, 1024 * a, n)]); pre = []
            o.append(["s_add_u32 m0, s61, %d" % (sl + 8192), "s_add_u32 s60, %s, %d" % (base, off),
                      "buffer_load_dwordx4 v%d, s[48:51], s60 offen lds ;#s%d" % (VS, n)])
        return o
    NPF = XP.get("npf", 2)
    ST = UA
    def center(r, t):
        x = XF + 72 * r + 4 * t
        o = []
        for c in range(4):
            o.append("v_dot2_f32_bf16 v%d, v%d, s88, v%d" % (TMP + 2 * c, x + c, 10 + r))
            o.append("v_dot2_f32_bf16 v%d, v%d, s89, v%d" % (TMP + 2 * c + 1, x + c, 10 + r))
        for c in range(4):
            o.append("v_cvt_pk_bf16_f32 v%d, v%d, v%d" % (x + c, TMP + 2 * c, TMP + 2 * c + 1))
        return o
    if "ab" in OPT:
        dm = [x for n in range(NPF) for x in dma(n)]
        early = []
        for n in range(NPF, 4): early += dma(n)
        NPRE = 18
        k("v_and_b32 v15, 7, v1\nv_min_u32 v15, 5, v15\nv_lshlrev_b32 v15, 7, v15\nv_mov_b32 v3, v250")
        k.extend(poll(2, 15, "s75"))
        k("v_lshl_add_u32 v8, v7, 11, v6\nv_lshlrev_b32 v8, 3, v8\nv_lshlrev_b32 v9, 4, v1\nv_add_u32 v12, 0x10000, v8")
        k.srd(8, 20, ST_BYTES, WS_ST)
        k.srd(12, 20, H_BYTES, WS_H)
        k.srd(16, 38, X_BYTES)
        assert "wdt" in OPT
        k("s_waitcnt vmcnt(0)\nv_mov_b32 v5, s3\nbuffer_store_dword v5, v250, s[96:99], s101 offen sc1")
        stamp(k, "p3 fl")
        k.extend(check("p4a", 2, 15, "s75"))
        def loads(r):
            o = [["buffer_load_dwordx2 %s, v%d, s[8:11], s30 offen offset:%d sc1" % (vr(ST + 6 * r + 2 * j, 2), (8, 12)[j], 256 * r)] for j in range(2)]
            for t in range(18):
                o.append((["s_add_u32 s32, s31, %d" % (r * 36864 + t // 4 * 4096)] if t % 4 == 0 else []) +
                         ["buffer_load_dwordx4 %s, v9, s[12:15], s32 offen offset:%d sc1" % (vr(XF + 72 * r + 4 * t, 4), (t % 4) * 1024)])
            return o
        def stats(r):
            b = ST + 6 * r
            k("v_add_f32 v%d, v%d, v%d\nv_add_f32 v%d, v%d, v%d" % (b, b, b + 2, b + 1, b + 1, b + 3))
            for sw in ("v_permlane16_swap_b32", "v_permlane32_swap_b32"):
                k("v_mov_b32 v%d, v%d\nv_mov_b32 v%d, v%d" % (b + 2, b, b + 3, b + 1))
                k("%s v%d, v%d\n%s v%d, v%d" % (sw, b, b + 2, sw, b + 1, b + 3))
                k("v_add_f32 v%d, v%d, v%d\nv_add_f32 v%d, v%d, v%d" % (b, b, b + 2, b + 1, b + 1, b + 3))
            k("v_mul_f32 v%d, s65, v%d" % (b, b))
            k("v_mul_f32 v%d, v%d, v%d" % (b + 2, b, b))
            k("v_fma_f32 v%d, v%d, s65, -v%d" % (b + 1, b + 1, b + 2))
            k("v_max_f32 v%d, 0, v%d" % (b + 1, b + 1))
            bf16_round(k, b, b)
            k("v_sub_f32 v%d, 0, v%d" % (10 + r, b))
            bf16_round(k, b + 1, b + 1)
            k("v_add_f32 v%d, 0x%x, v%d" % (b + 1, f2u(1e-5), b + 1))
            bf16_round(k, b + 1, b + 1)
            k("v_sqrt_f32 v%d, v%d" % (b + 1, b + 1))
            bf16_round(k, b + 1, b + 1)
            k("v_mul_f32 v%d, v%d, v%d" % (C2 + r, b + 1, b + 1))
            k("v_rcp_f32 v%d, v%d" % (b + 1, b + 1))
            k("v_mul_f32 v%d, 0x%x, v%d" % (C1 + r, f2u(-LOG2E), b + 1))
        for x in loads(0): k.extend(x)
        k("s_add_u32 s75, s75, 2048")
        k("@waitlds all\ns_barrier")
        touch_chain(k, "L_c4", 22)
        stats(0)
        PB_ = XP.get("pb", 12)
        for t in range(18):
            if dm: k.extend(dm.pop(0))
            if t == PB_: k.extend(poll(13, 15, "s75"))
            k.extend(center(0, t))
        assert not dm
        stamp(k, "p4 setup")
        k("s_waitcnt vmcnt(0)")
        k.extend(check("p4", 13, 15, "s75"))
        stamp(k, "p4 go")
        l1 = loads(1)
        NX1 = XP.get("nx1", 10)
        for x in l1[:NX1]: k.extend(x)
        l1 = l1[NX1:]
        k("v_and_b32 v12, 3, v1\nv_lshlrev_b32 v12, 7, v12")
        k.srd(8, 20, HB_BYTES, WS_HB)
        stats(1)
        for t in range(18):
            if l1: k.extend(l1.pop(0))
            k.extend(center(1, t))
    else:
        NPF = XP.get("npf", 2)
        dm = [x for n in range(NPF) for x in dma(n)]
        NB4 = XP.get("nb4", 4)
        for x in dm[:NB4]: k.extend(x)
        k("s_cmp_ge_u32 s2, 192\ns_cbranch_scc1 L_p4nf")
        k.extend(flag("h", 5, 250, "s101"))
        k("L_p4nf:")
        stamp(k, "p3 fl")
        for x in dm[NB4:]: k.extend(x)
        k("v_lshl_add_u32 v8, v7, 11, v6\nv_lshlrev_b32 v8, 3, v8\nv_lshlrev_b32 v9, 4, v1")
        k("v_add_u32 v12, 0x10000, v8\nv_mov_b32 v3, v250")
        k.srd(8, 20, ST_BYTES, WS_ST)
        k.srd(12, 20, H_BYTES, WS_H)
        k.srd(16, 38, X_BYTES)
        if "mcen" in OPT:
            k("v_and_b32 v5, 1, v6\nv_lshlrev_b32 v5, 4, v5\nv_mov_b32 v2, 0x3f80\nv_lshlrev_b32 v5, v5, v2\nv_lshrrev_b32 v2, 2, v6\nv_cmp_eq_u32 vcc, v2, v7\nv_cndmask_b32 v5, 0, v5, vcc")
            k("v_bfe_u32 v2, v6, 1, 1")
            for q in range(2): k("v_cmp_eq_u32 vcc, %d, v2\nv_cndmask_b32 v%d, 0, v5, vcc" % (q, UA + 26 + q))
            for q in (0, 1, 4, 5): k("v_mov_b32 v%d, 0" % (UA + 24 + q))
        k("v_and_b32 v14, 7, v1\nv_min_u32 v14, 5, v14\nv_lshlrev_b32 v14, 7, v14\nv_bfe_u32 v15, v1, 3, %d\nv_lshl_add_u32 v14, v15, 10, v14" % (3 if "poll4" in OPT else 1))
        if "earlypoll" in OPT: k.extend(poll(13, 14, "s75"))
        if "c4early" not in OPT: touch_chain(k, "L_c4", 22)
        if "poll4" in OPT:
            stamp(k, "p4 setup")
            k("s_cmp_lg_u32 s22, 0\ns_cbranch_scc1 L_p4w")
            k.extend(poll(13, 14, "s75")); k.extend(check("p4", 13, 14, "s75"))
            k("L_p4w:\ns_barrier")
        else:
            if "earlypoll" not in OPT: k.extend(poll(13, 14, "s75"))
            stamp(k, "p4 setup")
            k("s_waitcnt vmcnt(0)")
            k.extend(check("p4", 13, 14, "s75", ptmp=15))
        if "wdt" in OPT:
            k("s_cmp_lt_u32 s2, 192\ns_cbranch_scc1 L_nowf\ns_waitcnt vmcnt(0)\nv_mov_b32 v5, s3\nbuffer_store_dword v5, v250, s[96:99], s101 offen sc1\nL_nowf:\n@reset")
        stamp(k, "p4 go")
        ST = UA
        for r in range(2):
            for j in range(2):
                k("buffer_load_dwordx2 %s, v%d, s[8:11], s30 offen offset:%d sc1" % (vr(ST + 6 * r + 2 * j, 2), (8, 12)[j], 128 * r))
        def xload(r, t):
            return ["s_add_u32 s32, s31, %d" % ((r * 18 + t) // 4 * 4096),
                    "buffer_load_dwordx4 %s, v9, s[12:15], s32 offen offset:%d sc1" % (vr(XF + 72 * r + 4 * t, 4), ((r * 18 + t) % 4) * 1024)]
        NX0 = XP.get("nx0", 9)
        for t in range(NX0):
            for r in range(2): k.extend(xload(r, t))
        if XP.get("pf4", 0):
            k("s_lshl_b32 s67, s2, 2\ns_add_u32 s67, s67, s22\ns_mul_i32 s32, s67, 5184\nv_lshlrev_b32 v15, 7, v1\nv_mov_b32 v14, 0x%x" % BIG)
            k("v_cmp_gt_u32 vcc, 41, v1\nv_cndmask_b32 v15, v14, v15, vcc\ns_and_b32 s32, s32, 0xffffff80")
            k("v_mul_u32_u24 v2, 13, v1\nv_lshrrev_b32 v2, 6, v2\nv_mul_u32_u24 v4, 5, v2\nv_sub_u32 v4, v1, v4")
            k("v_cmp_lt_u32 vcc, 2, v4\nv_addc_co_u32 v5, vcc, v4, 2, vcc\nv_cmp_lt_u32 vcc, 2, v4\nv_addc_co_u32 v5, vcc, v5, 0, vcc")
            k("v_mul_u32_u24 v2, 9, v2\nv_add_u32 v2, v2, v5\nv_lshlrev_b32 v2, 7, v2\nv_cmp_gt_u32 vcc, 45, v1\nv_cndmask_b32 v2, v14, v2, vcc")
            k("s_lshr_b32 s60, s2, 0\ns_lshl_b32 s60, s60, 1\ns_and_b32 s67, s22, 1\ns_add_u32 s60, s60, s67\ns_mul_i32 s60, s60, %d" % (9 * 9 * 128))
            k("buffer_load_dword a200, v2, s[52:55], s60 offen\nbuffer_load_dword a201, v15, s[48:51], s32 offen")
        k("v_and_b32 v12, 3, v1\nv_lshlrev_b32 v12, 7, v12")
        k.srd(8, 20, HB_BYTES, WS_HB)
        for r in range(2):
            b = ST + 6 * r
            k("v_add_f32 v%d, v%d, v%d\nv_add_f32 v%d, v%d, v%d" % (b, b, b + 2, b + 1, b + 1, b + 3))
            for sw in ("v_permlane16_swap_b32", "v_permlane32_swap_b32"):
                k("v_mov_b32 v%d, v%d\nv_mov_b32 v%d, v%d" % (b + 2, b, b + 3, b + 1))
                k("%s v%d, v%d\n%s v%d, v%d" % (sw, b, b + 2, sw, b + 1, b + 3))
                k("v_add_f32 v%d, v%d, v%d\nv_add_f32 v%d, v%d, v%d" % (b, b, b + 2, b + 1, b + 1, b + 3))
            k("v_mul_f32 v%d, s65, v%d" % (b, b))
            k("v_mul_f32 v%d, v%d, v%d" % (b + 2, b, b))
            k("v_fma_f32 v%d, v%d, s65, -v%d" % (b + 1, b + 1, b + 2))
            k("v_max_f32 v%d, 0, v%d" % (b + 1, b + 1))
            bf16_round(k, b, b)
            k("v_sub_f32 v%d, 0, v%d" % (10 + r, b))
            bf16_round(k, b + 1, b + 1)
            k("v_add_f32 v%d, 0x%x, v%d" % (b + 1, f2u(1e-5), b + 1))
            bf16_round(k, b + 1, b + 1)
            k("v_sqrt_f32 v%d, v%d" % (b + 1, b + 1))
            bf16_round(k, b + 1, b + 1)
            k("v_mul_f32 v%d, v%d, v%d" % (C2 + r, b + 1, b + 1))
            k("v_rcp_f32 v%d, v%d" % (b + 1, b + 1))
            k("v_mul_f32 v%d, 0x%x, v%d" % (C1 + r, f2u(-LOG2E), b + 1))
        def center(r, t):
            x = XF + 72 * r + 4 * t
            o = []
            for c in range(4):
                o.append("v_dot2_f32_bf16 v%d, v%d, s88, v%d" % (TMP + 2 * c, x + c, 10 + r))
                o.append("v_dot2_f32_bf16 v%d, v%d, s89, v%d" % (TMP + 2 * c + 1, x + c, 10 + r))
            for c in range(4):
                o.append("v_cvt_pk_bf16_f32 v%d, v%d, v%d" % (x + c, TMP + 2 * c, TMP + 2 * c + 1))
            return o
        NPRE = XP["npre"]
        assert NX0 + NPRE >= 18 or "mcen" in OPT
        early = []
        for n in range(NPF, 4): early += dma(n)
        E0 = XP.get("e0", 99)
        if "mcen" in OPT:
            SE, CM, DT = UA + 24, UA + 16, UA
            for r in range(2):
                for q in range(4): k("v_mov_b32 v%d, v%d" % (CM + 4 * r + q, 10 + r))
            seq = [(r, t) for t in range(18) for r in range(2)]
            def mm(n):
                r, t = seq[n]; x = XF + 72 * r + 4 * t; d = DT + 8 * (n % 2)
                return ["v_mfma_f32_16x16x32_bf16 %s, %s, %s, %s" % (vr(d + 4 * e, 4), vr(SE + 2 - 2 * e, 4), vr(x, 4), vr(CM + 4 * r, 4)) for e in range(2)]
            def pk(n):
                r, t = seq[n]; x = XF + 72 * r + 4 * t; d = DT + 8 * (n % 2)
                return ["v_cvt_pk_bf16_f32 v%d, v%d, v%d" % (x + c, d + 2 * c, d + 2 * c + 1) for c in range(4)]
            k.extend(mm(0))
            rest = [xload(r, t) for t in range(NX0, 18) for r in range(2)]
            per = -(-len(rest) // (2 * NPRE))
            for n in range(2 * NPRE):
                for _ in range(per):
                    if rest: k.extend(rest.pop(0))
                if n + 1 < 2 * NPRE: k.extend(mm(n + 1))
                k.extend(pk(n))
            assert not rest
            MCEN = [(mm(n), pk(n)) for n in range(2 * NPRE, 36)]
        for t in range(NPRE if "mcen" not in OPT else 0):
            for r in range(2):
                if NX0 + t < 18: k.extend(xload(r, NX0 + t))
                elif t >= E0:
                    for _ in range(XP.get("en", 1)):
                        if early: k.extend(early.pop(0))
                k.extend(center(r, t))
    stamp(k, "p4 x")

    cur = {"TA": 0, "TM": 0, "TS": 0, "RL": 0}
    def shift(name, regs, sl):
        pre = []
        if cur[name] != sl:
            d = (sl - cur[name]) * SLOT
            for q in regs:
                pre.append("v_add_u32 v%d, %d, v%d" % (q, d, q) if d > 0 else "v_subrev_u32 v%d, %d, v%d" % (q, -d, q))
            cur[name] = sl
        return pre
    tiles = []
    main = []
    DA = XF
    OWN = "ownh" in OPT; AL = "al" in OPT; SPL = "split" in OPT; WDT = "wdt" in OPT; fin = {}
    HOWN = 144
    if LAG: SPL = False
    def hbuf(c):
        if LAG: return [64, 88, 112, 208, 1140, 1164, 1188][c % NBH]
        return HF + 24 * (c % 3) - 8 if OWN else HF + 32 * (c % 3)
    def hreg(x): return vr(x - 1000, 4) if x >= 1000 else ar(x, 4)
    fu = {}
    nt = 0
    for n in range(NS):
        kind, B, kh = stages[n]
        torder = ([8, 0, 1, 2, 3, 4, 5, 6, 7] if (AL and B > 0) else list(range(9))) if kind == "D" else list(range(4))
        uu = [B] * len(torder)
        if SPL and kind == "D" and B == 7: torder = [0, 0, 1, 1, 2, 2, 3, 3, 8]; uu = [7, 8] * 4 + [7]
        if SPL and kind == "D" and B == 8: torder = [8, 4, 4, 5, 5, 6, 6, 7, 7]; uu = [8] + [7, 8] * 4
        if LAG and kind == "D" and B >= U0: torder = [x[0] for x in lag_plan()[B]]; uu = [x[1] for x in lag_plan()[B]]
        for pos, T in enumerate(torder):
            Bq = B
            if kind == "D": B = uu[pos]
            if kind == "D": fin[T] = len(main); fu.setdefault(B, len(main))
            if kind == "D": nf = 4; f0 = AF + 16 * ((Bq * 9 + pos) % 4)
            else: nf = 9; f0 = AF + 36 * (nt & 1)
            tiles.append(dict(n=n, T=T, g0=len(main), nf=nf, f0=f0, id=nt, pos=pos, u=B)); nt += 1
            if AL and kind == "D" and T == 8:
                for E in range(4):
                    for r in range(2):
                        a = vr(DA + 64 + 8 * E + 4 * r, 4)
                        main.append("v_mfma_f32_16x16x32_bf16 %s, %s, %s, %s" % (a, ar(f0 + 4 * E, 4), ar(HOWN + 8 * B + 4 * r, 4), "0" if B == 0 else a))
                continue
            for r in range(2):
                if kind == "G": a = GA + 8 * T + 4 * r
                elif kind == "U": a = UA + 8 * T + 4 * r
                elif kind == "M": a = (GA if T < 2 else UA) + 8 * (T & 1) + 4 * r
                else: a = DA + 8 * T + 4 * r
                a = vr(a, 4)
                for jj in range(nf):
                    j = nf - 1 - jj if (r == 1 and "snake" in OPT) else jj
                    if kind == "D":
                        b = ar(HOWN + 8 * B + 4 * r, 4) if (OWN and j == 0) else hreg(hbuf(B) + 8 * j + 4 * r)
                        first = (jj == 0 and B == 0)
                    else: b = vr(XF + 72 * r + 4 * (9 * kh + j), 4); first = (jj == 0 and kh == 0)
                    main.append("v_mfma_f32_16x16x32_bf16 %s, %s, %s, %s" % (a, ar(f0 + 4 * j, 4), b, "0" if first else a))
            B = Bq
    NM = len(main)
    fill = {}
    load = [0.0] * (NM + 1)
    def put(g, items, cost=None):
        if isinstance(items, str): items = [items]
        fill.setdefault(g, []).extend(items)
        load[max(g, 0)] += len([x for x in items if not x.startswith("@") and not x.endswith(":")]) if cost is None else cost
    def frag_reads(t):
        n, T = t["n"], t["T"]; kind = stages[n][0]; sl = n % 4
        if kind == "G" and "wgt" in OPT:
            pre = shift("RL", [RL], sl)
            return pre, ["ds_read_b128 %s, v%d offset:%d ;#f%d%s" % (ar(t["f0"] + 4 * j, 4), RL, j * 4096 + T * 1024, t["id"], "a" if j < 4 else "b") for j in range(9)]
        if kind == "D" and LAG:
            if n < 18 + U0: pre = shift("TS", RP, sl)
            else: pre = shift("RL", [RL], sl)
            o = []
            for j in range(4):
                if n < 18 + U0: a, off = (RP[T >> 1], j * 9216 + (T & 1) * 1024) if T < 8 else (RP[4], j * 9216)
                else: a, off = RL, j * 9216 + t["pos"] * 1024
                o.append("ds_read_b128 %s, v%d offset:%d ;#f%da" % (ar(t["f0"] + 4 * j, 4), a, off, t["id"]))
            return pre, o
        if kind == "D" and WDT:
            pre = shift("TS", [VW, VW + 1, VW + 2], sl)
            o = []
            for j in range(4):
                if SPL and n >= 25: a, off = (VW, (4 * (t["u"] - 7) + j) * 4096 + (T & 3) * 1024) if T < 8 else (VW, 32768 + j * 1024)
                else: a, off = (VW + 1, j * 9216 + T * 1024) if T < 8 else (VW + 2, j * 9216)
                o.append("ds_read_b128 %s, v%d offset:%d ;#f%da" % (ar(t["f0"] + 4 * j, 4), a, off, t["id"]))
            return pre, o
        if kind == "M": pre = shift("TM", [TM, TM + 1], sl)
        elif kind == "D" and T == 8 and not AL: pre = shift("TS", [TS], sl)
        else: pre = shift("TA", [TA + q for q in range(4)], sl)
        o = []
        for j in range(t["nf"]):
            for h in range(2):
                if kind == "M": a, off = TM + (T & 1), (T >> 1) * 18432 + j * 2048 + h * 1024
                elif kind == "D" and AL: a, off = (TA + (T & 3), j * 8192 + (T >> 2) * 4096 + h * 2048) if T < 8 else (TA + j, 32768 + h * 2048)
                elif kind == "D" and SPL and n >= 25:
                    a, off = (TA + (T & 3), (4 * (t["u"] - 7) + j) * 4096 + h * 2048) if T < 8 else (TS, 24576 + j * 1024 + h * 512)
                elif kind == "D": a, off = (TA + (T & 3), j * 9216 + (T >> 2) * 4096 + h * 2048) if T < 8 else (TS, j * 9216 + h * 512)
                else: a, off = TA + T, j * 4096 + h * 2048
                o.append("ds_read_b64_tr_b16 %s, v%d offset:%d ;#f%d%s" % (ar(t["f0"] + 4 * j + 2 * h, 2), a, off, t["id"], "a" if (j < 4) else "b"))
        return pre, o
    pre, o = frag_reads(tiles[0])
    fill[-1] = ["s_barrier"] + pre + o
    first_d = [i for i, t in enumerate(tiles) if stages[t["n"]][0] == "D"][0]
    bar_gap = {}
    for i, t in enumerate(tiles):
        g0 = t["g0"]; kind = stages[t["n"]][0]
        put(g0 - 1, "@waitlds f%da" % t["id"], 1)
        if kind != "D":
            if t["T"] < 3: put(g0 + 3, "@waitlds f%db" % t["id"], 1)
            nxt = [i + 1] if i + 1 < first_d else [i + 1, i + 2]
            span = 16
        else:
            nxt = [i + 2] if i + 2 < len(tiles) else []
            span = 6
        if nxt and tiles[nxt[0]]["n"] != t["n"] and tiles[nxt[0]]["pos"] == 0:
            ex = ["s_memtime s[94:95]", "s_waitcnt lgkmcnt(0)", "v_writelane_b32 v0, s94, %d" % (32 + t["n"])] if "st3" in OPT else []
            put(g0 - 1, ["@waitlds all", "@waitvm s%d" % (t["n"] + 1), "s_barrier"] + ex, 2)
            bar_gap[t["n"]] = g0
        rd = []
        for q in nxt:
            pre, o = frag_reads(tiles[q]); rd += [pre + o[:1]] + [[x] for x in o[1:]]
        for q, x in enumerate(rd): put(g0 + (q * span) // len(rd), x)
    def place(gs, lo, hi):
        for i, x in enumerate(gs): put(lo + (i * (hi - lo + 1)) // len(gs), x)
    if early: place(early, XP.get("ea0", 1), 52)
    for n in range(NS - 4): place(dma(n + 4), bar_gap[n] + 2, bar_gap[n] + 52)
    work = []
    if "mcen" in OPT and MCEN:
        lo_, hi_ = XP.get("mc0", 8), XP.get("mc1", 66)
        for n, (a_, b_) in enumerate(MCEN):
            g = lo_ + (n * (hi_ - lo_)) // len(MCEN)
            g = g - (g % 9) + 8 if False else g
            put(g, a_, 4); put(g + 2, b_[:2]); put(g + 3, b_[2:])
    for t in range(NPRE, 18 if "mcen" not in OPT else 0):
        for r in range(2):
            work.append(dict(e=0, dl=72 + 9 * r + (t - 9) - 3 if t >= 9 else 0, ops=[(x, 1.3) for x in center(r, t)], key=("x", t, r), hard=True))
    def done_gap(n, T, r): return n * 72 + T * 18 + 9 * r + 8
    for B in range(5):
        if B < 4: nG, nU, nt_, u0 = 4 * B + 1, 4 * B + 3, 4, 2 * B
        else: nG, nU, nt_, u0 = 17, 17, 2, 8
        nxt = nU + 1
        for T in range(nt_):
            for r in range(2):
                g = GA + 8 * T + 4 * r; u = UA + 8 * T + 4 * r
                e = done_gap(nG, T, r) + 3
                eu = done_gap(nU, T if B < 4 else T + 2, r) + 3
                if B < 3: dl = (nxt * 4 + T) * 18 + 9 * r - 2
                elif B == 3: dl = (nxt * 4 + T) * 18 + 9 * r - 2 if T < 2 else (nxt * 4 + 2) * 18 - 2
                else: dl = eu + 6
                t0 = TMP
                ops = []
                for b in range(4): ops.append(("v_mul_f32 v%d, v%d, v%d" % (t0 + b, C1 + r, g + b), 1))
                for b in range(4): ops.append(("v_exp_f32 v%d, v%d" % (t0 + b, t0 + b), 2))
                for b in range(4): ops.append(("v_fma_f32 v%d, v%d, v%d, v%d" % (t0 + b, t0 + b, C2 + r, C2 + r), 1))
                for b in range(4): ops.append(("v_rcp_f32 v%d, v%d" % (t0 + b, t0 + b), 2))
                for b in range(4): ops.append(("v_mul_f32 v%d, v%d, v%d" % (g + b, g + b, t0 + b), 1))
                work.append(dict(e=e, dl=max(eu - 1, e + 8) if B < 4 else eu, ops=ops, key=("s", B, T, r)))
                ops = [("v_mul_f32 v%d, v%d, v%d" % (u + b, u + b, g + b), 1) for b in range(4)]
                work.append(dict(e=eu, dl=dl, ops=ops, key=("m", B, T, r), after=[("s", B, T, r)], hard=True))
                ue = UA + 8 * (T & ~1) + 4 * r
                ops = [("v_cvt_pk_bf16_f32 v%d, v%d, v%d" % (ue + 2 * (T & 1) + j, u + 2 * j, u + 2 * j + 1), 1) for j in range(2)]
                if OWN: ops += [("v_accvgpr_write_b32 a%d, v%d" % (HOWN + 8 * (u0 + (T >> 1)) + 4 * r + 2 * (T & 1) + j, ue + 2 * (T & 1) + j), 1) for j in range(2)]
                aft = [("m", B, T, r)]
                if T & 1:
                    aft.append(("c", B, T - 1, r))
                    ops.append(("s_add_u32 s67, s66, %d\nbuffer_store_dwordx4 %s, v9, s[8:11], s67 offen sc1 ;#h%d" % (((u0 + (T >> 1)) * 2 + r) * 1024, vr(ue, 4), B), 2))
                if B < 3: dl2 = (nxt + 1) * 72 + 10 + 8 * T + 4 * r
                elif B == 3: dl2 = (nxt * 4 + 2) * 18 - 4
                else: dl2 = eu + 10
                work.append(dict(e=eu, dl=dl2, ops=ops, key=("c", B, T, r), after=aft, hard=True))
    if "pfA" in OPT:
        NP = XP.get("pfn4", 3); per = -(-41 // NP)
        put(72 + 5, ["s_lshl_b32 s32, s2, 2", "s_add_u32 s32, s32, s22", "s_mul_i32 s32, s32, 5184", "s_and_b32 s32, s32, 0xffffff80",
                     "v_lshlrev_b32 v15, 7, v1", "v_mov_b32 v14, 0x%x" % BIG, "v_cmp_gt_u32 vcc, %d, v1" % per, "s_nop 1", "v_cndmask_b32 v15, v14, v15, vcc"])
        for q in range(NP):
            put(bar_gap[XP.get("pf0", 2) + q * XP.get("pfd4", 2)] + XP.get("pfg", 54), ["buffer_load_dword a%d, v15, s[48:51], s32 offen" % (200 + q), "s_add_u32 s32, s32, %d" % (per * 128)])
    FLG = 13
    def hloads(c):
        o = []
        for a in range(1 if OWN else 0, 4):
            o.append(["s_add_u32 s27, %s, %d" % (("s%d" % (76 + a), c * 2048) if OWN else ("s68", a * 73728 + c * 2048)), "buffer_load_dwordx4 %s, v9, s[8:11], s27 offen sc1" % hreg(hbuf(c) + 8 * a)])
            o.append(["buffer_load_dwordx4 %s, v9, s[8:11], s27 offen offset:1024 sc1" % hreg(hbuf(c) + 8 * a + 4)])
        return o
    if LAG:
        for q in range(5):
            if q < 4: ops = ["s_add_u32 s67, s25, %d" % (q + 1), "s_and_b32 s67, s67, 3", "s_lshl_b32 s67, s67, 1", "s_add_u32 s67, s67, s35", "s_lshl_b32 s67, s67, 10"]
            else: ops = ["s_xor_b32 s67, s35, 1", "s_lshl_b32 s67, s67, 13"]
            ops += ["v_add_u32 v%d, s67, v9" % RP[q], "s_add_u32 s%d, s63, s67" % TB[q], "s_add_u32 s%d, s64, s67" % TB8[q], "s_sub_u32 s%d, s%d, 4096" % (TB8[q], TB8[q])]
            put(3 * 72 + 10 + 10 * q, ops)
        if "wgt" not in OPT: put(4 * 72 + 10, ["v_mov_b32 v%d, v9" % RL])
    if WDT:
        if not LAG: put(3 * 72 + 20, ["v_mov_b32 v%d, v9" % VW, "s_lshl_b32 s67, s35, 10", "v_add_u32 v%d, s67, v9" % (VW + 1), "s_xor_b32 s67, s35, 1", "s_lshl_b32 s67, s67, 13", "v_add_u32 v%d, s67, v9" % (VW + 2)])
        put(5 * 72 + 20, ["v_min_u32 v14, 26, v1", "v_mul_u32_u24 v15, 22, v14", "v_lshrrev_b32 v15, 6, v15", "v_mul_u32_u24 v5, 6, v15", "v_add_u32 v14, v14, v5"])
        put(5 * 72 + 30, ["s_add_u32 s67, s26, s22", "s_and_b32 s67, s67, 3", "s_and_b32 s32, s24, 12", "s_add_u32 s67, s67, s32", "s_mul_i32 s67, s67, 81",
                          "s_mul_i32 s32, s26, 9", "s_lshr_b32 s32, s32, 2", "s_add_u32 s67, s67, s32", "v_add_u32 v14, s67, v14", "v_and_b32 v14, 255, v14", "v_lshlrev_b32 v14, 7, v14", "s_mov_b32 s32, %d" % FW])
        put(11 * 72 + 30, poll(FLG, 14, "s32")); put(12 * 72 + 40, check("w", FLG, 14, "s32", False), 4)
    if OWN:
        for a in range(1, 4):
            put(15 * 72 + 10 + 4 * a, ["s_add_u32 s%d, s26, %d" % (76 + a, a), "s_and_b32 s%d, s%d, 3" % (76 + a, 76 + a), "s_mul_i32 s%d, s%d, 73728" % (76 + a, 76 + a), "s_add_u32 s%d, s%d, s68" % (76 + a, 76 + a)])
    adv = lambda r: ["s_add_u32 %s, %s, 0x20000" % (r, r)]
    put(14 * 72 + 30, flag("h2", 4, 3, "s69") + adv("s69"))
    put(17 * 72 + 40, flag("h3", 4, 3, "s69") + adv("s69"))
    put(19 * 72 + 20, flag("h4", 4, 3, "s69"))
    put(15 * 72 + 40, poll(FLG, 12, "s70")); put(16 * 72 + 4, check("a", FLG, 12, "s70", False) + adv("s70"), 4)
    if LAG:
        lo = {c: fu[c] - XP.get("hl0", 136) for c in range(9)}
        for c in range(NBH, 9): assert lo[c] >= (19 + c - NBH) * 72, (c, lo[c])
        for c in range(9):
            if hbuf(c) >= 1000: assert lo[c] >= 18 * 72 + 30
            place(hloads(c), lo[c], lo[c] + 52)
        put(lo[6] - 66, poll(FLG, 12, "s70")); put(lo[6] - 3, check("b", FLG, 12, "s70", False) + adv("s70"), 4)
        put(lo[8] - 66, poll(FLG, 12, "s70")); put(lo[8] - 3, check("c", FLG, 12, "s70", False), 4)
        assert lo[8] - 66 > lo[6] and lo[6] - 3 > 20 * 72 + 68 and lo[0] > 16 * 72 + 4, lo
    else:
        put(20 * 72 + 10, poll(FLG, 12, "s70")); put(21 * 72 + 2, check("b", FLG, 12, "s70", False) + adv("s70"), 4)
        put(22 * 72 + 60, poll(FLG, 12, "s70")); put(23 * 72 + 60, check("c", FLG, 12, "s70", False), 4)
        for c in range(9):
            if SPL and c == 8: place(hloads(c), 24 * 72 + 1, 24 * 72 + 24)
            else: place(hloads(c), (16 + c) * 72 + 8, (16 + c) * 72 + 66)
    if LAG:
        AB = "ab" in OPT; RS_ = 36864 if AB else 18432
        SEL, SE2, HQ, HR, PL = 96, 100, 108, 116, 120
        g26 = 26 * 72
        sel = ["v_lshrrev_b32 v2, 1, v6", "v_and_b32 v5, 1, v6", "v_lshlrev_b32 v5, 4, v5", "v_mov_b32 v8, 0x3f80", "v_lshlrev_b32 v5, v5, v8"]
        for q in range(4): sel += ["v_cmp_eq_u32 vcc, %d, v2" % q, "v_cndmask_b32 v%d, 0, v5, vcc" % (SEL + q)]
        sel += ["v_lshrrev_b32 v8, 2, v6", "v_cmp_eq_u32 vcc, v8, v7", "v_cndmask_b32 v5, 0, v5, vcc", "v_and_b32 v2, 1, v2"]
        for q in range(2): sel += ["v_cmp_eq_u32 vcc, %d, v2" % q, "v_cndmask_b32 v%d, 0, v5, vcc" % (SE2 + 2 + q)]
        sel += ["v_mov_b32 v%d, 0" % (SE2 + q) for q in (0, 1, 4, 5)]
        setup = sel + ["s_lshl_b32 s29, s23, 2", "s_add_u32 s29, s29, s26", "s_lshl_b32 s29, s29, 2"]
        for q in range(3):
            setup += ["s_add_u32 s%d, s25, %d" % (85 + q, q + 1), "s_and_b32 s%d, s%d, 3" % (85 + q, 85 + q), "s_add_u32 s%d, s%d, s29" % (85 + q, 85 + q),
                      "s_lshl_b32 s%d, s%d, 2" % (85 + q, 85 + q), "s_add_u32 s%d, s%d, s22" % (85 + q, 85 + q), "s_mul_i32 s%d, s%d, 6144" % (85 + q, 85 + q)]
        setup += [
            "s_add_u32 s72, s29, s25", "s_lshl_b32 s74, s72, 2", "s_add_u32 s74, s74, s22", "s_mul_i32 s74, s74, 6144",
            "s_add_u32 s71, s29, s22", "s_lshl_b32 s73, s71, 9", "s_lshl_b32 s75, s29, 9",
            "s_lshl_b32 s71, s71, 2", "s_add_u32 s71, s71, s25", "s_lshl_b32 s71, s71, 10", "s_add_u32 s71, s71, 0x600000",
            "s_lshl_b32 s72, s72, 12", "s_lshl_b32 s29, s22, 8", "s_add_u32 s72, s72, s29", "s_add_u32 s72, s72, 0x600000",
            "s_lshl_b32 s29, s25, 7", "s_add_u32 s73, s73, s29", "s_add_u32 s73, s73, %d" % FP, "s_add_u32 s75, s75, %d" % FP,
            "s_lshl_b32 s29, s23, 2", "s_add_u32 s32, s29, s22", "s_mul_i32 s90, s32, 36864"] + (
            ["s_and_b32 s32, s22, 1", "s_mul_i32 s32, s32, 18432", "s_sub_u32 s90, s90, s32"] if AB else []) + ["s_mov_b32 s31, s90",
            "s_lshl_b32 s32, s33, 4", "s_add_u32 s90, s90, s32", "s_lshl_b32 s32, s25, 10", "s_add_u32 s90, s90, s32",
            "s_add_u32 s29, s29, s25", "s_mul_i32 s91, s29, 36864"] + (
            ["s_and_b32 s32, s25, 1", "s_mul_i32 s32, s32, 18432", "s_sub_u32 s91, s91, s32"] if AB else []) + ["s_mov_b32 s30, s91", "s_lshl_b32 s29, s22, 8", "s_add_u32 s91, s91, s29",
            "s_lshr_b32 s29, s34, 6", "s_lshl_b32 s29, s29, 10", "s_add_u32 s91, s91, s29", "s_lshl_b32 s29, s35, 3", "s_add_u32 s91, s91, s29",
            "s_add_u32 s31, s31, s33", "s_lshl_b32 s29, s25, 6", "s_add_u32 s31, s31, s29",
            "s_add_u32 s30, s30, s34", "s_lshl_b32 s29, s22, 3", "s_add_u32 s30, s30, s29",
            "v_lshlrev_b32 v14, 4, v6", "v_mov_b32 v2, 0x%x" % BIG, "v_cmp_gt_u32 vcc, 32, v1",
            "v_mul_u32_u24 v11, %d, v7" % RS_, "v_mul_u32_u24 v8, 1152, v6", "v_add_u32 v8, v8, v11", "v_add_u32 v11, v11, v14", "v_lshl_add_u32 v14, v7, 10, v14",
            "v_cndmask_b32 v11, v2, v11, vcc", "v_cndmask_b32 v8, v2, v8, vcc",
            "v_mul_u32_u24 v15, 1152, v6", "v_bfe_u32 v2, v1, 4, 1", "v_lshl_add_u32 v15, v2, 5, v15", "v_lshrrev_b32 v2, 5, v1", "v_lshl_add_u32 v15, v2, 4, v15",
            "v_bfe_u32 v2, v1, 2, 1", "v_mov_b32 v5, s22", "v_mov_b32 v10, s25", "v_cmp_eq_u32 vcc, 0, v2", "v_cndmask_b32 v10, v10, v5, vcc",
            "v_lshlrev_b32 v10, 9, v10", "v_add_u32 v10, v10, v12"]
        place([[x] for x in setup], 18 * 72 + 40, 20 * 72 + 30)
        put(20 * 72 + 40, ["s_add_u32 s40, s20, 0x%x" % WS_P2, "s_addc_u32 s41, s21, 0", "s_and_b32 s41, s41, 0xffff", "s_mov_b32 s42, 0x%x" % P2_BYTES, "s_mov_b32 s43, 0x20000"])
        place([["buffer_load_dwordx4 %s, v9, s[12:15], s90 offen sc1" % vr(HQ, 4)], ["s_add_u32 s67, s90, %d" % RS_, "buffer_load_dwordx4 %s, v9, s[12:15], s67 offen sc1" % vr(HQ + 4, 4)],
               ["buffer_load_dwordx2 %s, v11, s[12:15], s91 offen sc1" % vr(HR + 2, 2)]], 23 * 72 + 10, 23 * 72 + 30)
        ops = ["v_lshlrev_b32 v%d, 16, v%d" % (HR, HR + 2), "v_and_b32 v%d, 0xffff0000, v%d" % (HR + 1, HR + 2),
               "v_lshlrev_b32 v%d, 16, v%d" % (HR + 2, HR + 3), "v_and_b32 v%d, 0xffff0000, v%d" % (HR + 3, HR + 3)]
        work.append(dict(e=24 * 72 + 20, dl=g26, ops=[(x, 1) for x in ops], key=("h", 0)))
        def selm(r, e, b):
            a = vr(DA + 8 * (6 + e) + 4 * r, 4)
            return "v_mfma_f32_16x16x32_bf16 %s, %s, %s, %s" % (a, vr(SE2 + 2 - 2 * e, 4), vr(b, 4), a)
        put(24 * 72 + 31, [selm(r, e, HQ + 4 * r) for r in range(2) for e in range(2)], 4)
        for T in (0, 1, 2, 3, 4, 5, 8):
            for r in range(2):
                a = DA + 8 * T + 4 * r
                o = (DA + 8 * (T & ~1) + 4 * r + 2 * (T & 1)) if T < 8 else (DA + 64 + 2 * r)
                e = fin[T] + 4 * r + 3 + 3
                ops = [("v_cvt_pk_bf16_f32 v%d, v%d, v%d" % (o + j, a + 2 * j, a + 2 * j + 1), 1) for j in range(2)]
                aft = []
                if T < 8 and T & 1:
                    aft = [("d", T - 1, r)]
                    ops.append(("s_add_u32 s67, s%d, %d\nbuffer_store_dwordx4 %s, v9, s[40:43], s67 offen sc1 ;#p" % (85 + (T >> 1), (2 * (T >> 1) + r) * 1024, vr(o - 2, 4)), 2))
                elif T == 8 and r == 1:
                    aft = [("d", 8, 0)]
                    ops.append(("buffer_store_dwordx4 %s, v9, s[40:43], s71 offen sc1 ;#p" % vr(DA + 64, 4), 1))
                work.append(dict(e=e, dl=e + 4, ops=ops, key=("d", T, r), after=aft, hard=True))
        put(fin[8] + XP.get("lf", 42), flag("p", 4, 3, "s73"))
        put(g26 + XP.get("lp", 68), poll(FLG, 10, "s75"))
        fl_ = []
        for q in range(6):
            fl_.append((["s_add_u32 s27, s74, %d" % (q * 1024)] if q % 4 == 0 else []) + ["buffer_load_dwordx4 %s, v9, s[40:43], s27 offen offset:%d sc1" % (vr(PL + 4 * q, 4), 1024 * (q % 4))])
        fl_.append(["buffer_load_dwordx4 %s, v14, s[40:43], s72 offen sc1" % vr(PL + 24, 4)])
        LC = XP.get("lc", 0)
        if LC:
            assert fin[8] + XP.get("lf", 42) < g26 + XP["lp"] < g26 + LC
            put(g26 + LC, check("p5", FLG, 10, "s75", False) + stamp_ops("p4 go2"), 4)
            place(fl_, g26 + LC + 1, min(g26 + LC + 14, NM - 1)); fl_ = []
    elif AL:
        SEL, HR, PL, OO = 112, GA, 200, 116
        g26 = 26 * 72
        sel = ["v_lshrrev_b32 v2, 1, v6", "v_and_b32 v5, 1, v6", "v_lshlrev_b32 v5, 4, v5", "v_mov_b32 v8, 0x3f80", "v_lshlrev_b32 v5, v5, v8"]
        for q in range(4): sel += ["v_cmp_eq_u32 vcc, %d, v2" % q, "v_cndmask_b32 v%d, 0, v5, vcc" % (SEL + q)]
        setup = sel + [
            "s_lshl_b32 s29, s23, 2", "s_add_u32 s29, s29, s26", "s_lshl_b32 s29, s29, 2", "s_add_u32 s71, s29, s22", "s_add_u32 s72, s29, s25",
            "s_mul_i32 s71, s71, 33", "s_add_u32 s71, s71, s25", "s_lshl_b32 s71, s71, 10",
            "s_mul_i32 s72, s72, 33792", "s_lshl_b32 s29, s22, 8", "s_add_u32 s72, s72, s29",
            "s_lshl_b32 s35, s23, 2", "s_add_u32 s35, s35, s22", "s_mul_i32 s35, s35, 68", "s_add_u32 s35, s35, s24", "s_lshl_b32 s35, s35, 10", "s_add_u32 s35, s35, 0x880000",
            "s_lshl_b32 s74, s23, 4", "s_add_u32 s74, s74, s24", "s_mul_i32 s74, s74, 17408", "s_add_u32 s74, s74, s29", "s_add_u32 s74, s74, 0x880000",
            "s_lshl_b32 s73, s23, 2", "s_add_u32 s75, s73, s25", "s_add_u32 s73, s73, s22", "s_lshl_b32 s73, s73, 4", "s_add_u32 s73, s73, s24", "s_lshl_b32 s73, s73, 7",
            "s_add_u32 s73, s73, %d" % FP, "s_lshl_b32 s75, s75, 11", "s_add_u32 s75, s75, %d" % FP,
            "s_lshl_b32 s29, s23, 2", "s_add_u32 s29, s29, s25", "s_mul_i32 s90, s29, 36864", "s_mul_i32 s31, s29, %d" % (32 * 1152),
            "s_lshl_b32 s29, s26, 12", "s_add_u32 s90, s90, s29", "s_lshl_b32 s29, s22, 8", "s_add_u32 s90, s90, s29",
            "s_lshl_b32 s91, s23, 3", "s_lshr_b32 s30, s24, 1", "s_add_u32 s30, s30, s91", "s_mul_i32 s30, s30, 18432", "s_add_u32 s91, s30, s29",
            "s_and_b32 s29, s24, 1", "s_lshl_b32 s32, s29, 10", "s_add_u32 s91, s91, s32", "s_add_u32 s91, s91, 16384",
            "s_lshl_b32 s29, s29, 6", "s_add_u32 s30, s30, s29", "s_add_u32 s30, s30, 1024", "s_lshl_b32 s29, s22, 3", "s_add_u32 s30, s30, s29", "s_add_u32 s31, s31, s29",
            "s_lshl_b32 s29, s26, 8", "s_add_u32 s31, s31, s29",
            "v_lshlrev_b32 v14, 4, v6", "v_mov_b32 v2, 0x%x" % BIG, "v_cmp_gt_u32 vcc, 32, v1",
            "v_lshl_add_u32 v10, v7, 3, v14", "v_lshl_add_u32 v14, v7, 10, v14", "v_cndmask_b32 v10, v2, v10, vcc",
            "v_mul_u32_u24 v15, 1152, v6", "v_lshl_add_u32 v15, v7, 5, v15", "v_cndmask_b32 v15, v2, v15, vcc", "v_lshlrev_b32 v11, 7, v6"]
        place([[x] for x in setup], 19 * 72 + 30, 20 * 72 + 60)
        put(21 * 72 + 30, ["s_add_u32 s40, s20, 0x%x" % WS_P2, "s_addc_u32 s41, s21, 0", "s_and_b32 s41, s41, 0xffff", "s_mov_b32 s42, 0x%x" % P2_BYTES, "s_mov_b32 s43, 0x20000"])
        hl = []
        for q in range(9):
            if q < 8: hl.append(["s_add_u32 s67, s90, %d" % ((q & 1) * 18432 + (q >> 1) * 1024), "buffer_load_dwordx2 %s, v10, s[12:15], s67 offen sc1" % vr(HR + 4 * q + 2, 2)])
            else: hl.append(["buffer_load_dwordx2 %s, v10, s[12:15], s91 offen sc1" % vr(HR + 4 * q + 2, 2)])
        place(hl, 24 * 72 + 4, 24 * 72 + 68)
        for q in range(9):
            h = HR + 4 * q
            ops = ["v_lshlrev_b32 v%d, 16, v%d" % (h, h + 2), "v_and_b32 v%d, 0xffff0000, v%d" % (h + 1, h + 2),
                   "v_lshlrev_b32 v%d, 16, v%d" % (h + 2, h + 3), "v_and_b32 v%d, 0xffff0000, v%d" % (h + 3, h + 3)]
            work.append(dict(e=25 * 72 + 40 + q, dl=g26 + 40, ops=[(x, 1) for x in ops], key=("h", q)))
        for T in range(12):
            for r in range(2):
                a = DA + 8 * T + 4 * r; ae = DA + 8 * (T & ~1) + 4 * r
                e = (g26 + 8 + 8 * T + 4 * r + 3 + 3) if T < 8 else (g26 + 2 * (T - 8) + r + 4)
                ops = [("v_cvt_pk_bf16_f32 v%d, v%d, v%d" % (ae + 2 * (T & 1) + j, a + 2 * j, a + 2 * j + 1), 1) for j in range(2)]
                aft = []
                if T & 1:
                    aft = [("d", T - 1, r)]
                    if T < 8: so = "s_add_u32 s67, s71, %d" % ((2 * (T >> 1) + r) * 4096)
                    else: so = "s_add_u32 s67, s35, %d" % ((2 * r + ((T - 8) >> 1)) * 17408)
                    ops.append((so + "\nbuffer_store_dwordx4 %s, v9, s[40:43], s67 offen sc1 ;#p" % vr(ae, 4), 2))
                work.append(dict(e=e, dl=e + 4, ops=ops, key=("d", T, r), after=aft))
    else:
        QS, SEL, HR, PL, OO = 96, 136, GA, 200, 140
        g26 = 26 * 72
        sel = ["v_lshrrev_b32 v2, 1, v6", "v_and_b32 v5, 1, v6", "v_lshlrev_b32 v5, 4, v5", "v_mov_b32 v8, 0x3f80", "v_lshlrev_b32 v5, v5, v8"]
        for q in range(4): sel += ["v_cmp_eq_u32 vcc, %d, v2" % q, "v_cndmask_b32 v%d, 0, v5, vcc" % (SEL + q)]
        setup = sel + [
            "s_lshl_b32 s29, s23, 2", "s_add_u32 s29, s29, s26", "s_lshl_b32 s29, s29, 2", "s_add_u32 s71, s29, s22", "s_add_u32 s72, s29, s25",
            "s_lshl_b32 s73, s71, 9", "s_lshl_b32 s75, s72, 9",
            "s_mul_i32 s71, s71, 36", "s_add_u32 s71, s71, s25", "s_lshl_b32 s71, s71, 10",
            "s_mul_i32 s72, s72, 36864", "s_lshl_b32 s29, s22, 8", "s_add_u32 s72, s72, s29",
            "s_lshl_b32 s29, s25, 7", "s_add_u32 s73, s73, s29", "s_add_u32 s73, s73, %d" % FP, "s_add_u32 s75, s75, %d" % FP,
            "s_lshl_b32 s29, s23, 2", "s_add_u32 s29, s29, s25", "s_mul_i32 s90, s29, 36864", "s_mul_i32 s32, s29, %d" % (32 * 1152),
            "s_lshl_b32 s29, s22, 8", "s_add_u32 s90, s90, s29",
            "s_lshr_b32 s29, s34, 6", "s_lshl_b32 s29, s29, 10", "s_add_u32 s91, s90, s29", "s_lshl_b32 s29, s35, 3", "s_add_u32 s91, s91, s29",
            "s_lshl_b32 s29, s33, 4", "s_add_u32 s90, s90, s29",
            "s_lshl_b32 s29, s22, 3", "s_add_u32 s32, s32, s29", "s_add_u32 s31, s32, s33", "s_add_u32 s30, s32, s34",
            "v_lshlrev_b32 v14, 4, v6", "v_mov_b32 v2, 0x%x" % BIG, "v_cmp_gt_u32 vcc, 32, v1",
            "v_lshl_add_u32 v10, v7, 3, v14", "v_mul_u32_u24 v11, 18432, v7", "v_add_u32 v11, v11, v14", "v_lshl_add_u32 v14, v7, 10, v14",
            "v_cndmask_b32 v10, v2, v10, vcc", "v_cndmask_b32 v11, v2, v11, vcc",
            "v_mul_u32_u24 v15, 1152, v6", "v_mul_u32_u24 v8, 1152, v1", "v_lshl_add_u32 v15, v7, 5, v15",
            "v_cndmask_b32 v15, v2, v15, vcc", "v_cndmask_b32 v8, v2, v8, vcc"]
        place([[x] for x in setup], 19 * 72 + 30, 20 * 72 + 60)
        put(21 * 72 + 30, ["s_add_u32 s40, s20, 0x%x" % WS_P2, "s_addc_u32 s41, s21, 0", "s_and_b32 s41, s41, 0xffff", "s_mov_b32 s42, 0x%x" % P2_BYTES, "s_mov_b32 s43, 0x20000"])
        hl = []
        for q in range(9):
            if q < 8: hl.append(["s_add_u32 s67, s90, %d" % ((q & 1) * 18432 + (q >> 1) * 1024), "buffer_load_dwordx2 %s, v10, s[12:15], s67 offen sc1" % vr(HR + 4 * q + 2, 2)])
            else: hl.append(["buffer_load_dwordx2 %s, v11, s[12:15], s91 offen sc1" % vr(HR + 4 * q + 2, 2)])
        place(hl, 24 * 72 + 4, 24 * 72 + 68)
        for q in range(9):
            h = HR + 4 * q
            ops = ["v_lshlrev_b32 v%d, 16, v%d" % (h, h + 2), "v_and_b32 v%d, 0xffff0000, v%d" % (h + 1, h + 2),
                   "v_lshlrev_b32 v%d, 16, v%d" % (h + 2, h + 3), "v_and_b32 v%d, 0xffff0000, v%d" % (h + 3, h + 3)]
            work.append(dict(e=25 * 72 + 40 + q, dl=g26 + 40, ops=[(x, 1) for x in ops], key=("h", q)))
        for T in range(9):
            for r in range(2):
                a = DA + 8 * T + 4 * r
                q = 2 * (T >> 1) + r if T < 8 else 8
                o = QS + 4 * q + (2 * (T & 1) if T < 8 else 2 * r)
                e = fin[T] + 4 * r + 3 + 3
                ops = [("v_cvt_pk_bf16_f32 v%d, v%d, v%d" % (o + j, a + 2 * j, a + 2 * j + 1), 1) for j in range(2)]
                aft = []
                if (T < 8 and T & 1) or (T == 8 and r == 1):
                    aft = [("d", T - 1, r)] if T < 8 else [("d", 8, 0)]
                    ops.append(("s_add_u32 s67, s71, %d\nbuffer_store_dwordx4 %s, v9, s[40:43], s67 offen sc1 ;#p" % (q * 4096, vr(QS + 4 * q, 4)), 2))
                work.append(dict(e=e, dl=e + 4, ops=ops, key=("d", T, r), after=aft))
    put(18 * 72 - 1, stamp_ops("p4 A"), 0)
    put(XP.get("csplit", 11) * 72, ["L_s4:"], 0)
    tail, done = edf_place(work, fill, load, NM, XP["cap"] / 100.0)
    body = []
    for x in weave(main, fill): body += x.split("\n")
    if "xvalu" in OPT: body = [x for x in body if not re.match(r"v_(mul_f32|exp|fma_f32|rcp)", x)]
    for fl in ("nt", "sc1", "sc0"):
        if "d" + fl in OPT: body = [x.replace(" lds", " %s lds" % fl) for x in body]
    if "mockT" in OPT or "mockA" in OPT:
        nb = []; nm = 0
        for x in body:
            if x.startswith("v_mfma"): nm += 1
            m = re.match(r"ds_read_b64_tr_b16 a\[(\d+):\d+\], (v\d+) (offset:\d+)(.*)", x)
            if m and ((nm >= 18 * 72 - 18 and "mockT" in OPT) or (nm < 18 * 72 - 18 and "mockA" in OPT)):
                a = int(m.group(1))
                if a % 4 == 0: nb.append("ds_read_b128 a[%d:%d], v9 %s%s" % (a, a + 3, m.group(3), m.group(4)))
                continue
            if "mockT" in OPT:
                x = re.sub(r"buffer_load_dwordx4 v(232|233|234|235|254), s\[48:51\]", "buffer_load_dwordx4 v9, s[48:51]", x)
                m = re.match(r"s_add_u32 s60, (s63|s64), (\d+)", x)
                if m:
                    o = int(m.group(2)); x = "s_add_u32 s60, %s, %d" % (m.group(1), (o // 36864) * 36864 + (o % 36864) // 128 * 4096)
            nb.append(x)
        body = nb
    if "xdma" in OPT: body = [x for x in body if " lds" not in x]
    if "xds" in OPT: body = [x for x in body if not x.startswith("ds_read")]
    if "xb128" in OPT:
        nb = []
        for x in body:
            m = re.match(r"ds_read_b64_tr_b16 a\[(\d+):\d+\], (v\d+) (offset:\d+)(.*)", x)
            if m:
                a = int(m.group(1))
                if a % 4 == 0: nb.append("ds_read_b128 a[%d:%d], v9 %s%s" % (a, a + 3, m.group(3), m.group(4)))
            else: nb.append(x)
        body = nb
    if "xswap" in OPT:
        nb = []
        for x in body:
            m = re.match(r"(v_mfma\S+ \S+), (\S+), (\S+), (.*)", x)
            nb.append("%s, %s, %s, %s" % (m.group(1), m.group(3), m.group(2), m.group(4)) if m else x)
        body = nb
    if "xmfma" in OPT: body = [x for x in body if not x.startswith("v_mfma")]
    k.extend(body); k.extend(tail)
    stamp(k, "p4 D")
    if LAG:
        if fl_:
            k.extend(check("p5", FLG, 10, "s75", False))
            stamp(k, "p4 go2")
            for x in fl_: k.extend(x)
        for q in range(6):
            for e in range(2): k(selm(q & 1, e, PL + 4 * q))
        k("v_mfma_f32_16x16x32_bf16 %s, %s, %s, %s" % (vr(HR, 4), vr(SEL, 4), vr(PL + 24, 4), vr(HR, 4)))
        if "pert" in XP:
            k("s_lshl_b32 s67, s2, 2\ns_add_u32 s67, s67, s22\ns_cmp_eq_u32 s67, 0\ns_cselect_b32 s67, 0x%x, 0\nv_add_f32 v%d, s67, v%d" % (f2u(XP["pert"] / 100.0), HR, HR))
        if "scl" in XP:
            for q in list(range(DA + 48, DA + 64)) + list(range(HR, HR + 4)): k("v_mul_f32 v%d, 0x%x, v%d" % (q, f2u(1 + XP["scl"] / 1000.0), q))
        for r in range(2):
            a = DA + 48 + 4 * r; o = PL + 4 * r
            for e in range(2):
                for j in range(2): k("v_cvt_pk_bf16_f32 v%d, v%d, v%d" % (o + 2 * e + j, a + 8 * e + 2 * j, a + 8 * e + 2 * j + 1))
            k("v_permlane16_swap_b32 v%d, v%d\nv_permlane16_swap_b32 v%d, v%d" % (o, o + 2, o + 1, o + 3))
            k("s_add_u32 s67, s31, %d\nbuffer_store_dwordx4 %s, v15, s[16:19], s67 offen" % (r * RS_, vr(o, 4)))
        k("v_cvt_pk_bf16_f32 v%d, v%d, v%d\nv_cvt_pk_bf16_f32 v%d, v%d, v%d" % (HR, HR, HR + 1, HR + 1, HR + 2, HR + 3))
        k("buffer_store_dwordx2 %s, v8, s[16:19], s30 offen" % vr(HR, 2))
        return
    k.extend(flag("p", 4, 3, "s73"))
    stamp(k, "p4 fl")
    if "poll1" in OPT:
        k("s_cmp_lg_u32 s22, 0\ns_cbranch_scc1 L_p5w")
        spin(k, "p5", FLG, 11 if AL else 12, "s75", False, 5)
        k("L_p5w:\ns_barrier")
    else: spin(k, "p5", FLG, 11 if AL else 12, "s75", False, 5)
    stamp(k, "p4 go2")
    if AL:
        for q in range(12):
            k("s_add_u32 s67, %s, %d" % (("s72", q * 4096) if q < 8 else ("s74", (q - 8) * 4096)))
            k("buffer_load_dwordx4 %s, v14, s[40:43], s67 offen sc1" % vr(PL + 4 * q, 4))
        def outq(q):
            a = HR + 4 * q; o = OO + 2 * q
            ops = ["v_cvt_pk_bf16_f32 v%d, v%d, v%d" % (o, a, a + 1), "v_cvt_pk_bf16_f32 v%d, v%d, v%d" % (o + 1, a + 2, a + 3)]
            if q < 8: ops += ["s_add_u32 s67, s31, %d" % ((q & 1) * 16 * 1152), "buffer_store_dwordx2 %s, v15, s[16:19], s67 offen offset:%d" % (vr(o, 2), (q >> 1) * 64)]
            else: ops += ["buffer_store_dwordx2 %s, v15, s[16:19], s30 offen" % vr(o, 2)]
            return ops
        for q in range(12):
            a = vr(HR + 4 * min(q, 8), 4)
            k("v_mfma_f32_16x16x32_bf16 %s, %s, %s, %s" % (a, vr(SEL, 4), vr(PL + 4 * q, 4), a))
            if 2 <= q < 10: k.extend(outq(q - 2))
        k.extend(outq(8))
        return
    for q in range(9):
        k("s_add_u32 s67, s72, %d" % (q * 4096))
        k("buffer_load_dwordx4 %s, v14, s[40:43], s67 offen sc1" % vr(PL + 4 * q, 4))
    osc = " sc1" if "osc1" in OPT else (" nt" if "ont" in OPT else "")
    fix = lambda ops: [o.replace("s[96:99]", "s[16:19]") + (osc if o.startswith("buffer_store") else "") for o in ops]
    for q in range(9):
        k("v_mfma_f32_16x16x32_bf16 %s, %s, %s, %s" % (vr(HR + 4 * q, 4), vr(SEL, 4), vr(PL + 4 * q, 4), vr(HR + 4 * q, 4)))
        if q >= 2: k.extend(fix(_outq(q - 2, HR, OO)))
    k.extend(fix(_outq(7, HR, OO))); k.extend(fix(_outq(8, HR, OO)))

def build(path):
    k = K(NAME); k.vgpr = 256; k.agpr = 256; k.sgpr = 102
    k.page_align = True
    k("L_main:\nL_s1:\ns_cmp_ge_u32 s2, 256\ns_cbranch_scc1 L_exit")
    k("s_load_dwordx4 s[4:7], s[0:1], 0\ns_load_dwordx2 s[92:93], s[0:1], 64\ns_load_dwordx2 s[20:21], s[0:1], 72")
    k("v_and_b32 v1, 63, v0\nv_lshrrev_b32 v2, 6, v0")
    if "c1first" in OPT:
        k("s_getpc_b64 s[32:33]\nv_lshlrev_b32 v7, 5, v0\nv_add_u32 v7, 3072, v7\nglobal_load_dword v249, v7, s[32:33]")
    k("v_readfirstlane_b32 s22, v2\ns_mov_b32 s100, 400000")
    if "stamp" in OPT: k("v_mov_b32 v0, 0")
    stamp(k, "start")
    p1(k)
    k("L_s2:")
    p2(k)
    k("L_s3:")
    p3(k)
    p4(k)
    if "stamp" in OPT:
        k("s_waitcnt vmcnt(0)")
        stamp(k, "end")
        k.srd(76, 20, 1 << 22, WS_TS)
        k("s_lshl_b32 s75, s2, 2\ns_add_u32 s75, s75, s22\ns_lshl_b32 s75, s75, 8\nv_lshlrev_b32 v2, 2, v1")
        k("buffer_store_dword v0, v2, s[76:79], s75 offen")
        if "dbgst" in OPT:
            sel = XP.get("sel") or ["start", "p1 x", "p1 ln", "p1 mm", "p1 fl", "p2 go", "p2 st", "p3 go", "p3 fl", "p4 go", "p4 x", "p4 A", "p4 D", "p4 go2", "end"]
            k("v_mov_b32 v4, 0")
            for j, n in enumerate(sel):
                k("v_readlane_b32 s75, v0, %d" % STAMPS.index(n))
                if j == 0: k("s_not_b32 s75, s75")
                k("v_writelane_b32 v4, s75, %d" % (j + 1))
            k.srd(76, 92, 256)
            k("s_mov_b32 exec_hi, 0\ns_mov_b32 exec_lo, 0xfffe")
            k("buffer_atomic_umax v4, v2, s[76:79], 0 offen sc1")
    k("L_exit:\ns_endpgm\n@reset")
    kp = K("tmp")
    kp.srd(96, 20, FL_BYTES, WS_FL)
    prefetch_wg(kp)
    k.extend(SLOW)
    k("L_s5:\nL_pf0:\n@reset")
    k.ins += kp.ins
    k("L_code_end:")
    add_page_stubs(k, "L_main", [("L_c1", "L_s1", "L_s2"), ("L_c2", "L_s2", "L_s3"), ("L_c3", "L_s3", "L_s4"), ("L_c4", "L_s4", "L_s5")], base=XP.get("base", 768))
    hdr = """Pre-LN transformer block (sliding-window attention + SwiGLU FFN), S=2048 D=576 H=32 Dh=18 W=256 F=4608, bf16.
Kernarg (80 bytes): x, wqkv, wo, (unused), w_gate, w_up, w_down, out, d_debug, d_ws.
One persistent launch, one 4-wave workgroup per CU (all 256 are co-resident: 160 KB LDS each).  Phases:
P1 LayerNorm + QKV projection (64x256 tiles; 32 spare workgroups prefetch weights/code and publish the launch tag)
P2 attention (one head x 256 queries; exact row max, 32x32 MFMA, max subtracted by an MFMA)
P3 output projection + residual + row statistics (64x96 tiles; 64 spare workgroups re-lay W_down out in fragment order)
P4 gate/up GEMM + SiLU (128 rows x 288 hidden), down GEMM (128 x 144 x K/4), partial sums exchanged between 4 workgroups
Hand-offs go through d_ws: write-through (sc1) stores, s_waitcnt, then one flag word per producer wave holding this
launch's tag (d_ws epoch word + 1, published through d_debug[0]); consumers poll with sc1 loads (bounded spins).
Generated by a hand-written Python generator (scheduling, s_waitcnt counts and wait states are computed by it)."""
    txt = program([(k, 256, 256, 163840)], [k], hdr)
    if "single" in OPT:
        txt = txt.replace("; @launch kernel=%s grid" % NAME, "; @launch grid")
    open(path, "w").write(txt)
    print(k.stats, len(txt), "bytes")
    import json
    json.dump(STAMPS, open(path[:-2] + ".stamps.json", "w"))

if __name__ == "__main__":
    OPT.update(sys.argv[2:])
    for a in sys.argv[2:]:
        if a.startswith('-'): OPT.discard(a[1:])
    for a in sys.argv[2:]:
        if "=" in a: XP[a.split("=")[0]] = int(a.split("=")[1])
    build(sys.argv[1])
```

```python
import sys, struct, re
from asmgen import *
from gen import edf_place, tr_addrs, dma_piece, bf16_round, f2u, LOG2E, _outq

S, D, F, NQKV, NH, DH = 2048, 576, 4608, 1728, 32, 18
NAME = "sequential_preLN__sliding_block__swiglu_ffn__prompt_kernel"
CGS = 16384 + 128
WS_Z, Z_BYTES = 0, 432 * CGS
import os
OPS = int(os.environ.get("OPS", 32768 + 1024 + 256))
O2S = int(os.environ.get("O2S", 8192 + 256))
WS_OP, OP_BYTES = 0x700000, 64 * OPS
WS_O2, O2_BYTES = 0x940000, 32 * O2S
WS_H, H_BYTES = 0xA00000, 128 * 18 * 1024
WS_ST, ST_BYTES = 0xD00000, 6 * 2048 * 8
WS_FL, FL_BYTES = 0xE00000, 0x110000
WS_HB, HB_BYTES = 0x1000000, 256 * 73728
WS_P2, P2_BYTES = 0x2400000, 256 * 53248
WS_TS = 0x4000000
F1, F2, F3, FH, FP, FEPOCH, FW = 0, 0x20000, 0x40000, 0x60000, 0xC0000, 0xE0000, 0xE8000
F2A = 0xF0000
FG = 0xE1000
WS_GT = 0x3A00000
WS_WT = 0x3400000
X_BYTES = S * D * 2
WB = D * F * 2
BIG = 0x7fff0000
OPT = set()
OPT.update(['msub', 'wo1', 'ownh', 'split', 'poll1', 'poll2', 'poll3', 'wdt', 'xinit', 'qkdefer', 'snake', 'lag'])
XP = dict(npre=18, dr0=17, drs=3, cap=300, slp=0, wearly=0, wj=5, nwe=0, nw0=14, nx0=6, won=12, u0=2, lp=36)
SLOW = []
NSTAMP = [0]
STAMPS = []

def stamp(k, name):
    if "stamp" not in OPT: return
    k("s_memrealtime s[94:95]\ns_waitcnt lgkmcnt(0)\nv_writelane_b32 v0, s94, %d" % NSTAMP[0])
    STAMPS.append(name); NSTAMP[0] += 1
def stamp_ops(name):
    if "stamp" not in OPT: return []
    o = ["s_memrealtime s[94:95]", "s_waitcnt lgkmcnt(0)", "v_writelane_b32 v0, s94, %d" % NSTAMP[0]]
    STAMPS.append(name); NSTAMP[0] += 1
    return o

def poll(vflag, vaddr, soff):
    return ["buffer_load_dword v%d, v%d, s[96:99], %s offen sc1" % (vflag, vaddr, soff)]
def check(name, vflag, vaddr, soff, gate=True, ptmp=None):
    slp = ["s_sleep %d" % XP["slp"]] if XP.get("slp") else []
    if "pipe" in OPT and ptmp is not None:
        t = ptmp
        SLOW.extend(["L_slow_%s:" % name, "s_mov_b64 exec, vcc"] + poll(vflag, vaddr, soff) + ["s_nop 15", "s_nop 15", "s_nop 15", "s_nop 15", "L_loop_%s:" % name] +
                    poll(t, vaddr, soff) + ["s_waitcnt vmcnt(1)", "v_cmp_ne_u32 vcc, s3, v%d" % vflag, "s_nop 4", "s_cbranch_vccz L_out_%s" % name] +
                    poll(vflag, vaddr, soff) + ["s_waitcnt vmcnt(1)", "v_cmp_ne_u32 vcc, s3, v%d" % t, "s_sub_u32 s100, s100, 1", "s_cbranch_scc1 L_out_%s" % name, "s_nop 2",
                     "s_cbranch_vccnz L_loop_%s" % name, "L_out_%s:" % name, "s_mov_b64 exec, -1", "s_branch L_back_%s" % name])
    elif "gate" not in OPT:
        one = ["s_ff1_i32_b64 s94, vcc", "s_lshl_b64 exec, 1, s94"] if False else ["s_mov_b64 exec, vcc"]
        SLOW.extend(["L_slow_%s:" % name] + one + slp + poll(vflag, vaddr, soff) + ["s_waitcnt vmcnt(0)", "v_cmp_ne_u32 vcc, s3, v%d" % vflag,
                     "s_sub_u32 s100, s100, 1", "s_cbranch_scc1 L_out_%s" % name, "s_nop 2", "s_cbranch_vccnz L_slow_%s" % name,
                     "L_out_%s:" % name, "s_mov_b64 exec, -1", "s_branch L_back_%s" % name])
    elif gate:
        SLOW.extend(["L_slow_%s:" % name, "s_ff1_i32_b64 s94, vcc", "s_lshl_b64 exec, 1, s94", "L_gate_%s:" % name] + poll(vflag, vaddr, soff) +
                    ["s_waitcnt vmcnt(0)", "v_cmp_ne_u32 vcc, s3, v%d" % vflag, "s_sub_u32 s100, s100, 1", "s_cbranch_scc1 L_full_%s" % name, "s_nop 2",
                     "s_cbranch_vccz L_full_%s" % name] + slp + ["s_branch L_gate_%s" % name, "L_full_%s:" % name, "s_mov_b64 exec, -1"] + poll(vflag, vaddr, soff) +
                    ["s_waitcnt vmcnt(0)", "v_cmp_ne_u32 vcc, s3, v%d" % vflag, "s_sub_u32 s100, s100, 1", "s_cbranch_scc1 L_back_%s" % name, "s_nop 2",
                     "s_cbranch_vccnz L_slow_%s" % name, "s_branch L_back_%s" % name])
    else:
        SLOW.extend(["L_slow_%s:" % name] + poll(vflag, vaddr, soff) + ["s_waitcnt vmcnt(0)", "v_cmp_ne_u32 vcc, s3, v%d" % vflag,
                     "s_sub_u32 s100, s100, 1", "s_cbranch_scc1 L_back_%s" % name, "s_nop 2", "s_cbranch_vccz L_back_%s" % name] + slp + ["s_branch L_slow_%s" % name])
    return ["v_cmp_ne_u32 vcc, s3, v%d" % vflag, "s_nop 4", "s_cbranch_vccnz L_slow_%s" % name, "L_back_%s:" % name]
def spin(k, name, vflag, vaddr, soff, gate=True, ptmp=None):
    k.extend(poll(vflag, vaddr, soff))
    k("s_waitcnt vmcnt(0)")
    k.extend(check(name, vflag, vaddr, soff, gate, ptmp))
def flag(tag, vtmp, vlane0, soff):
    return ["@waitvm " + tag, "v_mov_b32 v%d, s3" % vtmp, "buffer_store_dword v%d, v%d, s[96:99], %s offen sc1" % (vtmp, vlane0, soff)]
def lane0(k, dst, tmp):
    k("v_mov_b32 v%d, 0x%x\nv_cmp_eq_u32 vcc, 0, v1\nv_cndmask_b32 v%d, v%d, v1, vcc" % (tmp, BIG, dst, tmp))

def get_tag(k, vt, issued):
    k("v_readfirstlane_b32 s3, v%d" % vt)
    k("s_cmp_eq_u32 s3, 0\ns_cbranch_scc1 L_tagslow_%s\nL_tagback_%s:" % (issued, issued))
    SLOW.extend(["L_tagslow_%s:" % issued, "v_mov_b32 v%d, 0" % vt, "global_load_dword v%d, v%d, s[92:93] sc1" % (vt, vt), "s_waitcnt vmcnt(0)",
                 "v_readfirstlane_b32 s3, v%d" % vt, "s_sub_u32 s100, s100, 1", "s_cbranch_scc1 L_tagback_%s" % issued,
                 "s_cmp_eq_u32 s3, 0", "s_cbranch_scc1 L_tagslow_%s" % issued, "s_branch L_tagback_%s" % issued])

def prefetch_wg(k):
    k("L_pf:")
    k("s_load_dwordx2 s[8:9], s[0:1], 16\ns_load_dwordx4 s[12:15], s[0:1], 32\ns_load_dwordx2 s[16:17], s[0:1], 48")
    k("s_sub_u32 s23, s2, 224\ns_lshl_b32 s24, s23, 2\ns_add_u32 s24, s24, s22")
    k("v_lshlrev_b32 v2, 7, v1")
    if "tlb" in OPT:
        SH = XP.get("tlbs", 20)
        k("s_load_dwordx2 s[18:19], s[0:1], 56\nv_lshlrev_b32 v3, %d, v1" % SH)
        k.srd(28, 20, 0x4000000)
        for q in range(max(1, (1 << 20) >> SH)):
            k("s_mov_b32 s25, %d\nbuffer_load_dword v%d, v3, s[28:31], s25 offen" % (q * (64 << SH), 40 + (q & 7)))
        k("s_waitcnt lgkmcnt(0)")
        for q, (b, n) in enumerate(((18, X_BYTES), (8, D * D * 2), (12, WB), (14, WB), (16, WB))):
            k.srd(28, b, n)
            k("buffer_load_dword v%d, v3, s[28:31], 0 offen" % (50 + q))
    if "nopfq" not in OPT:
        k.srd(28, 6, D * NQKV * 2)
        k("s_mul_i32 s25, s24, 15616")
        k("buffer_load_dword v10, v2, s[28:31], s25 offen\ns_add_u32 s25, s25, 8192\nbuffer_load_dword v11, v2, s[28:31], s25 offen")
    if "tag0" in OPT: k("s_branch L_pf_notag")
    k("s_cmp_lg_u32 s24, 0\ns_cbranch_scc1 L_pf_notag")
    k("v_mov_b32 v4, %d\nbuffer_load_dword v5, v4, s[96:99], 0 offen sc1\ns_waitcnt vmcnt(0)" % FEPOCH)
    k("v_add_u32 v5, 1, v5\nv_max_u32 v5, 1, v5\nv_mov_b32 v6, 0")
    k("global_store_dword v6, v5, s[92:93] sc1\nbuffer_store_dword v5, v4, s[96:99], 0 offen sc1")
    k("L_pf_notag:")
    k("s_getpc_b64 s[32:33]\nL_pc:\ns_sub_u32 s32, s32, L_pc-L_main\ns_subb_u32 s33, s33, 0")
    k("s_lshr_b32 s25, s23, 3\ns_lshl_b32 s25, s25, 2\ns_add_u32 s25, s25, s22\ns_lshl_b32 s25, s25, 13")
    k("v_add_u32 v3, s25, v2\ns_mov_b32 s25, L_code_end-L_main-4\nv_min_u32 v3, s25, v3")
    if "nocode" not in OPT: k("global_load_dword v12, v3, s[32:33]")
    k("s_waitcnt vmcnt(0) lgkmcnt(0)")
    k.srd(28, 8, D * D * 2)
    k("s_mul_i32 s25, s24, 5248\nv_cmp_gt_u32 vcc, 41, v1\nv_mov_b32 v4, 0x%x\nv_cndmask_b32 v4, v4, v2, vcc\nbuffer_load_dword v10, v4, s[28:31], s25 offen" % BIG)
    k("s_waitcnt vmcnt(0)")
    k.srd(28, 12, WB)
    if "wgt" in OPT:
        k.srd(32, 20, WB, WS_GT)
        dma_piece(k, 4, 1, 2)
        k("v_mul_u32_u24 v5, 9216, v2\nv_add_u32 v5, v5, v4")
        for a in range(4): k("v_add_u32 v%d, %d, v5" % (16 + a, a * (8 * 9216 - 1024)))
        k("s_mul_i32 s26, s22, 40960")
        tr_addrs(k, 20, 1, "s26", 2)
        k("v_lshlrev_b32 v24, 4, v1\ns_mul_i32 s23, s24, 11\ns_lshl_b32 s27, s23, 12")
        def gdma(r):
            o = ["s_add_u32 s25, s23, %d" % r, "s_mul_i32 s8, s25, 3641", "s_lshr_b32 s8, s8, 16", "s_mul_i32 s9, s8, 18", "s_sub_u32 s9, s25, s9",
                 "s_mul_i32 s9, s9, %d" % (32 * 9216), "s_lshl_b32 s8, s8, 7", "s_add_u32 s8, s8, s9", "s_cmp_ge_u32 s25, 1296", "s_cselect_b32 s8, 0x%x, s8" % WB,
                 "s_add_u32 m0, s26, %d" % ((r % 10) * 4096)]
            return o + ["buffer_load_dwordx4 v%d, s[28:31], s8 offen offset:%d lds ;#g%d" % (16 + a, 1024 * a, r) for a in range(4)]
        GL = XP.get("gl", 4)
        k("@reset")
        for r in range(GL): k.extend(gdma(r))
        for r in range(11):
            b = 32 + 16 * (r % 3)
            k("@waitvm g%d" % r)
            for T in range(4):
                for j in range(2): k("ds_read_b64_tr_b16 %s, v%d offset:%d" % (vr(b + 4 * T + 2 * j, 2), 20 + T, (r % 10) * 4096 + 2048 * j))
            if r + GL < 11: k.extend(gdma(r + GL))
            for T in range(4): k("buffer_store_dwordx4 %s, v24, s[32:35], s27 offen offset:%d sc1" % (vr(b + 4 * T, 4), 1024 * T))
            k("s_add_u32 s27, s27, 4096")
        k("s_lshl_b32 s30, s24, 7\ns_add_u32 s30, s30, %d" % FG)
    k("s_lshl_b32 s25, s24, 15")
    for j in range(0 if ("nopf1" in OPT or "wgt" in OPT) else 4):
        k("buffer_load_dword v%d, v2, s[28:31], s25 offen\ns_add_u32 s25, s25, 8192" % (11 + j))
    ND1 = XP.get("nd1", 0)
    if ND1:
        k.srd(28, 16, WB)
        k("s_mul_i32 s25, s24, %d" % (8192 * ND1))
        for j in range(ND1):
            k("buffer_load_dword v%d, v2, s[28:31], s25 offen\ns_add_u32 s25, s25, 8192" % (16 + j))
    lane0(k, 250, 2)
    p2_scalar(k)
    k("v_mov_b32 v248, 0\nglobal_load_dword v248, v248, s[92:93] sc1\ns_waitcnt vmcnt(0)")
    get_tag(k, 248, "pf")
    k("s_branch L_p2v")

_tc = touch_chain
def touch_chain(k, name, w):
    if 'notouch' in OPT: k('%s_ret:' % name)
    else: _tc(k, name, w)

def p1(k):
    XL, RING, STL = 0, 73728, 73728 + 4 * 20480
    if "map47" in OPT:
        k("s_lshr_b32 s23, s2, 5")
        k("s_and_b32 s24, s2, 7\ns_lshl_b32 s24, s24, 2\ns_bfe_u32 s25, s2, 0x20003\ns_add_u32 s24, s24, s25")
    else:
        k("s_and_b32 s26, s2, 1\ns_lshl_b32 s26, s26, 2\ns_lshr_b32 s23, s2, 6\ns_add_u32 s23, s23, s26")
        k("s_bfe_u32 s24, s2, 0x30003\ns_bfe_u32 s25, s2, 0x20003\ns_add_u32 s25, s25, s26")
        k("s_cmp_ge_u32 s2, 192\ns_cselect_b32 s23, 3, s23\ns_cselect_b32 s24, s25, s24")
        k("s_bfe_u32 s25, s2, 0x20001\ns_lshl_b32 s25, s25, 3\ns_add_u32 s24, s24, s25")
    k("s_lshl_b32 s25, s23, 2\ns_add_u32 s25, s25, s22")
    k("v_lshrrev_b32 v3, 3, v1\nv_and_b32 v4, 7, v1")
    k("v_mul_u32_u24 v5, 1152, v3\nv_lshl_add_u32 v5, v4, 4, v5")
    k("s_lshl_b32 s26, s24, 6\ns_lshl_b32 s27, s22, 4\ns_add_u32 s26, s26, s27\ns_mul_i32 s26, s26, 1152")
    k("v_add_u32 v15, %d, v5" % (8 * 1152))
    k("s_and_b32 s27, s24, 3\ns_mul_i32 s27, s27, 5\ns_lshr_b32 s27, s27, 1")
    if "norot" in OPT: k("s_mov_b32 s27, 0")
    VD = 251
    k("v_lshrrev_b32 v6, 2, v3\nv_lshlrev_b32 v6, 3, v6\nv_and_b32 v7, 3, v3\nv_add_u32 v6, v6, v7")
    k("v_mul_u32_u24 v6, 3456, v6")
    k("v_lshrrev_b32 v7, 1, v3\nv_lshlrev_b32 v7, 1, v7\nv_xor_b32 v7, v7, v4\nv_lshl_add_u32 v6, v7, 4, v6")
    base = [0, 16, 4, 20]
    for a in range(4):
        k("v_add_u32 v%d, %d, v6" % (VD + a, base[a] * 3456 - a * 1024))
    k("s_lshl_b32 s30, s25, 7\ns_mul_i32 s28, s27, %d\ns_add_u32 s28, s28, s30\ns_add_u32 s31, s30, %d" % (64 * 3456, 576 * 3456))
    k("s_lshl_b32 s27, s27, 7\ns_add_u32 s27, s27, s26\ns_add_u32 s101, s26, 1152")
    k("s_mul_i32 s29, s22, 20480\ns_add_u32 s29, s29, %d" % RING)
    k("s_waitcnt lgkmcnt(0)")
    stamp(k, "karg")
    if "tag0" in OPT:
        k("s_lshl_b32 s36, s2, 2\ns_add_u32 s36, s36, s22\ns_cmp_lg_u32 s36, 1023\ns_cbranch_scc1 L_notag")
        k.srd(96, 20, FL_BYTES, WS_FL)
        k("v_mov_b32 v8, %d\nbuffer_load_dword v9, v8, s[96:99], 0 offen sc1\nv_mov_b32 v10, 0\nglobal_load_dword v11, v10, s[92:93] sc1\ns_waitcnt vmcnt(0)" % FEPOCH)
        k("v_add_u32 v9, 1, v9\nv_max_u32 v9, 1, v9")
        k("global_store_dword v10, v9, s[92:93] sc1\nbuffer_store_dword v9, v8, s[96:99], 0 offen sc1\nL_notag:\n@reset")
    k("s_cmp_ge_u32 s2, 224\ns_cbranch_scc1 L_pf0")
    k.srd(8, 4, X_BYTES)
    XR = 16
    for j in range(9):
        for h in range(2):
            k("buffer_load_dwordx4 %s, v%d, s[8:11], s27 offen" % (vr(XR + (h * 9 + j) * 4, 4), (5, 15)[h]))
        if j < 8: k("s_add_u32 s27, s27, 128\ns_cmp_eq_u32 s27, s101\ns_cselect_b32 s27, s26, s27")
    k("s_mov_b32 s26, s30\ns_mov_b32 s27, s31")
    k.srd(12, 6, D * NQKV * 2)
    def dma(t):
        o = ["s_add_u32 m0, s29, %d" % ((t % 5) * 4096)]
        for a in range(4):
            o.append("buffer_load_dwordx4 v%d, s[12:15], s28 offen offset:%d lds ;#w%d" % (VD + a, 1024 * a, t))
        o.append("s_add_u32 s28, s28, %d\ns_cmp_eq_u32 s28, s27\ns_cselect_b32 s28, s26, s28" % (32 * 3456))
        return o
    WEARLY = XP.get("wearly", 0)
    for t in range(WEARLY): k.extend(dma(t))
    k.srd(96, 20, FL_BYTES, WS_FL)
    if "c1late" in OPT:
        k("s_getpc_b64 s[32:33]\nv_lshlrev_b32 v7, 5, v1\ns_lshl_b32 s34, s22, 11\ns_add_u32 s34, s34, 2048\nv_add_u32 v7, s34, v7\nglobal_load_dword v249, v7, s[32:33]")
    elif "c1first" not in OPT: touch_chain(k, "L_c1", 22)
    p2_scalar(k)
    k.srd(16, 20, Z_BYTES, WS_Z)
    k("s_lshr_b32 s30, s22, 1\ns_lshl_b32 s30, s30, 1")
    k("v_lshrrev_b32 v7, 5, v1\nv_add_u32 v7, s30, v7\nv_mul_u32_u24 v7, 18, v7")
    k("v_lshrrev_b32 v10, 2, v4\nv_add_u32 v7, v7, v10\nv_lshlrev_b32 v7, 10, v7")
    k("v_and_b32 v10, 3, v4\nv_lshl_add_u32 v7, v10, 8, v7")
    k("s_and_b32 s30, s22, 1\ns_lshl_b32 s30, s30, 3")
    k("v_and_b32 v10, 3, v3\nv_add_u32 v10, s30, v10")
    k("v_xor_b32 v11, v10, v4\nv_lshl_add_u32 v8, v11, 4, v7")
    k("v_add_u32 v10, 4, v10\nv_xor_b32 v11, v10, v4\nv_lshl_add_u32 v9, v11, 4, v7")
    k("v_and_b32 v10, 15, v1\nv_lshrrev_b32 v11, 4, v1")
    k("v_xor_b32 v12, v10, v11\nv_lshlrev_b32 v12, 4, v12\nv_lshl_add_u32 v247, v11, 8, v12")
    tr_addrs(k, 240, 1, "s29", 12)
    k("s_mov_b32 s31, %d" % CGS)
    k("v_lshrrev_b32 v12, 2, v10\nv_mul_lo_u32 v12, v12, s31\nv_lshl_add_u32 v12, v11, 6, v12\nv_and_b32 v13, 3, v10\nv_lshl_add_u32 v244, v13, 4, v12")
    k("s_cmp_ge_u32 s25, 27\ns_cselect_b32 s30, 0x%x, 0\nv_add_u32 v244, s30, v244" % BIG)
    k("v_lshlrev_b32 v245, 5, v11\nv_add_u32 v245, %d, v245" % STL)
    k("s_lshl_b32 s30, s22, 6\ns_add_u32 s30, s30, %d\nv_lshl_add_u32 v246, v3, 2, s30" % STL)
    lane0(k, 250, 12)
    k("s_mov_b32 s32, 0x3f803f80\ns_mov_b32 s33, 0x00003f80\ns_mov_b32 s34, 0x3f800000\ns_mov_b32 s35, 0x%x" % f2u(1.0 / D))
    T0 = 88
    winit = []
    for t in range(WEARLY, 5):
        d = dma(t); winit += [d[:2], d[2:3], d[3:4], d[4:]]
    for i in range(8): k("v_mov_b32 v%d, 0" % (T0 + i))
    if "c1first" in OPT:
        k("v_mov_b32 v249, v249")
        touch_chain(k, "L_c1", 22)
    for j in range(9):
        for c in range(4):
            for h in range(2):
                k("v_dot2c_f32_bf16 v%d, s32, v%d" % (T0 + 2 * h + (c & 1), XR + (h * 9 + j) * 4 + c))
                if "varold" not in OPT:
                    x = XR + (h * 9 + j) * 4 + c
                    k("v_dot2c_f32_bf16 v%d, v%d, v%d" % (T0 + 4 + 2 * h + (c & 1), x, x))
        if "mockL" in OPT:
            for h in range(2): k("ds_write_b128 v%d, %s offset:%d" % (8 + h, vr(XR + (h * 9 + j) * 4, 4), XL + 2048 * j))
        if j == 0 and "c1late" in OPT: touch_chain(k, "L_c1", 22)
        jw = j - XP.get("wj", 1)
        if jw >= 0:
            for _ in range(XP.get("wa", 1)):
                if winit: k.extend(winit.pop(0))
        if j == 0: stamp(k, "p1 x0")
    stamp(k, "p1 x")
    k("v_add_f32 v%d, v%d, v%d\nv_add_f32 v%d, v%d, v%d" % (T0, T0, T0 + 1, T0 + 2, T0 + 2, T0 + 3))
    for ctl in ("quad_perm:[1,0,3,2]", "quad_perm:[2,3,0,1]", "row_half_mirror"):
        for r in (T0, T0 + 2):
            k("v_add_f32_dpp v%d, v%d, v%d %s row_mask:0xf bank_mask:0xf" % (r, r, r, ctl))
    for h in range(2):
        r = T0 + 2 * h
        k("v_mul_f32 v%d, s35, v%d" % (r, r))
        bf16_round(k, r + 1, r)
        if "varold" in OPT: k("v_sub_f32 v%d, v%d, v%d" % (r, r, r + 1))
        k("v_sub_f32 v%d, 0, v%d" % (r + 1, r + 1))
    WF = 208
    def wreg(t, T): return ar(16 * t + 4 * T, 4) if t < 16 else vr(WF + 16 * (t - 16) + 4 * T, 4)
    def wreg2(t, T, j): return ar(16 * t + 4 * T + 2 * j, 2) if t < 16 else vr(WF + 16 * (t - 16) + 4 * T + 2 * j, 2)
    def drain(t):
        return ["@waitvm w%d" % t] + ["ds_read_b64_tr_b16 %s, v%d offset:%d ;#d%d" % (wreg2(t, T, j), 240 + T, (t % 5) * 4096 + j * 2048, t) for T in range(4) for j in range(2)]
    def refill(t):
        return (["@waitlds d%d" % t] + dma(t + 5)) if t + 5 < 18 else []
    T1 = T0 + 8
    nd = 0
    g = 0
    VARPOS = len(k.ins)
    if "mockL" in OPT:
        while winit: k.extend(winit.pop(0))
        for q in range(XP.get("ndm", 1)):
            k.extend(drain(nd)); k.extend(refill(nd)); nd += 1
    for j in range(9 if "mockL" not in OPT else 0):
        for h in range(2):
            x = XR + (h * 9 + j) * 4
            for c in range(4):
                k("v_dot2_f32_bf16 v%d, v%d, s33, v%d" % (T1 + 2 * c, x + c, T0 + 2 * h + 1))
                k("v_dot2_f32_bf16 v%d, v%d, s34, v%d" % (T1 + 2 * c + 1, x + c, T0 + 2 * h + 1))
            for c in range(4):
                k("v_cvt_pk_bf16_f32 v%d, v%d, v%d" % (x + c, T1 + 2 * c, T1 + 2 * c + 1))
            k("ds_write_b128 v%d, %s offset:%d" % (8 + h, vr(x, 4), XL + 2048 * j))
            g += 1
            for _ in range(XP.get("wb", 1)):
                if winit: k.extend(winit.pop(0))
            if g >= XP["dr0"]: assert not winit
            if g > XP["dr0"] and (g - 1 - XP["dr0"]) % XP["drs"] == 0: k.extend(refill(nd - 1))
            if g >= XP["dr0"] and (g - XP["dr0"]) % XP["drs"] == 0 and g < 18: k.extend(drain(nd)); nd += 1
    var = []
    for j in range(9):
        for c in range(4):
            for h in range(2):
                x = XR + (h * 9 + j) * 4 + c
                if "varold" in OPT: var.append("v_dot2c_f32_bf16 v%d, v%d, v%d" % (T0 + 4 + 2 * h + (c & 1), x, x))
    var += ["v_add_f32 v%d, v%d, v%d" % (T0 + 4, T0 + 4, T0 + 5), "v_add_f32 v%d, v%d, v%d" % (T0 + 6, T0 + 6, T0 + 7)]
    for ctl in ("quad_perm:[1,0,3,2]", "quad_perm:[2,3,0,1]", "row_half_mirror"):
        for r in (T0 + 4, T0 + 6):
            var.append("v_add_f32_dpp v%d, v%d, v%d %s row_mask:0xf bank_mask:0xf" % (r, r, r, ctl))
    rnd = lambda r: ["v_cvt_pk_bf16_f32 v%d, v%d, v%d" % (r, r, r), "v_and_b32 v%d, 0xffff0000, v%d" % (r, r)]
    for h in range(2):
        r = T0 + 4 + 2 * h; dl = T0 + 2 * h
        var += ["v_mul_f32 v%d, v%d, v%d" % (dl, dl, dl), "v_fma_f32 v%d, v%d, s35, -v%d" % (r, r, dl), "v_max_f32 v%d, 0, v%d" % (r, r)] + rnd(r)
        var += ["v_add_f32 v%d, 0x%x, v%d" % (r, f2u(1e-5), r)] + rnd(r) + ["v_sqrt_f32 v%d, v%d" % (r, r)] + rnd(r)
        var += ["v_rcp_f32 v%d, v%d" % (r, r), "ds_write_b32 v246, v%d offset:%d" % (r, 32 * h)]
    if "varold" in OPT: k.extend(var)
    else:
        body = k.ins[VARPOS:]; k.ins = k.ins[:VARPOS]
        if "mockL" in OPT: k.extend(var); var = ["s_nop 0"]
        step = max(1, (len(body) - 20) // len(var)); vi = 0
        for n, ins in enumerate(body):
            k.ins.append(ins)
            if n % step == step - 1 and vi < len(var) and not ins.op.startswith("s_"): k(var[vi]); vi += 1
        k.extend(var[vi:])
    k("v_mov_b32 v10, v247\nv_xor_b32 v11, 64, v247\nv_add_u32 v12, 36864, v10\nv_add_u32 v13, 36864, v11")
    k("@waitlds all\ns_barrier")
    stamp(k, "p1 ln")
    X2, ACC1, XF1, RR = 16, 160, 192, 2
    def xa(r, t): return "v%d offset:%d" % (10 + (t & 1) + 2 * (r >> 1), XL + ((r & 1) * 18 + t) * 1024)
    def x1reads(t): return ["ds_read_b128 %s, %s" % (vr(XF1 + 8 * (t & 1) + 4 * r, 4), xa(r, t)) for r in range(2)]
    def x2reads(t): return ["ds_read_b128 %s, %s" % (vr(X2 + 72 * r + 4 * t, 4), xa(r + 2, t)) for r in range(2)]
    k.extend(x1reads(0))
    main = []; fill = {}
    for t in range(18):
        g0 = 8 * t
        for u in range(8):
            T, r = u >> 1, u & 1
            a = vr(ACC1 + 8 * T + 4 * r, 4)
            main.append("v_mfma_f32_16x16x32_bf16 %s, %s, %s, %s" % (a, vr(XF1 + 8 * (t & 1) + 4 * r, 4), wreg(t, T), a if t else "0"))
        if "mockL" in OPT:
            for T in range(4): fill.setdefault(g0 + 2 * T + 1, []).append("v_mfma_f32_16x16x32_bf16 v[144:147], v[148:151], %s, v[144:147]" % wreg(t, T))
        if t + 1 < 18: spread(fill, x1reads(t + 1), g0, g0 + 1)
        spread(fill, x2reads(t), g0 + 6, g0 + 7)
        if nd < 18:
            d = drain(nd)
            spread(fill, [d[:2]] + d[2:], g0 + 2, g0 + 5)
            rf = refill(nd)
            if rf:
                for q, x in enumerate([rf[:3], rf[3:4], rf[4:5], rf[5:]]): fill.setdefault(g0 + 8 + 2 * q, []).extend(x)
            nd += 1
    assert nd == 18
    fill.setdefault(8 * 12, []).extend(["v_mov_b32 v248, 0", "global_load_dword v248, v248, s[92:93] sc1"])
    def rread(h): return ["ds_read_b128 %s, v245 offset:%d" % (vr(RR + 4 * r, 4), 128 * h + 16 * r) for r in range(2)]
    QS_ = "msub" in OPT or "qs" in OPT
    def rscale(): return ["v_mul_f32 v%d, s31, v%d" % (RR + i, RR + i) for i in range(8)] if QS_ else []
    if QS_: fill.setdefault(8 * 16, []).append("s_cmp_lt_u32 s25, 9\ns_cselect_b32 s31, s88, 1.0")
    spread(fill, rread(0), 8 * 17, 8 * 17 + 1)
    fill.setdefault(8 * 17 + 2, []).append("s_mul_i32 s28, s25, %d\ns_lshl_b32 s30, s24, 9\ns_add_u32 s28, s28, s30" % (16 * CGS))
    def epi(a, T, h):
        o = []
        for r in range(2):
            o += ["v_mul_f32 v%d, v%d, v%d" % (a + 4 * r + b, a + 4 * r + b, RR + 4 * r + b) for b in range(4)]
        o += ["v_cvt_pk_bf16_f32 v%d, v%d, v%d" % (a + j, a + 2 * j, a + 2 * j + 1) for j in range(4)]
        o.append("s_add_u32 s30, s28, %d\nbuffer_store_dwordx4 %s, v244, s[16:19], s30 offen offset:%d sc1 ;#z" % (4 * T * CGS, vr(a, 4), 256 * h))
        return o
    G2 = len(main)
    if "stamp" in OPT: fill.setdefault(G2 - 1, []).extend(stamp_ops("p1 m1"))
    for T in range(4):
        for r in range(2):
            a = vr(XF1 + 8 * (T & 1) + 4 * r, 4)
            for t in range(18):
                main.append("v_mfma_f32_16x16x32_bf16 %s, %s, %s, %s" % (a, vr(X2 + 72 * r + 4 * t, 4), wreg(t, T), a if t else "0"))
    e1 = rscale()
    for T in range(4): e1 += epi(ACC1 + 8 * T, T, 0)
    spread(fill, e1 + rread(1), G2 + 2, G2 + 33)
    if QS_: spread(fill, rscale(), G2 + 35, G2 + 38)
    for T in range(3): spread(fill, epi(XF1 + 8 * (T & 1), T, 1), G2 + 36 * (T + 1) + 3, G2 + 36 * (T + 1) + 20)
    if "wo1" in OPT:
        kw = K("tmp"); wo_offsets(kw, "main", 10)
        fill.setdefault(G2 + 1, []).extend(["@waitlds all", "s_barrier"])
        spread(fill, [i.text for i in kw.ins], G2 + 2, G2 + 20)
        spread(fill, wo_dmas()[:XP.get("won", 24)], G2 + XP.get("wo0", 24), G2 + XP.get("wo9", 120))
    k.extend(weave(main, fill))
    stamp(k, "p1 mm")
    k.extend(epi(XF1 + 8, 3, 1))
    get_tag(k, 248, "p1")
    k("s_lshl_b32 s30, s24, 12\ns_lshl_b32 s31, s25, 7\ns_add_u32 s30, s30, s31")
    stamp(k, "p1 st")
    k("L_p2v:")
    p2_vector(k)
    if "wgt" not in OPT: k("s_cmp_ge_u32 s2, 224\ns_cbranch_scc1 L_p2")
    k.extend(flag("z", 2, 250, "s30"))
    stamp(k, "p1 fl")

WOB = 53248
KB, VB, AUX, QB = 0, 20800, 41600, WOB + 16 * 6144
AK1, AK3, AQ1, AQ3, AV, VO1, VO2 = 232, 233, 234, 235, 236, 237, 238
VD2, VE2, VH2, VHE2 = 240, 244, 251, 253
MK = 208
KF, VF, QF, OA = 0, 80, 160, 176
def p2_scalar(k):
    k("s_load_dwordx2 s[90:91], s[0:1], 16")
    if "qmap" in OPT:
        k("s_and_b32 s80, s2, 7\ns_lshr_b32 s81, s2, 3")
    else:
        k("s_lshr_b32 s80, s2, 5")
        k("s_and_b32 s81, s2, 7\ns_lshl_b32 s81, s81, 2\ns_bfe_u32 s68, s2, 0x20003\ns_add_u32 s81, s81, s68")
    k("s_mul_i32 s68, s81, 18\ns_and_b32 s82, s68, 3\ns_lshr_b32 s68, s68, 2")
    k("s_add_u32 s83, s68, 144\ns_mul_i32 s83, s83, %d" % CGS)
    k("s_lshl_b32 s84, s80, 1\ns_add_u32 s84, s84, s22\ns_cmp_lt_u32 s84, 2\ns_cselect_b32 s69, 0, 2\ns_sub_u32 s84, s84, s69")
    k("s_lshl_b32 s84, s84, 10\ns_add_u32 s83, s83, s84\ns_lshl_b32 s84, s22, 10")
    k("s_mul_i32 s85, s68, %d\ns_lshl_b32 s69, s80, 11\ns_add_u32 s85, s85, s69\ns_lshl_b32 s87, s22, 9\ns_add_u32 s85, s85, s87" % CGS)
    k("s_mul_i32 s86, s22, 3072\ns_add_u32 s86, s86, %d" % QB)
    k("v_lshrrev_b32 v12, 5, v1\nv_lshlrev_b32 v12, 3, v12\nv_and_b32 v13, 31, v1\nv_sub_u32 v12, v13, v12")
    for rho in range(16):
        a, b = rho >> 2, rho & 3
        k("v_cmp_le_i32 s[%d:%d], %d, v12" % (36 + 2 * rho, 37 + 2 * rho, 16 * (a >> 1) + 4 * (a & 1) + b))
    k("s_lshl_b32 s68, s80, 8\ns_lshl_b32 s69, s22, 6\ns_add_u32 s68, s68, s69")
    k("s_mul_i32 s69, s81, %d\ns_lshl_b32 s70, s68, 4\ns_add_u32 s69, s69, s70" % (2 * OPS))
    k("s_mul_i32 s70, s81, %d\ns_lshl_b32 s68, s68, 2\ns_add_u32 s70, s70, s68" % O2S)
    k("s_lshr_b32 s73, s2, 5\ns_mul_i32 s72, s73, 192\ns_and_b32 s73, s73, 1\ns_lshl_b32 s74, s73, 6\ns_xor_b32 s73, s73, 1\ns_lshl_b32 s73, s73, 7")
    k("s_add_u32 s73, s73, s72\ns_add_u32 s72, s72, s74")
    k("s_lshl_b32 s71, s80, 1\ns_lshr_b32 s74, s22, 1\ns_add_u32 s71, s71, s74\ns_cmp_eq_u32 s71, 0\ns_cselect_b32 s71, 0xff7fff7f, 0")
    c = LOG2E * DH ** -0.5
    k("s_mov_b32 s75, 0x%x\ns_mov_b32 s88, 0x%x\ns_mov_b32 s89, s88" % (f2u(-c), f2u(c)))
    k("s_waitcnt lgkmcnt(0)")
    k.srd(76, 90, D * D * 2)
    k("s_cmp_ge_u32 s2, 192\ns_cselect_b32 s78, 0, s78")
    k("s_mul_i32 s90, s22, %d\ns_mul_i32 s91, s22, 6144\ns_add_u32 s91, s91, %d" % (36 * 1152, WOB))
    if "rot3" in OPT:
        k("s_bfe_u32 s74, s2, 0x20005\ns_mul_i32 s74, s74, %d\ns_add_u32 s90, s90, s74" % (4 * 36 * 1152))

def p2_vector(k):
    touch_chain(k, "L_c2", 22)
    k("v_lshrrev_b32 v2, 3, v1\ns_lshl_b32 s28, s80, 2\ns_cmp_eq_u32 s80, 0\ns_cselect_b32 s29, 3, 7\ns_cselect_b32 s27, 0, 4\ns_sub_u32 s28, s28, s27")
    k("v_and_b32 v2, s29, v2\nv_add_u32 v2, s28, v2\nv_lshlrev_b32 v2, 12, v2\ns_mul_i32 s27, s81, 18")
    k("v_and_b32 v3, 7, v1\nv_min_u32 v3, 5, v3\nv_and_b32 v4, 1, v3\nv_mul_u32_u24 v4, 17, v4\nv_add_u32 v4, s27, v4\nv_lshrrev_b32 v4, 6, v4")
    k("v_lshrrev_b32 v3, 1, v3\nv_mul_u32_u24 v3, 9, v3\nv_add_u32 v3, v3, v4\nv_lshl_add_u32 v14, v3, 7, v2")
    k("v_lshlrev_b32 v3, 4, v1")
    k("v_lshrrev_b32 v5, 5, v1\nv_mul_u32_u24 v4, %d, v5\nv_and_b32 v10, 31, v1\nv_lshl_add_u32 v4, v10, 4, v4\nv_lshlrev_b32 v15, 4, v10" % CGS)
    k("v_bfe_u32 v6, v1, 4, 1\nv_bfe_u32 v7, v1, 2, 2\nv_and_b32 v8, 3, v1")
    k("v_and_b32 v9, 1, v8\nv_lshl_add_u32 v9, v6, 1, v9\nv_lshlrev_b32 v9, 6, v9\nv_lshrrev_b32 v11, 1, v8\nv_lshl_add_u32 v9, v11, 3, v9")
    k("v_lshrrev_b32 v13, 1, v8\nv_lshl_add_u32 v13, v6, 1, v13\nv_lshlrev_b32 v13, 6, v13\nv_and_b32 v11, 1, v8\nv_lshl_add_u32 v13, v11, 3, v13")
    k("v_lshl_add_u32 v11, v5, 3, v7\nv_add_u32 v11, s82, v11")
    k("v_lshrrev_b32 v12, 2, v11\nv_and_b32 v11, 3, v11\nv_lshlrev_b32 v11, 4, v11")
    k("v_mul_u32_u24 v2, 4160, v12\nv_add3_u32 v2, v2, v11, v9\nv_add_u32 v%d, s87, v2" % AK1)
    k("v_lshl_add_u32 v2, v12, 9, v11\nv_add3_u32 v%d, v2, v13, s86" % AQ1)
    k("v_min_u32 v11, 1, v7\nv_add_u32 v11, s82, v11\nv_lshlrev_b32 v11, 4, v11")
    k("v_add3_u32 v2, v11, v9, s87\nv_add_u32 v2, %d, v2\nv_add_u32 v12, s87, v9\nv_add_u32 v12, %d, v12" % (4 * 4160, AUX))
    k("v_cmp_gt_u32 vcc, 2, v7\nv_cndmask_b32 v%d, v12, v2, vcc" % AK3)
    k("v_add3_u32 v2, v11, v13, s86\nv_add_u32 v%d, 2048, v2" % AQ3)
    k("v_add_u32 v11, s82, v10\nv_lshrrev_b32 v12, 2, v11\nv_and_b32 v11, 3, v11")
    k("v_mul_u32_u24 v12, 4160, v12\nv_lshl_add_u32 v12, v11, 4, v12\nv_add_u32 v12, %d, v12" % VB)
    k("v_mov_b32 v11, %d\nv_cmp_gt_u32 vcc, 18, v10\nv_cndmask_b32 v12, v11, v12, vcc" % (AUX + 16))
    k("v_lshl_add_u32 v12, v5, 6, v12\nv_add_u32 v%d, s87, v12" % AV)
    k("v_mul_u32_u24 v%d, %d, v5\nv_lshl_add_u32 v%d, v10, 4, v%d" % (VO1, OPS, VO1, VO1))
    k("v_lshlrev_b32 v2, 2, v10\nv_mov_b32 v6, 0x%x\nv_cmp_gt_u32 vcc, 32, v1\nv_cndmask_b32 v%d, v6, v2, vcc" % (BIG, VO2))

def wo_offsets(k, which, t=6):
    VD, VE, VH, VHE = VD2, VE2, VH2, VHE2
    a, b, c, d = t, t + 1, t + 2, t + 3
    dma_piece(k, b, 1, c)
    if which != "ext":
        k("v_mul_u32_u24 v%d, 1152, v%d\nv_add_u32 v%d, v%d, v%d" % (a, c, a, a, b))
        un = [0, 18, 8, 26]
        for q in range(4): k("v_add_u32 v%d, %d, v%d" % (VD + q, un[q] * 1152 - q * 1024, a))
    if which != "main":
        k("v_lshrrev_b32 v{a}, 2, v{c}\nv_lshlrev_b32 v{a}, 2, v{a}\nv_bfe_u32 v{d}, v{c}, 1, 1\nv_add_u32 v{a}, v{a}, v{d}\nv_mul_u32_u24 v{a}, 18, v{a}\nv_and_b32 v{d}, 1, v{c}\nv_add_u32 v{a}, v{a}, v{d}".format(a=a, c=c, d=d))
        k("v_mul_u32_u24 v%d, 1152, v%d\nv_add_u32 v%d, v%d, v%d" % (a, a, a, a, b))
        ue = [16, 18 * 8 + 16, 18 * 2 + 16, 18 * 10 + 16]
        for q in range(4): k("v_add_u32 v%d, %d, v%d" % (VE + q, ue[q] * 1152 - q * 1024, a))
    k("v_lshrrev_b32 v{c}, 2, v1\nv_bfe_u32 v{b}, v1, 4, 1\nv_lshlrev_b32 v{b}, 1, v{b}\nv_and_b32 v{d}, 3, v1\nv_xor_b32 v{b}, v{b}, v{d}\nv_lshlrev_b32 v{b}, 4, v{b}".format(b=b, c=c, d=d))
    if which != "ext":
        k("v_lshrrev_b32 v{a}, 3, v{c}\nv_mul_u32_u24 v{a}, 18, v{a}\nv_and_b32 v{d}, 7, v{c}\nv_add_u32 v{a}, v{a}, v{d}\nv_mul_u32_u24 v{a}, 1152, v{a}\nv_add_u32 v{h}, v{a}, v{b}".format(a=a, b=b, c=c, d=d, h=VH))
        k("v_add_u32 v%d, %d, v%d" % (VH + 1, 8 * 1152 - 1024, VH))
    if which != "main":
        k("v_lshrrev_b32 v{a}, 2, v{c}\nv_lshlrev_b32 v{a}, 2, v{a}\nv_bfe_u32 v{d}, v{c}, 1, 1\nv_add_u32 v{a}, v{a}, v{d}\nv_mul_u32_u24 v{a}, 18, v{a}\nv_and_b32 v{d}, 1, v{c}\nv_add3_u32 v{a}, v{a}, v{d}, 16".format(a=a, c=c, d=d))
        k("v_mul_u32_u24 v%d, 1152, v%d\nv_add_u32 v%d, v%d, v%d\nv_add_u32 v%d, %d, v%d" % (a, a, VHE, a, b, VHE + 1, 36 * 1152 - 1024, VHE))

def wo_dmas():
    VD, VE, VH, VHE = VD2, VE2, VH2, VHE2
    wo = []
    for rnd in range(5):
        vb, vh = (VD, VH) if rnd < 4 else (VE, VHE)
        pre = []
        if rnd == 4:
            pre = ["s_and_b32 s90, s22, 1", "s_mul_i32 s91, s90, 6144", "s_add_u32 s91, s91, %d" % WOB, "s_mul_i32 s90, s90, %d" % (18 * 16 * 1152)]
        pre += ["s_add_u32 m0, s91, %d" % (rnd * 4 * 6144), "s_add_u32 s101, s90, s72"]
        for a in range(4):
            wo.append(pre + ["buffer_load_dwordx4 v%d, s[76:79], s101 offen offset:%d lds ;#wo" % (vb + a, 1024 * a)]); pre = []
        pre = ["s_add_u32 m0, s91, %d" % (rnd * 4 * 6144 + 4096), "s_add_u32 s101, s90, s73"]
        for a in range(2):
            wo.append(pre + ["buffer_load_dwordx4 v%d, s[76:79], s101 offen offset:%d lds ;#wo" % (vh + a, 1024 * a)]); pre = []
        if rnd < 3:
            wo[-1].append("s_add_u32 s90, s90, %d" % (4 * 36 * 1152))
            if "rot3" in OPT: wo[-1].append("s_cmp_ge_u32 s90, %d\ns_cselect_b32 s101, %d, 0\ns_sub_u32 s90, s90, s101" % (16 * 36 * 1152, 16 * 36 * 1152))
    return wo

def p2(k):
    SCO = 16
    k("L_p2:\n@reset")
    k.srd(8, 20, Z_BYTES, WS_Z)
    k.srd(12, 20, OP_BYTES, WS_OP)
    k.srd(16, 20, O2_BYTES, WS_O2)
    k("s_barrier")
    k("v_and_b32 v2, 3, v1\nv_lshl_add_u32 v6, v1, 4, s84")
    k("v_mov_b32 v7, s71\nv_mov_b32 v8, 0x3f803f80\nv_cmp_eq_u32 vcc, 0, v2\nv_cndmask_b32 v8, v8, v7, vcc")
    k("v_mov_b32 v9, v8\nv_mov_b32 v10, v8\nv_mov_b32 v11, v8")
    k("ds_write_b128 v6, v[8:11] offset:%d" % AUX)
    kw = K("tmp"); wo_offsets(kw, "ext" if ("wo1" in OPT and XP.get("won", 24) == 24) else "both"); k.ins += kw.ins
    wo = wo_dmas()
    if "wo1" in OPT: wo = wo[XP.get("won", 24):]
    if "earlypoll" in OPT: k.extend(poll(16, 14, "0"))
    NWE = XP.get("nwe", 24)
    for x in wo[:NWE]: k.extend(x)
    wo = wo[NWE:]
    k("v_mov_b32 v12, 0xffff\nv_mov_b32 v13, 0xffff0000")
    for i in range(8):
        k("v_cndmask_b32 v2, 0, v12, s[%d:%d]\nv_cndmask_b32 v6, 0, v13, s[%d:%d]\nv_or_b32 v%d, v2, v6" % (36 + 4 * i, 37 + 4 * i, 38 + 4 * i, 39 + 4 * i, MK + i))
    for n in range(10): k("v_accvgpr_write_b32 a%d, 0\nv_accvgpr_write_b32 a%d, 0" % (KF + 8 * n + 6, KF + 8 * n + 7))
    for u in range(2): k("v_accvgpr_write_b32 a%d, 0\nv_accvgpr_write_b32 a%d, 0" % (QF + 8 * u + 6, QF + 8 * u + 7))
    k("v_mov_b32 v2, 0x3f80\nv_cmp_gt_u32 vcc, 32, v1\nv_cndmask_b32 v2, 0, v2, vcc\nv_accvgpr_write_b32 a%d, v2\nv_accvgpr_write_b32 a%d, v2" % (QF + 5, QF + 13))
    if "msub" in OPT:
        k("v_accvgpr_write_b32 a209, v2\nv_mov_b32 v6, 0x3f803f80\nv_cndmask_b32 v6, 0, v6, vcc\nv_accvgpr_write_b32 a208, v6")
        for a in (210, 211, 214, 215, 218, 219): k("v_accvgpr_write_b32 a%d, 0" % a)
    touch_chain(k, "L_c3", 22)
    if "poll2" in OPT:
        stamp(k, "p2 setup")
        k("s_cmp_lg_u32 s22, 0\ns_cbranch_scc1 L_p2w")
        spin(k, "p2", 16, 14, "0")
        k("L_p2w:\ns_barrier")
    else:
        if "earlypoll" not in OPT: k.extend(poll(16, 14, "0"))
        stamp(k, "p2 setup")
        k.extend(check("p2", 16, 14, "0", ptmp=17))
    stamp(k, "p2 go")
    k("s_mov_b32 m0, s86")
    k("buffer_load_dwordx4 v4, s[8:11], s85 offen sc1 lds ;#q")
    k("s_add_u32 m0, s86, 1024\ns_add_u32 s85, s85, %d" % (2 * CGS))
    k("buffer_load_dwordx4 v4, s[8:11], s85 offen sc1 lds ;#q")
    k("s_add_u32 m0, s86, 2048\ns_add_u32 s85, s85, %d" % (2 * CGS))
    k("buffer_load_dwordx4 v15, s[8:11], s85 offen sc1 lds ;#q")
    for m in range(2):
        for c in range(5):
            k("s_add_u32 m0, s84, %d" % (m * VB + c * 4160))
            k("buffer_load_dwordx4 v3, s[8:11], s83 offen sc1 lds ;#%s" % "kv"[m])
            k("s_add_u32 s83, s83, %d" % (CGS if c < 4 else 140 * CGS))
    k("s_load_dwordx4 s[4:7], s[0:1], 32\ns_lshl_b32 s26, s2, 2\ns_add_u32 s26, s26, s22\ns_mul_i32 s27, s26, 1088\ns_and_b32 s27, s27, 0xffffff80\ns_add_u32 s27, s27, 0x400000")
    k("s_mul_i32 s26, s26, 5184\ns_and_b32 s26, s26, 0xffffff80")
    k("v_lshlrev_b32 v229, 7, v1\nv_mov_b32 v6, 0x%x\nv_cmp_gt_u32 vcc, 14, v1\nv_cndmask_b32 v229, v6, v229, vcc" % BIG)
    k("@waitvm q")
    for u in range(2):
        k("ds_read_b64_tr_b16 %s, v%d offset:%d\nds_read_b64_tr_b16 %s, v%d offset:%d\nds_read_b64_tr_b16 %s, v%d offset:%d" % (
            ar(QF + 8 * u, 2), AQ1, 256 * u, ar(QF + 8 * u + 2, 2), AQ1, 512 + 256 * u, vr(6 + 2 * u, 2), AQ3, 256 * u))
    k("v_cmp_gt_u32 vcc, 32, v1")
    for u in range(2): k("v_cndmask_b32 v%d, 0, v%d, vcc\nv_accvgpr_write_b32 a%d, v%d" % (6 + 2 * u, 6 + 2 * u, QF + 8 * u + 4, 6 + 2 * u))
    k("@waitvm k\n@waitlds all\ns_barrier")
    stamp(k, "p2 k")
    def kread(n):
        f = KF + 8 * n
        return ["ds_read_b64_tr_b16 %s, v%d offset:%d" % (ar(f, 2), AK1, KB + 256 * n),
                "ds_read_b64_tr_b16 %s, v%d offset:%d" % (ar(f + 2, 2), AK1, KB + 256 * n + 4160),
                "ds_read_b64_tr_b16 %s, v%d offset:%d" % (ar(f + 4, 2), AK3, 256 * n)]
    def vread(n, s): return "ds_read_b128 %s, v%d offset:%d" % (ar(VF + 8 * n + 4 * s, 4), AV, 256 * n + 128 * s)
    order = [0, 8, 1, 2, 3, 4, 5, 6, 7]
    slot = [{j: j for j in range(9)}, dict(zip(order, [9, 10, 11, 0, 8, 1, 2, 3, 4]))]
    def sreg(u, j): return SCO + 16 * slot[u][j]
    def qk(u, j):
        s = vr(sreg(u, j), 16); f = KF + 8 * (j + u)
        return ["v_mfma_f32_32x32x16_bf16 %s, %s, %s, 0" % (s, ar(f, 4), ar(QF + 8 * u, 4)),
                "v_mfma_f32_32x32x16_bf16 %s, %s, %s, %s" % (s, ar(f + 4, 4), ar(QF + 8 * u + 4, 4), s)]
    MX = [216, 220]
    def maxops(u, j, first):
        b = sreg(u, j); m = MX[u]; o = []
        if j == 8: return []
        if j == 0:
            b8 = sreg(u, 8)
            o += ["v_cndmask_b32 v%d, v%d, v%d, s[%d:%d]" % (b + rho, b + rho, b8 + rho, 36 + 2 * rho, 37 + 2 * rho) for rho in range(16)]
            o += ["v_max3_f32 v%d, v%d, v%d, v%d" % (m, b, b + 1, b + 2), "v_max3_f32 v%d, v%d, v%d, v%d" % (m + 1, b + 3, b + 4, b + 5)]
            o += ["v_max3_f32 v%d, v%d, v%d, v%d" % (m + (i & 1), m + (i & 1), b + 6 + 2 * i, b + 7 + 2 * i) for i in range(5)]
        else:
            o += ["v_max3_f32 v%d, v%d, v%d, v%d" % (m + (i & 1), m + (i & 1), b + 2 * i, b + 2 * i + 1) for i in range(8)]
        return o
    ONE, MB = 208, [212, 216]
    def msub(u, j):
        s_ = vr(sreg(u, j), 16)
        return "v_mfma_f32_32x32x16_bf16 %s, %s, %s, %s" % (s_, ar(ONE, 4), ar(MB[u], 4), s_)
    def maxfin(u):
        m = MX[u]
        if "msub" in OPT:
            return ["v_max_f32 v%d, v%d, v%d" % (m, m, m + 1), "v_mov_b32 v%d, v%d" % (m + 1, m), "v_permlane32_swap_b32 v%d, v%d" % (m, m + 1),
                    "v_max_f32 v%d, v%d, v%d" % (m, m, m + 1),
                    "v_xor_b32 v%d, 0x80000000, v%d" % (m, m), "v_and_b32 v%d, 0xffff0000, v%d" % (m + 1, m), "v_sub_f32 v%d, v%d, v%d" % (m, m, m + 1),
                    "v_and_b32 v%d, 0xffff0000, v%d" % (m + 2, m), "v_sub_f32 v%d, v%d, v%d" % (m, m, m + 2),
                    "v_alignbit_b32 v%d, v%d, v%d, 16" % (m + 1, m + 3, m + 1), "v_and_b32 v%d, 0xffff, v%d" % (m + 1, m + 1), "v_or_b32 v%d, v%d, v%d" % (m + 1, m + 1, m + 2),
                    "v_lshrrev_b32 v%d, 16, v%d" % (m, m),
                    "v_accvgpr_write_b32 a%d, v%d" % (MB[u], m + 1), "v_accvgpr_write_b32 a%d, v%d" % (MB[u] + 1, m)]
        return ["v_max_f32 v%d, v%d, v%d" % (m, m, m + 1), "v_mov_b32 v%d, v%d" % (m + 1, m), "v_permlane32_swap_b32 v%d, v%d" % (m, m + 1),
                "v_max_f32 v%d, v%d, v%d" % (m, m, m + 1)] + (["v_mul_f32 v%d, s75, v%d" % (m, m), "v_mov_b32 v%d, v%d" % (m + 1, m)] if "qs" not in OPT else [])
    for n in (0, 8, 1, 2): k.extend(kread(n))
    rest = [3, 4, 5, 6, 7, 9]
    for i, j in enumerate(order):
        q = qk(0, j)
        k(q[0])
        if i < len(rest): k.extend(kread(rest[i]))
        k(q[1])
        if i >= 2: k.extend(maxops(0, order[i - 2], False))
    if "qkdefer" in OPT: k.extend(maxops(0, order[7], False)); k.extend(maxops(0, order[8], False))
    else: k.extend(qk(1, 0)); k.extend(maxops(0, order[7], False)); k.extend(qk(1, 8)); k.extend(maxops(0, order[8], False))
    k("@waitvm v\ns_barrier")
    k.srd(28, 4, WB)
    k.srd(32, 6, WB)
    pfl = ([] if "wgt" in OPT else [["buffer_load_dword a240, v229, s[28:31], s27 offen"]]) + [["buffer_load_dword a%d, v229, s[32:35], s26 offen offset:%d" % (241 + j, 1792 * j)] for j in range(3)]
    if "nopf2" in OPT: pfl = []
    vr_list = [vread(n, s) for n in [0, 8, 1, 2, 3, 4, 5, 6, 7, 9] for s in range(2)]
    k.extend(vr_list[:6])
    k.extend(maxfin(0))
    if "msub" in OPT: k(msub(0, 0)); k(msub(0, 1))
    stamp(k, "p2 s")
    vr_list = vr_list[6:]
    first = [True, True]
    def pv(u, j):
        o = []
        for s in range(2):
            a = ar(OA + 16 * u, 16)
            o.append("v_mfma_f32_32x32x16_bf16 %s, %s, %s, %s" % (a, ar(VF + 8 * (j + u) + 4 * s, 4), vr(sreg(u, j) + 4 * s, 4), "0" if first[u] else a))
            first[u] = False
        return o
    def expops(u, j):
        b = sreg(u, j); m = MX[u]; o = []
        for hf in range(2):
            if "msub" in OPT: pass
            elif "qs" in OPT:
                for i in range(8): o.append("v_sub_f32 v%d, v%d, v%d" % (b + 8 * hf + i, b + 8 * hf + i, m))
            elif "pk" not in OPT:
                for i in range(8): o.append("v_fma_f32 v%d, v%d, s88, v%d" % (b + 8 * hf + i, b + 8 * hf + i, m))
            else:
                for i in range(0, 8, 2): o.append("v_pk_fma_f32 %s, %s, s[88:89], %s" % (vr(b + 8 * hf + i, 2), vr(b + 8 * hf + i, 2), vr(m, 2)))
            for i in range(8): o.append("v_exp_f32 v%d, v%d" % (b + 8 * hf + i, b + 8 * hf + i))
            for i in range(4): o.append("v_cvt_pk_bf16_f32 v%d, v%d, v%d" % (b + 4 * hf + i, b + 8 * hf + 2 * i, b + 8 * hf + 2 * i + 1))
        if j == 0:
            b8 = sreg(u, 8)
            for i in range(8): o += ["v_and_b32 v%d, v%d, v%d" % (b8 + i, b + i, MK + i), "v_xor_b32 v%d, v%d, v%d" % (b + i, b + i, b8 + i)]
        return o
    def outops(u):
        a = OA + 16 * u; t = 224 if u else SCO + 80
        o = ["v_accvgpr_read_b32 v2, a%d" % (a + 12), "v_rcp_f32 v2, v2"]
        o += ["v_accvgpr_read_b32 v%d, a%d" % (4 + i, a + i) for i in range(10)]
        o += ["v_mul_f32 v%d, v%d, v2" % (4 + i, 4 + i) for i in range(10)]
        o += ["v_cvt_pk_bf16_f32 v%d, v%d, v%d" % (t + i, 4 + 2 * i, 5 + 2 * i) for i in range(5)]
        sc = "" if "mockP" in OPT else "sc1"
        o += ["buffer_store_dwordx4 %s, v%d, s[12:15], s69 offen offset:%d %s ;#o" % (vr(t, 4), VO1, 512 * u, sc),
              "buffer_store_dword v%d, v%d, s[16:19], s70 offen offset:%d %s ;#o" % (t + 4, VO2, 128 * u, sc)]
        return o
    steps = [0, 1, 2, 3, 4, 5, 6, 7]
    bq = {0: [1], 2: [2, 3], 3: [4], 4: [5], 5: [6], 6: [7]}
    bm = {0: [], 1: [0, 1], 3: [2, 3], 4: [4], 5: [5], 6: [6], 7: [7]}
    if "qkdefer" in OPT: bq[0] = [0, 8, 1]
    prev = []
    PFAT = XP.get("pfat", len(wo)); bg = wo[:PFAT] + pfl + wo[PFAT:]; wo = []; pfl = []
    NWO = XP.get("nwo", 3)
    for e in steps:
        ops = expops(0, e)
        mf = list(prev)
        if "msub" in OPT and e + 2 < 8: mf = [msub(0, e + 2)] + mf
        for j in bq.get(e, []): mf += qk(1, j)
        fill = {}
        if mf: spread(fill, mf, 2, len(ops) - 4)
        if vr_list: spread(fill, vr_list[:4], 0, 20); vr_list = vr_list[4:]
        if bg: spread(fill, bg[:NWO], 3, len(ops) - 1); bg = bg[NWO:]
        k.extend(weave(ops, fill))
        for j in bm.get(e, []): k.extend(maxops(1, j, False))
        prev = pv(0, 0) + pv(0, 8) if e == 0 else pv(0, e)
    k.extend(maxfin(1))
    if "msub" in OPT: k(msub(1, 0)); k.extend(prev); prev = []; k(msub(1, 1))
    for e in steps:
        ops = expops(1, e)
        fill = {}
        if "msub" in OPT and e + 2 < 8: prev = [msub(1, e + 2)] + prev
        if prev: spread(fill, prev, 2, len(ops) - 4)
        if bg: spread(fill, bg[:NWO], 3, len(ops) - 1); bg = bg[NWO:]
        k.extend(weave(ops, fill))
        if e == 1:
            o0 = outops(0)
            if "ab" in OPT: k.extend([x.replace(";#o", ";#oa") for x in o0]); o0 = []
            else: k.extend(o0[:-2])
        if "ab" in OPT and e == XP.get("fa", 5):
            k("s_lshl_b32 s30, s80, 2\ns_add_u32 s30, s30, s22\ns_lshl_b32 s30, s30, 12\ns_lshl_b32 s31, s81, 7\ns_add_u32 s30, s30, s31\ns_add_u32 s30, s30, %d" % F2A)
            k.extend(flag("oa", 2, 250, "s30"))
        prev = pv(1, 0) + pv(1, 8) if e == 0 else pv(1, e)
    k.extend(o0[-2:])
    k.extend(prev)
    k.extend(outops(1))
    assert not bg
    stamp(k, "p2 st")

def p3(k):
    k("s_load_dwordx2 s[56:57], s[0:1], 0\ns_load_dwordx4 s[36:39], s[0:1], 48")
    k("s_lshl_b32 s30, s80, 2\ns_add_u32 s30, s30, s22\ns_lshl_b32 s30, s30, 12\ns_lshl_b32 s31, s81, 7\ns_add_u32 s30, s30, s31\ns_add_u32 s30, s30, %d" % F2)
    k("s_lshr_b32 s80, s2, 5\ns_and_b32 s81, s2, 7\ns_lshl_b32 s81, s81, 2\ns_bfe_u32 s82, s2, 0x20003\ns_add_u32 s81, s81, s82")
    k("s_lshl_b32 s82, s81, 2\ns_add_u32 s82, s82, s22")
    k("v_and_b32 v6, 15, v1\nv_lshrrev_b32 v7, 4, v1")
    XR, BF, ACC, WV = 208, 16, 88, 112
    TA, TM = 220, 246
    k("s_mov_b32 s26, %d" % WOB)
    tr_addrs(k, TA, 1, "s26", 2)
    k("v_lshrrev_b32 v2, 2, v1\nv_lshlrev_b32 v2, 6, v2\nv_and_b32 v3, 3, v1\nv_lshl_add_u32 v2, v3, 3, v2\nv_bfe_u32 v3, v1, 4, 1")
    k("v_lshl_add_u32 v%d, v3, 5, v2\nv_add_u32 v%d, %d, v%d\nv_xor_b32 v%d, 32, v%d" % (TM, TM, WOB + 4096, TM, TM + 1, TM))
    k("v_mul_u32_u24 v10, 1152, v6\nv_lshl_add_u32 v10, v7, 3, v10\ns_mul_i32 s28, s82, %d\ns_add_u32 s29, s28, s73\ns_add_u32 s28, s28, s72" % (16 * 1152))
    k.extend([x.replace(" sc1", "") if "mockF" in OPT else x for x in flag("o", 2, 250, "s30")])
    stamp(k, "p2 fl")
    if "c4early" in OPT: touch_chain(k, "L_c4", 22)
    if "wgt" in OPT:
        k("s_bfe_u32 s84, s2, 0x20001\ns_lshl_b32 s84, s84, 2\ns_lshr_b32 s85, s2, 6\ns_add_u32 s84, s84, s85\ns_lshr_b32 s85, s84, 1\ns_mul_i32 s85, s85, 9")
        k("s_and_b32 s84, s84, 1\ns_mul_i32 s84, s84, 5\ns_add_u32 s84, s84, s85\ns_mul_i32 s84, s84, 18")
        k("v_and_b32 v12, 7, v1\nv_mul_u32_u24 v12, 11, v12\nv_min_u32 v12, 71, v12\nv_add_u32 v12, s84, v12\nv_mul_u32_u24 v12, 5958, v12\nv_lshrrev_b32 v12, 16, v12")
        k("v_lshlrev_b32 v12, 7, v12\nv_add_u32 v12, %d, v12" % FG)
    k("s_waitcnt lgkmcnt(0)\ns_barrier")
    k("s_cmp_ge_u32 s2, 192\ns_cbranch_scc1 L_pf3")
    kp = K("tmp")
    kp("L_pf3:")
    if "wgt" in OPT:
        kp.extend(poll(15, 12, "0")); kp("s_waitcnt vmcnt(0)"); kp.extend(check("pg", 15, 12, "0"))
    if "wdt" in OPT:
        STG = 73728
        kp("s_sub_u32 s23, s2, 192\ns_lshl_b32 s23, s23, 2\ns_add_u32 s23, s23, s22")
        kp.srd(8, 36, WB)
        kp.srd(12, 20, WB, WS_WT)
        dma_piece(kp, 4, 1, 2)
        kp("v_mul_u32_u24 v5, 1152, v2\nv_add_u32 v5, v5, v4")
        for a in range(4): kp("v_add_u32 v%d, %d, v5" % (16 + a, a * (8 * 1152 - 1024)))
        kp("s_mul_i32 s24, s22, 20480\ns_add_u32 s24, s24, %d" % STG)
        tr_addrs(kp, 20, 1, "s24", 2)
        kp("v_lshlrev_b32 v24, 4, v1")
        def wdma(r):
            o = ["s_add_u32 s25, s23, %d" % (256 * r), "s_mul_i32 s26, s25, 7282", "s_lshr_b32 s26, s26, 16", "s_mul_i32 s27, s26, 9", "s_sub_u32 s27, s25, s27",
                 "s_mul_i32 s26, s26, 36864", "s_lshl_b32 s27, s27, 7", "s_add_u32 s26, s26, s27", "s_add_u32 m0, s24, %d" % ((r % 5) * 4096)]
            return o + ["buffer_load_dwordx4 v%d, s[8:11], s26 offen offset:%d lds ;#t%d" % (16 + a, 1024 * a, r) for a in range(4)]
        kp("@reset")
        NR = XP.get("nr", 6)
        for r in range(min(5, NR)): kp.extend(wdma(r))
        kp("s_lshl_b32 s28, s23, 12")
        for r in range(NR):
            b = 32 + 16 * (r % 3)
            kp("@waitvm t%d" % r)
            for T in range(4):
                for j in range(2): kp("ds_read_b64_tr_b16 %s, v%d offset:%d" % (vr(b + 4 * T + 2 * j, 2), 20 + T, (r % 5) * 4096 + 2048 * j))
            if r == 0 and NR == 6:
                kp("@waitlds all"); kp.extend(wdma(5))
            for T in range(4): kp("buffer_store_dwordx4 %s, v24, s[12:15], s28 offen offset:%d sc1" % (vr(b + 4 * T, 4), 1024 * T))
            if r < 5: kp("s_add_u32 s28, s28, 0x100000")
        kp("s_lshl_b32 s101, s23, 7\ns_add_u32 s101, s101, %d" % FW)
    rest = 0 if "wdt" in OPT else WB - XP.get("nd1", 0) * (1 << 20); lines = -(-rest // (256 * 128))
    if lines:
        kp("s_sub_u32 s23, s2, 192\ns_lshl_b32 s23, s23, 2\ns_add_u32 s23, s23, s22\ns_mul_i32 s23, s23, %d\ns_add_u32 s23, s23, %d\nv_lshlrev_b32 v2, 7, v1" % (lines * 128, WB - rest))
        kp.srd(8, 36, WB)
    if "nopf3" in OPT or "pfA" in OPT: kp("s_mov_b32 s10, 0")
    q = 0
    while lines > 0:
        if lines < 64:
            m = (1 << lines) - 1
            kp("s_mov_b32 exec_lo, 0x%x\ns_mov_b32 exec_hi, 0x%x" % (m & 0xffffffff, m >> 32))
        kp("buffer_load_dword a%d, v2, s[8:11], s23 offen\ns_add_u32 s23, s23, 8192" % (240 + q)); q += 1; lines -= 64
    kp("s_mov_b64 exec, -1")
    p4_early(kp)
    kp("s_branch L_p4")
    SLOW.extend(i.text + (" ;#" + i.tag if i.tag else "") for i in kp.ins)
    k("v_and_b32 v11, 31, v1\nv_lshlrev_b32 v11, 7, v11\ns_lshl_b32 s83, s81, 12\ns_add_u32 s83, s83, %d" % F2)
    if "wgt" in OPT: k("v_add_u32 v11, s83, v11\nv_cmp_gt_u32 vcc, 32, v1\nv_cndmask_b32 v11, v12, v11, vcc\ns_mov_b32 s83, 0")
    if "ab" in OPT: k("s_cmp_lt_u32 s22, 2\ns_cselect_b32 s87, %d, 0\ns_add_u32 s83, s83, s87" % (F2A - F2))
    if "earlypoll" in OPT: k.extend(poll(15, 11, "s83"))
    k.srd(52, 56, X_BYTES)
    for T in range(6): k("buffer_load_dwordx2 %s, v10, s[52:55], s%d offen offset:%d" % (vr(XR + 2 * T, 2), 28 if T < 4 else 29, 32 * (T & 3)))
    def wreg(t, T, o=0, n=4):
        if t < 10: return ar(24 * t + 4 * T + o, n)
        if t < 14: return vr(WV + 24 * (t - 10) + 4 * T + o, n)
        return ar(24 * (t - 14) + 4 * T + o, n)
    def wread(t):
        o = []
        if t == 10: o += ["v_add_u32 v%d, 61440, v%d" % (q, q) for q in (TA, TA + 1, TA + 2, TA + 3, TM, TM + 1)]
        off = (t % 10) * 6144
        for T in range(6):
            for j in range(2):
                a, oo = (TA + T, off + 2048 * j) if T < 4 else (TM + T - 4, off + 1024 * j)
                o.append("ds_read_b64_tr_b16 %s, v%d offset:%d" % (wreg(t, T, 2 * j, 2), a, oo))
        return o
    NW0 = XP.get("nw0", 8)
    for t in range(NW0): k.extend(wread(t))
    k("v_mul_u32_u24 v8, %d, v7\nv_lshl_add_u32 v8, v6, 4, v8" % OPS)
    k("v_mul_u32_u24 v9, %d, v7\nv_lshl_add_u32 v9, v6, 2, v9" % (4 * O2S))
    k("s_lshl_b32 s84, s82, 8\ns_lshl_b32 s85, s82, 6")
    if "rot3" in OPT: k("s_add_u32 s90, s84, %d\ns_and_b32 s87, s80, 3\ns_mul_i32 s87, s87, %d\ns_add_u32 s84, s84, s87" % (64 * OPS, 16 * OPS))
    k.srd(8, 20, H_BYTES, WS_H)
    k.srd(76, 20, ST_BYTES, WS_ST)
    k("s_mov_b32 s86, 0x3f803f80")
    k("s_mul_i32 s91, s82, 18432\ns_lshl_b32 s71, s73, 4\ns_add_u32 s71, s71, s91\ns_lshl_b32 s74, s72, 4\ns_add_u32 s91, s91, s74")
    k("s_lshl_b32 s74, s80, 14\ns_lshl_b32 s87, s82, 7\ns_add_u32 s74, s74, s87")
    k("s_lshl_b32 s101, s82, 10\ns_lshl_b32 s87, s80, 7\ns_add_u32 s101, s101, s87\ns_add_u32 s101, s101, %d" % F3)
    k("v_lshlrev_b32 v13, 4, v1\nv_lshlrev_b32 v14, 3, v1\nv_mov_b32 v2, 0x%x\nv_cmp_gt_u32 vcc, 16, v1\nv_cndmask_b32 v14, v2, v14, vcc" % BIG)
    if "early4" in OPT: p4_early(k)
    if "xinit" in OPT:
        for T in range(6):
            for j in range(2):
                a = ACC + 4 * T + 2 * j; p = XR + 2 * T + j
                k("v_lshlrev_b32 v%d, 16, v%d\nv_and_b32 v%d, 0xffff0000, v%d" % (a, p, a + 1, p))
    if "poll3" in OPT and "ab" not in OPT:
        stamp(k, "p3 setup")
        k("s_cmp_lg_u32 s22, 0\ns_cbranch_scc1 L_p3w")
        k.extend(poll(15, 11, "s83")); k.extend(check("p3", 15, 11, "s83"))
        k("L_p3w:\ns_barrier")
    else:
        if "earlypoll" not in OPT: k.extend(poll(15, 11, "s83"))
        stamp(k, "p3 setup")
        k.extend(check("p3", 15, 11, "s83", ptmp=12))
    stamp(k, "p3 go")
    lds_ = []
    for t in range(18):
        if t < 16:
            lds_.append("s_nop 0\nbuffer_load_dwordx4 %s, v8, s[12:15], s84 offen sc1" % vr(BF + 4 * t, 4))
        else:
            for e in range(4):
                lds_.append("s_nop 0\nbuffer_load_dword v%d, v9, s[16:19], s85 offen sc1" % (BF + 4 * t + e))
    ke = K("tmp")
    if "early4" not in OPT: p4_early(ke)
    ext = []
    grp = []
    for i in ke.ins:
        grp.append(i.text)
        if not (i.op.startswith("s_cmp") or i.op in ("s_add_u32", "s_cselect_b32")): ext.append("\n".join(grp)); grp = []
    if grp: ext.append("\n".join(grp))
    ext4 = []
    if "p3old" not in OPT: ext4, ext = ext, []
    for t in range(NW0, 14): ext += wread(t)
    steps = []
    for n, x in enumerate(lds_):
        inc = ("s84", 4 * OPS) if n < 16 else ("s85", O2S if (n - 16) % 4 < 3 else 13 * O2S)
        steps.append(x.split("\n")[1] + "\ns_add_u32 %s, %s, %d" % (inc[0], inc[0], inc[1]))
        if "rot3" in OPT and n in (3, 7, 11): steps[-1] += "\ns_cmp_ge_u32 s84, s90\ns_cselect_b32 s87, %d, 0\ns_sub_u32 s84, s84, s87" % (64 * OPS)
    fill = {}
    if ext: spread(fill, ext, XP.get("ex0", 3), len(steps) - 1)
    k.extend(weave(steps, fill))
    main = []; fill = {}
    for t in range(18):
        for T in range(6):
            a = vr(ACC + 4 * T, 4)
            main.append("v_mfma_f32_16x16x32_bf16 %s, %s, %s, %s" % (a, wreg(t, T), vr(BF + 4 * t, 4), a if (t or "xinit" in OPT) else "0"))
    for t in range(14, 18): spread(fill, wread(t), 6 + 14 * (t - 14), 6 + 14 * (t - 14) + 11)
    if ext4: spread(fill, ext4, 0, 100)
    if "ab" not in OPT: fill.setdefault(6 * 14 - 1, []).extend(["@waitlds all", "s_barrier"])
    k.extend(weave(main, fill))
    stamp(k, "p3 mm")
    HO, TT = 16, 32
    k("v_mov_b32 v4, 0\nv_mov_b32 v5, 0")
    for T in range(6 if "xinit" not in OPT else 0):
        for j in range(2): k("v_cvt_pk_bf16_f32 v%d, v%d, v%d" % (TT + 2 * T + j, ACC + 4 * T + 2 * j, ACC + 4 * T + 2 * j + 1))
    for T in range(6 if "xinit" not in OPT else 0):
        for j in range(2):
            p = TT + 2 * T + j; a = ACC + 4 * T + 2 * j
            k("v_lshlrev_b32 v%d, 16, v%d\nv_and_b32 v%d, 0xffff0000, v%d" % (a, p, a + 1, p))
    for T in range(6 if "xinit" not in OPT else 0):
        for j in range(2):
            a = ACC + 4 * T + 2 * j
            k("v_dot2c_f32_bf16 v%d, s88, v%d\nv_dot2c_f32_bf16 v%d, s89, v%d" % (a, XR + 2 * T + j, a + 1, XR + 2 * T + j))
    for T in range(6):
        for j in range(2): k("v_cvt_pk_bf16_f32 v%d, v%d, v%d" % (HO + 2 * T + j, ACC + 4 * T + 2 * j, ACC + 4 * T + 2 * j + 1))
        if T & 1:
            k("buffer_store_dwordx4 %s, v13, s[8:11], s%d offen offset:%d sc1 ;#h" % (vr(HO + 2 * T - 2, 4), 91 if T < 4 else 71, 1024 if T == 3 else 0))
    for i in range(12):
        k("v_dot2c_f32_bf16 v4, s86, v%d\nv_dot2c_f32_bf16 v5, v%d, v%d" % (HO + i, HO + i, HO + i))
    for sw in ("v_permlane16_swap_b32", "v_permlane32_swap_b32"):
        k("v_mov_b32 v2, v4\nv_mov_b32 v3, v5")
        k("%s v4, v2\n%s v5, v3" % (sw, sw))
        k("v_add_f32 v4, v4, v2\nv_add_f32 v5, v5, v3")
    k("buffer_store_dwordx2 v[4:5], v14, s[76:79], s74 offen sc1 ;#h")
    stamp(k, "p3 st")

XF4, GA4, UA4 = 16, 160, 192
VG, VM, VW, TA4, TM4, C1, C2, TMP, VS, TS = 224, 228, 232, 236, 240, 242, 244, 246, 254, 255
def p4_early(k):
    TA, TM = TA4, TM4
    if "map16" in OPT:
        k("s_lshr_b32 s23, s2, 4\ns_and_b32 s24, s2, 15")
    else:
        k("s_and_b32 s23, s2, 1\ns_lshl_b32 s23, s23, 3\ns_bfe_u32 s25, s2, 0x30003\ns_add_u32 s23, s23, s25")
        k("s_bfe_u32 s24, s2, 0x20001\ns_lshl_b32 s24, s24, 2\ns_lshr_b32 s25, s2, 6\ns_add_u32 s24, s24, s25")
    k("s_and_b32 s25, s24, 1\ns_mul_i32 s26, s24, 576\ns_lshl_b32 s27, s25, 6\ns_add_u32 s27, s27, s26")
    k("s_xor_b32 s25, s25, 1\ns_lshl_b32 s25, s25, 9\ns_add_u32 s28, s25, s26")
    if "ab" in OPT:
        k("s_lshl_b32 s29, s23, 3\ns_and_b32 s30, s22, 2\ns_lshl_b32 s30, s30, 1\ns_add_u32 s29, s29, s30\ns_and_b32 s30, s22, 1\ns_add_u32 s29, s29, s30")
    else:
        k("s_lshl_b32 s29, s23, 3\ns_lshl_b32 s30, s22, 1\ns_add_u32 s29, s29, s30")
    dma_piece(k, 4, 1, 2)
    k("v_mul_u32_u24 v5, 9216, v2\nv_add_u32 v5, v5, v4")
    for a in range(4): k("v_add_u32 v%d, %d, v5" % (VG + a, a * (8 * 9216 - 1024)))
    k("s_mul_i32 s56, s22, %d\ns_add_u32 s56, s56, s27" % (64 * 9216))
    k("s_mul_i32 s57, s22, %d\ns_add_u32 s57, s57, s27\ns_add_u32 s57, s57, %d" % (8 * 9216, 256 * 9216))
    k("s_lshl_b32 s58, s22, 13\ns_lshl_b32 s59, s22, 10\ns_add_u32 s59, s59, 32768")
    k.srd(40, 4, WB)
    k.srd(44, 6, WB)
    k("s_lshl_b32 s30, s29, 7\ns_mul_i32 s31, s29, 18432")
    if "wdt" in OPT: k.srd(48, 20, WB, WS_WT)
    else: k.srd(48, 36, WB)
    k("s_cmp_lt_u32 s22, 2\ns_cselect_b32 s52, s40, s44\ns_cselect_b32 s53, s41, s45\ns_mov_b32 s54, 0x%x\ns_mov_b32 s55, 0x20000" % WB)
    if "wdt" not in OPT:
        k("v_mul_u32_u24 v5, 1152, v2\nv_add_u32 v5, v5, v4")
        for a in range(4): k("v_add_u32 v%d, %d, v5" % (VW + a, a * (8 * 1152 - 1024)))
    k("v_lshrrev_b32 v2, 2, v1\nv_mul_u32_u24 v5, 9216, v2\nv_bfe_u32 v3, v1, 4, 1\nv_lshlrev_b32 v3, 1, v3\nv_and_b32 v4, 3, v1\nv_xor_b32 v3, v3, v4\nv_lshl_add_u32 v5, v3, 4, v5")
    for a in range(4): k("v_add_u32 v%d, %d, v5" % (VM + a, a * (16 * 9216 - 1024)))
    k("s_mul_i32 s61, s22, 9216\ns_and_b32 s62, s22, 1\ns_mul_i32 s62, s62, %d\ns_add_u32 s62, s62, s28" % (144 * 9216))
    k("s_lshr_b32 s25, s24, 2\ns_and_b32 s26, s24, 3\ns_and_b32 s35, s26, 1\ns_mul_i32 s34, s26, 288")
    k("s_lshl_b32 s67, s35, 5\ns_add_u32 s33, s34, s67\ns_xor_b32 s67, s35, 1\ns_lshl_b32 s67, s67, 8\ns_add_u32 s34, s34, s67")
    if "ownh" in OPT:
        k("s_add_u32 s63, s26, s22\ns_and_b32 s63, s63, 3\ns_and_b32 s67, s24, 12\ns_add_u32 s67, s67, s63\ns_mul_i32 s63, s67, 288\ns_and_b32 s67, s67, 1")
    else:
        k("s_and_b32 s67, s24, 12\ns_add_u32 s67, s67, s22\ns_mul_i32 s63, s67, 288\ns_and_b32 s67, s22, 1")
    k("s_xor_b32 s64, s67, 1\ns_lshl_b32 s64, s64, 8\ns_add_u32 s64, s64, s63\ns_lshl_b32 s67, s67, 5\ns_add_u32 s63, s63, s67")
    if "wdt" in OPT:
        k("s_mul_i32 s67, s26, 9216\ns_mul_i32 s63, s63, 1152\ns_add_u32 s63, s63, s67\ns_mul_i32 s64, s64, 1152\ns_add_u32 s64, s64, s67")
    elif "al" in OPT:
        k("s_lshl_b32 s67, s26, 8\ns_mul_i32 s63, s63, 1152\ns_add_u32 s63, s63, s67\ns_mul_i32 s64, s64, 1152\ns_add_u32 s64, s64, s67")
        k("s_lshl_b32 s67, s22, 3\ns_lshr_b32 s33, s27, 1\ns_add_u32 s33, s33, s67\ns_mul_i32 s33, s33, 1152\ns_add_u32 s33, s33, 1024")
        k("s_lshr_b32 s34, s28, 1\ns_add_u32 s34, s34, s67\ns_mul_i32 s34, s34, 1152\ns_add_u32 s34, s34, 1024")
    else:
        k("s_mul_i32 s67, s26, 288\ns_mul_i32 s63, s63, 1152\ns_add_u32 s63, s63, s67\ns_mul_i32 s64, s64, 1152\ns_add_u32 s64, s64, s67")
        k("v_lshrrev_b32 v2, 1, v1\nv_mul_u32_u24 v2, 1152, v2\nv_and_b32 v3, 1, v1\nv_lshl_add_u32 v2, v3, 4, v2")
        k("s_sub_u32 s60, s34, s67\nv_add_u32 v%d, s60, v2\ns_sub_u32 s60, s33, s67" % VS)
        for a in range(4): k("v_add_u32 v%d, s60, v%d" % (VW + a, VW + a))
    tr_addrs(k, TA, 1, None, 2)
    k("v_lshrrev_b32 v2, 2, v1\nv_lshlrev_b32 v2, 6, v2\nv_and_b32 v3, 3, v1\nv_lshl_add_u32 v2, v3, 3, v2\nv_bfe_u32 v3, v1, 4, 1")
    k("v_lshl_add_u32 v%d, v3, 5, v2\nv_xor_b32 v%d, 32, v%d" % (TM, TM + 1, TM))
    if "wdt" not in OPT: k("v_lshlrev_b32 v%d, 3, v1\nv_add_u32 v%d, 8192, v%d" % (TS, TS, TS))
    k("s_mov_b32 s88, 0x00003f80\ns_mov_b32 s89, 0x3f800000\ns_mov_b32 s65, 0x%x" % f2u(1.0 / D))
    k("s_lshl_b32 s67, s23, 4\ns_add_u32 s66, s67, s24\ns_lshl_b32 s66, s66, 2\ns_add_u32 s66, s66, s22\ns_mul_i32 s66, s66, 18432")
    k("s_and_b32 s68, s24, 12\ns_add_u32 s68, s68, s67\ns_lshl_b32 s68, s68, 2\ns_add_u32 s68, s68, s22\ns_mul_i32 s68, s68, 18432")
    k("s_lshl_b32 s69, s23, 2\ns_add_u32 s69, s69, s22\ns_lshl_b32 s69, s69, 11\ns_add_u32 s69, s69, %d\ns_and_b32 s70, s24, 12\ns_lshl_b32 s70, s70, 7\ns_add_u32 s70, s70, s69" % FH)
    k("s_lshl_b32 s67, s24, 7\ns_add_u32 s69, s69, s67")
    k("s_lshl_b32 s75, s29, 10\ns_add_u32 s75, s75, %d" % F3)
    if "wgt" in OPT:
        k.srd(40, 20, WB, WS_GT)
        k("s_lshr_b32 s37, s24, 1\ns_mul_i32 s37, s37, 9\ns_and_b32 s67, s24, 1\ns_mul_i32 s67, s67, 5\ns_add_u32 s37, s37, s67\ns_mul_i32 s37, s37, 73728\ns_add_u32 s37, s37, s61")
        k("v_lshlrev_b32 v%d, 4, v1\nv_mov_b32 v%d, v%d" % (TS, VS, TS))

def lag_plan():
    U0 = XP.get("u0", 5)
    seq = [(T, u) for u in range(U0, 9) for T in (0, 1, 2, 3, 4, 5, 8)] + [(T, u) for T in (6, 7) for u in range(U0, 9)]
    return {U0 + c: seq[9 * c:9 * c + 9] for c in range(9 - U0)}

def p4(k):
    SLOT = 36864
    LAG = "lag" in OPT; U0 = XP.get("u0", 5); NBH = max(4, 9 - U0)
    TB = [80, 81, 82, 83, 84]; TB8 = [4, 5, 6, 7, 36]; RP = [VW, VW + 1, VW + 2, VW + 3, VS]; RL = TS
    k("L_p4:")
    XF, GA, UA, TA, TM = XF4, GA4, UA4, TA4, TM4
    AF, HF = 0, 72
    stages = []
    for B in range(4): stages += [("G", B, 0), ("G", B, 1), ("U", B, 0), ("U", B, 1)]
    stages += [("M", 4, 0), ("M", 4, 1)]
    stages += [("D", c, 0) for c in range(9)]
    NS = len(stages)
    def dma(n):
        kind, B, kh = stages[n]
        sl = (n % 4) * SLOT
        o = []
        if kind == "G" and "wgt" in OPT:
            for g in range(3):
                pre = ["s_add_u32 m0, s61, %d" % (sl + 4096 * g), "s_add_u32 s60, s37, %d" % (B * 73728 + kh * 36864 + 4096 * g)]
                for a in range(4 if g < 2 else 1):
                    o.append(pre + ["buffer_load_dwordx4 v%d, s[40:43], s60 offen offset:%d sc1 lds ;#s%d" % (VS if n < 2 else 9, 1024 * a, n)]); pre = []
        elif kind in "GU":
            srd = "s[40:43]" if kind == "G" else "s[44:47]"
            off = 128 * B + kh * 288 * 9216
            for g in range(2):
                pre = ["s_add_u32 m0, s58, %d" % (sl + 4096 * g), "s_add_u32 s60, s56, %d" % (off + g * 32 * 9216)]
                for a in range(4):
                    o.append(pre + ["buffer_load_dwordx4 v%d, %s, s60 offen offset:%d lds ;#s%d" % (VG + a, srd, 1024 * a, n)]); pre = []
            o.append(["s_add_u32 m0, s59, %d" % sl, "s_add_u32 s60, s57, %d" % off, "buffer_load_dwordx4 v%d, %s, s60 offen lds ;#s%d" % (VG, srd, n)])
        elif kind == "M":
            for g in range(3):
                pre = ["s_add_u32 m0, s61, %d" % (sl + 4096 * g), "s_add_u32 s60, s62, %d" % (kh * 288 * 9216 + g * 64 * 9216)]
                for a in range(4 if g < 2 else 1):
                    o.append(pre + ["buffer_load_dwordx4 v%d, s[52:55], s60 offen offset:%d lds ;#s%d" % (VM + a, 1024 * a, n)]); pre = []
        elif LAG and B >= U0:
            for p_, (T, u) in enumerate(lag_plan()[B]):
                q, e = (T >> 1, T & 1) if T < 8 else (4, 0)
                pre = ["s_add_u32 m0, s61, %d" % (sl + 4096 * (p_ >> 2))] if p_ % 4 == 0 else []
                base, off = (TB[q], u * 36864) if u < 8 else (TB8[q], 4096)
                o.append(pre + ["s_add_u32 s60, s%d, %d" % (base, off + 1024 * e - 1024 * (p_ & 3)),
                                "buffer_load_dwordx4 v9, s[48:51], s60 offen offset:%d sc1 lds ;#s%d" % (1024 * (p_ & 3), n)])
        elif "wdt" in OPT and "split" in OPT and B >= 7:
            for g in range(2):
                base, off = (("s63", 7 * 36864), ("s64", 0))[g]
                pre = ["s_lshl_b32 s60, s22, 12", "s_add_u32 m0, s60, %d" % (sl + 16384 * g), "s_lshl_b32 s60, s35, 10", "s_add_u32 s60, s60, %s" % base, "s_add_u32 s60, s60, %d" % (off + 4096 * (B - 7))]
                for a in range(4):
                    o.append(pre + ["buffer_load_dwordx4 v9, s[48:51], s60 offen offset:%d sc1 lds ;#s%d" % (1024 * a, n)]); pre = []
            base, off = (("s63", 7 * 36864), ("s64", 0))[B - 7]
            o.append(["s_add_u32 m0, s59, %d" % sl, "s_xor_b32 s60, s35, 1", "s_lshl_b32 s60, s60, 13", "s_add_u32 s60, s60, %s" % base, "s_add_u32 s60, s60, %d" % off,
                      "buffer_load_dwordx4 v9, s[48:51], s60 offen sc1 lds ;#s%d" % n])
        elif "wdt" in OPT:
            base, off = ("s63", B * 36864) if B < 8 else ("s64", 0)
            for g in range(3):
                pre = ["s_add_u32 m0, s61, %d" % (sl + 4096 * g), "s_add_u32 s60, %s, %d" % (base, off + 4096 * g)]
                for a in range(4 if g < 2 else 1):
                    o.append(pre + ["buffer_load_dwordx4 v9, s[48:51], s60 offen offset:%d sc1 lds ;#s%d" % (1024 * a, n)]); pre = []
        elif "al" in OPT:
            base, base2, off = ("s63", "s33", B * 32 * 1152) if B < 8 else ("s64", "s34", 0)
            for g in range(2):
                pre = ["s_add_u32 m0, s58, %d" % (sl + 4096 * g), "s_add_u32 s60, %s, %d" % (base, off + 128 * g)]
                for a in range(4):
                    o.append(pre + ["buffer_load_dwordx4 v%d, s[48:51], s60 offen offset:%d lds ;#s%d" % (VW + a, 1024 * a, n)]); pre = []
            o.append(["s_add_u32 m0, s59, %d" % sl, "s_add_u32 s60, %s, %d" % (base2, off), "buffer_load_dwordx4 v%d, s[48:51], s60 offen lds ;#s%d" % (VW, n)])
        elif "split" in OPT and B >= 7:
            for g in range(2):
                base, off = (("s63", 7 * 32 * 1152), ("s64", 0))[g]
                pre = ["s_lshl_b32 s60, s22, 12", "s_add_u32 m0, s60, %d" % (sl + 16384 * g), "s_add_u32 s60, %s, %d" % (base, off + 128 * (B - 7))]
                for a in range(4):
                    o.append(pre + ["buffer_load_dwordx4 v%d, s[48:51], s60 offen offset:%d lds ;#s%d" % (VW + a, 1024 * a, n)]); pre = []
            base, off = (("s63", 7 * 32 * 1152), ("s64", 0))[B - 7]
            o.append(["s_add_u32 m0, s59, %d" % sl, "s_add_u32 s60, %s, %d" % (base, off), "buffer_load_dwordx4 v%d, s[48:51], s60 offen lds ;#s%d" % (VS, n)])
        else:
            base, off = ("s63", B * 32 * 1152) if B < 8 else ("s64", 0)
            for g in range(2):
                pre = ["s_add_u32 m0, s61, %d" % (sl + 4096 * g), "s_add_u32 s60, %s, %d" % (base, off + 128 * g)]
                for a in range(4):
                    o.append(pre + ["buffer_load_dwordx4 v%d, s[48:51], s60 offen offset:%d lds ;#s%d" % (VW + a, 1024 * a, n)]); pre = []
            o.append(["s_add_u32 m0, s61, %d" % (sl + 8192), "s_add_u32 s60, %s, %d" % (base, off),
                      "buffer_load_dwordx4 v%d, s[48:51], s60 offen lds ;#s%d" % (VS, n)])
        return o
    NPF = XP.get("npf", 2)
    ST = UA
    def center(r, t):
        x = XF + 72 * r + 4 * t
        o = []
        for c in range(4):
            o.append("v_dot2_f32_bf16 v%d, v%d, s88, v%d" % (TMP + 2 * c, x + c, 10 + r))
            o.append("v_dot2_f32_bf16 v%d, v%d, s89, v%d" % (TMP + 2 * c + 1, x + c, 10 + r))
        for c in range(4):
            o.append("v_cvt_pk_bf16_f32 v%d, v%d, v%d" % (x + c, TMP + 2 * c, TMP + 2 * c + 1))
        return o
    if "ab" in OPT:
        dm = [x for n in range(NPF) for x in dma(n)]
        early = []
        for n in range(NPF, 4): early += dma(n)
        NPRE = 18
        k("v_and_b32 v15, 7, v1\nv_min_u32 v15, 5, v15\nv_lshlrev_b32 v15, 7, v15\nv_mov_b32 v3, v250")
        k.extend(poll(2, 15, "s75"))
        k("v_lshl_add_u32 v8, v7, 11, v6\nv_lshlrev_b32 v8, 3, v8\nv_lshlrev_b32 v9, 4, v1\nv_add_u32 v12, 0x10000, v8")
        k.srd(8, 20, ST_BYTES, WS_ST)
        k.srd(12, 20, H_BYTES, WS_H)
        k.srd(16, 38, X_BYTES)
        assert "wdt" in OPT
        k("s_waitcnt vmcnt(0)\nv_mov_b32 v5, s3\nbuffer_store_dword v5, v250, s[96:99], s101 offen sc1")
        stamp(k, "p3 fl")
        k.extend(check("p4a", 2, 15, "s75"))
        def loads(r):
            o = [["buffer_load_dwordx2 %s, v%d, s[8:11], s30 offen offset:%d sc1" % (vr(ST + 6 * r + 2 * j, 2), (8, 12)[j], 256 * r)] for j in range(2)]
            for t in range(18):
                o.append((["s_add_u32 s32, s31, %d" % (r * 36864 + t // 4 * 4096)] if t % 4 == 0 else []) +
                         ["buffer_load_dwordx4 %s, v9, s[12:15], s32 offen offset:%d sc1" % (vr(XF + 72 * r + 4 * t, 4), (t % 4) * 1024)])
            return o
        def stats(r):
            b = ST + 6 * r
            k("v_add_f32 v%d, v%d, v%d\nv_add_f32 v%d, v%d, v%d" % (b, b, b + 2, b + 1, b + 1, b + 3))
            for sw in ("v_permlane16_swap_b32", "v_permlane32_swap_b32"):
                k("v_mov_b32 v%d, v%d\nv_mov_b32 v%d, v%d" % (b + 2, b, b + 3, b + 1))
                k("%s v%d, v%d\n%s v%d, v%d" % (sw, b, b + 2, sw, b + 1, b + 3))
                k("v_add_f32 v%d, v%d, v%d\nv_add_f32 v%d, v%d, v%d" % (b, b, b + 2, b + 1, b + 1, b + 3))
            k("v_mul_f32 v%d, s65, v%d" % (b, b))
            k("v_mul_f32 v%d, v%d, v%d" % (b + 2, b, b))
            k("v_fma_f32 v%d, v%d, s65, -v%d" % (b + 1, b + 1, b + 2))
            k("v_max_f32 v%d, 0, v%d" % (b + 1, b + 1))
            bf16_round(k, b, b)
            k("v_sub_f32 v%d, 0, v%d" % (10 + r, b))
            bf16_round(k, b + 1, b + 1)
            k("v_add_f32 v%d, 0x%x, v%d" % (b + 1, f2u(1e-5), b + 1))
            bf16_round(k, b + 1, b + 1)
            k("v_sqrt_f32 v%d, v%d" % (b + 1, b + 1))
            bf16_round(k, b + 1, b + 1)
            k("v_mul_f32 v%d, v%d, v%d" % (C2 + r, b + 1, b + 1))
            k("v_rcp_f32 v%d, v%d" % (b + 1, b + 1))
            k("v_mul_f32 v%d, 0x%x, v%d" % (C1 + r, f2u(-LOG2E), b + 1))
        for x in loads(0): k.extend(x)
        k("s_add_u32 s75, s75, 2048")
        k("@waitlds all\ns_barrier")
        touch_chain(k, "L_c4", 22)
        stats(0)
        PB_ = XP.get("pb", 12)
        for t in range(18):
            if dm: k.extend(dm.pop(0))
            if t == PB_: k.extend(poll(13, 15, "s75"))
            k.extend(center(0, t))
        assert not dm
        stamp(k, "p4 setup")
        k("s_waitcnt vmcnt(0)")
        k.extend(check("p4", 13, 15, "s75"))
        stamp(k, "p4 go")
        l1 = loads(1)
        NX1 = XP.get("nx1", 10)
        for x in l1[:NX1]: k.extend(x)
        l1 = l1[NX1:]
        k("v_and_b32 v12, 3, v1\nv_lshlrev_b32 v12, 7, v12")
        k.srd(8, 20, HB_BYTES, WS_HB)
        stats(1)
        for t in range(18):
            if l1: k.extend(l1.pop(0))
            k.extend(center(1, t))
    else:
        NPF = XP.get("npf", 2)
        dm = [x for n in range(NPF) for x in dma(n)]
        NB4 = XP.get("nb4", 4)
        for x in dm[:NB4]: k.extend(x)
        k("s_cmp_ge_u32 s2, 192\ns_cbranch_scc1 L_p4nf")
        k.extend(flag("h", 5, 250, "s101"))
        k("L_p4nf:")
        stamp(k, "p3 fl")
        for x in dm[NB4:]: k.extend(x)
        k("v_lshl_add_u32 v8, v7, 11, v6\nv_lshlrev_b32 v8, 3, v8\nv_lshlrev_b32 v9, 4, v1")
        k("v_add_u32 v12, 0x10000, v8\nv_mov_b32 v3, v250")
        k.srd(8, 20, ST_BYTES, WS_ST)
        k.srd(12, 20, H_BYTES, WS_H)
        k.srd(16, 38, X_BYTES)
        if "mcen" in OPT:
            k("v_and_b32 v5, 1, v6\nv_lshlrev_b32 v5, 4, v5\nv_mov_b32 v2, 0x3f80\nv_lshlrev_b32 v5, v5, v2\nv_lshrrev_b32 v2, 2, v6\nv_cmp_eq_u32 vcc, v2, v7\nv_cndmask_b32 v5, 0, v5, vcc")
            k("v_bfe_u32 v2, v6, 1, 1")
            for q in range(2): k("v_cmp_eq_u32 vcc, %d, v2\nv_cndmask_b32 v%d, 0, v5, vcc" % (q, UA + 26 + q))
            for q in (0, 1, 4, 5): k("v_mov_b32 v%d, 0" % (UA + 24 + q))
        k("v_and_b32 v14, 7, v1\nv_min_u32 v14, 5, v14\nv_lshlrev_b32 v14, 7, v14\nv_bfe_u32 v15, v1, 3, %d\nv_lshl_add_u32 v14, v15, 10, v14" % (3 if "poll4" in OPT else 1))
        if "earlypoll" in OPT: k.extend(poll(13, 14, "s75"))
        if "c4early" not in OPT: touch_chain(k, "L_c4", 22)
        if "poll4" in OPT:
            stamp(k, "p4 setup")
            k("s_cmp_lg_u32 s22, 0\ns_cbranch_scc1 L_p4w")
            k.extend(poll(13, 14, "s75")); k.extend(check("p4", 13, 14, "s75"))
            k("L_p4w:\ns_barrier")
        else:
            if "earlypoll" not in OPT: k.extend(poll(13, 14, "s75"))
            stamp(k, "p4 setup")
            k("s_waitcnt vmcnt(0)")
            k.extend(check("p4", 13, 14, "s75", ptmp=15))
        if "wdt" in OPT:
            k("s_cmp_lt_u32 s2, 192\ns_cbranch_scc1 L_nowf\ns_waitcnt vmcnt(0)\nv_mov_b32 v5, s3\nbuffer_store_dword v5, v250, s[96:99], s101 offen sc1\nL_nowf:\n@reset")
        stamp(k, "p4 go")
        ST = UA
        for r in range(2):
            for j in range(2):
                k("buffer_load_dwordx2 %s, v%d, s[8:11], s30 offen offset:%d sc1" % (vr(ST + 6 * r + 2 * j, 2), (8, 12)[j], 128 * r))
        def xload(r, t):
            return ["s_add_u32 s32, s31, %d" % ((r * 18 + t) // 4 * 4096),
                    "buffer_load_dwordx4 %s, v9, s[12:15], s32 offen offset:%d sc1" % (vr(XF + 72 * r + 4 * t, 4), ((r * 18 + t) % 4) * 1024)]
        NX0 = XP.get("nx0", 9)
        for t in range(NX0):
            for r in range(2): k.extend(xload(r, t))
        if XP.get("pf4", 0):
            k("s_lshl_b32 s67, s2, 2\ns_add_u32 s67, s67, s22\ns_mul_i32 s32, s67, 5184\nv_lshlrev_b32 v15, 7, v1\nv_mov_b32 v14, 0x%x" % BIG)
            k("v_cmp_gt_u32 vcc, 41, v1\nv_cndmask_b32 v15, v14, v15, vcc\ns_and_b32 s32, s32, 0xffffff80")
            k("v_mul_u32_u24 v2, 13, v1\nv_lshrrev_b32 v2, 6, v2\nv_mul_u32_u24 v4, 5, v2\nv_sub_u32 v4, v1, v4")
            k("v_cmp_lt_u32 vcc, 2, v4\nv_addc_co_u32 v5, vcc, v4, 2, vcc\nv_cmp_lt_u32 vcc, 2, v4\nv_addc_co_u32 v5, vcc, v5, 0, vcc")
            k("v_mul_u32_u24 v2, 9, v2\nv_add_u32 v2, v2, v5\nv_lshlrev_b32 v2, 7, v2\nv_cmp_gt_u32 vcc, 45, v1\nv_cndmask_b32 v2, v14, v2, vcc")
            k("s_lshr_b32 s60, s2, 0\ns_lshl_b32 s60, s60, 1\ns_and_b32 s67, s22, 1\ns_add_u32 s60, s60, s67\ns_mul_i32 s60, s60, %d" % (9 * 9 * 128))
            k("buffer_load_dword a200, v2, s[52:55], s60 offen\nbuffer_load_dword a201, v15, s[48:51], s32 offen")
        k("v_and_b32 v12, 3, v1\nv_lshlrev_b32 v12, 7, v12")
        k.srd(8, 20, HB_BYTES, WS_HB)
        for r in range(2):
            b = ST + 6 * r
            k("v_add_f32 v%d, v%d, v%d\nv_add_f32 v%d, v%d, v%d" % (b, b, b + 2, b + 1, b + 1, b + 3))
            for sw in ("v_permlane16_swap_b32", "v_permlane32_swap_b32"):
                k("v_mov_b32 v%d, v%d\nv_mov_b32 v%d, v%d" % (b + 2, b, b + 3, b + 1))
                k("%s v%d, v%d\n%s v%d, v%d" % (sw, b, b + 2, sw, b + 1, b + 3))
                k("v_add_f32 v%d, v%d, v%d\nv_add_f32 v%d, v%d, v%d" % (b, b, b + 2, b + 1, b + 1, b + 3))
            k("v_mul_f32 v%d, s65, v%d" % (b, b))
            k("v_mul_f32 v%d, v%d, v%d" % (b + 2, b, b))
            k("v_fma_f32 v%d, v%d, s65, -v%d" % (b + 1, b + 1, b + 2))
            k("v_max_f32 v%d, 0, v%d" % (b + 1, b + 1))
            bf16_round(k, b, b)
            k("v_sub_f32 v%d, 0, v%d" % (10 + r, b))
            bf16_round(k, b + 1, b + 1)
            k("v_add_f32 v%d, 0x%x, v%d" % (b + 1, f2u(1e-5), b + 1))
            bf16_round(k, b + 1, b + 1)
            k("v_sqrt_f32 v%d, v%d" % (b + 1, b + 1))
            bf16_round(k, b + 1, b + 1)
            k("v_mul_f32 v%d, v%d, v%d" % (C2 + r, b + 1, b + 1))
            k("v_rcp_f32 v%d, v%d" % (b + 1, b + 1))
            k("v_mul_f32 v%d, 0x%x, v%d" % (C1 + r, f2u(-LOG2E), b + 1))
        def center(r, t):
            x = XF + 72 * r + 4 * t
            o = []
            for c in range(4):
                o.append("v_dot2_f32_bf16 v%d, v%d, s88, v%d" % (TMP + 2 * c, x + c, 10 + r))
                o.append("v_dot2_f32_bf16 v%d, v%d, s89, v%d" % (TMP + 2 * c + 1, x + c, 10 + r))
            for c in range(4):
                o.append("v_cvt_pk_bf16_f32 v%d, v%d, v%d" % (x + c, TMP + 2 * c, TMP + 2 * c + 1))
            return o
        NPRE = XP["npre"]
        assert NX0 + NPRE >= 18 or "mcen" in OPT
        early = []
        for n in range(NPF, 4): early += dma(n)
        E0 = XP.get("e0", 99)
        if "mcen" in OPT:
            SE, CM, DT = UA + 24, UA + 16, UA
            for r in range(2):
                for q in range(4): k("v_mov_b32 v%d, v%d" % (CM + 4 * r + q, 10 + r))
            seq = [(r, t) for t in range(18) for r in range(2)]
            def mm(n):
                r, t = seq[n]; x = XF + 72 * r + 4 * t; d = DT + 8 * (n % 2)
                return ["v_mfma_f32_16x16x32_bf16 %s, %s, %s, %s" % (vr(d + 4 * e, 4), vr(SE + 2 - 2 * e, 4), vr(x, 4), vr(CM + 4 * r, 4)) for e in range(2)]
            def pk(n):
                r, t = seq[n]; x = XF + 72 * r + 4 * t; d = DT + 8 * (n % 2)
                return ["v_cvt_pk_bf16_f32 v%d, v%d, v%d" % (x + c, d + 2 * c, d + 2 * c + 1) for c in range(4)]
            k.extend(mm(0))
            rest = [xload(r, t) for t in range(NX0, 18) for r in range(2)]
            per = -(-len(rest) // (2 * NPRE))
            for n in range(2 * NPRE):
                for _ in range(per):
                    if rest: k.extend(rest.pop(0))
                if n + 1 < 2 * NPRE: k.extend(mm(n + 1))
                k.extend(pk(n))
            assert not rest
            MCEN = [(mm(n), pk(n)) for n in range(2 * NPRE, 36)]
        for t in range(NPRE if "mcen" not in OPT else 0):
            for r in range(2):
                if NX0 + t < 18: k.extend(xload(r, NX0 + t))
                elif t >= E0:
                    for _ in range(XP.get("en", 1)):
                        if early: k.extend(early.pop(0))
                k.extend(center(r, t))
    stamp(k, "p4 x")

    cur = {"TA": 0, "TM": 0, "TS": 0, "RL": 0}
    def shift(name, regs, sl):
        pre = []
        if cur[name] != sl:
            d = (sl - cur[name]) * SLOT
            for q in regs:
                pre.append("v_add_u32 v%d, %d, v%d" % (q, d, q) if d > 0 else "v_subrev_u32 v%d, %d, v%d" % (q, -d, q))
            cur[name] = sl
        return pre
    tiles = []
    main = []
    DA = XF
    OWN = "ownh" in OPT; AL = "al" in OPT; SPL = "split" in OPT; WDT = "wdt" in OPT; fin = {}
    HOWN = 144
    if LAG: SPL = False
    def hbuf(c):
        if LAG: return [64, 88, 112, 208, 1140, 1164, 1188][c % NBH]
        return HF + 24 * (c % 3) - 8 if OWN else HF + 32 * (c % 3)
    def hreg(x): return vr(x - 1000, 4) if x >= 1000 else ar(x, 4)
    fu = {}
    nt = 0
    for n in range(NS):
        kind, B, kh = stages[n]
        torder = ([8, 0, 1, 2, 3, 4, 5, 6, 7] if (AL and B > 0) else list(range(9))) if kind == "D" else list(range(4))
        uu = [B] * len(torder)
        if SPL and kind == "D" and B == 7: torder = [0, 0, 1, 1, 2, 2, 3, 3, 8]; uu = [7, 8] * 4 + [7]
        if SPL and kind == "D" and B == 8: torder = [8, 4, 4, 5, 5, 6, 6, 7, 7]; uu = [8] + [7, 8] * 4
        if LAG and kind == "D" and B >= U0: torder = [x[0] for x in lag_plan()[B]]; uu = [x[1] for x in lag_plan()[B]]
        for pos, T in enumerate(torder):
            Bq = B
            if kind == "D": B = uu[pos]
            if kind == "D": fin[T] = len(main); fu.setdefault(B, len(main))
            if kind == "D": nf = 4; f0 = AF + 16 * ((Bq * 9 + pos) % 4)
            else: nf = 9; f0 = AF + 36 * (nt & 1)
            tiles.append(dict(n=n, T=T, g0=len(main), nf=nf, f0=f0, id=nt, pos=pos, u=B)); nt += 1
            if AL and kind == "D" and T == 8:
                for E in range(4):
                    for r in range(2):
                        a = vr(DA + 64 + 8 * E + 4 * r, 4)
                        main.append("v_mfma_f32_16x16x32_bf16 %s, %s, %s, %s" % (a, ar(f0 + 4 * E, 4), ar(HOWN + 8 * B + 4 * r, 4), "0" if B == 0 else a))
                continue
            for r in range(2):
                if kind == "G": a = GA + 8 * T + 4 * r
                elif kind == "U": a = UA + 8 * T + 4 * r
                elif kind == "M": a = (GA if T < 2 else UA) + 8 * (T & 1) + 4 * r
                else: a = DA + 8 * T + 4 * r
                a = vr(a, 4)
                for jj in range(nf):
                    j = nf - 1 - jj if (r == 1 and "snake" in OPT) else jj
                    if kind == "D":
                        b = ar(HOWN + 8 * B + 4 * r, 4) if (OWN and j == 0) else hreg(hbuf(B) + 8 * j + 4 * r)
                        first = (jj == 0 and B == 0)
                    else: b = vr(XF + 72 * r + 4 * (9 * kh + j), 4); first = (jj == 0 and kh == 0)
                    main.append("v_mfma_f32_16x16x32_bf16 %s, %s, %s, %s" % (a, ar(f0 + 4 * j, 4), b, "0" if first else a))
            B = Bq
    NM = len(main)
    fill = {}
    load = [0.0] * (NM + 1)
    def put(g, items, cost=None):
        if isinstance(items, str): items = [items]
        fill.setdefault(g, []).extend(items)
        load[max(g, 0)] += len([x for x in items if not x.startswith("@") and not x.endswith(":")]) if cost is None else cost
    def frag_reads(t):
        n, T = t["n"], t["T"]; kind = stages[n][0]; sl = n % 4
        if kind == "G" and "wgt" in OPT:
            pre = shift("RL", [RL], sl)
            return pre, ["ds_read_b128 %s, v%d offset:%d ;#f%d%s" % (ar(t["f0"] + 4 * j, 4), RL, j * 4096 + T * 1024, t["id"], "a" if j < 4 else "b") for j in range(9)]
        if kind == "D" and LAG:
            if n < 18 + U0: pre = shift("TS", RP, sl)
            else: pre = shift("RL", [RL], sl)
            o = []
            for j in range(4):
                if n < 18 + U0: a, off = (RP[T >> 1], j * 9216 + (T & 1) * 1024) if T < 8 else (RP[4], j * 9216)
                else: a, off = RL, j * 9216 + t["pos"] * 1024
                o.append("ds_read_b128 %s, v%d offset:%d ;#f%da" % (ar(t["f0"] + 4 * j, 4), a, off, t["id"]))
            return pre, o
        if kind == "D" and WDT:
            pre = shift("TS", [VW, VW + 1, VW + 2], sl)
            o = []
            for j in range(4):
                if SPL and n >= 25: a, off = (VW, (4 * (t["u"] - 7) + j) * 4096 + (T & 3) * 1024) if T < 8 else (VW, 32768 + j * 1024)
                else: a, off = (VW + 1, j * 9216 + T * 1024) if T < 8 else (VW + 2, j * 9216)
                o.append("ds_read_b128 %s, v%d offset:%d ;#f%da" % (ar(t["f0"] + 4 * j, 4), a, off, t["id"]))
            return pre, o
        if kind == "M": pre = shift("TM", [TM, TM + 1], sl)
        elif kind == "D" and T == 8 and not AL: pre = shift("TS", [TS], sl)
        else: pre = shift("TA", [TA + q for q in range(4)], sl)
        o = []
        for j in range(t["nf"]):
            for h in range(2):
                if kind == "M": a, off = TM + (T & 1), (T >> 1) * 18432 + j * 2048 + h * 1024
                elif kind == "D" and AL: a, off = (TA + (T & 3), j * 8192 + (T >> 2) * 4096 + h * 2048) if T < 8 else (TA + j, 32768 + h * 2048)
                elif kind == "D" and SPL and n >= 25:
                    a, off = (TA + (T & 3), (4 * (t["u"] - 7) + j) * 4096 + h * 2048) if T < 8 else (TS, 24576 + j * 1024 + h * 512)
                elif kind == "D": a, off = (TA + (T & 3), j * 9216 + (T >> 2) * 4096 + h * 2048) if T < 8 else (TS, j * 9216 + h * 512)
                else: a, off = TA + T, j * 4096 + h * 2048
                o.append("ds_read_b64_tr_b16 %s, v%d offset:%d ;#f%d%s" % (ar(t["f0"] + 4 * j + 2 * h, 2), a, off, t["id"], "a" if (j < 4) else "b"))
        return pre, o
    pre, o = frag_reads(tiles[0])
    fill[-1] = ["s_barrier"] + pre + o
    first_d = [i for i, t in enumerate(tiles) if stages[t["n"]][0] == "D"][0]
    bar_gap = {}
    for i, t in enumerate(tiles):
        g0 = t["g0"]; kind = stages[t["n"]][0]
        put(g0 - 1, "@waitlds f%da" % t["id"], 1)
        if kind != "D":
            if t["T"] < 3: put(g0 + 3, "@waitlds f%db" % t["id"], 1)
            nxt = [i + 1] if i + 1 < first_d else [i + 1, i + 2]
            span = 16
        else:
            nxt = [i + 2] if i + 2 < len(tiles) else []
            span = 6
        if nxt and tiles[nxt[0]]["n"] != t["n"] and tiles[nxt[0]]["pos"] == 0:
            ex = ["s_memtime s[94:95]", "s_waitcnt lgkmcnt(0)", "v_writelane_b32 v0, s94, %d" % (32 + t["n"])] if "st3" in OPT else []
            put(g0 - 1, ["@waitlds all", "@waitvm s%d" % (t["n"] + 1), "s_barrier"] + ex, 2)
            bar_gap[t["n"]] = g0
        rd = []
        for q in nxt:
            pre, o = frag_reads(tiles[q]); rd += [pre + o[:1]] + [[x] for x in o[1:]]
        for q, x in enumerate(rd): put(g0 + (q * span) // len(rd), x)
    def place(gs, lo, hi):
        for i, x in enumerate(gs): put(lo + (i * (hi - lo + 1)) // len(gs), x)
    if early: place(early, XP.get("ea0", 1), 52)
    for n in range(NS - 4): place(dma(n + 4), bar_gap[n] + 2, bar_gap[n] + 52)
    work = []
    if "mcen" in OPT and MCEN:
        lo_, hi_ = XP.get("mc0", 8), XP.get("mc1", 66)
        for n, (a_, b_) in enumerate(MCEN):
            g = lo_ + (n * (hi_ - lo_)) // len(MCEN)
            g = g - (g % 9) + 8 if False else g
            put(g, a_, 4); put(g + 2, b_[:2]); put(g + 3, b_[2:])
    for t in range(NPRE, 18 if "mcen" not in OPT else 0):
        for r in range(2):
            work.append(dict(e=0, dl=72 + 9 * r + (t - 9) - 3 if t >= 9 else 0, ops=[(x, 1.3) for x in center(r, t)], key=("x", t, r), hard=True))
    def done_gap(n, T, r): return n * 72 + T * 18 + 9 * r + 8
    for B in range(5):
        if B < 4: nG, nU, nt_, u0 = 4 * B + 1, 4 * B + 3, 4, 2 * B
        else: nG, nU, nt_, u0 = 17, 17, 2, 8
        nxt = nU + 1
        for T in range(nt_):
            for r in range(2):
                g = GA + 8 * T + 4 * r; u = UA + 8 * T + 4 * r
                e = done_gap(nG, T, r) + 3
                eu = done_gap(nU, T if B < 4 else T + 2, r) + 3
                if B < 3: dl = (nxt * 4 + T) * 18 + 9 * r - 2
                elif B == 3: dl = (nxt * 4 + T) * 18 + 9 * r - 2 if T < 2 else (nxt * 4 + 2) * 18 - 2
                else: dl = eu + 6
                t0 = TMP
                ops = []
                PK = XP.get("pk", 0); pc = XP.get("pkc", 15) / 10.0
                if PK & 1:
                    for b in (0, 2): ops.append(("v_pk_mul_f32 %s, %s, %s op_sel:[0,%d] op_sel_hi:[1,%d]" % (vr(t0 + b, 2), vr(g + b, 2), vr(C1, 2), r, r), pc))
                else:
                    for b in range(4): ops.append(("v_mul_f32 v%d, v%d, v%d" % (t0 + b, C1 + r, g + b), 1))
                for b in range(4): ops.append(("v_exp_f32 v%d, v%d" % (t0 + b, t0 + b), 2))
                if PK & 2:
                    for b in (0, 2): ops.append(("v_pk_fma_f32 %s, %s, %s, %s op_sel:[0,%d,%d] op_sel_hi:[1,%d,%d]" % (vr(t0 + b, 2), vr(t0 + b, 2), vr(C2, 2), vr(C2, 2), r, r, r, r), pc))
                else:
                    for b in range(4): ops.append(("v_fma_f32 v%d, v%d, v%d, v%d" % (t0 + b, t0 + b, C2 + r, C2 + r), 1))
                for b in range(4): ops.append(("v_rcp_f32 v%d, v%d" % (t0 + b, t0 + b), 2))
                if PK & 4:
                    for b in (0, 2): ops.append(("v_pk_mul_f32 %s, %s, %s" % (vr(g + b, 2), vr(g + b, 2), vr(t0 + b, 2)), pc))
                else:
                    for b in range(4): ops.append(("v_mul_f32 v%d, v%d, v%d" % (g + b, g + b, t0 + b), 1))
                work.append(dict(e=e, dl=max(eu - 1, e + 8) if B < 4 else eu, ops=ops, key=("s", B, T, r)))
                ops = [("v_mul_f32 v%d, v%d, v%d" % (u + b, u + b, g + b), 1) for b in range(4)]
                if PK & 8: ops = [("v_pk_mul_f32 %s, %s, %s" % (vr(u + b, 2), vr(u + b, 2), vr(g + b, 2)), pc) for b in (0, 2)]
                work.append(dict(e=eu, dl=dl, ops=ops, key=("m", B, T, r), after=[("s", B, T, r)], hard=True))
                ue = UA + 8 * (T & ~1) + 4 * r
                ops = [("v_cvt_pk_bf16_f32 v%d, v%d, v%d" % (ue + 2 * (T & 1) + j, u + 2 * j, u + 2 * j + 1), 1) for j in range(2)]
                if OWN: ops += [("v_accvgpr_write_b32 a%d, v%d" % (HOWN + 8 * (u0 + (T >> 1)) + 4 * r + 2 * (T & 1) + j, ue + 2 * (T & 1) + j), 1) for j in range(2)]
                aft = [("m", B, T, r)]
                if T & 1:
                    aft.append(("c", B, T - 1, r))
                    ops.append(("s_add_u32 s67, s66, %d\nbuffer_store_dwordx4 %s, v9, s[8:11], s67 offen sc1 ;#h%d" % (((u0 + (T >> 1)) * 2 + r) * 1024, vr(ue, 4), B), 2))
                if B < 3: dl2 = (nxt + 1) * 72 + 10 + 8 * T + 4 * r
                elif B == 3: dl2 = (nxt * 4 + 2) * 18 - 4
                else: dl2 = eu + 10
                work.append(dict(e=eu, dl=dl2, ops=ops, key=("c", B, T, r), after=aft, hard=True))
    if "pfA" in OPT:
        NP = XP.get("pfn4", 3); per = -(-41 // NP)
        put(72 + 5, ["s_lshl_b32 s32, s2, 2", "s_add_u32 s32, s32, s22", "s_mul_i32 s32, s32, 5184", "s_and_b32 s32, s32, 0xffffff80",
                     "v_lshlrev_b32 v15, 7, v1", "v_mov_b32 v14, 0x%x" % BIG, "v_cmp_gt_u32 vcc, %d, v1" % per, "s_nop 1", "v_cndmask_b32 v15, v14, v15, vcc"])
        for q in range(NP):
            put(bar_gap[XP.get("pf0", 2) + q * XP.get("pfd4", 2)] + XP.get("pfg", 54), ["buffer_load_dword a%d, v15, s[48:51], s32 offen" % (200 + q), "s_add_u32 s32, s32, %d" % (per * 128)])
    FLG = 13
    def hloads(c):
        o = []
        for a in range(1 if OWN else 0, 4):
            o.append(["s_add_u32 s27, %s, %d" % (("s%d" % (76 + a), c * 2048) if OWN else ("s68", a * 73728 + c * 2048)), "buffer_load_dwordx4 %s, v9, s[8:11], s27 offen sc1" % hreg(hbuf(c) + 8 * a)])
            o.append(["buffer_load_dwordx4 %s, v9, s[8:11], s27 offen offset:1024 sc1" % hreg(hbuf(c) + 8 * a + 4)])
        return o
    if LAG:
        for q in range(5):
            if q < 4: ops = ["s_add_u32 s67, s25, %d" % (q + 1), "s_and_b32 s67, s67, 3", "s_lshl_b32 s67, s67, 1", "s_add_u32 s67, s67, s35", "s_lshl_b32 s67, s67, 10"]
            else: ops = ["s_xor_b32 s67, s35, 1", "s_lshl_b32 s67, s67, 13"]
            ops += ["v_add_u32 v%d, s67, v9" % RP[q], "s_add_u32 s%d, s63, s67" % TB[q], "s_add_u32 s%d, s64, s67" % TB8[q], "s_sub_u32 s%d, s%d, 4096" % (TB8[q], TB8[q])]
            put(3 * 72 + 10 + 10 * q, ops)
        if "wgt" not in OPT: put(4 * 72 + 10, ["v_mov_b32 v%d, v9" % RL])
    if WDT:
        if not LAG: put(3 * 72 + 20, ["v_mov_b32 v%d, v9" % VW, "s_lshl_b32 s67, s35, 10", "v_add_u32 v%d, s67, v9" % (VW + 1), "s_xor_b32 s67, s35, 1", "s_lshl_b32 s67, s67, 13", "v_add_u32 v%d, s67, v9" % (VW + 2)])
        put(5 * 72 + 20, ["v_min_u32 v14, 26, v1", "v_mul_u32_u24 v15, 22, v14", "v_lshrrev_b32 v15, 6, v15", "v_mul_u32_u24 v5, 6, v15", "v_add_u32 v14, v14, v5"])
        put(5 * 72 + 30, ["s_add_u32 s67, s26, s22", "s_and_b32 s67, s67, 3", "s_and_b32 s32, s24, 12", "s_add_u32 s67, s67, s32", "s_mul_i32 s67, s67, 81",
                          "s_mul_i32 s32, s26, 9", "s_lshr_b32 s32, s32, 2", "s_add_u32 s67, s67, s32", "v_add_u32 v14, s67, v14", "v_and_b32 v14, 255, v14", "v_lshlrev_b32 v14, 7, v14", "s_mov_b32 s32, %d" % FW])
        put(11 * 72 + 30, poll(FLG, 14, "s32")); put(12 * 72 + 40, check("w", FLG, 14, "s32", False), 4)
    if OWN:
        for a in range(1, 4):
            put(15 * 72 + 10 + 4 * a, ["s_add_u32 s%d, s26, %d" % (76 + a, a), "s_and_b32 s%d, s%d, 3" % (76 + a, 76 + a), "s_mul_i32 s%d, s%d, 73728" % (76 + a, 76 + a), "s_add_u32 s%d, s%d, s68" % (76 + a, 76 + a)])
    adv = lambda r: ["s_add_u32 %s, %s, 0x20000" % (r, r)]
    put(14 * 72 + 30, flag("h2", 4, 3, "s69") + adv("s69"))
    put(17 * 72 + 40, flag("h3", 4, 3, "s69") + adv("s69"))
    put(19 * 72 + 20, flag("h4", 4, 3, "s69"))
    put(15 * 72 + 40, poll(FLG, 12, "s70")); put(16 * 72 + 4, check("a", FLG, 12, "s70", False) + adv("s70"), 4)
    if LAG:
        lo = {c: fu[c] - XP.get("hl0", 136) for c in range(9)}
        for c in range(NBH, 9): assert lo[c] >= (19 + c - NBH) * 72, (c, lo[c])
        for c in range(9):
            if hbuf(c) >= 1000: assert lo[c] >= 18 * 72 + 30
            place(hloads(c), lo[c], lo[c] + 52)
        put(lo[6] - 66, poll(FLG, 12, "s70")); put(lo[6] - 3, check("b", FLG, 12, "s70", False) + adv("s70"), 4)
        put(lo[8] - 66, poll(FLG, 12, "s70")); put(lo[8] - 3, check("c", FLG, 12, "s70", False), 4)
        assert lo[8] - 66 > lo[6] and lo[6] - 3 > 20 * 72 + 68 and lo[0] > 16 * 72 + 4, lo
    else:
        put(20 * 72 + 10, poll(FLG, 12, "s70")); put(21 * 72 + 2, check("b", FLG, 12, "s70", False) + adv("s70"), 4)
        put(22 * 72 + 60, poll(FLG, 12, "s70")); put(23 * 72 + 60, check("c", FLG, 12, "s70", False), 4)
        for c in range(9):
            if SPL and c == 8: place(hloads(c), 24 * 72 + 1, 24 * 72 + 24)
            else: place(hloads(c), (16 + c) * 72 + 8, (16 + c) * 72 + 66)
    if LAG:
        AB = "ab" in OPT; RS_ = 36864 if AB else 18432
        SEL, SE2, HQ, HR, PL = 96, 100, 108, 116, 120
        g26 = 26 * 72
        sel = ["v_lshrrev_b32 v2, 1, v6", "v_and_b32 v5, 1, v6", "v_lshlrev_b32 v5, 4, v5", "v_mov_b32 v8, 0x3f80", "v_lshlrev_b32 v5, v5, v8"]
        for q in range(4): sel += ["v_cmp_eq_u32 vcc, %d, v2" % q, "v_cndmask_b32 v%d, 0, v5, vcc" % (SEL + q)]
        sel += ["v_lshrrev_b32 v8, 2, v6", "v_cmp_eq_u32 vcc, v8, v7", "v_cndmask_b32 v5, 0, v5, vcc", "v_and_b32 v2, 1, v2"]
        for q in range(2): sel += ["v_cmp_eq_u32 vcc, %d, v2" % q, "v_cndmask_b32 v%d, 0, v5, vcc" % (SE2 + 2 + q)]
        sel += ["v_mov_b32 v%d, 0" % (SE2 + q) for q in (0, 1, 4, 5)]
        setup = sel + ["s_lshl_b32 s29, s23, 2", "s_add_u32 s29, s29, s26", "s_lshl_b32 s29, s29, 2"]
        for q in range(3):
            setup += ["s_add_u32 s%d, s25, %d" % (85 + q, q + 1), "s_and_b32 s%d, s%d, 3" % (85 + q, 85 + q), "s_add_u32 s%d, s%d, s29" % (85 + q, 85 + q),
                      "s_lshl_b32 s%d, s%d, 2" % (85 + q, 85 + q), "s_add_u32 s%d, s%d, s22" % (85 + q, 85 + q), "s_mul_i32 s%d, s%d, 6144" % (85 + q, 85 + q)]
        setup += [
            "s_add_u32 s72, s29, s25", "s_lshl_b32 s74, s72, 2", "s_add_u32 s74, s74, s22", "s_mul_i32 s74, s74, 6144",
            "s_add_u32 s71, s29, s22", "s_lshl_b32 s73, s71, 9", "s_lshl_b32 s75, s29, 9",
            "s_lshl_b32 s71, s71, 2", "s_add_u32 s71, s71, s25", "s_lshl_b32 s71, s71, 10", "s_add_u32 s71, s71, 0x600000",
            "s_lshl_b32 s72, s72, 12", "s_lshl_b32 s29, s22, 8", "s_add_u32 s72, s72, s29", "s_add_u32 s72, s72, 0x600000",
            "s_lshl_b32 s29, s25, 7", "s_add_u32 s73, s73, s29", "s_add_u32 s73, s73, %d" % FP, "s_add_u32 s75, s75, %d" % FP,
            "s_lshl_b32 s29, s23, 2", "s_add_u32 s32, s29, s22", "s_mul_i32 s90, s32, 36864"] + (
            ["s_and_b32 s32, s22, 1", "s_mul_i32 s32, s32, 18432", "s_sub_u32 s90, s90, s32"] if AB else []) + ["s_mov_b32 s31, s90",
            "s_lshl_b32 s32, s33, 4", "s_add_u32 s90, s90, s32", "s_lshl_b32 s32, s25, 10", "s_add_u32 s90, s90, s32",
            "s_add_u32 s29, s29, s25", "s_mul_i32 s91, s29, 36864"] + (
            ["s_and_b32 s32, s25, 1", "s_mul_i32 s32, s32, 18432", "s_sub_u32 s91, s91, s32"] if AB else []) + ["s_mov_b32 s30, s91", "s_lshl_b32 s29, s22, 8", "s_add_u32 s91, s91, s29",
            "s_lshr_b32 s29, s34, 6", "s_lshl_b32 s29, s29, 10", "s_add_u32 s91, s91, s29", "s_lshl_b32 s29, s35, 3", "s_add_u32 s91, s91, s29",
            "s_add_u32 s31, s31, s33", "s_lshl_b32 s29, s25, 6", "s_add_u32 s31, s31, s29",
            "s_add_u32 s30, s30, s34", "s_lshl_b32 s29, s22, 3", "s_add_u32 s30, s30, s29",
            "v_lshlrev_b32 v14, 4, v6", "v_mov_b32 v2, 0x%x" % BIG, "v_cmp_gt_u32 vcc, 32, v1",
            "v_mul_u32_u24 v11, %d, v7" % RS_, "v_mul_u32_u24 v8, 1152, v6", "v_add_u32 v8, v8, v11", "v_add_u32 v11, v11, v14", "v_lshl_add_u32 v14, v7, 10, v14",
            "v_cndmask_b32 v11, v2, v11, vcc", "v_cndmask_b32 v8, v2, v8, vcc",
            "v_mul_u32_u24 v15, 1152, v6", "v_bfe_u32 v2, v1, 4, 1", "v_lshl_add_u32 v15, v2, 5, v15", "v_lshrrev_b32 v2, 5, v1", "v_lshl_add_u32 v15, v2, 4, v15",
            "v_bfe_u32 v2, v1, 2, 1", "v_mov_b32 v5, s22", "v_mov_b32 v10, s25", "v_cmp_eq_u32 vcc, 0, v2", "v_cndmask_b32 v10, v10, v5, vcc",
            "v_lshlrev_b32 v10, 9, v10", "v_add_u32 v10, v10, v12"]
        place([[x] for x in setup], 18 * 72 + 40, 20 * 72 + 30)
        put(20 * 72 + 40, ["s_add_u32 s40, s20, 0x%x" % WS_P2, "s_addc_u32 s41, s21, 0", "s_and_b32 s41, s41, 0xffff", "s_mov_b32 s42, 0x%x" % P2_BYTES, "s_mov_b32 s43, 0x20000"])
        place([["buffer_load_dwordx4 %s, v9, s[12:15], s90 offen sc1" % vr(HQ, 4)], ["s_add_u32 s67, s90, %d" % RS_, "buffer_load_dwordx4 %s, v9, s[12:15], s67 offen sc1" % vr(HQ + 4, 4)],
               ["buffer_load_dwordx2 %s, v11, s[12:15], s91 offen sc1" % vr(HR + 2, 2)]], 23 * 72 + 10, 23 * 72 + 30)
        ops = ["v_lshlrev_b32 v%d, 16, v%d" % (HR, HR + 2), "v_and_b32 v%d, 0xffff0000, v%d" % (HR + 1, HR + 2),
               "v_lshlrev_b32 v%d, 16, v%d" % (HR + 2, HR + 3), "v_and_b32 v%d, 0xffff0000, v%d" % (HR + 3, HR + 3)]
        work.append(dict(e=24 * 72 + 20, dl=g26, ops=[(x, 1) for x in ops], key=("h", 0)))
        def selm(r, e, b):
            a = vr(DA + 8 * (6 + e) + 4 * r, 4)
            return "v_mfma_f32_16x16x32_bf16 %s, %s, %s, %s" % (a, vr(SE2 + 2 - 2 * e, 4), vr(b, 4), a)
        put(24 * 72 + 31, [selm(r, e, HQ + 4 * r) for r in range(2) for e in range(2)], 4)
        for T in (0, 1, 2, 3, 4, 5, 8):
            for r in range(2):
                a = DA + 8 * T + 4 * r
                o = (DA + 8 * (T & ~1) + 4 * r + 2 * (T & 1)) if T < 8 else (DA + 64 + 2 * r)
                e = fin[T] + 4 * r + 3 + 3
                ops = [("v_cvt_pk_bf16_f32 v%d, v%d, v%d" % (o + j, a + 2 * j, a + 2 * j + 1), 1) for j in range(2)]
                aft = []
                if T < 8 and T & 1:
                    aft = [("d", T - 1, r)]
                    ops.append(("s_add_u32 s67, s%d, %d\nbuffer_store_dwordx4 %s, v9, s[40:43], s67 offen sc1 ;#p" % (85 + (T >> 1), (2 * (T >> 1) + r) * 1024, vr(o - 2, 4)), 2))
                elif T == 8 and r == 1:
                    aft = [("d", 8, 0)]
                    ops.append(("buffer_store_dwordx4 %s, v9, s[40:43], s71 offen sc1 ;#p" % vr(DA + 64, 4), 1))
                work.append(dict(e=e, dl=e + 4, ops=ops, key=("d", T, r), after=aft, hard=True))
        put(fin[8] + XP.get("lf", 42), flag("p", 4, 3, "s73"))
        put(g26 + XP.get("lp", 68), poll(FLG, 10, "s75"))
        fl_ = []
        for q in range(6):
            fl_.append((["s_add_u32 s27, s74, %d" % (q * 1024)] if q % 4 == 0 else []) + ["buffer_load_dwordx4 %s, v9, s[40:43], s27 offen offset:%d sc1" % (vr(PL + 4 * q, 4), 1024 * (q % 4))])
        fl_.append(["buffer_load_dwordx4 %s, v14, s[40:43], s72 offen sc1" % vr(PL + 24, 4)])
        LC = XP.get("lc", 0)
        if LC:
            assert fin[8] + XP.get("lf", 42) < g26 + XP["lp"] < g26 + LC
            put(g26 + LC, check("p5", FLG, 10, "s75", False) + stamp_ops("p4 go2"), 4)
            place(fl_, g26 + LC + 1, min(g26 + LC + 14, NM - 1)); fl_ = []
    elif AL:
        SEL, HR, PL, OO = 112, GA, 200, 116
        g26 = 26 * 72
        sel = ["v_lshrrev_b32 v2, 1, v6", "v_and_b32 v5, 1, v6", "v_lshlrev_b32 v5, 4, v5", "v_mov_b32 v8, 0x3f80", "v_lshlrev_b32 v5, v5, v8"]
        for q in range(4): sel += ["v_cmp_eq_u32 vcc, %d, v2" % q, "v_cndmask_b32 v%d, 0, v5, vcc" % (SEL + q)]
        setup = sel + [
            "s_lshl_b32 s29, s23, 2", "s_add_u32 s29, s29, s26", "s_lshl_b32 s29, s29, 2", "s_add_u32 s71, s29, s22", "s_add_u32 s72, s29, s25",
            "s_mul_i32 s71, s71, 33", "s_add_u32 s71, s71, s25", "s_lshl_b32 s71, s71, 10",
            "s_mul_i32 s72, s72, 33792", "s_lshl_b32 s29, s22, 8", "s_add_u32 s72, s72, s29",
            "s_lshl_b32 s35, s23, 2", "s_add_u32 s35, s35, s22", "s_mul_i32 s35, s35, 68", "s_add_u32 s35, s35, s24", "s_lshl_b32 s35, s35, 10", "s_add_u32 s35, s35, 0x880000",
            "s_lshl_b32 s74, s23, 4", "s_add_u32 s74, s74, s24", "s_mul_i32 s74, s74, 17408", "s_add_u32 s74, s74, s29", "s_add_u32 s74, s74, 0x880000",
            "s_lshl_b32 s73, s23, 2", "s_add_u32 s75, s73, s25", "s_add_u32 s73, s73, s22", "s_lshl_b32 s73, s73, 4", "s_add_u32 s73, s73, s24", "s_lshl_b32 s73, s73, 7",
            "s_add_u32 s73, s73, %d" % FP, "s_lshl_b32 s75, s75, 11", "s_add_u32 s75, s75, %d" % FP,
            "s_lshl_b32 s29, s23, 2", "s_add_u32 s29, s29, s25", "s_mul_i32 s90, s29, 36864", "s_mul_i32 s31, s29, %d" % (32 * 1152),
            "s_lshl_b32 s29, s26, 12", "s_add_u32 s90, s90, s29", "s_lshl_b32 s29, s22, 8", "s_add_u32 s90, s90, s29",
            "s_lshl_b32 s91, s23, 3", "s_lshr_b32 s30, s24, 1", "s_add_u32 s30, s30, s91", "s_mul_i32 s30, s30, 18432", "s_add_u32 s91, s30, s29",
            "s_and_b32 s29, s24, 1", "s_lshl_b32 s32, s29, 10", "s_add_u32 s91, s91, s32", "s_add_u32 s91, s91, 16384",
            "s_lshl_b32 s29, s29, 6", "s_add_u32 s30, s30, s29", "s_add_u32 s30, s30, 1024", "s_lshl_b32 s29, s22, 3", "s_add_u32 s30, s30, s29", "s_add_u32 s31, s31, s29",
            "s_lshl_b32 s29, s26, 8", "s_add_u32 s31, s31, s29",
            "v_lshlrev_b32 v14, 4, v6", "v_mov_b32 v2, 0x%x" % BIG, "v_cmp_gt_u32 vcc, 32, v1",
            "v_lshl_add_u32 v10, v7, 3, v14", "v_lshl_add_u32 v14, v7, 10, v14", "v_cndmask_b32 v10, v2, v10, vcc",
            "v_mul_u32_u24 v15, 1152, v6", "v_lshl_add_u32 v15, v7, 5, v15", "v_cndmask_b32 v15, v2, v15, vcc", "v_lshlrev_b32 v11, 7, v6"]
        place([[x] for x in setup], 19 * 72 + 30, 20 * 72 + 60)
        put(21 * 72 + 30, ["s_add_u32 s40, s20, 0x%x" % WS_P2, "s_addc_u32 s41, s21, 0", "s_and_b32 s41, s41, 0xffff", "s_mov_b32 s42, 0x%x" % P2_BYTES, "s_mov_b32 s43, 0x20000"])
        hl = []
        for q in range(9):
            if q < 8: hl.append(["s_add_u32 s67, s90, %d" % ((q & 1) * 18432 + (q >> 1) * 1024), "buffer_load_dwordx2 %s, v10, s[12:15], s67 offen sc1" % vr(HR + 4 * q + 2, 2)])
            else: hl.append(["buffer_load_dwordx2 %s, v10, s[12:15], s91 offen sc1" % vr(HR + 4 * q + 2, 2)])
        place(hl, 24 * 72 + 4, 24 * 72 + 68)
        for q in range(9):
            h = HR + 4 * q
            ops = ["v_lshlrev_b32 v%d, 16, v%d" % (h, h + 2), "v_and_b32 v%d, 0xffff0000, v%d" % (h + 1, h + 2),
                   "v_lshlrev_b32 v%d, 16, v%d" % (h + 2, h + 3), "v_and_b32 v%d, 0xffff0000, v%d" % (h + 3, h + 3)]
            work.append(dict(e=25 * 72 + 40 + q, dl=g26 + 40, ops=[(x, 1) for x in ops], key=("h", q)))
        for T in range(12):
            for r in range(2):
                a = DA + 8 * T + 4 * r; ae = DA + 8 * (T & ~1) + 4 * r
                e = (g26 + 8 + 8 * T + 4 * r + 3 + 3) if T < 8 else (g26 + 2 * (T - 8) + r + 4)
                ops = [("v_cvt_pk_bf16_f32 v%d, v%d, v%d" % (ae + 2 * (T & 1) + j, a + 2 * j, a + 2 * j + 1), 1) for j in range(2)]
                aft = []
                if T & 1:
                    aft = [("d", T - 1, r)]
                    if T < 8: so = "s_add_u32 s67, s71, %d" % ((2 * (T >> 1) + r) * 4096)
                    else: so = "s_add_u32 s67, s35, %d" % ((2 * r + ((T - 8) >> 1)) * 17408)
                    ops.append((so + "\nbuffer_store_dwordx4 %s, v9, s[40:43], s67 offen sc1 ;#p" % vr(ae, 4), 2))
                work.append(dict(e=e, dl=e + 4, ops=ops, key=("d", T, r), after=aft))
    else:
        QS, SEL, HR, PL, OO = 96, 136, GA, 200, 140
        g26 = 26 * 72
        sel = ["v_lshrrev_b32 v2, 1, v6", "v_and_b32 v5, 1, v6", "v_lshlrev_b32 v5, 4, v5", "v_mov_b32 v8, 0x3f80", "v_lshlrev_b32 v5, v5, v8"]
        for q in range(4): sel += ["v_cmp_eq_u32 vcc, %d, v2" % q, "v_cndmask_b32 v%d, 0, v5, vcc" % (SEL + q)]
        setup = sel + [
            "s_lshl_b32 s29, s23, 2", "s_add_u32 s29, s29, s26", "s_lshl_b32 s29, s29, 2", "s_add_u32 s71, s29, s22", "s_add_u32 s72, s29, s25",
            "s_lshl_b32 s73, s71, 9", "s_lshl_b32 s75, s72, 9",
            "s_mul_i32 s71, s71, 36", "s_add_u32 s71, s71, s25", "s_lshl_b32 s71, s71, 10",
            "s_mul_i32 s72, s72, 36864", "s_lshl_b32 s29, s22, 8", "s_add_u32 s72, s72, s29",
            "s_lshl_b32 s29, s25, 7", "s_add_u32 s73, s73, s29", "s_add_u32 s73, s73, %d" % FP, "s_add_u32 s75, s75, %d" % FP,
            "s_lshl_b32 s29, s23, 2", "s_add_u32 s29, s29, s25", "s_mul_i32 s90, s29, 36864", "s_mul_i32 s32, s29, %d" % (32 * 1152),
            "s_lshl_b32 s29, s22, 8", "s_add_u32 s90, s90, s29",
            "s_lshr_b32 s29, s34, 6", "s_lshl_b32 s29, s29, 10", "s_add_u32 s91, s90, s29", "s_lshl_b32 s29, s35, 3", "s_add_u32 s91, s91, s29",
            "s_lshl_b32 s29, s33, 4", "s_add_u32 s90, s90, s29",
            "s_lshl_b32 s29, s22, 3", "s_add_u32 s32, s32, s29", "s_add_u32 s31, s32, s33", "s_add_u32 s30, s32, s34",
            "v_lshlrev_b32 v14, 4, v6", "v_mov_b32 v2, 0x%x" % BIG, "v_cmp_gt_u32 vcc, 32, v1",
            "v_lshl_add_u32 v10, v7, 3, v14", "v_mul_u32_u24 v11, 18432, v7", "v_add_u32 v11, v11, v14", "v_lshl_add_u32 v14, v7, 10, v14",
            "v_cndmask_b32 v10, v2, v10, vcc", "v_cndmask_b32 v11, v2, v11, vcc",
            "v_mul_u32_u24 v15, 1152, v6", "v_mul_u32_u24 v8, 1152, v1", "v_lshl_add_u32 v15, v7, 5, v15",
            "v_cndmask_b32 v15, v2, v15, vcc", "v_cndmask_b32 v8, v2, v8, vcc"]
        place([[x] for x in setup], 19 * 72 + 30, 20 * 72 + 60)
        put(21 * 72 + 30, ["s_add_u32 s40, s20, 0x%x" % WS_P2, "s_addc_u32 s41, s21, 0", "s_and_b32 s41, s41, 0xffff", "s_mov_b32 s42, 0x%x" % P2_BYTES, "s_mov_b32 s43, 0x20000"])
        hl = []
        for q in range(9):
            if q < 8: hl.append(["s_add_u32 s67, s90, %d" % ((q & 1) * 18432 + (q >> 1) * 1024), "buffer_load_dwordx2 %s, v10, s[12:15], s67 offen sc1" % vr(HR + 4 * q + 2, 2)])
            else: hl.append(["buffer_load_dwordx2 %s, v11, s[12:15], s91 offen sc1" % vr(HR + 4 * q + 2, 2)])
        place(hl, 24 * 72 + 4, 24 * 72 + 68)
        for q in range(9):
            h = HR + 4 * q
            ops = ["v_lshlrev_b32 v%d, 16, v%d" % (h, h + 2), "v_and_b32 v%d, 0xffff0000, v%d" % (h + 1, h + 2),
                   "v_lshlrev_b32 v%d, 16, v%d" % (h + 2, h + 3), "v_and_b32 v%d, 0xffff0000, v%d" % (h + 3, h + 3)]
            work.append(dict(e=25 * 72 + 40 + q, dl=g26 + 40, ops=[(x, 1) for x in ops], key=("h", q)))
        for T in range(9):
            for r in range(2):
                a = DA + 8 * T + 4 * r
                q = 2 * (T >> 1) + r if T < 8 else 8
                o = QS + 4 * q + (2 * (T & 1) if T < 8 else 2 * r)
                e = fin[T] + 4 * r + 3 + 3
                ops = [("v_cvt_pk_bf16_f32 v%d, v%d, v%d" % (o + j, a + 2 * j, a + 2 * j + 1), 1) for j in range(2)]
                aft = []
                if (T < 8 and T & 1) or (T == 8 and r == 1):
                    aft = [("d", T - 1, r)] if T < 8 else [("d", 8, 0)]
                    ops.append(("s_add_u32 s67, s71, %d\nbuffer_store_dwordx4 %s, v9, s[40:43], s67 offen sc1 ;#p" % (q * 4096, vr(QS + 4 * q, 4)), 2))
                work.append(dict(e=e, dl=e + 4, ops=ops, key=("d", T, r), after=aft))
    put(18 * 72 - 1, stamp_ops("p4 A"), 0)
    put(XP.get("csplit", 11) * 72, ["L_s4:"], 0)
    tail, done = edf_place(work, fill, load, NM, XP["cap"] / 100.0)
    body = []
    for x in weave(main, fill): body += x.split("\n")
    if "xvalu" in OPT: body = [x for x in body if not re.match(r"v_(mul_f32|exp|fma_f32|rcp)", x)]
    for fl in ("nt", "sc1", "sc0"):
        if "d" + fl in OPT: body = [x.replace(" lds", " %s lds" % fl) for x in body]
    if "mockT" in OPT or "mockA" in OPT:
        nb = []; nm = 0
        for x in body:
            if x.startswith("v_mfma"): nm += 1
            m = re.match(r"ds_read_b64_tr_b16 a\[(\d+):\d+\], (v\d+) (offset:\d+)(.*)", x)
            if m and ((nm >= 18 * 72 - 18 and "mockT" in OPT) or (nm < 18 * 72 - 18 and "mockA" in OPT)):
                a = int(m.group(1))
                if a % 4 == 0: nb.append("ds_read_b128 a[%d:%d], v9 %s%s" % (a, a + 3, m.group(3), m.group(4)))
                continue
            if "mockT" in OPT:
                x = re.sub(r"buffer_load_dwordx4 v(232|233|234|235|254), s\[48:51\]", "buffer_load_dwordx4 v9, s[48:51]", x)
                m = re.match(r"s_add_u32 s60, (s63|s64), (\d+)", x)
                if m:
                    o = int(m.group(2)); x = "s_add_u32 s60, %s, %d" % (m.group(1), (o // 36864) * 36864 + (o % 36864) // 128 * 4096)
            nb.append(x)
        body = nb
    if "xdma" in OPT: body = [x for x in body if " lds" not in x]
    if "xds" in OPT: body = [x for x in body if not x.startswith("ds_read")]
    if "xb128" in OPT:
        nb = []
        for x in body:
            m = re.match(r"ds_read_b64_tr_b16 a\[(\d+):\d+\], (v\d+) (offset:\d+)(.*)", x)
            if m:
                a = int(m.group(1))
                if a % 4 == 0: nb.append("ds_read_b128 a[%d:%d], v9 %s%s" % (a, a + 3, m.group(3), m.group(4)))
            else: nb.append(x)
        body = nb
    if "xswap" in OPT:
        nb = []
        for x in body:
            m = re.match(r"(v_mfma\S+ \S+), (\S+), (\S+), (.*)", x)
            nb.append("%s, %s, %s, %s" % (m.group(1), m.group(3), m.group(2), m.group(4)) if m else x)
        body = nb
    if "xmfma" in OPT: body = [x for x in body if not x.startswith("v_mfma")]
    k.extend(body); k.extend(tail)
    stamp(k, "p4 D")
    if LAG:
        if fl_:
            k.extend(check("p5", FLG, 10, "s75", False))
            stamp(k, "p4 go2")
            for x in fl_: k.extend(x)
        for q in range(6):
            for e in range(2): k(selm(q & 1, e, PL + 4 * q))
        k("v_mfma_f32_16x16x32_bf16 %s, %s, %s, %s" % (vr(HR, 4), vr(SEL, 4), vr(PL + 24, 4), vr(HR, 4)))
        for r in range(2):
            a = DA + 48 + 4 * r; o = PL + 4 * r
            for e in range(2):
                for j in range(2): k("v_cvt_pk_bf16_f32 v%d, v%d, v%d" % (o + 2 * e + j, a + 8 * e + 2 * j, a + 8 * e + 2 * j + 1))
            k("v_permlane16_swap_b32 v%d, v%d\nv_permlane16_swap_b32 v%d, v%d" % (o, o + 2, o + 1, o + 3))
            k("s_add_u32 s67, s31, %d\nbuffer_store_dwordx4 %s, v15, s[16:19], s67 offen" % (r * RS_, vr(o, 4)))
        k("v_cvt_pk_bf16_f32 v%d, v%d, v%d\nv_cvt_pk_bf16_f32 v%d, v%d, v%d" % (HR, HR, HR + 1, HR + 1, HR + 2, HR + 3))
        k("buffer_store_dwordx2 %s, v8, s[16:19], s30 offen" % vr(HR, 2))
        return
    k.extend(flag("p", 4, 3, "s73"))
    stamp(k, "p4 fl")
    if "poll1" in OPT:
        k("s_cmp_lg_u32 s22, 0\ns_cbranch_scc1 L_p5w")
        spin(k, "p5", FLG, 11 if AL else 12, "s75", False, 5)
        k("L_p5w:\ns_barrier")
    else: spin(k, "p5", FLG, 11 if AL else 12, "s75", False, 5)
    stamp(k, "p4 go2")
    if AL:
        for q in range(12):
            k("s_add_u32 s67, %s, %d" % (("s72", q * 4096) if q < 8 else ("s74", (q - 8) * 4096)))
            k("buffer_load_dwordx4 %s, v14, s[40:43], s67 offen sc1" % vr(PL + 4 * q, 4))
        def outq(q):
            a = HR + 4 * q; o = OO + 2 * q
            ops = ["v_cvt_pk_bf16_f32 v%d, v%d, v%d" % (o, a, a + 1), "v_cvt_pk_bf16_f32 v%d, v%d, v%d" % (o + 1, a + 2, a + 3)]
            if q < 8: ops += ["s_add_u32 s67, s31, %d" % ((q & 1) * 16 * 1152), "buffer_store_dwordx2 %s, v15, s[16:19], s67 offen offset:%d" % (vr(o, 2), (q >> 1) * 64)]
            else: ops += ["buffer_store_dwordx2 %s, v15, s[16:19], s30 offen" % vr(o, 2)]
            return ops
        for q in range(12):
            a = vr(HR + 4 * min(q, 8), 4)
            k("v_mfma_f32_16x16x32_bf16 %s, %s, %s, %s" % (a, vr(SEL, 4), vr(PL + 4 * q, 4), a))
            if 2 <= q < 10: k.extend(outq(q - 2))
        k.extend(outq(8))
        return
    for q in range(9):
        k("s_add_u32 s67, s72, %d" % (q * 4096))
        k("buffer_load_dwordx4 %s, v14, s[40:43], s67 offen sc1" % vr(PL + 4 * q, 4))
    osc = " sc1" if "osc1" in OPT else (" nt" if "ont" in OPT else "")
    fix = lambda ops: [o.replace("s[96:99]", "s[16:19]") + (osc if o.startswith("buffer_store") else "") for o in ops]
    for q in range(9):
        k("v_mfma_f32_16x16x32_bf16 %s, %s, %s, %s" % (vr(HR + 4 * q, 4), vr(SEL, 4), vr(PL + 4 * q, 4), vr(HR + 4 * q, 4)))
        if q >= 2: k.extend(fix(_outq(q - 2, HR, OO)))
    k.extend(fix(_outq(7, HR, OO))); k.extend(fix(_outq(8, HR, OO)))

def build(path):
    k = K(NAME); k.vgpr = 256; k.agpr = 256; k.sgpr = 102
    k.page_align = True
    k("L_main:\nL_s1:\ns_cmp_ge_u32 s2, 256\ns_cbranch_scc1 L_exit")
    k("s_load_dwordx4 s[4:7], s[0:1], 0\ns_load_dwordx2 s[92:93], s[0:1], 64\ns_load_dwordx2 s[20:21], s[0:1], 72")
    k("v_and_b32 v1, 63, v0\nv_lshrrev_b32 v2, 6, v0")
    if "c1first" in OPT:
        k("s_getpc_b64 s[32:33]\nv_lshlrev_b32 v7, 5, v0\nv_add_u32 v7, 3072, v7\nglobal_load_dword v249, v7, s[32:33]")
    k("v_readfirstlane_b32 s22, v2\ns_mov_b32 s100, 400000")
    if "stamp" in OPT: k("v_mov_b32 v0, 0")
    stamp(k, "start")
    p1(k)
    k("L_s2:")
    p2(k)
    k("L_s3:")
    p3(k)
    p4(k)
    if "stamp" in OPT:
        k("s_waitcnt vmcnt(0)")
        stamp(k, "end")
        k.srd(76, 20, 1 << 22, WS_TS)
        k("s_lshl_b32 s75, s2, 2\ns_add_u32 s75, s75, s22\ns_lshl_b32 s75, s75, 8\nv_lshlrev_b32 v2, 2, v1")
        k("buffer_store_dword v0, v2, s[76:79], s75 offen")
        if "dbgst" in OPT:
            sel = XP.get("sel") or ["start", "p1 x", "p1 ln", "p1 mm", "p1 fl", "p2 go", "p2 st", "p3 go", "p3 fl", "p4 go", "p4 x", "p4 A", "p4 D", "p4 go2", "end"]
            k("v_mov_b32 v4, 0")
            for j, n in enumerate(sel):
                k("v_readlane_b32 s75, v0, %d" % STAMPS.index(n))
                if j == 0: k("s_not_b32 s75, s75")
                k("v_writelane_b32 v4, s75, %d" % (j + 1))
            k.srd(76, 92, 256)
            k("s_mov_b32 exec_hi, 0\ns_mov_b32 exec_lo, 0xfffe")
            k("buffer_atomic_umax v4, v2, s[76:79], 0 offen sc1")
    k("L_exit:\ns_endpgm\n@reset")
    kp = K("tmp")
    kp.srd(96, 20, FL_BYTES, WS_FL)
    prefetch_wg(kp)
    k.extend(SLOW)
    k("L_s5:\nL_pf0:\n@reset")
    k.ins += kp.ins
    k("L_code_end:")
    add_page_stubs(k, "L_main", [("L_c1", "L_s1", "L_s2"), ("L_c2", "L_s2", "L_s3"), ("L_c3", "L_s3", "L_s4"), ("L_c4", "L_s4", "L_s5")], base=XP.get("base", 768))
    hdr = """Pre-LN transformer block (sliding-window attention + SwiGLU FFN), S=2048 D=576 H=32 Dh=18 W=256 F=4608, bf16.
Kernarg (80 bytes): x, wqkv, wo, (unused), w_gate, w_up, w_down, out, d_debug, d_ws.
One persistent launch, one 4-wave workgroup per CU (all 256 are co-resident: 160 KB LDS each).  Phases:
P1 LayerNorm + QKV projection (64x256 tiles; 32 spare workgroups prefetch weights/code and publish the launch tag)
P2 attention (one head x 256 queries; exact row max, 32x32 MFMA, max subtracted by an MFMA)
P3 output projection + residual + row statistics (64x96 tiles; 64 spare workgroups re-lay W_down out in fragment order)
P4 gate/up GEMM + SiLU (128 rows x 288 hidden), down GEMM (128 x 144 x K/4), partial sums exchanged between 4 workgroups
Hand-offs go through d_ws: write-through (sc1) stores, s_waitcnt, then one flag word per producer wave holding this
launch's tag (d_ws epoch word + 1, published through d_debug[0]); consumers poll with sc1 loads (bounded spins).
Generated by a hand-written Python generator (scheduling, s_waitcnt counts and wait states are computed by it)."""
    txt = program([(k, 256, 256, 163840)], [k], hdr)
    if "single" in OPT:
        txt = txt.replace("; @launch kernel=%s grid" % NAME, "; @launch grid")
    open(path, "w").write(txt)
    print(k.stats, len(txt), "bytes")
    import json
    json.dump(STAMPS, open(path[:-2] + ".stamps.json", "w"))

if __name__ == "__main__":
    OPT.update(sys.argv[2:])
    for a in sys.argv[2:]:
        if a.startswith('-'): OPT.discard(a[1:])
    for a in sys.argv[2:]:
        if "=" in a: XP[a.split("=")[0]] = int(a.split("=")[1])
    build(sys.argv[1])
```
